```python
import torch

def _softmax(x, axis=-1):
    return torch.softmax(x, dim=axis)
def _gelu(x):
    return torch.nn.functional.gelu(x, approximate="tanh")
def _silu(x):
    return torch.nn.functional.silu(x)
def _sigmoid(x):
    return torch.sigmoid(x)
def _layernorm(x, axis=-1, eps=1e-5):
    m = x.mean(dim=axis, keepdim=True)
    v = x.var(dim=axis, keepdim=True, unbiased=False)
    return (x - m) / torch.sqrt(v + eps)
def _scatter_add(tgt, idx, src, axis=0):
    return tgt.clone().index_add_(axis, idx, src)
def _segment_sum(src, seg, n):
    out = torch.zeros((n,) + src.shape[1:], dtype=src.dtype)
    return out.index_add_(0, seg, src)
def _pad(x, pw):
    flat = tuple(v for pair in reversed(pw) for v in pair)
    return torch.nn.functional.pad(x, flat)

kernel_name = 'sequential_preLN__linear_kernel_hedgehog__glu_gated_reglu__prompt'

def setup_inputs():

    _w = (lambda a: (lambda t: t.to(torch.bfloat16) if t.is_floating_point() else t)(torch.as_tensor(a)))
    def _A_setup():
        B, S, D, H = 1, 2048, 576, 32
        Dh = D // H
        return {
            "x": _w((lambda *s: torch.randn(*s, dtype=torch.bfloat16) * 0.05)(B, S, D)),
            "wqkv": _w((lambda *s: torch.randn(*s, dtype=torch.bfloat16) * 0.2)(D, 3 * D)),
            "w_phi": _w((lambda *s: torch.randn(*s, dtype=torch.bfloat16) * 0.2)(H, Dh, Dh) * (Dh ** -0.5)),
            "wo": _w((lambda *s: torch.randn(*s, dtype=torch.bfloat16) * 0.05)(D, D)),
        }
    _A_in = _A_setup()

    def _B_setup():
        B, S, D, F = 1, 2048, 576, 4608
        return {
            "x": _w((lambda *s: torch.randn(*s, dtype=torch.bfloat16) * 0.05)(B, S, D)),
            "W_gate": _w((lambda *s: torch.randn(*s, dtype=torch.bfloat16) * 0.4)(D, F) * (2.0 / D) ** 0.5),
            "W_up": _w((lambda *s: torch.randn(*s, dtype=torch.bfloat16) * 0.4)(D, F) * (2.0 / D) ** 0.5),
            "W_down": _w((lambda *s: torch.randn(*s, dtype=torch.bfloat16) * 0.4)(F, D) * (1.0 / F) ** 0.5),
        }
    _B_in = _B_setup()

    return {
        "A_x": _A_in["x"],
        "A_wqkv": _A_in["wqkv"],
        "A_w_phi": _A_in["w_phi"],
        "A_wo": _A_in["wo"],
        "B_x": _B_in["x"],
        "B_W_gate": _B_in["W_gate"],
        "B_W_up": _B_in["W_up"],
        "B_W_down": _B_in["W_down"],
    }

def reference(A_x, A_wqkv, A_w_phi, A_wo, B_x, B_W_gate, B_W_up, B_W_down):
    def _A_ref(x, wqkv, w_phi, wo):
        B, S, D = x.shape
        H = 32; Dh = D // H
        qkv = (lambda x, *d: x.permute(*d))((x @ wqkv).reshape(B, S, 3, H, Dh), 2, 0, 3, 1, 4)
        q, k, v = qkv[0], qkv[1], qkv[2]
        pq = torch.einsum("bhsd,hdf->bhsf", q, w_phi)
        pk = torch.einsum("bhsd,hdf->bhsf", k, w_phi)
        phi_q = torch.concatenate([_softmax(pq, axis=-1), _softmax(-pq, axis=-1)], axis=-1)
        phi_k = torch.concatenate([_softmax(pk, axis=-1), _softmax(-pk, axis=-1)], axis=-1)
        kv = torch.einsum("bhsf,bhsd->bhfd", phi_k, v)
        z  = torch.einsum("bhsf->bhf", phi_k)
        num = torch.einsum("bhqf,bhfd->bhqd", phi_q, kv)
        den = torch.einsum("bhqf,bhf->bhq", phi_q, z)[..., None] + 1e-6
        o = num / den
        return (lambda x, *d: x.permute(*d))(o, 0, 2, 1, 3).reshape(B, S, D) @ wo

    def _B_ref(x, W_gate, W_up, W_down):
        gate = torch.einsum("bsd,df->bsf", x, W_gate)
        up = torch.einsum("bsd,df->bsf", x, W_up)
        gate = gate * (lambda x, dt: x.to(dt))(gate > 0, gate.dtype)
        h = gate * up
        return torch.einsum("bsf,fd->bsd", h, W_down)

    x = A_x
    h = x + _A_ref(_layernorm(x, axis=-1), A_wqkv, A_w_phi, A_wo)
    h2 = h + _B_ref(_layernorm(h, axis=-1), B_W_gate, B_W_up, B_W_down)
    return h2
```

```python
import re
REG = re.compile(r'^(-?\|?|abs\()?([vas])(\d+)\|?\)?$')
RNG = re.compile(r'^(-?)([vas])\[(\d+):(\d+)\]$')
TRANS = ("v_exp_f32", "v_log_f32", "v_rcp_f32", "v_rsq_f32", "v_sqrt_f32", "v_sin_f32", "v_cos_f32", "v_rcp_iflag_f32")

def regs(tok):
    tok = tok.strip()
    m = RNG.match(tok)
    if m: return [f"{m.group(2)}{i}" for i in range(int(m.group(3)), int(m.group(4)) + 1)]
    m = REG.match(tok)
    if m: return [f"{m.group(2)}{m.group(3)}"]
    if tok == "vcc": return ["vcc"]
    if tok in ("m0",): return ["m0"]
    if tok in ("exec",): return ["exec"]
    return []

class Ins:
    def __init__(self, text):
        self.text = text
        t = text.split(";")[0].strip()
        self.label = t.endswith(":")
        self.directive = t.startswith(".")
        self.defs, self.uses = set(), set()
        self.kind = "other"; self.op = ""; self.srcc = set(); self.srcab = set(); self.data = set(); self.nop = 1
        if self.label or self.directive or not t:
            self.nop = 0; return
        sp = t.split(None, 1)
        op = sp[0]; self.op = op
        ops = []
        if len(sp) > 1:
            parts = [p.strip() for p in sp[1].split(",")]
            for p in parts:
                ops.append(p.split()[0] if p else p)
            self.mods = sp[1]
        else: self.mods = ""
        R = [regs(o) for o in ops]
        base = re.sub(r'_(e32|e64|dpp|sdwa)$', '', op)
        self.base = base
        if op.startswith("v_mfma"):
            self.kind = "mfma"; self.defs = set(R[0]); self.srcab = set(R[1]) | set(R[2]); self.srcc = set(R[3]); self.uses = self.srcab | self.srcc
            self.passes = 8 if "32x32x16" in op else 4
            self.dlist = R[0]; self.clist = R[3]
        elif op.startswith("ds_"):
            self.kind = "ds"
            if op.startswith("ds_read") or "permute" in op or "swizzle" in op or "_rtn" in op:
                self.defs = set(R[0]); [self.uses.update(r) for r in R[1:]]
            else:
                [self.uses.update(r) for r in R]
        elif op.startswith("buffer_") or op.startswith("global_"):
            self.kind = "vmem"
            if op in ("buffer_wbl2", "buffer_inv"): pass
            elif " lds" in " " + self.mods + " " and re.search(r'\blds\b', self.mods):
                [self.uses.update(r) for r in R]; self.uses.add("m0"); self.dma = True
            elif "load" in op:
                self.defs = set(R[0]); [self.uses.update(r) for r in R[1:]]
            elif "atomic" in op:
                [self.uses.update(r) for r in R]
                if re.search(r'\bsc0\b', self.mods): self.defs = set(R[0])
            else:
                [self.uses.update(r) for r in R]
                if op.endswith("x4") or op.endswith("x3"): self.data = set(R[0])
        elif op.startswith("v_"):
            self.kind = "valu"
            if base.startswith("v_cmp"):
                self.defs = set(R[0]); [self.uses.update(r) for r in R[1:]]
                if base.startswith("v_cmpx"): self.defs.add("exec")
            elif "permlane" in base and "swap" in base:
                self.defs = set(R[0]) | set(R[1]); self.uses = set(self.defs)
            elif base in ("v_add_co_u32", "v_sub_co_u32", "v_addc_co_u32", "v_subb_co_u32", "v_div_scale_f32"):
                self.defs = set(R[0]) | set(R[1]); [self.uses.update(r) for r in R[2:]]
            else:
                self.defs = set(R[0]); [self.uses.update(r) for r in R[1:]]
                if base in ("v_fmac_f32", "v_dot2c_f32_bf16", "v_writelane_b32") or "dpp" in op or "row_" in self.mods or "quad_perm" in self.mods: self.uses |= set(R[0])
                if base == "v_cndmask_b32" and len(R) == 3: self.uses.add("vcc")
            self.trans = base in TRANS
            self.dot = base.startswith("v_dot")
            self.dpp = ("dpp" in op) or ("row_" in self.mods) or ("quad_perm" in self.mods)
            if self.dot: self.srcc = set(R[3]) if len(R) > 3 else set(R[0])
        elif op.startswith("s_"):
            self.kind = "salu"
            if op == "s_nop": self.nop = int(ops[0], 0) + 1
            elif op.startswith("s_load") or op.startswith("s_buffer_load") or op.startswith("s_atomic") or op in ("s_memtime", "s_memrealtime"):
                self.kind = "smem"; self.defs = set(R[0]); [self.uses.update(r) for r in R[1:]]
            elif op.startswith("s_cmp") or op.startswith("s_cbranch") or op in ("s_waitcnt", "s_barrier", "s_branch", "s_endpgm", "s_sleep", "s_setprio", "s_setpc_b64", "s_swappc_b64"):
                [self.uses.update(r) for r in R]
            else:
                if R: self.defs = set(R[0])
                [self.uses.update(r) for r in R[1:]]
                if "saveexec" in op: self.defs.add("exec")

def need(p, c):
    n = 0
    vdefs = {r for r in p.defs if r[0] in "va" and r != "vcc"}
    sdefs = p.defs - vdefs
    if p.kind == "valu":
        if c.kind == "mfma" and vdefs & c.uses: n = max(n, 2)
        if c.kind == "mfma" and "exec" in p.defs: n = max(n, 4)
        if c.kind == "valu":
            if p.trans and not c.trans and vdefs & c.uses: n = max(n, 1)
            if p.trans and c.trans and vdefs & c.uses: n = max(n, 1)
            if c.base in ("v_readfirstlane_b32", "v_readlane_b32") and vdefs & c.uses: n = max(n, 1)
            if ("permlane" in c.base or c.dpp) and vdefs & c.uses: n = max(n, 2)
            if sdefs & c.uses: n = max(n, 4 if c.base in ("v_readlane_b32", "v_writelane_b32", "v_div_fmas_f32") else 2)
            if "exec" in p.defs and (c.dpp or "permlane" in c.base or "lane" in c.base): n = max(n, 5)
            if "op_sel" in p.mods or "sdwa" in p.op:
                if vdefs & (c.uses | c.defs): n = max(n, 1)
        if p.dot and vdefs & (c.uses | c.defs):
            if c.kind == "valu" and c.base == p.base and not (vdefs & (c.uses - c.srcc)) : pass
            else: n = max(n, 3)
        if c.kind == "vmem" and sdefs & c.uses: n = max(n, 5)
        if c.kind in ("salu", "smem") and sdefs & c.uses: n = max(n, 1)
    if p.kind == "mfma":
        big = p.passes == 8
        if c.kind == "mfma":
            if p.defs & c.srcab: n = max(n, 12 if big else 8)
            if p.defs & c.srcc and not (p.dlist == c.clist and p.passes == c.passes): n = max(n, 10 if big else 6)
        elif c.kind in ("valu", "vmem", "ds"):
            if p.defs & (c.uses | c.defs): n = max(n, 12 if big else 8)
            if c.kind == "valu" and p.srcc & c.defs: n = max(n, 7 if big else 3)
    if p.kind == "salu" and "m0" in p.defs and c.kind == "vmem" and "m0" in c.uses: n = max(n, 1)
    if p.kind == "vmem" and p.data & c.defs: n = max(n, 2)
    return n

class A:
    def __init__(self, prefix="L"):
        self.l = []; self.nlab = 0; self.prefix = prefix
        self.vm = []; self.lg = []
    def __call__(self, s, vtag=None, ltag=None):
        for x in s.split("\n"):
            x = x.strip()
            if not x or x.startswith(";"): continue
            i = Ins(x); self.l.append(i)
            if i.kind == "vmem": self.vm.append(vtag)
            if i.kind == "ds": self.lg.append(ltag)
            if i.kind == "smem": self.lg.append("SMEM")
            if i.op == "s_waitcnt":
                m = re.search(r'vmcnt\((\d+)\)', x)
                if m: n = int(m.group(1)); self.vm = self.vm[len(self.vm) - n:] if n < len(self.vm) else self.vm
                if m and int(m.group(1)) == 0: self.vm = []
                m = re.search(r'lgkmcnt\((\d+)\)', x)
                if m:
                    n = int(m.group(1))
                    assert n == 0 or "SMEM" not in self.lg, "counted lgkm wait with SMEM outstanding"
                    self.lg = self.lg[len(self.lg) - n:] if 0 < n < len(self.lg) else ([] if n == 0 else self.lg)
    def lab(self, p=""):
        self.nlab += 1
        return f"{self.prefix}{p}_{self.nlab}"
    @staticmethod
    def _cnt(q, pred):
        last = -1
        for k, t in enumerate(q):
            if pred(t): last = k
        return None if last < 0 else len(q) - 1 - last
    def wait(self, v=None, l=None):
        parts = []
        if v is not None:
            n = self._cnt(self.vm, v if callable(v) else (lambda t: t == v))
            if n is not None: parts.append(f"vmcnt({min(n,63)})")
        if l is not None:
            n = self._cnt(self.lg, l if callable(l) else (lambda t: t == l))
            if n is not None:
                if "SMEM" in self.lg: n = 0
                parts.append(f"lgkmcnt({min(n,15)})")
        if parts: self("s_waitcnt " + " ".join(parts))
        return bool(parts)
    def pad(self):
        out = []; added = 0
        for c in self.l:
            if c.nop and c.op != "s_nop":
                d = 0; req = 0
                for p in reversed(out):
                    if p.nop == 0: continue
                    r = need(p, c)
                    if r - d > req: req = r - d
                    d += p.nop
                    if d >= 20: break
                if req > 0:
                    out.append(Ins(f"s_nop {req-1}")); added += req
            out.append(c)
        self.l = out
        return added
    def text(self):
        self.padded = self.pad()
        return "\n".join(("" if i.label else "    ") + i.text for i in self.l) + "\n"

def header(launches, comment=""):
    s = comment
    for (k, g, b, lds) in launches:
        s += f"; @launch kernel={k} grid=({g},1,1) block=({b},1,1) lds={lds}\n"
    s += '.amdgcn_target "amdgcn-amd-amdhsa--gfx950"\n.text\n'
    return s

def kernel(name, body):
    return f".globl {name}\n.p2align 8\n.type {name},@function\n{name}:\n{body}"

def descriptor(name, vgpr=512, accum=256, sgpr=102):
    return f""".p2align 6
.amdhsa_kernel {name}
  .amdhsa_next_free_vgpr {vgpr}
  .amdhsa_next_free_sgpr {sgpr}
  .amdhsa_accum_offset {accum}
  .amdhsa_group_segment_fixed_size 0
  .amdhsa_kernarg_size 88
  .amdhsa_user_sgpr_count 2
  .amdhsa_user_sgpr_kernarg_segment_ptr 1
  .amdhsa_system_sgpr_workgroup_id_x 1
  .amdhsa_float_denorm_mode_32 3
.end_amdhsa_kernel
"""
def program(launches, kernels, comment=""):
    s = header(launches, comment)
    for (n, b, v, a) in kernels: s += kernel(n, b)
    s += '.section .rodata,"a"\n'
    for (n, b, v, a) in kernels: s += descriptor(n, v, a)
    return s

def vr(b, n, k="v"): return f"{k}[{b}:{b+n-1}]" if n > 1 else f"{k}{b}"
```

```python
from asmlib import *
from layout import *

class Stamps:
    def __init__(self, a, on, kidx=0):
        self.a = a; self.on = on; self.n = 0; self.kidx = kidx; self.names = []
    def __call__(self, name):
        if not self.on: return
        self.a(f"s_memrealtime s[{56+2*self.n}:{57+2*self.n}]")
        self.names.append(name); self.n += 1
        assert self.n <= 16
    def dump(self, srd, wave):
        if not self.on: return
        a = self.a
        a(f"""s_waitcnt vmcnt(0) lgkmcnt(0)
        s_lshl_b32 s3, s2, 2
        s_add_u32 s3, s3, {wave}
        s_lshl_b32 s3, s3, 6
        s_add_u32 s3, s3, {TS + self.kidx * 0x10000}
        s_mov_b64 exec, -1
        v_mov_b32 v0, 0""")
        for q in range(16):
            a(f"v_mov_b32 v{4+q}, s{56+2*q}" if q < self.n else f"v_mov_b32 v{4+q}, 0")
        for q in range(4):
            a(f"buffer_store_dwordx4 v[{4+4*q}:{7+4*q}], v0, {srd}, s3 offen offset:{16*q}")

def code_prefetch(a, lab_from, lab_to, vaddr, vdst, nwg_shift=3, reps=1):
    pc = a.lab("pc")
    a(f"""s_getpc_b64 s[92:93]
    {pc}:
    s_add_u32 s92, s92, {lab_from}-{pc}
    s_addc_u32 s93, s93, 0
    s_mov_b32 s94, {lab_to}-{lab_from}
    s_mov_b32 s95, 0x20000
    s_lshr_b32 s96, s2, {nwg_shift}
    s_lshl_b32 s96, s96, 11
    v_lshlrev_b32 v{vaddr}, 3, v0""")
    for r in range(reps):
        if r: a("s_add_u32 s96, s96, 0x10000")
        a(f"buffer_load_dwordx2 {vdst}, v{vaddr}, s[92:95], s96 offen", vtag="pf")

def srd(a, d, lo, hi, nbytes):
    a(f"s_mov_b32 s{d}, s{lo}\ns_mov_b32 s{d+1}, s{hi}\ns_mov_b32 s{d+2}, {nbytes}\ns_mov_b32 s{d+3}, 0x20000")
```

```python
from common import *

UNIT = 18432
def dma_offsets(stride):
    r = []
    for i in range(9):
        r.append(f"v_add_u32 v{i}, {i*1024}, v15")
        r.append(f"v_lshrrev_b32 v{i}, 6, v{i}")
        r.append(f"v_mul_u32_u24 v{i}, 0x1c72, v{i}")
        r.append(f"v_lshrrev_b32 v{i}, 16, v{i}")
        r.append(f"v_lshlrev_b32 v14, 3, v{i}")
        r.append(f"v_and_b32 v14, 32, v14")
        r.append(f"v_xor_b32 v14, v14, v15")
        r.append(f"v_mad_u32_u24 v{i}, v{i}, s41, v14")
        r.append(f"v_add_u32 v{i}, {4096*(i//4)+3072}, v{i}")
    return [f"s_movk_i32 s41, {stride-576}"] + r

def gen_ffn(name="ffn_kernel", diag=False, mode="strict", sc="", opts=()):
    a = A("F"); st = Stamps(a, diag, 2)
    end = "F_end"; start = "F_start"
    opt = lambda k, d: next((int(o[len(k):]) for o in opts if o.startswith(k)), d)
    T0 = 21
    G = lambda t: 56 + 8 * t
    def U(t): return ("v", 200 + 8 * t) if t < 7 else ("a", 144 + 8 * (t - 7))
    XR = lambda k: 32 + 8 * (k % 3)
    NF = 6
    AF = lambda i: 232 + 4 * (i % NF)
    a(f"""s_cmp_ge_u32 s2, 256
    s_cbranch_scc1 {end}
    s_load_dwordx4 s[4:7], s[0:1], 40
    s_load_dwordx2 s[8:9], s[0:1], 56
    s_load_dwordx2 s[10:11], s[0:1], 80""")
    st("entry")
    if "nopf" not in opts: code_prefetch(a, start, end, 22, "a[0:1]")
    a(f"""{start}:
    v_lshrrev_b32 v21, 6, v0
    v_and_b32 v30, 63, v0
    v_readfirstlane_b32 s30, v21
    s_and_b32 s31, s2, 7
    s_lshl_b32 s31, s31, 1
    s_bfe_u32 s33, s2, 0x10003
    s_add_u32 s31, s31, s33
    s_lshr_b32 s32, s2, 4
    s_and_b32 s33, s30, 1
    s_lshr_b32 s34, s30, 1
    v_lshlrev_b32 v15, 4, v30""")
    a("""v_lshrrev_b32 v21, 2, v30
    v_mul_u32_u24 v9, 576, v21
    v_and_b32 v21, 3, v30
    v_lshl_add_u32 v9, v21, 3, v9
    v_bfe_u32 v21, v30, 4, 1
    v_lshlrev_b32 v21, 5, v21
    v_sub_u32 v16, v9, v21
    v_add_u32 v9, v9, v21
    v_add_u32 v10, 55296, v9
    v_add_u32 v11, 110592, v9
    v_add_u32 v17, 55296, v16
    v_add_u32 v18, 110592, v16""")
    for it in dma_offsets(576 if "lin" in opts else 9216): a(it)
    a("s_waitcnt lgkmcnt(0)")
    a(f"""s_cmp_eq_u32 s34, 0
    s_cselect_b32 s12, s4, s6
    s_cselect_b32 s13, s5, s7
    s_sub_u32 s12, s12, 3072
    s_subb_u32 s13, s13, 0
    s_mov_b32 s14, {576*9216+3072}
    s_mov_b32 s15, 0x20000
    s_sub_u32 s16, s8, 3072
    s_subb_u32 s17, s9, 0
    s_mov_b32 s18, {4608*1152+3072}
    s_mov_b32 s19, 0x20000
    s_mov_b32 s20, s10
    s_mov_b32 s21, s11
    s_mov_b32 s22, {WS_BYTES}
    s_mov_b32 s23, 0x20000""")
    a(f"""s_lshl_b32 s35, s32, 2
    s_add_u32 s35, s35, s30
    s_mul_i32 s43, s35, {32*96}
    s_mul_i32 s35, s35, 36864
    s_add_u32 s43, s43, {STATS}
    s_mul_i32 s36, s31, 576
    s_mul_i32 s39, s33, {16*9216}
    s_add_u32 s36, s36, s39
    s_mul_i32 s37, s30, 9216
    s_mul_i32 s38, s31, {288*1152}
    s_mul_i32 s39, s33, {16*1152}
    s_add_u32 s38, s38, s39
    s_mov_b32 s47, 0xffff0000""")
    if HFRAG: a(f"s_add_u32 s35, s35, {HFRAG}")
    a("""v_and_b32 v21, 31, v30
    v_mul_u32_u24 v21, 96, v21
    v_lshrrev_b32 v22, 5, v30
    v_mul_u32_u24 v22, 48, v22
    v_add_u32 v29, v21, v22""")
    a(f"""buffer_load_dwordx4 v[56:59], v29, s[20:23], s43 offen
    buffer_load_dwordx4 v[60:63], v29, s[20:23], s43 offen offset:16
    buffer_load_dword v64, v29, s[20:23], s43 offen offset:32""", vtag="st")
    def xload(k):
        r = []
        if k % 2 == 0 and k: r.append(("s", f"s_add_u32 s35, s35, 4096"))
        for h in range(2):
            r.append(("x", f"buffer_load_dwordx4 {vr(XR(k)+4*h,4)}, v15, s[20:23], s35 offen offset:{(k%2)*2048+h*1024}", ("X", k)))
        return r
    def dma_pair(P):
        r = []
        slot = (2 * P) % 8
        if P < 18:
            srd = "s[12:15]"; so = "s36"
            post = [("s", f"s_add_u32 s36, s36, {32*9216}")]
        else:
            srd = "s[16:19]"; so = "s39"
            def off(u):
                c, kk = divmod(u - 36, 9); return c * 576 + kk * 32 * 1152
            c0, c1 = off(2 * P), off(2 * P + 1)
            r.append(("s", f"s_mul_i32 s39, s34, {c1-c0}"))
            r.append(("s", f"s_add_u32 s39, s39, s38"))
            if c0: r.append(("s", f"s_add_u32 s39, s39, {c0}"))
            post = []
        for i in range(9):
            if i % 4 == 0: r.append(("m", f"s_add_u32 m0, s37, {slot*UNIT + i*1024}"))
            if "dmareg" in opts and P > 2: r.append(("d", f"buffer_load_dwordx4 a[{232+4*(i%6)}:{235+4*(i%6)}], v{i}, {srd}, {so} offen offset:{(i%4)*1024}", ("P", P)))
            else: r.append(("d", f"buffer_load_dwordx4 v{i}, {srd}, {so} offen offset:{(i%4)*1024} lds", ("P", P)))
        return r + post
    def emit(it):
        if len(it) > 2: a(it[1], vtag=it[2])
        else: a(it[1])
    ahead = 2 if mode == "strict" else 3
    [emit(x) for x in xload(0)]
    [emit(x) for x in dma_pair(0)]
    [emit(x) for x in xload(1)]
    for P in range(1, ahead): [emit(x) for x in dma_pair(P)]
    a.wait(v="st")
    a("""v_add_f32 v56, v56, v57
    v_add_f32 v58, v58, v59
    v_add_f32 v60, v60, v61
    v_add_f32 v62, v62, v63
    v_add_f32 v56, v56, v58
    v_add_f32 v60, v60, v62
    v_add_f32 v56, v56, v64
    v_add_f32 v56, v56, v60
    v_mov_b32 v57, v56
    v_permlane32_swap_b32 v56, v57
    v_mul_f32 v56, 0x3ae38e39, v56
    v_mul_f32 v57, 0x3ae38e39, v57
    v_fma_f32 v57, -v56, v56, v57
    v_max_f32 v57, 0, v57
    v_add_f32 v57, 0x3727c5ac, v57
    v_rsq_f32 v12, v57
    s_nop 0
    v_mul_f32_e64 v19, -v56, v12
    v_mov_b32 v13, v12
    v_mov_b32 v20, v19
    v_permlane16_swap_b32 v12, v13
    v_permlane16_swap_b32 v19, v20""")
    def norm(k):
        r = []
        if "nonorm" in opts: return r
        for h in range(2):
            b = XR(k) + 4 * h
            for j in range(4):
                r.append(("v", f"v_lshlrev_b32_e32 v{T0+2*j}, 16, v{b+j}"))
                r.append(("v", f"v_and_b32_e32 v{T0+1+2*j}, s47, v{b+j}"))
            for j in range(8):
                r.append(("v", f"v_fma_f32 v{T0+j}, v{T0+j}, v{12+h}, v{19+h}"))
            for j in range(4):
                r.append(("v", f"v_cvt_pk_bf16_f32 v{b+j}, v{T0+2*j}, v{T0+1+2*j}"))
        return r
    def conv(J):
        r = []
        for h in range(2):
            for e in range(2):
                t = 2 * J + e; g = G(t) + 4 * h; k, u = U(t); u += 4 * h
                for q in range(4):
                    if k == "a": r.append(("v", f"v_accvgpr_read_b32 v{T0+q}, a{u+q}"))
                    r.append(("v", f"v_max_f32_e32 v{g+q}, 0, v{g+q}"))
                for q in range(4):
                    src = f"v{T0+q}" if k == "a" else f"v{u+q}"
                    r.append(("v", f"v_mul_f32_e32 v{g+q}, v{g+q}, {src}"))
                d = G(2 * J) + 4 * h + 2 * e
                for q in range(2):
                    r.append(("v", f"v_cvt_pk_bf16_f32 v{d+q}, v{g+2*q}, v{g+2*q+1}"))
        return r
    def acc2(c, t): return ("a", 8 * t) if c == 0 else U(t)
    ecount = [0]
    def epi(c, tp, h):
        r = []
        S = 32 + 4 * (ecount[0] % 6); ecount[0] += 1
        for e in range(2):
            k, b = acc2(c, 2 * tp + e); b += 4 * h
            if k == "a":
                for q in range(4): r.append(("v", f"v_accvgpr_read_b32 v{T0+4*e+q}, a{b+q}"))
                b = T0 + 4 * e
            for q in range(2): r.append(("v", f"v_cvt_pk_bf16_f32 v{S+2*e+q}, v{b+2*q}, v{b+2*q+1}"))
        o = (c * 9 + tp) * 512
        r.append(("st", f"buffer_store_dwordx4 {vr(S,4)}, v15, s[20:23], s{44+3*h+o//4096} offen offset:{o%4096}{sc}", "ST"))
        return r
    a.wait(v=("X", 0))
    [emit(x) for x in norm(0)]
    fr = []
    for ks in range(18):
        for t in range(18):
            fr.append((2 * ks, t, "v", G(t), XR(ks), ks == 0))
            k, b = U(t); fr.append((2 * ks + 1, t, k, b, XR(ks), ks == 0))
    for u in range(36, 54):
        c, kk = divmod(u - 36, 9)
        for t in range(18):
            k, b = acc2(c, t)
            fr.append((u, t, k, b, G(2 * kk), kk == 0))
    N = len(fr); D = NF - 2
    def reads(i):
        u, t = fr[i][0], fr[i][1]
        slot = u % 8; base = (9 if t % 2 == 0 else 16) + slot // 3
        o = (slot % 3) * UNIT + t * 32
        f = AF(i)
        return [f"ds_read_b64_tr_b16 a[{f}:{f+1}], v{base} offset:{o}", f"ds_read_b64_tr_b16 a[{f+2}:{f+3}], v{base} offset:{o+9216}"]
    def barrier(s):
        if "nowait" not in opts or s == 0: a.wait(v=("P", s))
        if "nobar2" not in opts or s == 0: a("s_barrier")
    st("pro")
    barrier(0)
    st("bar0")
    if diag: a("s_waitcnt lgkmcnt(0)")
    for i in range(D):
        for r in reads(i): a(r, ltag=("A", i))
    memq = []; valq = []; pendbar = None
    budget = opt("bud", 2); wper = opt("wper", 1); mper = opt("mper", 4); moff = opt("moff", 0)
    nods = "nods" in opts; nodma = "nodma" in opts; nobar = "nobar" in opts; half = "halfds" in opts
    def emitv(it):
        if it[0] == "w": return 1 if a.wait(v=it[1]) else 0
        emit(it); return 1
    for i in range(N):
        u, t, k, b, B, first = fr[i]
        s, pos = divmod(i, 36)
        if i == 648: st("s1")
        if ((i + D) % 36 == 0 and i + D < N) or i == 0:
            sn = (i + D) // 36 if i else 0
            if i:
                for it in memq: emit(it)
                memq = []
                if not nobar: pendbar = sn
            P = sn + ahead
            if P == 18:
                memq += [("s" if x.startswith("s_") else "v", x) for x in dma_offsets(576 if "lin" in opts else 1152)]
            if P < 27 and not nodma: memq += dma_pair(P)
        if pos == 0 and s <= 15:
            memq = xload(s + 2) + memq
        if pos == 4 and s + 1 < 18:
            valq += [(("w", ("X", s + 1)), i + 31)] + [(x, i + 31) for x in norm(s + 1)]
        if i >= 612 and i < 648 and (i - 612) % 4 == 2 and (i - 612) // 4 >= 1:
            J = (i - 612) // 4 - 1
            valq += [(x, 648 + 18 * J) for x in conv(J)]
        if i == 650:
            valq += [(x, 648 + 18 * 8) for x in conv(8)]
        if i == 648 + 162:
            valq += [(("v", x), None) for x in store_setup()]
        if i >= 648 + 162 + 2 and (i - 648 - 162 - 2) % 8 == 0:
            e = (i - 648 - 162 - 2) // 8
            if e < 18: valq += [(x, None) for x in epi(0, e // 2, e % 2)]
        while any(d is not None and d <= i for (_, d) in valq):
            emitv(valq.pop(0)[0])
        lw = lambda lim: a.wait(l=lambda t: t is not None and t != "SMEM" and t[1] <= lim)
        if not nods: lw(i)
        f = AF(i)
        rd = reads(i + D) if (i + D < N and not nods and not (half and i % 2) and not ("eighth" in opts and i % 8)) else []
        for h in range(2):
            C = "0" if first else vr(b + 4 * h, 4, k)
            a(f"v_mfma_f32_16x16x32_bf16 {vr(b+4*h,4,k)}, a[{f}:{f+3}], {vr(B+4*h,4)}, {C}")
            sc_used = False
            if pendbar is not None: barrier(pendbar); pendbar = None; sc_used = True
            if h == 1 and not nods and (i + 1) % wper == 0: sc_used = lw(i + wper)
            if not sc_used:
                if memq and memq[0][0] in ("s", "m"): emit(memq.pop(0)); sc_used = True
                elif valq and valq[0][0][0] == "w": sc_used = emitv(valq.pop(0)[0])
                elif valq and valq[0][0][1].startswith("s_"): emitv(valq.pop(0)[0]); sc_used = True
            n = 0
            if rd: a(rd[h], ltag=("A", i + D)); n += 1
            if memq and memq[0][0] in ("x", "d") and (2 * i + h) % mper == moff:
                emit(memq.pop(0)); n += 1
            elif memq and memq[0][0] == "v":
                emit(memq.pop(0)); n += 1
            while valq and n < budget and valq[0][0][0] != "w" and not valq[0][0][1].startswith("s_"):
                n += emitv(valq.pop(0)[0])
    for it, d in valq: emit(it)
    st("s2")
    for tp in range(9):
        for h in range(2):
            for x in epi(1, tp, h): emit(x)
    st("epi")
    if diag:
        a("s_waitcnt vmcnt(0)")
        st("drain")
    st.dump("s[20:23]", "s30")
    a(f"{end}:\ns_endpgm")
    return a, st

def store_setup():
    return [f"v_lshrrev_b32 v14, 4, v15",
            f"v_bfe_u32 v29, v14, 3, 1",
            f"v_mul_u32_u24 v29, 0x24000, v29",
            f"v_lshrrev_b32 v15, 4, v14",
            f"v_lshlrev_b32 v15, 7, v15",
            f"v_and_b32 v14, 7, v14",
            f"v_lshlrev_b32 v14, 4, v14",
            f"v_add3_u32 v15, v15, v14, v29",
            f"s_lshl_b32 s44, s32, 4",
            f"s_lshl_b32 s45, s30, 2",
            f"s_add_u32 s44, s44, s45",
            f"s_lshl_b32 s44, s44, 4",
            f"s_add_u32 s44, s44, s31",
            f"s_mul_i32 s44, s44, 9216",
            f"s_add_u32 s44, s44, {PART}",
            f"s_add_u32 s45, s44, 4096",
            f"s_add_u32 s46, s44, 8192",
            f"s_add_u32 s47, s44, {2*147456}",
            f"s_add_u32 s48, s45, {2*147456}",
            f"s_add_u32 s49, s46, {2*147456}"]
```

```python
from common import *
REG = 36864
SP = 4 * REG
MOFF = SP
KVL = SP + 6144
ZERO = KVL + 3072
LOG2E = 0x3fb8aa3b

def softmax(a, P, E):
    a(f"v_max3_f32 v24, v{P}, v{P+1}, v{P+2}\nv_min3_f32 v25, v{P}, v{P+1}, v{P+2}")
    a(f"v_max3_f32 v26, v{P+3}, v{P+4}, v{P+5}\nv_min3_f32 v27, v{P+3}, v{P+4}, v{P+5}")
    for i in range(6, 18, 4):
        a(f"v_max3_f32 v24, v24, v{P+i}, v{P+i+1}\nv_min3_f32 v25, v25, v{P+i}, v{P+i+1}")
        a(f"v_max3_f32 v26, v26, v{P+i+2}, v{P+i+3}\nv_min3_f32 v27, v27, v{P+i+2}, v{P+i+3}")
    a("v_max_f32 v24, v24, v26\nv_min_f32 v25, v25, v27")
    a("v_mul_f32 v24, s48, v24\nv_mul_f32 v26, s48, v25")
    for i in range(0, 18, 2):
        a(f"v_pk_fma_f32 v[{E+i}:{E+i+1}], v[{P+i}:{P+i+1}], s[48:49], v[26:27] op_sel_hi:[1,0,0] neg_lo:[1,0,0] neg_hi:[1,0,0]")
        a(f"v_pk_fma_f32 v[{P+i}:{P+i+1}], v[{P+i}:{P+i+1}], s[48:49], v[24:25] op_sel_hi:[1,0,0] neg_lo:[0,0,1] neg_hi:[0,0,1]")
    for i in range(18):
        a(f"v_exp_f32 v{P+i}, v{P+i}\nv_exp_f32 v{E+i}, v{E+i}")
    a(f"v_pk_add_f32 v[24:25], v[{P}:{P+1}], v[{P+2}:{P+3}]\nv_pk_add_f32 v[26:27], v[{E}:{E+1}], v[{E+2}:{E+3}]")
    a(f"v_pk_add_f32 v[28:29], v[{P+4}:{P+5}], v[{P+6}:{P+7}]\nv_pk_add_f32 v[30:31], v[{E+4}:{E+5}], v[{E+6}:{E+7}]")
    for i in (8, 12):
        a(f"v_pk_add_f32 v[24:25], v[24:25], v[{P+i}:{P+i+1}]\nv_pk_add_f32 v[26:27], v[26:27], v[{E+i}:{E+i+1}]")
        a(f"v_pk_add_f32 v[28:29], v[28:29], v[{P+i+2}:{P+i+3}]\nv_pk_add_f32 v[30:31], v[30:31], v[{E+i+2}:{E+i+3}]")
    a(f"v_pk_add_f32 v[24:25], v[24:25], v[{P+16}:{P+17}]\nv_pk_add_f32 v[26:27], v[26:27], v[{E+16}:{E+17}]")
    a("v_pk_add_f32 v[24:25], v[24:25], v[28:29]\nv_pk_add_f32 v[26:27], v[26:27], v[30:31]")
    a("v_add_f32 v24, v24, v25\nv_add_f32 v26, v26, v27\nv_rcp_f32 v24, v24\nv_rcp_f32 v26, v26")
    for i in range(0, 18, 2):
        a(f"v_pk_mul_f32 v[{P+i}:{P+i+1}], v[{P+i}:{P+i+1}], v[24:25] op_sel_hi:[1,0]")
        a(f"v_pk_mul_f32 v[{E+i}:{E+i+1}], v[{E+i}:{E+i+1}], v[26:27] op_sel_hi:[1,0]")

def gen_p1(a, st, opts=()):
    X = lambda k: 112 + 4 * k
    T0, T2, T3, T1, PX = 48, 64, 80, 96, 32
    a("""s_load_dwordx4 s[4:7], s[0:1], 0
    s_load_dwordx2 s[8:9], s[0:1], 16
    s_load_dwordx4 s[24:27], s[0:1], 72""")
    a("""v_lshrrev_b32 v16, 6, v0
    v_and_b32 v15, 63, v0
    v_mov_b32 v14, v0
    v_readfirstlane_b32 s30, v16
    s_and_b32 s31, s2, 3
    s_lshl_b32 s31, s31, 2
    s_bfe_u32 s33, s2, 0x20003
    s_add_u32 s32, s31, s33
    s_bfe_u32 s31, s2, 0x10002
    s_lshl_b32 s31, s31, 3
    s_lshr_b32 s33, s2, 5
    s_add_u32 s31, s31, s33""")
    a("""v_lshrrev_b32 v16, 3, v15
    v_mul_u32_u24 v16, 1152, v16
    v_lshrrev_b32 v17, 4, v15
    v_and_b32 v18, 7, v15
    v_xor_b32 v18, v18, v17
    v_lshl_add_u32 v0, v18, 4, v16
    v_xor_b32 v1, 64, v0
    v_add_u32 v1, 8192, v1
    v_add_u32 v2, 16384, v0
    v_add_u32 v3, 16384, v1""")
    a(f"""s_mul_i32 s34, s30, {REG}
    s_lshl_b32 s35, s32, 2
    s_add_u32 s35, s35, s30
    s_mul_i32 s36, s35, {32*1152}
    s_waitcnt lgkmcnt(0)""")
    srd(a, 12, 4, 5, 2048 * 1152)
    srd(a, 16, 6, 7, 576 * 3456)
    srd(a, 20, 26, 27, WS_BYTES)
    srd(a, 40, 8, 9, 32 * 648)
    srd(a, 44, 24, 25, 256)
    st("start")
    a("""s_mul_i32 s37, s31, 1296
    v_lshlrev_b32 v17, 2, v14
    buffer_load_dword v20, v17, s[40:43], s37 offen
    buffer_load_dword v21, v17, s[40:43], s37 offen offset:1024""", vtag="wphi")
    for cc in range(9):
        a(f"s_add_u32 m0, s34, {cc*4096}")
        if cc: a("s_add_u32 s36, s36, 128")
        else: a("s_nop 0")
        for q in range(4):
            a(f"buffer_load_dwordx4 v{q}, s[12:15], s36 offen offset:{q*1024} lds", vtag=("x", cc))
    a(f"""v_mov_b32 v24, 0
    v_mov_b32 v25, 0
    v_mov_b32 v26, 0
    v_mov_b32 v27, 0
    v_lshlrev_b32 v16, 4, v14
    v_add_u32 v16, {SP}, v16
    ds_write_b128 v16, v[24:27]
    ds_write_b128 v16, v[24:27] offset:4096
    ds_write_b128 v16, v[24:27] offset:8192""")
    for r, dst in ((0, 22), (1, 23)):
        a(f"""v_add_u32 v16, {256*r}, v14
        v_mul_u32_u24 v17, 0x1c72, v16
        v_lshrrev_b32 v17, 16, v17
        v_mul_u32_u24 v18, 9, v17
        v_sub_u32 v18, v16, v18
        v_lshrrev_b32 v19, 1, v18
        v_lshlrev_b32 v19, 4, v19
        v_and_b32 v18, 1, v18
        v_lshl_add_u32 v19, v18, 2, v19
        v_cmp_lt_u32 vcc, 161, v16
        v_cndmask_b32 v18, 0, 8, vcc
        v_lshlrev_b32 v17, 7, v17
        v_add3_u32 v{dst}, v17, v19, v18
        v_add_u32 v{dst}, {MOFF}, v{dst}""".replace("v_cndmask_b32 v18, 0, 8, vcc", "v_cndmask_b32_e64 v18, 0, 8, vcc"))
    a("""v_and_b32 v16, 31, v15
    v_lshrrev_b32 v17, 5, v15
    v_bfe_u32 v18, v15, 1, 3
    v_xor_b32 v18, v18, v17
    v_lshlrev_b32 v18, 4, v18
    v_lshl_add_u32 v18, v16, 7, v18
    v_add_u32 v4, s34, v18
    v_xor_b32 v5, 32, v4
    v_xor_b32 v6, 64, v4
    v_xor_b32 v7, 96, v4""")
    a("s_waitcnt lgkmcnt(0)\ns_barrier")
    a.wait(v="wphi")
    a("""ds_write_b32 v22, v20
    v_cmp_gt_u32 vcc, 68, v14
    s_and_saveexec_b64 s[38:39], vcc
    ds_write_b32 v23, v21
    s_mov_b64 exec, s[38:39]""")
    a("s_mul_i32 s37, s31, 72")
    for i in range(3):
        a(f"""v_add_u32 v16, {64*i}, v15
        v_mul_u32_u24 v17, 0x1556, v16
        v_lshrrev_b32 v17, 16, v17
        v_mul_u32_u24 v18, 12, v17
        v_sub_u32 v18, v16, v18
        v_mul_u32_u24 v17, 3456, v17
        v_lshl_add_u32 v17, v18, 4, v17
        v_mov_b32 v19, {1152 - i*1024}
        v_mov_b32 v16, {2304 - 80 - i*1024}
        v_cmp_lt_u32 vcc, 4, v18
        v_cndmask_b32 v19, v19, v16, vcc
        v_mov_b32 v16, {2304 + 36 - 128 - i*1024}
        v_cmp_lt_u32 vcc, 7, v18
        v_cndmask_b32 v19, v19, v16, vcc
        v_mov_b32 v16, {64 - 176 - i*1024}
        v_cmp_lt_u32 vcc, 10, v18
        v_cndmask_b32 v19, v19, v16, vcc
        v_add_u32 v{8+i}, v17, v19""")
    a("""v_lshrrev_b32 v16, 2, v15
    v_mul_u32_u24 v16, 3456, v16
    v_and_b32 v17, 3, v15
    v_lshl_add_u32 v11, v17, 4, v16""")
    a("""v_lshrrev_b32 v16, 5, v15
    v_lshlrev_b32 v16, 3, v16
    v_bfe_u32 v17, v15, 2, 2
    v_add_u32 v28, v16, v17
    v_bfe_u32 v16, v15, 4, 1
    v_and_b32 v17, 3, v15
    v_lshl_add_u32 v29, v16, 2, v17""")
    a(f"""v_lshrrev_b32 v16, 5, v15
    v_lshlrev_b32 v16, 2, v16
    v_bfe_u32 v17, v15, 2, 2
    v_add_u32 v16, v16, v17
    v_lshlrev_b32 v16, 7, v16
    v_lshl_add_u32 v16, v29, 3, v16
    v_add_u32 v30, {MOFF}, v16
    s_waitcnt lgkmcnt(0)
    s_barrier""")
    WP = lambda tile, stp: 232 + 4 * (3 * tile + stp)
    for tile in range(2):
        for stp in range(3):
            f = WP(tile, stp)
            a(f"ds_read_b64_tr_b16 a[{f}:{f+1}], v30 offset:{stp*2048 + tile*64}\nds_read_b64_tr_b16 a[{f+2}:{f+3}], v30 offset:{stp*2048 + tile*64 + 1024}")
    a("s_mov_b32 s50, 0x3f803f80\nv_mov_b32 v24, 0\nv_mov_b32 v25, 0\nv_mov_b32 v26, 0\nv_mov_b32 v27, 0")
    def stats(cc):
        a.wait(l=("xr", cc))
        for kk in range(4):
            for j in range(4):
                r = X(4 * cc + kk) + j
                a(f"v_dot2_f32_bf16 v{24+(j&1)}, v{r}, s50, v{24+(j&1)}\nv_dot2_f32_bf16 v{26+(j&1)}, v{r}, v{r}, v{26+(j&1)}")
    for cc in range(9):
        a.wait(v=("x", cc))
        if cc == 0: st("x0")
        for kk in range(4):
            a(f"ds_read_b128 {vr(X(4*cc+kk),4)}, v{4+kk} offset:{cc*4096}", ltag=("xr", cc))
        if cc and cc < 8: stats(cc - 1)
    a("s_waitcnt lgkmcnt(0)")
    st("xall")
    a(f"s_mul_i32 s36, s30, {16*3456}\ns_add_u32 s36, s36, s37\ns_mov_b32 s51, s36")
    for j in range(9):
        a(f"s_add_u32 m0, s34, {j*3072}")
        if j: a(f"s_add_u32 s36, s36, {64*3456}")
        else: a("s_nop 0")
        for i in range(3):
            a(f"buffer_load_dwordx4 v{8+i}, s[16:19], s36 offen offset:{i*1024} lds", vtag=("w", j))
    for j in range(9):
        a(f"s_add_u32 m0, s34, {27648 + j*1024}")
        if j: a(f"s_add_u32 s51, s51, {64*3456}")
        else: a("s_nop 0")
        a(f"buffer_load_dwordx4 v11, s[16:19], s51 offen lds", vtag="wq")
    stats(7); stats(8)
    a("""v_mul_u32_u24 v16, 192, v28
    v_lshl_add_u32 v0, v29, 3, v16
    v_and_b32 v17, 1, v29
    v_mul_u32_u24 v17, 48, v17
    v_lshrrev_b32 v18, 1, v29
    v_lshl_add_u32 v17, v18, 3, v17
    v_add3_u32 v2, v16, v17, 64
    v_add_u32 v2, 16, v2
    v_mov_b32 v17, 64
    v_mov_b32 v18, 112
    v_cmp_eq_u32 vcc, 2, v29
    v_cndmask_b32 v17, v17, v18, vcc
    v_mov_b32 v18, 160
    v_cmp_eq_u32 vcc, 3, v29
    v_cndmask_b32 v17, v17, v18, vcc
    v_mov_b32 v18, 176
    v_cmp_eq_u32 vcc, 4, v29
    v_cndmask_b32 v17, v17, v18, vcc
    v_add_u32 v4, v16, v17
    v_lshlrev_b32 v16, 6, v28
    v_lshl_add_u32 v6, v29, 3, v16
    v_add_u32 v6, 27648, v6""")
    for q in (0, 2, 4, 6): a(f"v_add_u32 v{q+1}, {2*REG}, v{q}")
    a("""v_add_f32 v24, v24, v25
    v_add_f32 v26, v26, v27
    v_mov_b32 v25, v24
    v_mov_b32 v27, v26
    v_permlane32_swap_b32 v24, v25
    v_permlane32_swap_b32 v26, v27
    v_add_f32 v24, v24, v25
    v_add_f32 v26, v26, v27
    v_mul_f32 v24, 0x3ae38e39, v24
    v_mul_f32 v26, 0x3ae38e39, v26
    v_fma_f32 v26, -v24, v24, v26
    v_max_f32 v26, 0, v26
    v_add_f32 v26, 0x3727c5ac, v26
    v_rsq_f32 v12, v26
    s_mov_b32 s50, 0xffff0000
    v_mul_f32_e64 v13, -v24, v12""")
    def norm(k, pk):
        b = X(k); r = []
        for j in range(4):
            r.append(f"v_lshlrev_b32_e32 v{16+2*j}, 16, v{b+j}")
            r.append(f"v_and_b32_e32 v{17+2*j}, s50, v{b+j}")
        if pk:
            for j in range(4): r.append(f"v_pk_fma_f32 v[{16+2*j}:{17+2*j}], v[{16+2*j}:{17+2*j}], v[12:13], v[12:13] op_sel:[0,0,1] op_sel_hi:[1,0,1]")
        else:
            for j in range(8): r.append(f"v_fma_f32 v{16+j}, v{16+j}, v12, v13")
        for j in range(4): r.append(f"v_cvt_pk_bf16_f32 v{b+j}, v{16+2*j}, v{17+2*j}")
        return r
    NPRE = 10
    for k in range(NPRE):
        for x in norm(k, True): a(x)
    st("stats")
    AF = lambda i: 4 * (i % 8)
    tiles = ((T0, 0), (T2, 2), (T3, 4))
    fr = [(ks, T, ad) for ks in range(36) for (T, ad) in tiles]
    def reads(i, lst):
        ks, T, ad = lst[i]
        w, j = ks % 4, ks // 4
        if T == T1: o = (w % 2) * REG + j * 1024; o2 = o + 256
        else: o = (w % 2) * REG + j * 3072; o2 = o + 768
        f = AF(i)
        return [f"ds_read_b64_tr_b16 a[{f}:{f+1}], v{ad + w//2} offset:{o}", f"ds_read_b64_tr_b16 a[{f+2}:{f+3}], v{ad + w//2} offset:{o2}"]
    D = 6
    bars = {0: 0, 1: 1, 2: 3, 4: 5, 6: 8}
    def gemm(lst, valq, bars):
        N = len(lst); per = N // 36
        def maybe_bar(i):
            if i < N and i % (4 * per) == 0 and (i // (4 * per)) in bars:
                lim = bars[i // (4 * per)]
                a.wait(v=lambda t: isinstance(t, tuple) and t[0] == "w" and t[1] <= lim); a("s_barrier")
        for i in range(D):
            maybe_bar(i)
            for r in reads(i, lst): a(r, ltag=("A", i))
        for i in range(N):
            ks, T, ad = lst[i]
            while any(d <= i for (_, d) in valq): a(valq.pop(0)[0])
            a.wait(l=lambda t: isinstance(t, tuple) and t[0] == "A" and t[1] <= i)
            f = AF(i)
            a(f"v_mfma_f32_32x32x16_bf16 {vr(T,16)}, a[{f}:{f+3}], {vr(X(ks),4)}, {'0' if ks == 0 else vr(T,16)}")
            if i % 2 == 1: a.wait(l=lambda t: isinstance(t, tuple) and t[0] == "A" and t[1] <= i + 2)
            if i + D < N:
                maybe_bar(i + D)
                for r in reads(i + D, lst): a(r, ltag=("A", i + D))
            for _ in range(5):
                if valq: a(valq.pop(0)[0])
    valq = [(x, 3 * k - 1) for k in range(NPRE, 36) for x in norm(k, False)]
    gemm(fr, valq, bars)
    st("gemm")
    a(f"s_mov_b32 s48, {LOG2E}\ns_mov_b32 s49, {LOG2E}")
    a("s_waitcnt vmcnt(0)\ns_barrier")
    for q in range(8): a(f"v_cvt_pk_bf16_f32 v{T0+q}, v{T0+2*q}, v{T0+2*q+1}")
    for q in range(8): a(f"v_cvt_pk_bf16_f32 v{56+q}, v{T3+2*q}, v{T3+2*q+1}")
    def feat(B):
        for stp in range(3):
            for tile, T in ((1, PX), (0, T1)):
                f = WP(tile, stp)
                a(f"v_mfma_f32_32x32x16_bf16 {vr(T,16)}, a[{f}:{f+3}], {vr(B[stp],4)}, {'0' if stp == 0 else vr(T,16)}")
    feat((48, 52, 56))
    for q in range(8): a(f"v_cvt_pk_bf16_f32 v{T2+q}, v{T2+2*q}, v{T2+2*q+1}")
    a(f"""v_and_b32 v16, 31, v15
    v_mul_u32_u24 v16, 144, v16
    v_lshrrev_b32 v17, 5, v15
    v_mul_u32_u24 v17, 4608, v17
    v_add3_u32 v8, v16, v17, s34
    s_lshr_b32 s36, s30, 1
    s_mul_i32 s36, s36, 4608
    s_and_b32 s37, s30, 1
    s_mul_i32 s37, s37, 40
    v_mul_u32_u24 v16, 144, v28
    v_lshl_add_u32 v16, v29, 3, v16
    v_add_u32 v10, s36, v16
    v_add_u32 v9, s37, v10
    v_add_u32 v10, 80, v10
    v_add_u32 v11, {2*REG}, v9
    v_add_u32 v14, {2*REG}, v10""")
    a(f"v_mov_b32 v94, v{PX}\nv_mov_b32 v95, v{PX+1}")
    softmax(a, 94, 72)
    for blk, S in ((16, 94), (26, 72)):
        for q in range(8): a(f"v_cvt_pk_bf16_f32 v{blk+q}, v{S+2+2*q}, v{S+3+2*q}")
        a(f"v_cvt_pk_bf16_f32 v{blk+8}, v{S}, v{S+1}")
    for q in range(8): a(f"v_mov_b32 v{36+q}, v{T2+q}")
    a("v_mov_b32 v44, v58\nv_mov_b32 v45, 0x3f80")
    for q in range(7): a(f"ds_write_b128 v8, {vr(16+4*q,4)} offset:{16*q}")
    a("ds_write_b64 v8, v[44:45] offset:112")
    a("s_waitcnt lgkmcnt(0)\ns_barrier")
    st("smk")
    for stp in range(8):
        w = stp // 2; o = (w % 2) * REG + (stp % 2) * 16 * 144
        va, vb = (9, 10) if w < 2 else (11, 14)
        f = 8 * stp
        a(f"ds_read_b64_tr_b16 a[{f}:{f+1}], v{va} offset:{o}\nds_read_b64_tr_b16 a[{f+2}:{f+3}], v{va} offset:{o+576}", ltag=("Z", stp))
        a(f"ds_read_b64_tr_b16 a[{f+4}:{f+5}], v{vb} offset:{o}\nds_read_b64_tr_b16 a[{f+6}:{f+7}], v{vb} offset:{o+576}", ltag=("Z", stp))
        if stp >= 2:
            s2 = stp - 2; f = 8 * s2
            a.wait(l=("Z", s2))
            a(f"v_mfma_f32_32x32x16_bf16 v[64:79], a[{f}:{f+3}], a[{f+4}:{f+7}], {'0' if s2 == 0 else 'v[64:79]'}")
    for s2 in (6, 7):
        f = 8 * s2
        a.wait(l=("Z", s2))
        a(f"v_mfma_f32_32x32x16_bf16 v[64:79], a[{f}:{f+3}], a[{f+4}:{f+7}], v[64:79]")
    a(f"""s_lshl_b32 s36, s31, 6
    s_add_u32 s36, s36, s30
    s_mul_i32 s52, s36, 1152
    s_add_u32 s52, s52, {KVP}
    s_mul_i32 s37, s32, 4608
    s_add_u32 s37, s37, s52
    v_lshlrev_b32 v8, 4, v15
    v_lshlrev_b32 v9, 2, v15
    s_mov_b32 s54, 0x7ffff
    s_mov_b32 s55, 0x7ffff""")
    for q in range(5): a(f"v_cvt_pk_bf16_f32 v{16+q}, v{64+2*q}, v{65+2*q}")
    a("""s_mov_b64 exec, s[54:55]
    buffer_store_dwordx4 v[16:19], v8, s[20:23], s37 offen sc1
    s_mov_b32 exec_hi, 0
    buffer_store_dword v20, v9, s[20:23], s37 offen offset:1024 sc1
    s_mov_b64 exec, -1
    s_waitcnt vmcnt(0)
    s_barrier""")
    st("kvst")
    sk = a.lab("sig")
    a(f"""s_cmp_lg_u32 s30, 0
    s_cbranch_scc1 {sk}
    s_lshl_b32 s36, s31, 4
    v_mov_b32 v16, 1
    v_mov_b32 v17, 0
    s_mov_b64 exec, 1
    buffer_atomic_add v16, v17, s[44:47], s36 offen sc1
    s_mov_b64 exec, -1
    {sk}:""")
    a.vm = []
    gemm([(ks, T1, 6) for ks in range(36)], [], {})
    for q in range(8): a(f"v_cvt_pk_bf16_f32 v{48+q}, v{T1+2*q}, v{T1+2*q+1}")
    feat((48, 52, 60))
    a(f"""v_bfe_u32 v16, v15, 2, 1
    v_lshrrev_b32 v17, 5, v15
    v_bfe_u32 v18, v15, 3, 2
    v_and_b32 v19, 3, v15
    v_lshl_add_u32 v20, v18, 2, v19
    v_mul_u32_u24 v20, 80, v20
    v_mul_u32_u24 v21, 1536, v17
    v_add_u32 v20, v20, v21
    v_add_u32 v20, {KVL}, v20
    v_mov_b32 v22, {ZERO}
    v_cmp_eq_u32 vcc, v16, v17
    v_cndmask_b32 v10, v22, v20, vcc
    v_add_u32 v20, 1280, v20
    v_cndmask_b32 v11, v22, v20, vcc
    v_cmp_eq_u32 vcc, 0, v18
    v_cndmask_b32 v11, v22, v11, vcc
    v_cmp_gt_u32 vcc, 3, v19
    v_cndmask_b32 v11, v22, v11, vcc
    v_and_b32 v16, 31, v15
    v_mul_u32_u24 v16, 80, v16
    s_lshr_b32 s36, s30, 1
    s_mul_i32 s36, s36, 1536
    s_add_u32 s36, s36, {KVL}
    s_and_b32 s37, s30, 1
    s_lshl_b32 s38, s37, 5
    s_lshl_b32 s37, s37, 2
    v_add_u32 v16, s36, v16
    v_lshl_add_u32 v14, v17, 4, v16
    v_add_u32 v14, s38, v14
    v_add_u32 v12, s37, v16""")
    a(f"v_mov_b32 v94, v{PX}\nv_mov_b32 v95, v{PX+1}")
    softmax(a, 94, 72)
    for sgn, S in ((0, 94), (1, 72)):
        for h in range(2):
            d = 48 + 8 * sgn + 4 * h
            for q in range(4):
                f = 4 * h + 2 * (q % 2) + 8 * (q // 2)
                a(f"v_cvt_pk_bf16_f32 v{d+q}, v{S+2+f}, v{S+3+f}")
        a(f"v_cvt_pk_bf16_f32 v{64+sgn}, v{S}, v{S+1}")
    a("v_mov_b32 v66, 0\nv_mov_b32 v67, 0")
    st("smq")
    lp = a.lab("poll"); dn = a.lab("done")
    a(f"""s_lshl_b32 s36, s31, 4
    v_mov_b32 v17, 0
    s_mov_b32 s37, 0
    {lp}:
    buffer_load_dword v16, v17, s[44:47], s36 offen sc1
    s_add_u32 s37, s37, 1
    s_waitcnt vmcnt(0)
    v_readfirstlane_b32 s38, v16
    s_cmp_ge_u32 s38, 16
    s_cbranch_scc1 {dn}
    s_cmp_lt_u32 s37, 0x40000
    s_cbranch_scc1 {lp}
    {dn}:""")
    st("sync1")
    a("s_mov_b64 exec, s[54:55]")
    for p in range(16):
        if p: a("s_add_u32 s52, s52, 4608")
        a(f"buffer_load_dwordx4 {vr(112+4*p,4)}, v8, s[20:23], s52 offen sc1", vtag=("kv", p))
        a(f"buffer_load_dword v{176+p}, v9, s[20:23], s52 offen offset:1024 sc1", vtag=("kv", p))
    a("s_mov_b32 s50, 0x3f80\ns_mov_b32 s51, 0x3f800000")
    for q in range(10): a(f"v_mov_b32 v{72+q}, 0")
    for p in range(16):
        a.wait(v=("kv", p))
        for q in range(5):
            r = 112 + 4 * p + q if q < 4 else 176 + p
            a(f"v_dot2_f32_bf16 v{72+2*q}, v{r}, s50, v{72+2*q}\nv_dot2_f32_bf16 v{73+2*q}, v{r}, s51, v{73+2*q}")
    for q in range(5): a(f"v_cvt_pk_bf16_f32 v{16+q}, v{72+2*q}, v{73+2*q}")
    a("""ds_write_b128 v14, v[16:19]
    s_mov_b32 exec_hi, 0
    ds_write_b32 v12, v20 offset:64
    s_mov_b64 exec, -1
    s_waitcnt lgkmcnt(0)
    s_barrier""")
    st("kvred")
    for stp in range(5):
        for tile in range(2):
            f = 8 * stp + 4 * tile
            a(f"ds_read_b128 a[{f}:{f+3}], v{10+tile} offset:{16*stp}", ltag=("K", stp))
    for stp in range(5):
        a.wait(l=("K", stp))
        for tile, T in ((1, 96), (0, 80)):
            f = 8 * stp + 4 * tile
            a(f"v_mfma_f32_32x32x16_bf16 {vr(T,16)}, a[{f}:{f+3}], {vr(48+4*stp,4)}, {'0' if stp == 0 else vr(T,16)}")
    a(f"""s_mul_i32 s36, s35, 36864
    s_add_u32 s36, s36, {OFRAG}
    s_lshr_b32 s37, s31, 2
    s_lshl_b32 s37, s37, 10
    s_and_b32 s38, s31, 3
    s_lshl_b32 s38, s38, 2
    s_add_u32 s37, s37, s38
    s_add_u32 s37, s37, s36
    s_add_u32 s37, s37, 32768
    s_lshl_b32 s38, s31, 11
    s_add_u32 s36, s36, s38""")
    a("v_add_f32 v98, 0x358637bd, v98\nv_rcp_f32 v98, v98")
    for q in range(0, 18, 2):
        a(f"v_pk_mul_f32 v[{80+q}:{81+q}], v[{80+q}:{81+q}], v[98:99] op_sel_hi:[1,0]")
    for q in range(9): a(f"v_cvt_pk_bf16_f32 v{16+q}, v{80+2*q}, v{81+2*q}")
    sc = " sc1" if "osc1" in opts else ""
    a(f"""buffer_store_dwordx4 v[16:19], v8, s[20:23], s36 offen{sc}
    buffer_store_dwordx4 v[20:23], v8, s[20:23], s36 offen offset:1024{sc}
    buffer_store_dword v24, v8, s[20:23], s37 offen{sc}""")
    st("ost")

def kernel_p1(diag, opts=()):
    a = A("A"); st = Stamps(a, diag, 0)
    a("s_cmp_ge_u32 s2, 256\ns_cbranch_scc1 A_end")
    st("entry")
    code_prefetch(a, "A_start", "A_end", 16, "a[0:1]")
    a("A_start:")
    gen_p1(a, st, opts)
    st.dump("s[20:23]", "s30")
    a("A_end:\ns_endpgm")
    return a, st
if __name__ == "__main__":
    a, st = kernel_p1(True)
    t = a.text(); print("nops", a.padded, "instrs", len(a.l), st.names)
    open("k_p1.s", "w").write(program([("p1_kernel", 256, 256, 163840)], [("p1_kernel", t, 512, 256)]))
```

```python
from common import *

def gen_p2b(a, st, opts=()):
    O = lambda k: 112 + 4 * k
    a("""s_load_dwordx2 s[4:5], s[0:1], 0
    s_load_dwordx2 s[6:7], s[0:1], 24
    s_load_dwordx2 s[26:27], s[0:1], 80
    v_lshrrev_b32 v16, 6, v0
    v_and_b32 v15, 63, v0
    v_readfirstlane_b32 s30, v16
    s_lshr_b32 s33, s2, 3
    s_cmp_ge_u32 s33, 9
    s_cselect_b32 s31, 9, 0
    s_cselect_b32 s32, 1, 0
    s_sub_u32 s31, s33, s31
    s_and_b32 s33, s2, 7
    s_lshl_b32 s33, s33, 1
    s_add_u32 s32, s32, s33""")
    a("""v_lshrrev_b32 v16, 3, v15
    v_and_b32 v17, 7, v15
    v_bfe_u32 v18, v15, 4, 1
    v_lshlrev_b32 v18, 2, v18
    v_xor_b32 v17, v17, v18
    v_lshlrev_b32 v17, 4, v17
    v_mul_u32_u24 v18, 1152, v16
    v_add_u32 v0, v18, v17
    v_lshrrev_b32 v18, 1, v16
    v_mul_u32_u24 v18, 36, v18
    v_and_b32 v16, 1, v16
    v_add_u32 v18, v18, v16
    v_mul_u32_u24 v18, 1152, v18
    v_add_u32 v1, v18, v17
    v_lshlrev_b32 v8, 4, v15
    s_lshl_b32 s35, s32, 2
    s_add_u32 s35, s35, s30
    s_waitcnt lgkmcnt(0)""")
    srd(a, 12, 4, 5, 2048 * 1152)
    srd(a, 16, 6, 7, 576 * 1152)
    srd(a, 20, 26, 27, WS_BYTES)
    st("start")
    a(f"""s_and_b32 s33, s30, 1
    s_lshr_b32 s34, s30, 1
    s_mul_i32 s36, s33, {18*1152}
    s_lshl_b32 s37, s31, 7
    s_add_u32 s36, s36, s37
    s_mul_i32 s37, s34, {8*1152}
    s_add_u32 s38, s36, s37
    s_mul_i32 s37, s34, {144*1152}
    s_add_u32 s39, s36, s37
    s_add_u32 s39, s39, {16*1152}
    s_lshl_b32 s40, s30, 10
    s_mul_i32 s41, s35, 36864
    s_add_u32 s42, s41, {OFRAG}""")
    def oload(k):
        if k % 4 == 0 and k: a("s_add_u32 s42, s42, 4096")
        a(f"buffer_load_dwordx4 {vr(O(k),4)}, v8, s[20:23], s42 offen offset:{(k%4)*1024}" + (" sc1" if "osc1" in opts else ""), vtag=("o", k))
    for i in range(18):
        a(f"s_add_u32 m0, s40, {i*4096}")
        if i < 16:
            a(f"s_add_u32 s38, s38, {36*1152}" if i else "s_nop 0")
            a("buffer_load_dwordx4 v0, s[16:19], s38 offen lds", vtag=("w", i))
        else:
            a(f"s_add_u32 s39, s39, {288*1152}" if i == 17 else "s_nop 0")
            a("buffer_load_dwordx4 v1, s[16:19], s39 offen lds", vtag=("w", i))
        oload(2 * i); oload(2 * i + 1)
    a(f"""v_and_b32 v16, 31, v15
    v_mul_u32_u24 v16, 1152, v16
    v_lshrrev_b32 v17, 5, v15
    v_lshl_add_u32 v9, v17, 3, v16
    s_mul_i32 s36, s35, {32*1152}
    s_lshl_b32 s37, s31, 7
    s_add_u32 s36, s36, s37""")
    for t in range(2):
        for j in range(4):
            a(f"buffer_load_dwordx2 v[{32+8*t+2*j}:{33+8*t+2*j}], v9, s[12:15], s36 offen offset:{64*t+16*j}", vtag="x")
    a("""v_lshrrev_b32 v16, 5, v15
    v_lshlrev_b32 v16, 3, v16
    v_bfe_u32 v17, v15, 2, 2
    v_add_u32 v16, v16, v17
    v_lshlrev_b32 v16, 7, v16
    v_bfe_u32 v17, v15, 3, 1
    v_lshl_add_u32 v16, v17, 6, v16
    v_bfe_u32 v17, v15, 4, 1
    v_lshl_add_u32 v16, v17, 5, v16
    v_and_b32 v17, 3, v15
    v_lshl_add_u32 v2, v17, 3, v16
    v_xor_b32 v3, 64, v2
    v_add_u32 v4, 36864, v2
    v_add_u32 v5, 36864, v3""")
    a("""v_bfe_u32 v16, v15, 4, 1
    v_lshlrev_b32 v16, 10, v16
    v_lshrrev_b32 v17, 5, v15
    v_lshl_add_u32 v16, v17, 8, v16
    v_and_b32 v18, 15, v15
    v_lshl_add_u32 v10, v18, 4, v16
    v_and_b32 v16, 31, v15
    v_mul_u32_u24 v16, 96, v16
    v_mul_u32_u24 v17, 48, v17
    v_add_u32 v11, v16, v17""")
    T = (48, 64)
    fr = [(ks, t) for ks in range(36) for t in range(2)]
    AF = lambda i: 4 * (i % 8)
    def reads(i):
        ks, t = fr[i]; f = AF(i); o = (ks % 18) * 2048; ad = 2 + t + 2 * (ks // 18)
        return [f"ds_read_b64_tr_b16 a[{f}:{f+1}], v{ad} offset:{o}", f"ds_read_b64_tr_b16 a[{f+2}:{f+3}], v{ad} offset:{o+512}"]
    D = 6; N = 72
    bars = {0: 2, 6: 8, 18: 17}
    def maybe_bar(i):
        if i < N and i % 2 == 0 and i // 2 in bars:
            lim = bars[i // 2]
            a.wait(v=lambda t: isinstance(t, tuple) and t[0] == "w" and t[1] <= lim); a("s_barrier")
    for i in range(D):
        maybe_bar(i)
        for r in reads(i): a(r, ltag=("A", i))
    st("w0")
    for i in range(N):
        ks, t = fr[i]
        a.wait(v=("o", ks), l=lambda tg: isinstance(tg, tuple) and tg[0] == "A" and tg[1] <= i)
        f = AF(i)
        a(f"v_mfma_f32_32x32x16_bf16 {vr(T[t],16)}, a[{f}:{f+3}], {vr(O(ks),4)}, {'0' if ks == 0 else vr(T[t],16)}")
        if i + D < N:
            maybe_bar(i + D)
            for r in reads(i + D): a(r, ltag=("A", i + D))
    st("gemm")
    a("s_mov_b32 s50, 0x3f80\ns_mov_b32 s51, 0x3f800000")
    a(f"""s_lshl_b32 s37, s31, 12
    s_add_u32 s41, s41, s37
    s_mul_i32 s36, s35, {32*96}
    s_lshl_b32 s37, s31, 2
    s_add_u32 s36, s36, s37
    s_add_u32 s36, s36, {STATS}""")
    if HFRAG: a(f"s_add_u32 s41, s41, {HFRAG}")
    a.wait(v="x")
    sc = " sc1" if "hsc1" in opts else ""
    for t in range(2):
        for q in range(8):
            a(f"v_dot2_f32_bf16 v{T[t]+2*q}, v{32+8*t+q}, s50, v{T[t]+2*q}\nv_dot2_f32_bf16 v{T[t]+2*q+1}, v{32+8*t+q}, s51, v{T[t]+2*q+1}")
    for t in range(2):
        for j in range(2):
            S = 80 + 8 * t + 4 * j
            for e in range(2):
                b = T[t] + 4 * (j + 2 * e)
                a(f"v_cvt_pk_bf16_f32 v{S+2*e}, v{b}, v{b+1}\nv_cvt_pk_bf16_f32 v{S+2*e+1}, v{b+2}, v{b+3}")
            a(f"buffer_store_dwordx4 {vr(S,4)}, v10, s[20:23], s41 offen offset:{t*2048 + j*512}{sc}")
    a("s_mov_b32 s50, 0x3f803f80\nv_mov_b32 v24, 0\nv_mov_b32 v25, 0\nv_mov_b32 v26, 0\nv_mov_b32 v27, 0")
    for q in range(16):
        a(f"v_dot2_f32_bf16 v{24+2*(q&1)}, v{80+q}, s50, v{24+2*(q&1)}\nv_dot2_f32_bf16 v{25+2*(q&1)}, v{80+q}, v{80+q}, v{25+2*(q&1)}")
    a(f"""v_add_f32 v24, v24, v26
    v_add_f32 v25, v25, v27
    v_permlane32_swap_b32 v24, v25
    v_add_f32 v24, v24, v25
    buffer_store_dword v24, v11, s[20:23], s36 offen{sc}""")
    st("end")

def gen_red(a, st, opts=()):
    a("""s_load_dwordx2 s[4:5], s[0:1], 64
    s_load_dwordx2 s[26:27], s[0:1], 80
    v_lshrrev_b32 v16, 6, v0
    v_and_b32 v15, 63, v0
    v_readfirstlane_b32 s30, v16
    s_waitcnt lgkmcnt(0)""")
    srd(a, 12, 4, 5, 2048 * 1152)
    srd(a, 20, 26, 27, WS_BYTES)
    st("start")
    red_body(a, st, "s2", opts)

def red_body(a, st, wgreg, opts):
    a(f"""v_lshrrev_b32 v16, 4, v15
    v_mul_u32_u24 v17, 9216, v16
    v_and_b32 v18, 15, v15
    v_lshl_add_u32 v0, v18, 4, v17
    s_mul_i32 s36, {wgreg}, 147456
    s_mul_i32 s37, s30, 2304
    s_add_u32 s36, s36, s37
    s_add_u32 s36, s36, {PART}""")
    sc = " sc1" if "psc1" in opts else ""
    for i in range(4):
        if i: a(f"s_add_u32 s36, s36, {4*9216}")
        for u in range(9):
            a(f"buffer_load_dwordx4 {vr(112+4*(9*i+u),4)}, v0, s[20:23], s36 offen offset:{256*u}{sc}", vtag=("p", i, u))
    a(f"""v_bfe_u32 v17, v15, 3, 1
    v_and_b32 v18, 7, v15
    v_lshlrev_b32 v19, 8, v17
    v_lshl_add_u32 v19, v18, 4, v19
    v_lshl_add_u32 v1, v16, 2, v19
    v_mul_u32_u24 v19, 1152, v18
    v_lshl_add_u32 v19, v17, 3, v19
    v_lshrrev_b32 v17, 1, v16
    v_lshl_add_u32 v19, v17, 5, v19
    v_and_b32 v17, 1, v16
    v_lshl_add_u32 v2, v17, 2, v19
    s_lshr_b32 s36, {wgreg}, 2
    s_mul_i32 s36, s36, 36864
    s_bfe_u32 s37, {wgreg}, 0x10001
    s_lshl_b32 s37, s37, 10
    s_add_u32 s36, s36, s37
    s_and_b32 s37, {wgreg}, 1
    s_lshl_b32 s37, s37, 7
    s_add_u32 s36, s36, s37
    s_mul_i32 s38, {wgreg}, {8*1152}
    s_mul_i32 s39, s30, 9""")
    if HFRAG: a(f"s_add_u32 s36, s36, {HFRAG}")
    for u in range(9):
        a(f"""s_add_u32 s40, s39, {u}
        s_lshr_b32 s41, s40, 1
        s_and_b32 s40, s40, 1
        s_lshl_b32 s42, s41, 11
        s_lshl_b32 s43, s40, 9
        s_add_u32 s42, s42, s43
        s_add_u32 s42, s42, s36
        s_lshl_b32 s41, s41, 6
        s_lshl_b32 s40, s40, 4
        s_add_u32 s41, s41, s40
        s_add_u32 s{44+u}, s41, s38""")
        a(f"buffer_load_dword v{20+u}, v1, s[20:23], s42 offen{sc}", vtag="h")
    a("s_mov_b32 s54, 0x3f80\ns_mov_b32 s55, 0x3f800000")
    ACC = lambda u: 32 + 8 * u
    for i in range(4):
        for u in range(9):
            a.wait(v=("p", i, u))
            r = 112 + 4 * (9 * i + u)
            for q in range(4):
                c0 = "0" if i == 0 else f"v{ACC(u)+2*q}"; c1 = "0" if i == 0 else f"v{ACC(u)+2*q+1}"
                a(f"v_dot2_f32_bf16 v{ACC(u)+2*q}, v{r+q}, s54, {c0}\nv_dot2_f32_bf16 v{ACC(u)+2*q+1}, v{r+q}, s55, {c1}")
    st("loaded")
    a.wait(v="h")
    for u in range(9):
        b = ACC(u)
        for q in range(4): a(f"v_permlane32_swap_b32 v{b+q}, v{b+4+q}")
    for u in range(9):
        b = ACC(u)
        for q in range(0, 4, 2): a(f"v_pk_add_f32 v[{b+q}:{b+q+1}], v[{b+q}:{b+q+1}], v[{b+4+q}:{b+5+q}]")
    for u in range(9):
        b = ACC(u)
        for q in range(2): a(f"v_permlane16_swap_b32 v{b+q}, v{b+2+q}")
    for u in range(9):
        b = ACC(u)
        a(f"v_pk_add_f32 v[{b}:{b+1}], v[{b}:{b+1}], v[{b+2}:{b+3}]")
    for u in range(9):
        b = ACC(u)
        a(f"v_dot2_f32_bf16 v{b}, v{20+u}, s54, v{b}\nv_dot2_f32_bf16 v{b+1}, v{20+u}, s55, v{b+1}")
    for u in range(9):
        b = ACC(u)
        a(f"v_cvt_pk_bf16_f32 v{b}, v{b}, v{b+1}")
        a(f"buffer_store_dword v{b}, v2, s[12:15], s{44+u} offen")
    st("end")

def kernel_p2b(diag, opts=()):
    a = A("B"); st = Stamps(a, diag, 1)
    a("s_cmp_ge_u32 s2, 144\ns_cbranch_scc1 B_end")
    st("entry")
    code_prefetch(a, "B_start", "B_end", 16, "a[0:1]")
    a("B_start:")
    gen_p2b(a, st, opts)
    st.dump("s[20:23]", "s30")
    a("B_end:\ns_endpgm")
    return a, st
def kernel_red(diag, opts=()):
    a = A("R"); st = Stamps(a, diag, 3)
    a("s_cmp_ge_u32 s2, 256\ns_cbranch_scc1 R_end")
    st("entry")
    code_prefetch(a, "R_start", "R_end", 16, "a[0:1]")
    a("R_start:")
    gen_red(a, st, opts)
    st.dump("s[20:23]", "s30")
    a("R_end:\ns_endpgm")
    return a, st
```

```python
import sys, json
from common import *
from p1 import kernel_p1
from p2 import kernel_p2b, kernel_red
from ffn16 import gen_ffn, UNIT
out = sys.argv[1]; opts = sys.argv[2:]
diag = "diag" in opts
ks = []; names = []
a1, s1 = kernel_p1(diag, opts); a2, s2 = kernel_p2b(diag, opts)
a3, s3 = gen_ffn(diag=diag, opts=list(opts) + ["mper6"]); a4, s4 = kernel_red(diag, opts)
launches = [("p1_kernel", 256, 256, 163840), ("p2_kernel", 144, 256, 73728), ("ffn_kernel", 256, 256, 8 * UNIT), ("red_kernel", 256, 256, 0)]
kern = [("p1_kernel", a1.text(), 512, 256), ("p2_kernel", a2.text(), 512, 256), ("ffn_kernel", a3.text(), 512, 256), ("red_kernel", a4.text(), 512, 256)]
ne = next((int(o[5:]) for o in opts if o.startswith("empty")), 0)
if ne:
    launches = [("nop_kernel", 256, 256, 0)] * ne + launches
    kern.append(("nop_kernel", "    s_endpgm\n", 32, 32))
hdr = "".join(l for l in open("sequential_preLN__linear_kernel_hedgehog__glu_gated_reglu__prompt.s.ref") if l.startswith(";") and "@launch" not in l and "Override" not in l and "grid=" not in l)
open(out, "w").write(program(launches, kern, hdr))
json.dump([s1.names, s2.names, s3.names, s4.names], open(out + ".json", "w"))
print("nops", a1.padded, a2.padded, a3.padded, a4.padded)
```

```python
from asmlib import *
from layout import *

class Stamps:
    def __init__(self, a, on, kidx=0):
        self.a = a; self.on = on; self.n = 0; self.kidx = kidx; self.names = []; self.groups = []
    def __call__(self, name):
        if not self.on: return
        self.a(f"{'s_memtime' if self.on == 'cyc' else 's_memrealtime'} s[{56+2*self.n}:{57+2*self.n}]")
        self.names.append(name); self.n += 1
        assert self.n <= 16
    def dump(self, srd, wave, va=0, vd=1):
        if not self.on: return
        a = self.a
        a(f"s_waitcnt lgkmcnt(0)\nv_mov_b32 v{vd}, 0")
        for q in range(self.n): a(f"v_writelane_b32 v{vd}, s{56+2*q}, {q}")
        a(f"""s_lshl_b32 s3, s2, 2
        s_add_u32 s3, s3, {wave}
        s_lshl_b32 s3, s3, 6
        s_add_u32 s3, s3, {TS + self.kidx * 0x10000}
        v_mbcnt_lo_u32_b32 v{va}, -1, 0
        v_lshlrev_b32 v{va}, 2, v{va}
        s_mov_b64 exec, 0xffff
        buffer_store_dword v{vd}, v{va}, {srd}, s3 offen
        s_mov_b64 exec, -1""")
        self.groups.append(self.names); self.names = []; self.n = 0; self.kidx += 1

def code_prefetch(a, lab_from, lab_to, vaddr, vdst, nwg_shift=3, reps=1):
    pc = a.lab("pc")
    a(f"""s_getpc_b64 s[92:93]
    {pc}:
    s_add_u32 s92, s92, {lab_from}-{pc}
    s_addc_u32 s93, s93, 0
    s_mov_b32 s94, {lab_to}-{lab_from}
    s_mov_b32 s95, 0x20000
    s_lshr_b32 s96, s2, {nwg_shift}
    s_lshl_b32 s96, s96, 11
    v_lshlrev_b32 v{vaddr}, 3, v0""")
    for r in range(reps):
        if r: a("s_add_u32 s96, s96, 0x10000")
        a(f"buffer_load_dwordx2 {vdst}, v{vaddr}, s[92:95], s96 offen", vtag="pf")

def srd(a, d, lo, hi, nbytes):
    a(f"s_mov_b32 s{d}, s{lo}\ns_mov_b32 s{d+1}, s{hi}\ns_mov_b32 s{d+2}, {nbytes}\ns_mov_b32 s{d+3}, 0x20000")

def signal(a, cnt_sreg, vt=None, check_init=False):
    sk = a.lab("sig"); saved = list(a.lg)
    a(f"""s_cmp_lg_u32 s30, 0
    s_cbranch_scc1 {sk}""")
    if check_init:
        lp = a.lab("ini"); dn = a.lab("inid"); sv = list(a.vm)
        a(f"""s_mov_b32 s97, 0
        {lp}:
        v_readfirstlane_b32 s98, v{check_init}
        s_cmp_eq_u32 s98, 1
        s_cbranch_scc1 {dn}
        v_mov_b32 v16, 0
        buffer_load_dword v{check_init}, v16, s[24:27], 0 offen sc1
        s_add_u32 s97, s97, 1
        s_cmp_lt_u32 s97, 0x40000
        s_waitcnt vmcnt(0)
        s_cbranch_scc1 {lp}
        {dn}:""")
        a.vm = sv
    a(f"""s_mov_b32 s98, 1
    s_atomic_add s98, s[20:21], {cnt_sreg}
    {sk}:""")
    a.lg = saved

def poll(a, cnt_sreg, target, vt=None):
    sk = a.lab("pk"); lp = a.lab("poll"); dn = a.lab("done"); saved = list(a.lg)
    a(f"""s_cmp_lg_u32 s30, 0
    s_cbranch_scc1 {sk}
    s_mov_b32 s97, 0
    s_waitcnt lgkmcnt(0)
    {lp}:
    s_mov_b32 s98, 0
    s_atomic_add s98, s[20:21], {cnt_sreg} glc
    s_add_u32 s97, s97, 1
    s_waitcnt lgkmcnt(0)
    s_cmp_ge_u32 s98, {target}
    s_cbranch_scc1 {dn}
    s_cmp_lt_u32 s97, 0x40000
    s_cbranch_scc1 {lp}
    {dn}:
    {sk}:
    s_barrier""")
    a.lg = saved

def init_check(a, vreg):
    lp = a.lab("ini"); dn = a.lab("inid"); sv = list(a.vm)
    a(f"""s_cmp_lg_u32 s30, 0
    s_cbranch_scc1 {dn}
    s_mov_b32 s97, 0
    {lp}:
    v_readfirstlane_b32 s98, v{vreg}
    s_cmp_eq_u32 s98, 1
    s_cbranch_scc1 {dn}
    v_mov_b32 v16, 0
    buffer_load_dword v{vreg}, v16, s[24:27], 0 offen sc1
    s_add_u32 s97, s97, 1
    s_cmp_lt_u32 s97, 0x40000
    s_waitcnt vmcnt(0)
    s_cbranch_scc1 {lp}
    {dn}:""")
    a.vm = sv
```

```python
from common import *

UNIT = 18432
def dma_offsets(stride):
    r = []
    for i in range(9):
        r.append(f"v_add_u32 v{i}, {i*1024}, v15")
        r.append(f"v_lshrrev_b32 v{i}, 6, v{i}")
        r.append(f"v_mul_u32_u24 v{i}, 0x1c72, v{i}")
        r.append(f"v_lshrrev_b32 v{i}, 16, v{i}")
        r.append(f"v_lshlrev_b32 v14, 3, v{i}")
        r.append(f"v_and_b32 v14, 32, v14")
        r.append(f"v_xor_b32 v14, v14, v15")
        r.append(f"v_mad_u32_u24 v{i}, v{i}, s41, v14")
        r.append(f"v_add_u32 v{i}, {4096*(i//4)+3072}, v{i}")
    return [f"s_movk_i32 s41, {stride-576}"] + r

def ffn_body(a, st, opts, C3, C4):
    mode = "loose" if "loose" in opts else "strict"; sc = " sc1"; diag = st.on
    opt = lambda k, d: next((int(o[len(k):]) for o in opts if o.startswith(k)), d)
    T0 = 21
    G = lambda t: 56 + 8 * t
    def U(t): return ("v", 200 + 8 * t) if t < 7 else ("a", 144 + 8 * (t - 7))
    XR = lambda k: 32 + 8 * (k % 3)
    NF = 6
    AF = lambda i: 232 + 4 * (i % NF)
    a(f"""v_mov_b32 v30, v15
    s_lshl_b32 s31, s29, 1
    s_and_b32 s33, s28, 1
    s_add_u32 s31, s31, s33
    s_lshr_b32 s32, s28, 1
    s_and_b32 s33, s30, 1
    s_lshr_b32 s34, s30, 1
    s_lshl_b32 s53, s32, 8
    s_add_u32 s53, s53, {C3}
    v_lshlrev_b32 v15, 4, v30""")
    a("""v_lshrrev_b32 v21, 2, v30
    v_mul_u32_u24 v9, 576, v21
    v_and_b32 v21, 3, v30
    v_lshl_add_u32 v9, v21, 3, v9
    v_bfe_u32 v21, v30, 4, 1
    v_lshlrev_b32 v21, 5, v21
    v_sub_u32 v16, v9, v21
    v_add_u32 v9, v9, v21
    v_add_u32 v10, 55296, v9
    v_add_u32 v11, 110592, v9
    v_add_u32 v17, 55296, v16
    v_add_u32 v18, 110592, v16""")
    for it in dma_offsets(576 if "lin" in opts else 9216): a(it)
    a("s_waitcnt lgkmcnt(0)")
    a(f"""s_cmp_eq_u32 s34, 0
    s_cselect_b32 s12, s4, s6
    s_cselect_b32 s13, s5, s7
    s_sub_u32 s12, s12, 3072
    s_subb_u32 s13, s13, 0
    s_mov_b32 s14, {576*9216+3072}
    s_mov_b32 s15, 0x20000
    s_sub_u32 s16, s8, 3072
    s_subb_u32 s17, s9, 0
    s_mov_b32 s18, {4608*1152+3072}
    s_mov_b32 s19, 0x20000""")
    a(f"""s_lshl_b32 s35, s32, 2
    s_add_u32 s35, s35, s30
    s_mul_i32 s43, s35, 2304
    s_mul_i32 s35, s35, 36864
    s_add_u32 s43, s43, {STATS}
    s_mul_i32 s36, s31, 576
    s_mul_i32 s39, s33, {16*9216}
    s_add_u32 s36, s36, s39
    s_mul_i32 s37, s30, 9216
    s_mul_i32 s38, s31, {288*1152}
    s_mul_i32 s39, s33, {16*1152}
    s_add_u32 s38, s38, s39
    s_mov_b32 s47, 0xffff0000""")
    if HFRAG: a(f"s_add_u32 s35, s35, {HFRAG}")
    a("v_lshlrev_b32 v29, 2, v30")
    def xload(k):
        r = []
        if k % 2 == 0 and k: r.append(("s", f"s_add_u32 s35, s35, 4096"))
        for h in range(2):
            r.append(("x", f"buffer_load_dwordx4 {vr(XR(k)+4*h,4)}, v15, s[20:23], s35 offen offset:{(k%2)*2048+h*1024} sc1", ("X", k)))
        return r
    def dma_pair(P):
        r = []
        slot = (2 * P) % 8
        if P < 18:
            srd = "s[12:15]"; so = "s36"
            post = [("s", f"s_add_u32 s36, s36, {32*9216}")]
        else:
            srd = "s[16:19]"; so = "s39"
            def off(u):
                c, kk = divmod(u - 36, 9); return c * 576 + kk * 32 * 1152
            c0, c1 = off(2 * P), off(2 * P + 1)
            r.append(("s", f"s_mul_i32 s39, s34, {c1-c0}"))
            r.append(("s", f"s_add_u32 s39, s39, s38"))
            if c0: r.append(("s", f"s_add_u32 s39, s39, {c0}"))
            post = []
        for i in range(9):
            if i % 4 == 0: r.append(("m", f"s_add_u32 m0, s37, {slot*UNIT + i*1024}"))
            if "dmareg" in opts and P > 2: r.append(("d", f"buffer_load_dwordx4 a[{232+4*(i%6)}:{235+4*(i%6)}], v{i}, {srd}, {so} offen offset:{(i%4)*1024}", ("P", P)))
            else: r.append(("d", f"buffer_load_dwordx4 v{i}, {srd}, {so} offen offset:{(i%4)*1024} lds", ("P", P)))
        return r + post
    def emit(it):
        if len(it) > 2: a(it[1], vtag=it[2])
        else: a(it[1])
    ahead = 2 if mode == "strict" else 3
    for P in range(ahead): [emit(x) for x in dma_pair(P)]
    st("fdma")
    poll(a, "s53", 9, vt=(21, 22))
    st("sync3")
    for q in range(9): a(f"buffer_load_dword v{56+q}, v29, s[20:23], s43 offen offset:{256*q} sc1", vtag="st")
    [emit(x) for x in xload(0)]
    [emit(x) for x in xload(1)]
    a.wait(v="st")
    a("""v_add_f32 v56, v56, v57
    v_add_f32 v58, v58, v59
    v_add_f32 v60, v60, v61
    v_add_f32 v62, v62, v63
    v_add_f32 v56, v56, v58
    v_add_f32 v60, v60, v62
    v_add_f32 v56, v56, v64
    v_add_f32 v56, v56, v60
    v_mov_b32 v57, v56
    v_permlane32_swap_b32 v56, v57
    v_mul_f32 v56, 0x3ae38e39, v56
    v_mul_f32 v57, 0x3ae38e39, v57
    v_fma_f32 v57, -v56, v56, v57
    v_max_f32 v57, 0, v57
    v_add_f32 v57, 0x3727c5ac, v57
    v_rsq_f32 v12, v57
    s_nop 0
    v_mul_f32_e64 v19, -v56, v12
    v_mov_b32 v13, v12
    v_mov_b32 v20, v19
    v_permlane16_swap_b32 v12, v13
    v_permlane16_swap_b32 v19, v20""")
    def norm(k):
        r = []
        if "nonorm" in opts: return r
        for h in range(2):
            b = XR(k) + 4 * h
            for j in range(4):
                r.append(("v", f"v_lshlrev_b32_e32 v{T0+2*j}, 16, v{b+j}"))
                r.append(("v", f"v_and_b32_e32 v{T0+1+2*j}, s47, v{b+j}"))
            for j in range(8):
                r.append(("v", f"v_fma_f32 v{T0+j}, v{T0+j}, v{12+h}, v{19+h}"))
            for j in range(4):
                r.append(("v", f"v_cvt_pk_bf16_f32 v{b+j}, v{T0+2*j}, v{T0+1+2*j}"))
        return r
    def conv(J):
        r = []
        for h in range(2):
            for e in range(2):
                t = 2 * J + e; g = G(t) + 4 * h; k, u = U(t); u += 4 * h
                for q in range(4):
                    if k == "a": r.append(("v", f"v_accvgpr_read_b32 v{T0+q}, a{u+q}"))
                    r.append(("v", f"v_max_f32_e32 v{g+q}, 0, v{g+q}"))
                for q in range(4):
                    src = f"v{T0+q}" if k == "a" else f"v{u+q}"
                    r.append(("v", f"v_mul_f32_e32 v{g+q}, v{g+q}, {src}"))
                d = G(2 * J) + 4 * h + 2 * e
                for q in range(2):
                    r.append(("v", f"v_cvt_pk_bf16_f32 v{d+q}, v{g+2*q}, v{g+2*q+1}"))
        return r
    def acc2(c, t): return ("a", 8 * t) if c == 0 else U(t)
    ecount = [0]
    def epi(c, tp, h):
        r = []
        S = 32 + 4 * (ecount[0] % 6); ecount[0] += 1
        for e in range(2):
            k, b = acc2(c, 2 * tp + e); b += 4 * h
            if k == "a":
                for q in range(4): r.append(("v", f"v_accvgpr_read_b32 v{T0+4*e+q}, a{b+q}"))
                b = T0 + 4 * e
            for q in range(2): r.append(("v", f"v_cvt_pk_bf16_f32 v{S+2*e+q}, v{b+2*q}, v{b+2*q+1}"))
        o = (c * 9 + tp) * 512
        r.append(("st", f"buffer_store_dwordx4 {vr(S,4)}, v15, s[20:23], s{44+3*h+o//4096} offen offset:{o%4096}{sc}", "ST"))
        return r
    a.wait(v=("X", 0))
    [emit(x) for x in norm(0)]
    fr = []
    for ks in range(18):
        for t in range(18):
            fr.append((2 * ks, t, "v", G(t), XR(ks), ks == 0))
            k, b = U(t); fr.append((2 * ks + 1, t, k, b, XR(ks), ks == 0))
    for u in range(36, 54):
        c, kk = divmod(u - 36, 9)
        for t in range(18):
            k, b = acc2(c, t)
            fr.append((u, t, k, b, G(2 * kk), kk == 0))
    N = len(fr); D = NF - 2
    def reads(i):
        u, t = fr[i][0], fr[i][1]
        slot = u % 8; base = (9 if t % 2 == 0 else 16) + slot // 3
        o = (slot % 3) * UNIT + t * 32
        f = AF(i)
        return [f"ds_read_b64_tr_b16 a[{f}:{f+1}], v{base} offset:{o}", f"ds_read_b64_tr_b16 a[{f+2}:{f+3}], v{base} offset:{o+9216}"]
    def barrier(s):
        if "nowait" not in opts or s == 0: a.wait(v=("P", s))
        if "nobar2" not in opts or s == 0: a("s_barrier")
    st("pro")
    barrier(0)
    st("bar0")
    if diag: a("s_waitcnt lgkmcnt(0)")
    for i in range(D):
        for r in reads(i): a(r, ltag=("A", i))
    memq = []; valq = []; pendbar = None
    budget = opt("bud", 2); wper = opt("wper", 1); mper = opt("mper", 6); moff = opt("moff", 0)
    nods = "nods" in opts; nodma = "nodma" in opts; nobar = "nobar" in opts; half = "halfds" in opts
    def emitv(it):
        if it[0] == "w": return 1 if a.wait(v=it[1]) else 0
        emit(it); return 1
    for i in range(N):
        u, t, k, b, B, first = fr[i]
        s, pos = divmod(i, 36)
        if i == 648: st("s1")
        if ((i + D) % 36 == 0 and i + D < N) or i == 0:
            sn = (i + D) // 36 if i else 0
            if i:
                for it in memq: emit(it)
                memq = []
                if not nobar: pendbar = sn
            P = sn + ahead
            if P == 18:
                memq += [("s" if x.startswith("s_") else "v", x) for x in dma_offsets(576 if "lin" in opts else 1152)]
            if P < 27 and not nodma: memq += dma_pair(P)
        if pos == 0 and s <= 15:
            memq = xload(s + 2) + memq
        if pos == 4 and s + 1 < 18:
            valq += [(("w", ("X", s + 1)), i + 31)] + [(x, i + 31) for x in norm(s + 1)]
        if i >= 612 and i < 648 and (i - 612) % 4 == 2 and (i - 612) // 4 >= 1:
            J = (i - 612) // 4 - 1
            valq += [(x, 648 + 18 * J) for x in conv(J)]
        if i == 650:
            valq += [(x, 648 + 18 * 8) for x in conv(8)]
        if i == 648 + 162:
            valq += [(("v", x), None) for x in store_setup()]
        if i >= 648 + 162 + 2 and (i - 648 - 162 - 2) % 8 == 0:
            e = (i - 648 - 162 - 2) // 8
            if e < 18: valq += [(x, None) for x in epi(0, e // 2, e % 2)]
        while any(d is not None and d <= i for (_, d) in valq):
            emitv(valq.pop(0)[0])
        lw = lambda lim: a.wait(l=lambda t: t is not None and t != "SMEM" and t[1] <= lim)
        if not nods: lw(i)
        f = AF(i)
        rd = reads(i + D) if (i + D < N and not nods and not (half and i % 2) and not ("eighth" in opts and i % 8)) else []
        for h in range(2):
            C = "0" if first else vr(b + 4 * h, 4, k)
            a(f"v_mfma_f32_16x16x32_bf16 {vr(b+4*h,4,k)}, a[{f}:{f+3}], {vr(B+4*h,4)}, {C}")
            sc_used = False
            if pendbar is not None: barrier(pendbar); pendbar = None; sc_used = True
            if h == 1 and not nods and (i + 1) % wper == 0: sc_used = lw(i + wper)
            if not sc_used:
                if memq and memq[0][0] in ("s", "m"): emit(memq.pop(0)); sc_used = True
                elif valq and valq[0][0][0] == "w": sc_used = emitv(valq.pop(0)[0])
                elif valq and valq[0][0][1].startswith("s_"): emitv(valq.pop(0)[0]); sc_used = True
            n = 0
            if rd: a(rd[h], ltag=("A", i + D)); n += 1
            if memq and memq[0][0] in ("x", "d") and (2 * i + h) % mper == moff:
                emit(memq.pop(0)); n += 1
            elif memq and memq[0][0] == "v":
                emit(memq.pop(0)); n += 1
            while valq and n < budget and valq[0][0][0] != "w" and not valq[0][0][1].startswith("s_"):
                n += emitv(valq.pop(0)[0])
    for it, d in valq: emit(it)
    st("s2")
    for tp in range(9):
        for h in range(2):
            for x in epi(1, tp, h): emit(x)
    st("epi")
    a(f"""s_waitcnt vmcnt(0)
    s_barrier
    s_add_u32 s53, s53, {C4-C3}""")
    st("drain")
    signal(a, "s53")
    srd(a, 12, 10, 11, 2048 * 1152)
    a("""s_lshl_b32 s29, s32, 4
    s_add_u32 s29, s29, s31
    v_mov_b32 v15, v30""")
    poll(a, "s53", 16)
    st("sync4")
    from p2 import red_body
    red_body(a, st, "s29", ["psc1"])

def store_setup():
    return [f"v_lshrrev_b32 v14, 4, v15",
            f"v_bfe_u32 v29, v14, 3, 1",
            f"v_mul_u32_u24 v29, 0x24000, v29",
            f"v_lshrrev_b32 v15, 4, v14",
            f"v_lshlrev_b32 v15, 7, v15",
            f"v_and_b32 v14, 7, v14",
            f"v_lshlrev_b32 v14, 4, v14",
            f"v_add3_u32 v15, v15, v14, v29",
            f"s_lshl_b32 s44, s32, 4",
            f"s_lshl_b32 s45, s30, 2",
            f"s_add_u32 s44, s44, s45",
            f"s_lshl_b32 s44, s44, 4",
            f"s_add_u32 s44, s44, s31",
            f"s_mul_i32 s44, s44, 9216",
            f"s_add_u32 s44, s44, {PART}",
            f"s_add_u32 s45, s44, 4096",
            f"s_add_u32 s46, s44, 8192",
            f"s_add_u32 s47, s44, {2*147456}",
            f"s_add_u32 s48, s45, {2*147456}",
            f"s_add_u32 s49, s46, {2*147456}"]
```

```python
from common import *
from ffn16 import dma_offsets, store_setup
UNIT = 18432; SLOT = 2 * UNIT

def ffn_body(a, st, opts, C3, C4):
    opt = lambda k, d: next((int(o[len(k):]) for o in opts if o.startswith(k)), d)
    diag = st.on
    T0 = 21
    G = lambda t: 64 + 8 * t
    def U(t): return ("v", 208 + 8 * t) if t < 6 else ("a", 96 + 8 * (t - 6))
    XR = lambda k: 32 + 8 * (k % 4)
    NF = opt("nf", 8); D = NF - 2; NA = opt("na", 3)
    AF = lambda i: 192 + 4 * (i % NF)
    a(f"""v_mov_b32 v30, v15
    s_lshl_b32 s31, s29, 1
    s_and_b32 s33, s28, 1
    s_add_u32 s31, s31, s33
    s_lshr_b32 s32, s28, 1
    s_and_b32 s33, s30, 1
    s_lshr_b32 s34, s30, 1
    s_lshl_b32 s53, s32, 8
    s_add_u32 s53, s53, {C3}
    v_lshlrev_b32 v15, 4, v30""")
    for it in dma_offsets(9216): a(it)
    a(f"""s_cmp_eq_u32 s34, 0
    s_cselect_b32 s12, s4, s6
    s_cselect_b32 s13, s5, s7
    s_sub_u32 s12, s12, 3072
    s_subb_u32 s13, s13, 0
    s_mov_b32 s14, {576*9216+3072}
    s_mov_b32 s15, 0x20000""")
    srd(a, 16, 8, 9, 4608 * 1152)
    a(f"""s_mul_i32 s36, s31, 576
    s_mul_i32 s39, s33, {16*9216}
    s_add_u32 s36, s36, s39
    s_mul_i32 s37, s30, 9216""")
    def emit(it):
        if len(it) > 2 and it[2][0] == "F":
            saved = list(a.lg); a(it[1]); a.lg = saved
        elif len(it) > 2: a(it[1], vtag=it[2])
        else: a(it[1])
    def blocks(P):
        if P < 18 + NA: return [(J, cg) for J in range(9) for cg in range(NA)][9 * (P - 18):9 * (P - 17)]
        return [(J, P - 18) for J in range(9)]
    def dma_pair(P):
        r = []; slot = P % 4
        if P < 18:
            for i in range(9):
                if i % 4 == 0: r.append(("m", f"s_add_u32 m0, s37, {slot*SLOT + i*1024}"))
                r.append(("d", f"buffer_load_dwordx4 v{i}, s[12:15], s36 offen offset:{(i%4)*1024} lds", ("P", P)))
            return r + [("s", f"s_add_u32 s36, s36, {32*9216}")]
        for b, (J, cg) in enumerate(blocks(P)):
            r.append(("m", f"s_add_u32 m0, s40, {slot*SLOT + b*4096}"))
            r.append(("s", f"s_add_u32 s39, s38, {J*32*1152 + cg*128}"))
            r.append(("d", f"buffer_load_dwordx4 v0, s[16:19], s39 offen lds", ("P", P)))
        return r
    for P in range(2): [emit(x) for x in dma_pair(P)]
    st("fdma")
    a("""v_lshrrev_b32 v21, 2, v30
    v_mul_u32_u24 v9, 576, v21
    v_and_b32 v21, 3, v30
    v_lshl_add_u32 v9, v21, 3, v9
    v_bfe_u32 v21, v30, 4, 1
    v_lshlrev_b32 v21, 5, v21
    v_sub_u32 v16, v9, v21
    v_add_u32 v9, v9, v21
    v_add_u32 v10, 55296, v9
    v_add_u32 v11, 110592, v9
    v_add_u32 v17, 55296, v16
    v_add_u32 v18, 110592, v16""")
    a(f"""s_lshl_b32 s35, s32, 2
    s_add_u32 s35, s35, s30
    s_mul_i32 s43, s35, 2304
    s_mul_i32 s35, s35, 36864
    s_add_u32 s43, s43, {STATS}
    s_mul_i32 s38, s31, {288*1152}
    s_mul_i32 s39, s30, {8*1152}
    s_add_u32 s38, s38, s39
    s_lshl_b32 s40, s30, 10
    s_mov_b32 s47, 0xffff0000
    v_lshlrev_b32 v29, 2, v30""")
    if HFRAG: a(f"s_add_u32 s35, s35, {HFRAG}")
    loop = "noloop" not in opts
    if loop:
        for t in range(18):
            for q in range(8):
                a(f"v_mov_b32 v{G(t)+q}, 0")
                k, b = U(t)
                a(f"v_mov_b32 v{b+q}, 0" if k == "v" else f"v_accvgpr_write_b32 a{b+q}, 0")
    a("v_and_b32 v21, 15, v30\nv_mov_b32 v22, 0x3f80\nv_mov_b32 v23, 0x3f800000")
    for hi in range(2):
        for j in range(4):
            a(f"""v_cmp_eq_u32 vcc, {8*hi+2*j}, v21
            v_cndmask_b32 v24, 0, v22, vcc
            v_cmp_eq_u32 vcc, {8*hi+2*j+1}, v21
            v_cndmask_b32 v24, v24, v23, vcc
            v_accvgpr_write_b32 a{224+4*hi+j}, v24""")
    poll(a, "s53", 9, vt=(21, 22))
    st("sync3")
    def xload(k):
        r = []
        for h in range(2):
            r.append(("x", f"buffer_load_dwordx4 {vr(XR(k)+4*h,4)}, v15, s[20:23], s35 offen offset:{h*1024} sc1", ("X", k)))
        return r + [("s", "s_add_u32 s35, s35, 2048")]
    for q in range(9): a(f"buffer_load_dword v{56+q if q < 8 else 14}, v29, s[20:23], s43 offen offset:{256*q} sc1", vtag="st")
    for k in range(2): [emit(x) for x in xload(k)]
    a.wait(v="st")
    a("""v_add_f32 v56, v56, v57
    v_add_f32 v58, v58, v59
    v_add_f32 v60, v60, v61
    v_add_f32 v62, v62, v63
    v_add_f32 v56, v56, v58
    v_add_f32 v60, v60, v62
    v_add_f32 v56, v56, v14
    v_add_f32 v56, v56, v60
    v_mov_b32 v57, v56
    v_permlane32_swap_b32 v56, v57
    v_mul_f32 v56, 0x3ae38e39, v56
    v_mul_f32 v57, 0x3ae38e39, v57
    v_fma_f32 v57, -v56, v56, v57
    v_max_f32 v57, 0, v57
    v_add_f32 v57, 0x3727c5ac, v57
    v_rsq_f32 v12, v57
    s_nop 0
    v_mul_f32_e64 v19, -v56, v12
    v_mov_b32 v13, v12
    v_mov_b32 v20, v19
    v_permlane16_swap_b32 v12, v13
    v_permlane16_swap_b32 v19, v20""")
    def norm(k):
        r = []
        for h in range(2):
            b = XR(k) + 4 * h
            for j in range(4):
                r.append(("v", f"v_lshlrev_b32_e32 v{T0+2*j}, 16, v{b+j}"))
                r.append(("v", f"v_and_b32_e32 v{T0+1+2*j}, s47, v{b+j}"))
            for j in range(8):
                r.append(("v", f"v_fma_f32 v{T0+j}, v{T0+j}, v{12+h}, v{19+h}"))
            for j in range(4):
                r.append(("v", f"v_cvt_pk_bf16_f32 v{b+j}, v{T0+2*j}, v{T0+1+2*j}"))
        return r
    def conv(J):
        r = []
        for h in range(2):
            for e in range(2):
                t = 2 * J + e; g = G(t) + 4 * h; k, u = U(t); u += 4 * h
                for q in range(4):
                    if k == "a": r.append(("v", f"v_accvgpr_read_b32 v{T0+q}, a{u+q}"))
                    r.append(("v", f"v_max_f32_e32 v{g+q}, 0, v{g+q}"))
                for q in range(4):
                    src = f"v{T0+q}" if k == "a" else f"v{u+q}"
                    r.append(("v", f"v_mul_f32_e32 v{g+q}, v{g+q}, {src}"))
                d = G(2 * J) + 4 * h + 2 * e
                for q in range(2):
                    r.append(("v", f"v_cvt_pk_bf16_f32 v{d+q}, v{g+2*q}, v{g+2*q+1}"))
        return r
    def acc2(c, t): return ("a", 8 * (4 * c + t)) if c < NA else ("v", G(2 * ((c % 2) * 4 + t) + 1))
    ecount = [0]
    def epi(c):
        r = []
        for tp in range(2):
            for h in range(2):
                S = 32 + 4 * (ecount[0] % 8); ecount[0] += 1
                for e in range(2):
                    k, b = acc2(c, 2 * tp + e); b += 4 * h
                    if k == "a":
                        for q in range(4): r.append(("v", f"v_accvgpr_read_b32 v{T0+4*e+q}, a{b+q}"))
                        b = T0 + 4 * e
                    for q in range(2): r.append(("v", f"v_cvt_pk_bf16_f32 v{S+2*e+q}, v{b+2*q}, v{b+2*q+1}"))
                o = (2 * c + tp) * 512
                r.append(("st", f"buffer_store_dwordx4 {vr(S,4)}, v15, s[20:23], s{44+3*h+o//4096} offen offset:{o%4096}{'' if 'xplain' in opts else ' sc1'}", ("ST", c)))
                if "xnost" in opts and c < 8: r.pop()
        return r
    a.wait(v=("X", 0))
    [emit(x) for x in norm(0)]
    fr = []
    for ks in range(18):
        for t in range(18):
            fr.append((ks, (0, t), "v", G(t), XR(ks), ks == 0 and not loop))
            k, b = U(t); fr.append((ks, (1, t), k, b, XR(ks), ks == 0 and not loop))
    for P in range(18, 27):
        for b_, (J, cg) in enumerate(blocks(P)):
            for t in range(4):
                k, b = acc2(cg, t)
                fr.append((P, (b_, t), k, b, G(2 * J), J == 0))
    N = len(fr)
    def reads(i):
        P, (x, t) = fr[i][0], fr[i][1]; f = AF(i)
        if P < 18:
            slot = (2 * P + x) % 8; base = (9 if t % 2 == 0 else 16) + slot // 3
            o = (slot % 3) * UNIT + t * 32; o2 = o + 9216
        else:
            base = 1 + t; o = x * 4096; o2 = o + 2048
        return [f"ds_read_b64_tr_b16 a[{f}:{f+1}], v{base} offset:{o}", f"ds_read_b64_tr_b16 a[{f+2}:{f+3}], v{base} offset:{o2}"]
    s2setup = ["v_lshrrev_b32 v0, 3, v30", "v_mul_u32_u24 v0, 1152, v0", "v_and_b32 v14, 7, v30", "v_lshlrev_b32 v14, 4, v14",
               "v_lshrrev_b32 v1, 4, v30", "v_lshlrev_b32 v1, 5, v1", "v_xor_b32 v14, v14, v1", "v_add_u32 v0, v0, v14"]
    s2read = ["v_lshrrev_b32 v1, 2, v30", "v_lshlrev_b32 v1, 7, v1", "v_and_b32 v14, 3, v30", "v_lshl_add_u32 v1, v14, 3, v1",
              "v_bfe_u32 v14, v30, 3, 2", "v_lshl_add_u32 v1, v14, 5, v1", f"v_add_u32 v1, {2*SLOT}, v1",
              "v_xor_b32 v2, 32, v1", "v_xor_b32 v3, 64, v1", "v_xor_b32 v4, 96, v1"]
    redsetup = ["v_lshrrev_b32 v14, 4, v30", "v_mul_u32_u24 v31, 9216, v14", "v_and_b32 v5, 15, v30", "v_lshl_add_u32 v31, v5, 4, v31",
                "v_bfe_u32 v6, v30, 3, 1", "v_lshlrev_b32 v7, 8, v6", "v_and_b32 v5, 7, v30", "v_lshl_add_u32 v7, v5, 4, v7",
                "v_mov_b32 v8, 0x7fffff00", "v_cmp_eq_u32 vcc, 0, v14", "v_mul_u32_u24 v5, 1152, v5", "v_lshl_add_u32 v5, v6, 3, v5", "v_cndmask_b32 v7, v8, v7, vcc",
                "v_lshrrev_b32 v6, 1, v14", "v_lshl_add_u32 v5, v6, 7, v5", "v_and_b32 v6, 1, v14", "v_lshl_add_u32 v5, v6, 5, v5",
                "v_mov_b32 v6, 0",
                "s_lshl_b32 s29, s32, 4", "s_add_u32 s29, s29, s31",
                "s_mul_i32 s88, s29, 147456", "s_lshl_b32 s89, s30, 8", "s_add_u32 s88, s88, s89", f"s_add_u32 s88, s88, {PART}",
                "s_add_u32 s89, s88, 36864", "s_add_u32 s90, s89, 36864", "s_add_u32 s91, s90, 36864",
                "s_lshr_b32 s92, s29, 2", "s_mul_i32 s92, s92, 36864", "s_bfe_u32 s93, s29, 0x10001", "s_lshl_b32 s93, s93, 10", "s_add_u32 s92, s92, s93",
                "s_and_b32 s93, s29, 1", "s_lshl_b32 s93, s93, 7", "s_add_u32 s92, s92, s93", "s_lshl_b32 s93, s34, 11", "s_add_u32 s92, s92, s93",
                "s_lshl_b32 s93, s33, 9", "s_add_u32 s92, s92, s93",
                f"s_mul_i32 s94, s29, {8*1152}", "s_lshl_b32 s93, s34, 6", "s_add_u32 s94, s94, s93", "s_lshl_b32 s93, s33, 4", "s_add_u32 s94, s94, s93",
                f"s_add_u32 s53, s53, {C4-C3}"]
    if HFRAG: redsetup.append(f"s_add_u32 s92, s92, {HFRAG}")
    PL = lambda c, i: (96 + 4 * (4 * c + i)) if c < 6 else 4 * (4 * (c - 6) + i)
    HL = lambda c: 48 + 4 * c
    def hload(c): return [("x", f"buffer_load_dwordx4 a[{HL(c)}:{HL(c)+3}], v7, s[20:23], s92 offen sc1", ("H", c)), ("s", "s_add_u32 s92, s92, 4096")]
    def pload(c):
        r = []
        if c and c % 4 == 0: r += [("s", f"s_add_u32 s{88+i}, s{88+i}, 4096") for i in range(4)]
        for i in range(4):
            r.append(("x", f"buffer_load_dwordx4 a[{PL(c,i)}:{PL(c,i)+3}], v31, s[20:23], s{88+i} offen offset:{(c%4)*1024} sc1", ("L", c)))
        return r
    sched = opt("sch", 1)
    if sched == 0: groups = [(range(9), None, None)]
    elif sched == 4: groups = [((0, 1, 2, 3, 4, 5), 26, None), ((6, 7, 8), None, None)]
    elif sched == 5: groups = [((0, 1, 2, 3, 4, 5), 26, None), ((6, 7), 27, None), ((8,), None, None)]
    elif sched == 6: groups = [((0, 1), 22, 23), ((2, 3, 4, 5), 26, None), ((6, 7, 8), None, None)]
    elif sched == 7: groups = [((0, 1, 2), 23, 24), ((3, 4, 5), 26, None), ((6, 7, 8), None, None)]
    elif sched == 8: groups = [((0,), 21, 22), ((1, 2), 23, 24), ((3, 4, 5), 26, None), ((6, 7, 8), None, None)]
    elif sched == 9: groups = [((0, 1), 22, 24), ((2, 3, 4, 5), 26, None), ((6, 7), 27, None), ((8,), None, None)]
    slowq = []; lper = opt("lper", 18)
    spins = []
    def sig(g):
        sk = a.lab("sg"); saved = list(a.lg)
        a(f"""s_cmp_lg_u32 s30, 0
        s_cbranch_scc1 {sk}
        s_add_u32 s95, s53, {4096*g}
        s_mov_b32 s98, 1
        s_atomic_add s98, s[20:21], s95
        {sk}:""")
        a.lg = saved
    def poll_issue(g):
        sk = a.lab("pi")
        return [("x", f"s_cmp_lg_u32 s30, 0\ns_cbranch_scc1 {sk}\ns_add_u32 s96, s53, {4096*g}\ns_mov_b32 s97, 0\ns_atomic_add s97, s[20:21], s96 glc\n{sk}:", ("F", g))]
    def poll_check(g):
        ok = a.lab("ok"); sp = a.lab("spin"); saved = list(a.lg)
        a(f"s_cmp_eq_u32 s30, 0\ns_cbranch_scc1 {sp}\n{ok}:")
        spins.append(f"""{sp}:
        s_mov_b32 s99, 0
        {sp}_l:
        s_waitcnt lgkmcnt(0)
        s_cmp_ge_u32 s97, 16
        s_cbranch_scc1 {ok}
        s_mov_b32 s97, 0
        s_atomic_add s97, s[20:21], s96 glc
        s_add_u32 s99, s99, 1
        s_cmp_lt_u32 s99, 0x40000
        s_cbranch_scc1 {sp}_l
        s_waitcnt lgkmcnt(0)
        s_branch {ok}""")
    st("pro")
    a("s_waitcnt vmcnt(0)\ns_barrier")
    st("bar0")
    if diag: a("s_waitcnt lgkmcnt(0)")
    for i in range(D):
        for r in reads(i): a(r, ltag=("A", i))
    memq = []; valq = []; pendbar = None
    budget = opt("bud", 2); mper = opt("mper", 4)
    def emitv(it):
        if it[0] == "w": return 1 if a.wait(v=it[1]) else 0
        emit(it); return 1
    marks = {}
    for i in range(N):
        P, xt, k, b, B, first = fr[i]
        s, pos = divmod(i, 36)
        if pos == 0 and s % 4 == 0 and s <= 16: marks[s] = len(a.l)
        if i == 648: st("s1")
        if (i + D) % 36 == 0 and i + D < N:
            sn = (i + D) // 36
            while any(len(x) > 2 and x[2][0] == "P" for x in memq) or (memq and memq[0][0] in "sv"): emit(memq.pop(0))
            pendbar = sn
            if sn > 18: valq = [(("v", f"v_add_u32 v{1+t}, {SLOT if sn % 4 else -3*SLOT}, v{1+t}"), i) for t in range(4)] + valq
        if pos == 0:
            Pn = s + 2; q = []
            if s <= 15: q += xload(s + 2)
            if Pn == 18: q += [("v", x) for x in s2setup]
            if Pn < 27: q += dma_pair(Pn)
            if Pn == 18: q += [("v", x) for x in s2read]
            memq = q + memq
        if pos == 4 and s + 1 < 18:
            valq += [(("w", ("X", s + 1)), i + 31)] + [(x, i + 31) for x in norm(s + 1)]
        if i >= 612 and i < 648 and (i - 612) % 4 == 2 and (i - 612) // 4 >= 1:
            J = (i - 612) // 4 - 1
            valq += [(x, 648 + 4 * NA * J) for x in conv(J)]
        if i == 650: valq += [(x, 648 + 4 * NA * 8) for x in conv(8)]
        if i == 652: valq += [(("v", x), 648 + 36 * NA + 20) for x in store_setup() + redsetup]
        EP = opt("ep", 2)
        if i == 648 + 36 * NA + EP:
            for c in range(NA): valq += [(x, None) for x in epi(c)]
        if i >= 648 + 36 * (NA + 1) + 2 and pos == (EP if s < 25 else 2):
            c = s - 19
            valq += [(x, 648 + 36 * (c + 2)) for x in epi(c)]
        if i == opt('hl', N - 1):
            for c in range(9): slowq += hload(c)
        chks = []
        for g, (chs, sst, chk) in enumerate(groups):
            if chk is not None and i == 36 * chk - D - 16: memq = poll_issue(g) + memq
            if chk is not None and pendbar == chk:
                while any(len(x) > 2 and x[2] == ("F", g) for x in memq): emit(memq.pop(0))
                chks.append(g)
        if slowq and i % lper == opt("loff", 0):
            while True:
                x = slowq.pop(0); memq.append(x)
                if x[0] == "x" or not slowq: break
        sigs = [g for g, (chs, sst, chk) in enumerate(groups) if pendbar is not None and sst == pendbar]
        for g in sigs:
            last = max(groups[g][0])
            while any(len(x) > 2 and x[2][0] == "ST" and x[2][1] <= last for (x, _) in valq): emitv(valq.pop(0)[0])
        while any(d is not None and d <= i for (_, d) in valq): emitv(valq.pop(0)[0])
        lw = lambda lim: a.wait(l=lambda t: t is not None and t != "SMEM" and t[1] <= lim)
        lw(i)
        f = AF(i)
        rd = reads(i + D) if i + D < N else []
        behind = len(valq) > opt("beh", 60)
        for h in range(2):
            C = "0" if first else vr(b + 4 * h, 4, k)
            a(f"v_mfma_f32_16x16x32_bf16 {vr(b+4*h,4,k)}, a[{f}:{f+3}], {vr(B+4*h,4)}, {C}")
            sc_used = False
            if pendbar is not None:
                lasts = [max(groups[g][0]) for g in sigs]
                a.wait(v=lambda t: t == ("P", pendbar) or (isinstance(t, tuple) and t[0] == "ST" and any(t[1] <= l for l in lasts)))
                for g in chks: poll_check(g)
                a("s_barrier")
                for g in sigs: sig(g)
                for g in chks:
                    for c in groups[g][0]: slowq += pload(c)
                pendbar = None; sc_used = True
            if h == 1 and not sc_used: sc_used = lw(i + 1)
            if not sc_used:
                if memq and memq[0][0] in ("s", "m"):
                    emit(memq.pop(0)); sc_used = True
                    if "sc2" in opts and memq and memq[0][0] in ("s", "m"): emit(memq.pop(0))
                elif valq and valq[0][0][0] == "w": sc_used = emitv(valq.pop(0)[0])
                elif valq and valq[0][0][1].startswith("s_"): emitv(valq.pop(0)[0]); sc_used = True
            n = 0
            if rd: a(rd[h], ltag=("A", i + D)); n += 1
            mp = mper if s < 16 else opt("mq", 4)
            if memq and memq[0][0] in ("x", "d") and (2 * i + h) % mp == 0:
                emit(memq.pop(0)); n += 1
            elif memq and memq[0][0] == "v":
                emit(memq.pop(0)); n += 1
            while valq and n < budget + (1 if behind else 0) and valq[0][0][0] != "w" and not valq[0][0][1].startswith("s_"):
                n += emitv(valq.pop(0)[0])
    for it in memq: emit(it)
    for it, d in valq: emitv(it)
    tailq = slowq
    if loop:
        body = [[x.text for x in a.l[marks[s]:marks[s + 4]]] for s in (0, 4, 8, 12)]
        assert body[1] == body[2] == body[3], "loop bodies differ"
        pre = []
        if body[0][0] != body[1][0]:
            assert body[0][0].startswith("s_waitcnt lgkmcnt"); pre = [Ins(body[0][0])]; body[0] = body[0][1:]
        assert body[0] == [x for x in body[1] if not (x.startswith("s_waitcnt vmcnt") and x not in body[0])] or \
               [x for x in body[0] if "vmcnt" not in x] == [x for x in body[1] if "vmcnt" not in x]
        lp = a.lab("loop")
        a.l = a.l[:marks[0]] + pre + [Ins("s_mov_b32 s41, 0"), Ins(".p2align 3"), Ins(f"{lp}:")] + a.l[marks[4]:marks[8]] + \
              [Ins("s_add_u32 s41, s41, 1"), Ins("s_cmp_lt_u32 s41, 4"), Ins(f"s_cbranch_scc1 {lp}")] + a.l[marks[16]:]
    st("s2")
    rest = [g for g, (chs, sst, chk) in enumerate(groups) if sst is None or sst >= 27]
    late = [g for g, (chs, sst, chk) in enumerate(groups) if chk is None]
    srd(a, 12, 10, 11, 2048 * 1152)
    def red(c):
        T = 208 + 4 * (c // 2); S = 224 + 4 * (c % 2)
        a.wait(v=("H", c))
        a(f"v_mfma_f32_16x16x32_bf16 v[{T}:{T+3}], a[{S}:{S+3}], a[{HL(c)}:{HL(c)+3}], {'0' if c % 2 == 0 else f'v[{T}:{T+3}]'}")
        a.wait(v=("L", c))
        for i in range(4):
            a(f"v_mfma_f32_16x16x32_bf16 v[{T}:{T+3}], a[{S}:{S+3}], a[{PL(c,i)}:{PL(c,i)+3}], v[{T}:{T+3}]")
    def out(T):
        r = 208 + 4 * T
        a(f"v_cvt_pk_bf16_f32 v{r}, v{r}, v{r+1}\nv_cvt_pk_bf16_f32 v{r+1}, v{r+2}, v{r+3}")
        if T == 4: a("s_mov_b32 exec_hi, 0")
        a(f"buffer_store_dwordx2 v[{r}:{r+1}], v5, s[12:15], s94 offen offset:{256*T}")
        if T == 4: a("s_mov_b64 exec, -1")
    for g in rest:
        if groups[g][1] == 27:
            last = max(groups[g][0])
            a.wait(v=lambda t: isinstance(t, tuple) and t[0] == "ST" and t[1] <= last); a("s_barrier"); sig(g)
    for x in epi(8): emit(x)
    st("epi")
    done = 0
    pend = list(tailq)
    def issue(n):
        while pend and n > 0:
            x = pend.pop(0); emit(x)
            if x[0] == "x": n -= 1
    a.wait(v=lambda t: isinstance(t, tuple) and t[0] == "ST"); a("s_barrier")
    for g in rest:
        if groups[g][1] is None: sig(g)
    rest = [g for g in late if groups[g][1] is not None and groups[g][1] < 27] + rest
    st("drain")
    for g in rest:
        nx = sum(1 for x in pend if x[0] == "x")
        issue(nx - opt("keep", 6))
        [emit(x) for x in poll_issue(g)]
        issue(99)
        poll_check(g); a("s_barrier")
        if g == rest[-1]: st("sync4")
        for c in groups[g][0]: pend += pload(c)
    issue(99)
    for c in range(done, 9):
        red(c)
        if c >= 3 and c % 2 == 1: out(c // 2 - 1)
    st("loaded")
    out(3); out(4)
    st("end")
    a.spins = spins
```

```python
import sys, json
from common import *
from p1 import softmax, LOG2E
import ffn16, ffn17
from ffn16 import UNIT

REG = 36864; SP = 4 * REG; MOFF = SP; KVL = SP + 6144; ZERO = KVL + 3072
KVS = 2816; QOFF = 9 * KVS; QS = 1280
C1, C2, C3, C4 = FLAGS, FLAGS + 4096, FLAGS + 8192, FLAGS + 12288
PB = 768

def divu(a, dst, src, d, tmp=None):
    a(f"v_mul_u32_u24 v{dst}, {65536//d+1}, v{src}\nv_lshrrev_b32 v{dst}, 16, v{dst}")

def touch_rows(a, srd_, nrow_lines, rowstride, sbase, nitems, vdst, first=0):
    a(f"v_add_u32 v18, {first}, v14" if first else "v_mov_b32 v18, v14")
    divu(a, 16, 18, nrow_lines)
    a(f"""v_mul_u32_u24 v17, {nrow_lines}, v16
    v_sub_u32 v17, v18, v17
    v_mul_u32_u24 v16, {rowstride}, v16
    v_lshl_add_u32 v16, v17, 7, v16
    v_mov_b32 v17, 0x7fffff00
    v_cmp_gt_u32 vcc, {nitems}, v18
    v_cndmask_b32 v16, v17, v16, vcc""")
    a(f"buffer_load_dword {vdst}, v16, {srd_}, {sbase} offen", vtag="touch")

def gen(diag, opts):
    a = A("K"); st = Stamps(a, diag, 0)
    X = lambda k: 112 + 4 * k
    T0, T2, T3, T1, PX = 48, 64, 80, 96, 32
    a("s_cmp_ge_u32 s2, 256\ns_cbranch_scc1 K_end")
    a("""s_load_dwordx4 s[4:7], s[0:1], 0
    s_load_dwordx4 s[8:11], s[0:1], 16
    s_load_dwordx4 s[88:91], s[0:1], 72""")
    st("entry")
    code_prefetch(a, "K_start", "K_end", 16, "a[0:1]", reps=2)
    a("K_start:")
    a("""v_lshrrev_b32 v16, 6, v0
    v_and_b32 v15, 63, v0
    v_mov_b32 v14, v0
    v_readfirstlane_b32 s30, v16
    s_and_b32 s31, s2, 3
    s_lshl_b32 s31, s31, 2
    s_bfe_u32 s33, s2, 0x20003
    s_add_u32 s32, s31, s33
    s_bfe_u32 s31, s2, 0x10002
    s_lshl_b32 s31, s31, 3
    s_lshr_b32 s33, s2, 5
    s_add_u32 s31, s31, s33""")
    a("""v_lshrrev_b32 v16, 3, v15
    v_mul_u32_u24 v16, 1152, v16
    v_lshrrev_b32 v17, 4, v15
    v_and_b32 v18, 7, v15
    v_xor_b32 v18, v18, v17
    v_lshl_add_u32 v0, v18, 4, v16
    v_xor_b32 v1, 64, v0
    v_add_u32 v1, 8192, v1
    v_add_u32 v2, 16384, v0
    v_add_u32 v3, 16384, v1""")
    a(f"""s_mul_i32 s34, s30, {REG}
    s_lshl_b32 s35, s32, 2
    s_add_u32 s35, s35, s30
    s_mul_i32 s36, s35, {32*1152}
    s_lshr_b32 s28, s2, 3
    s_and_b32 s29, s2, 7
    s_waitcnt lgkmcnt(0)""")
    srd(a, 12, 4, 5, 2048 * 1152)
    srd(a, 16, 6, 7, 576 * 3456)
    srd(a, 20, 90, 91, WS_BYTES)
    srd(a, 40, 8, 9, 32 * 648)
    srd(a, 24, 88, 89, 256)
    srd(a, 44, 10, 11, 576 * 1152)
    a("s_load_dwordx8 s[4:11], s[0:1], 40")
    st("start")
    def touch_x():
        a(f"""s_and_b32 s37, s29, 3
        s_lshl_b32 s37, s37, 5
        s_add_u32 s37, s37, s28
        s_mul_i32 s37, s37, {16*1152}
        v_lshlrev_b32 v16, 7, v14
        v_mov_b32 v17, 0x7fffff00
        v_cmp_gt_u32 vcc, 144, v14
        v_cndmask_b32 v16, v17, v16, vcc""")
        a("buffer_load_dword a2, v16, s[12:15], s37 offen", vtag="touch")
    def touch_wq():
        a(f"""s_mul_i32 s37, s28, {18*3456}
        s_lshr_b32 s38, s29, 2
        s_lshl_b32 s38, s38, 9
        s_add_u32 s37, s37, s38""")
        touch_rows(a, "s[16:19]", 5, 1152, "s37", 270, "a3")
        touch_rows(a, "s[16:19]", 5, 1152, "s37", 270, "a4", first=256)
    if "tx" in opts: touch_x()
    if "twq0" in opts: touch_wq()
    norot = "norot" in opts
    if norot: a("s_mov_b32 s99, 0")
    else:
        a("""s_and_b32 s37, s32, 3
        s_lshl_b32 s37, s37, 1
        s_and_b32 s99, s31, 7
        s_add_u32 s99, s99, s37
        s_cmp_ge_u32 s99, 9
        s_cselect_b32 s37, 9, 0
        s_sub_u32 s99, s99, s37""")
    a("s_lshl_b32 s37, s99, 7\ns_add_u32 s33, s36, 1152\ns_add_u32 s36, s36, s37")
    def xdma(cc):
        a(f"s_add_u32 m0, s34, {cc*4096}")
        if cc: a("s_add_u32 s36, s36, 128\ns_cmp_ge_u32 s36, s33\ns_cselect_b32 s37, 1152, 0\ns_sub_u32 s36, s36, s37")
        else: a("s_nop 0")
        for q in range(4):
            a(f"buffer_load_dwordx4 v{q}, s[12:15], s36 offen offset:{q*1024} lds", vtag=("x", cc))
    b = A("S")
    b.nlab = 1000
    sk = b.lab("noinit")
    b(f"""s_add_u32 s38, s2, s30
    s_cmp_lg_u32 s38, 0
    s_cbranch_scc1 {sk}
    v_lshlrev_b32 v16, 8, v15
    v_mov_b32 v17, 0
    s_mov_b32 s38, {FLAGS}
    buffer_store_dword v17, v16, s[20:23], s38 offen sc1
    s_add_u32 s38, s38, 16384
    buffer_store_dword v17, v16, s[20:23], s38 offen sc1
    s_add_u32 s38, s38, 16384
    buffer_store_dword v17, v16, s[20:23], s38 offen sc1
    s_add_u32 s38, s38, 16384
    buffer_store_dword v17, v16, s[20:23], s38 offen sc1
    s_waitcnt vmcnt(0)
    v_mov_b32 v16, 1
    s_mov_b64 exec, 1
    buffer_store_dword v16, v17, s[24:27], 0 offen sc1
    s_mov_b64 exec, -1
    {sk}:""")
    init_code = b.l; b.l = []
    b("""v_and_b32 v16, 31, v15
    v_lshrrev_b32 v17, 2, v16
    v_lshlrev_b32 v17, 1, v17
    v_and_b32 v18, 1, v16
    v_add_u32 v17, v17, v18
    v_lshrrev_b32 v19, 5, v15
    v_mul_u32_u24 v19, 9, v19
    v_add_lshl_u32 v19, v19, v17, 2
    v_mov_b32 v22, 0x7fffff00
    v_cmp_gt_u32 vcc, 9, v17
    v_cndmask_b32 v19, v22, v19, vcc
    v_bfe_u32 v16, v16, 1, 1
    v_cmp_eq_u32 vcc, 0, v16
    v_cndmask_b32 v20, v22, v19, vcc
    v_cndmask_b32 v21, v19, v22, vcc""")
    b(f"""v_mov_b32 v24, 0
    v_mov_b32 v25, 0
    v_mov_b32 v26, 0
    v_mov_b32 v27, 0
    v_lshlrev_b32 v16, 4, v14
    v_add_u32 v16, {KVL}, v16
    ds_write_b128 v16, v[24:27]""")
    b("""v_and_b32 v16, 31, v15
    v_lshrrev_b32 v17, 5, v15
    v_bfe_u32 v18, v15, 1, 3
    v_xor_b32 v18, v18, v17
    v_lshlrev_b32 v18, 4, v18
    v_lshl_add_u32 v18, v16, 7, v18
    v_add_u32 v4, s34, v18
    v_xor_b32 v5, 32, v4
    v_xor_b32 v6, 64, v4
    v_xor_b32 v7, 96, v4""")
    for i in range(3):
        b(f"v_add_u32 v16, {64*i}, v15")
        divu(b, 17, 16, 11)
        b(f"""v_mul_u32_u24 v18, 11, v17
        v_sub_u32 v18, v16, v18
        v_and_b32 v19, 3, v17
        v_lshrrev_b32 v17, 2, v17
        v_lshl_add_u32 v17, v19, 2, v17
        v_mul_u32_u24 v17, 3456, v17
        v_lshl_add_u32 v17, v18, 4, v17
        v_mov_b32 v19, {1152 + 2048 - i*1024}
        v_mov_b32 v16, {2304 - 80 + 2048 - i*1024}
        v_cmp_lt_u32 vcc, 4, v18
        v_cndmask_b32 v19, v19, v16, vcc
        v_mov_b32 v16, {2304 + 36 - 128 + 2048 - i*1024}
        v_cmp_lt_u32 vcc, 7, v18
        v_cndmask_b32 v19, v19, v16, vcc
        v_add_u32 v{8+i}, v17, v19""")
    b("""v_cmp_gt_u32 vcc, 48, v15
    v_cndmask_b32 v10, v22, v10, vcc""")
    for i, dst in ((0, 11), (1, 31)):
        b(f"v_add_u32 v16, {64*i}, v15")
        divu(b, 17, 16, 5)
        b(f"""v_mul_u32_u24 v18, 5, v17
        v_sub_u32 v18, v16, v18
        v_and_b32 v19, 3, v17
        v_lshrrev_b32 v17, 2, v17
        v_lshl_add_u32 v17, v19, 2, v17
        v_mul_u32_u24 v17, 3456, v17
        v_lshl_add_u32 v17, v18, 4, v17
        v_add_u32 v{dst}, {2048 - 1024*i}, v17""")
    b(f"""v_lshrrev_b32 v16, 5, v15
    v_bfe_u32 v17, v15, 2, 2
    v_lshl_add_u32 v28, v16, 3, v17
    v_lshlrev_b32 v13, 1, v16
    v_lshl_add_u32 v13, v17, 2, v13
    v_bfe_u32 v18, v15, 4, 1
    v_and_b32 v19, 3, v15
    v_lshl_add_u32 v29, v18, 2, v19
    v_lshl_add_u32 v16, v16, 2, v17
    v_lshlrev_b32 v16, 7, v16
    v_lshl_add_u32 v16, v29, 3, v16
    v_add_u32 v30, {MOFF}, v16""")
    setup = [x.text for x in b.l]
    LA = next((int(o[2:]) for o in opts if o.startswith("la")), 3)
    xdma(0); xdma(1)
    for x in setup: a(x)
    for cc in range(2, LA): xdma(cc)
    a(f"s_sub_u32 s16, s16, 2048\ns_subb_u32 s17, s17, 0\ns_add_u32 s18, s18, 2048")
    def mdma():
        a("s_mul_i32 s38, s30, 6\ns_mul_i32 s39, s31, 1296")
        for i in range(6):
            a(f"""s_add_u32 s37, s38, {i}
            s_lshl_b32 s100, s37, 8
            s_add_u32 m0, s100, {MOFF}
            s_cmp_lt_u32 s37, 9
            s_cselect_b64 vcc, -1, 0
            v_cndmask_b32 v16, v21, v20, vcc
            s_mul_i32 s100, s37, 72
            s_add_u32 s100, s100, s39
            s_cmp_ge_u32 s37, 18
            s_cselect_b32 s100, 0x100000, s100""")
            a("buffer_load_dword v16, s[40:43], s100 offen lds", vtag="wphi")
    mdma()
    saved = list(a.vm)
    for x in init_code: a(x.text)
    a.vm = saved
    st("d1")
    WP = lambda tile, stp: 232 + 4 * (3 * tile + stp)
    a("s_mov_b32 s50, 0x3f803f80")
    a(f"""s_mul_i32 s101, s30, {16*3456}
    s_mul_i32 s37, s31, 72
    s_add_u32 s101, s101, s37
    s_add_u32 s100, s101, {576*3456}
    s_mul_i32 s37, s99, {64*3456}
    s_add_u32 s101, s101, s37
    s_mov_b32 s51, s101""")
    def stats(cc):
        for kk in range(4):
            for j in range(4):
                r = X(4 * cc + kk) + j
                a(f"v_dot2_f32_bf16 v{24+(j&1)}, v{r}, s50, v{24+(j&1)}\nv_dot2_f32_bf16 v{26+(j&1)}, v{r}, v{r}, v{26+(j&1)}")
    def kvdma(j):
        r = [f"s_add_u32 m0, s34, {j*KVS}", f"s_add_u32 s101, s101, {64*3456}\ns_cmp_ge_u32 s101, s100\ns_cselect_b32 s37, {576*3456}, 0\ns_sub_u32 s101, s101, s37" if j else "s_nop 0"]
        r += [(f"buffer_load_dwordx4 v{8+i}, s[16:19], s101 offen offset:{i*1024} lds", ("w", j)) for i in range(3)]
        return r
    def em(x):
        if isinstance(x, tuple): a(x[0], vtag=x[1])
        else: a(x)
    NW0 = next((int(o[3:]) for o in opts if o.startswith("nw0")), LA)
    nkv = 0
    for cc in range(9):
        a.wait(v=("x", cc))
        if cc == 0: st("x0")
        for kk in range(4):
            a(f"ds_read_b128 {vr(X(4*cc+kk),4)}, v{4+kk} offset:{cc*4096}", ltag=("xr", cc))
        if cc + LA < 9: xdma(cc + LA)
        elif nkv < NW0:
            [em(x) for x in kvdma(nkv)]; nkv += 1
        if cc:
            a.wait(l=("xr", cc - 1))
            stats(cc - 1)
    a("s_waitcnt lgkmcnt(0)")
    st("xall")
    stats(8)
    while nkv < NW0:
        [em(x) for x in kvdma(nkv)]; nkv += 1
    a(f"""v_mul_u32_u24 v16, 176, v13
    v_lshl_add_u32 v0, v29, 3, v16
    v_and_b32 v17, 1, v29
    v_mul_u32_u24 v17, 48, v17
    v_lshrrev_b32 v18, 1, v29
    v_lshl_add_u32 v17, v18, 3, v17
    v_add3_u32 v2, v16, v17, 64
    v_add_u32 v2, 16, v2
    v_mov_b32 v17, 64
    v_mov_b32 v18, 112
    v_cmp_eq_u32 vcc, 2, v29
    v_cndmask_b32 v17, v17, v18, vcc
    v_mov_b32 v18, 160
    v_cmp_eq_u32 vcc, 3, v29
    v_cndmask_b32 v17, v17, v18, vcc
    v_add_u32 v4, v16, v17
    v_mul_u32_u24 v16, 80, v13
    v_lshl_add_u32 v6, v29, 3, v16
    v_add_u32 v6, {QOFF}, v6
    v_add_u32 v47, {QOFF+64}, v16""")
    for q in (0, 2, 4, 6): a(f"v_add_u32 v{q+1}, {2*REG}, v{q}")
    a("""v_add_f32 v24, v24, v25
    v_add_f32 v26, v26, v27
    v_mov_b32 v25, v24
    v_mov_b32 v27, v26
    v_permlane32_swap_b32 v24, v25
    v_permlane32_swap_b32 v26, v27
    v_add_f32 v24, v24, v25
    v_add_f32 v26, v26, v27
    v_mul_f32 v24, 0x3ae38e39, v24
    v_mul_f32 v26, 0x3ae38e39, v26
    v_fma_f32 v26, -v24, v24, v26
    v_max_f32 v26, 0, v26
    v_add_f32 v26, 0x3727c5ac, v26
    v_rsq_f32 v12, v26
    s_mov_b32 s50, 0xffff0000
    v_mul_f32_e64 v13, -v24, v12""")
    def norm(k, pk):
        b = X(k); r = []
        for j in range(4):
            r.append(f"v_lshlrev_b32_e32 v{16+2*j}, 16, v{b+j}")
            r.append(f"v_and_b32_e32 v{17+2*j}, s50, v{b+j}")
        if pk:
            for j in range(4): r.append(f"v_pk_fma_f32 v[{16+2*j}:{17+2*j}], v[{16+2*j}:{17+2*j}], v[12:13], v[12:13] op_sel:[0,0,1] op_sel_hi:[1,0,1]")
        else:
            for j in range(8): r.append(f"v_fma_f32 v{16+j}, v{16+j}, v12, v13")
        for j in range(4): r.append(f"v_cvt_pk_bf16_f32 v{b+j}, v{16+2*j}, v{17+2*j}")
        return r
    NPRE = next((int(o[4:]) for o in opts if o.startswith("npre")), 6)
    for k in range(NPRE):
        for x in norm(k, True): a(x)
    st("stats")
    AF = lambda i: 4 * (i % 8)
    def reads(i, lst):
        ks, T, ad, sz = lst[i]
        w, j = ks % 4, ks // 4
        o = (w % 2) * REG + j * 16 * sz; f = AF(i)
        return [f"ds_read_b64_tr_b16 a[{f}:{f+1}], v{ad + w//2} offset:{o}", f"ds_read_b64_tr_b16 a[{f+2}:{f+3}], v{ad + w//2} offset:{o+sz}"]
    D = 6
    def gemm(lst, valq, bars, memq, nval=5, mper=2, hook=None):
        N = len(lst); per = N // 36
        def maybe_bar(i):
            if i < N and i % (4 * per) == 0 and (i // (4 * per)) in bars:
                lim = bars[i // (4 * per)]
                while any(isinstance(x, tuple) and isinstance(x[1], tuple) and x[1][0] == "w" and x[1][1] <= lim for x in memq): em(memq.pop(0))
                a.wait(v=lambda t: isinstance(t, tuple) and t[0] == "w" and t[1] <= lim); a("s_barrier")
        for i in range(D):
            maybe_bar(i)
            for r in reads(i, lst): a(r, ltag=("A", i))
        for i in range(N):
            ks, T, ad, sz = lst[i]
            while any(d <= i for (_, d) in valq): a(valq.pop(0)[0])
            a.wait(l=lambda t: isinstance(t, tuple) and t[0] == "A" and t[1] <= i)
            f = AF(i)
            a(f"v_mfma_f32_32x32x16_bf16 {vr(T,16)}, a[{f}:{f+3}], {vr(X(ks),4)}, {'0' if ks == 0 else vr(T,16)}")
            if i % 2 == 1: a.wait(l=lambda t: isinstance(t, tuple) and t[0] == "A" and t[1] <= i + 2)
            if i + D < N:
                maybe_bar(i + D)
                for r in reads(i + D, lst): a(r, ltag=("A", i + D))
            n = 0
            if hook and i in hook: hook[i]()
            if memq and i % mper == 0:
                while memq and not isinstance(memq[0], tuple): em(memq.pop(0))
                if memq: em(memq.pop(0)); n += 1
            while valq and n < nval: a(valq.pop(0)[0]); n += 1
        for x in memq: em(x)
    memq = [x for j in range(NW0, 9) for x in kvdma(j)]
    qq = []
    for j in range(9):
        qq.append([f"s_add_u32 m0, s34, {QOFF + j*QS}", f"s_add_u32 s51, s51, {64*3456}\ns_cmp_ge_u32 s51, s100\ns_cselect_b32 s37, {576*3456}, 0\ns_sub_u32 s51, s51, s37" if j else "s_nop 0",
                 ("buffer_load_dwordx4 v11, s[16:19], s51 offen lds", "wq"), "s_mov_b64 exec, 0xffff",
                 ("buffer_load_dwordx4 v31, s[16:19], s51 offen offset:1024 lds\ns_mov_b64 exec, -1", "wq")])
    NQ = next((int(o[2:]) for o in opts if o.startswith("nq")), 4)
    for g in qq[:NQ]: memq += g
    qq = qq[NQ:]
    valq = [(x, 3 * k - 1) for k in range(NPRE, 36) for x in norm(k, False)]
    fr = [(ks, T, ad, 176) for ks in range(36) for (T, ad) in ((T0, 0), (T2, 2), (T3, 4))]
    bars = {j: j for j in range(9)}
    if "xnodma" in opts: memq = []
    if "xnobar" in opts: bars = {0: 0}
    if "xnoval" in opts: valq = []
    gemm(fr, valq, bars, memq, mper=next((int(o[2:]) for o in opts if o.startswith('mp')), 4))
    st("gemm")
    for tile in range(2):
        for stp in range(3):
            f = WP(tile, stp)
            a(f"ds_read_b64_tr_b16 a[{f}:{f+1}], v30 offset:{stp*2048 + tile*64}\nds_read_b64_tr_b16 a[{f+2}:{f+3}], v30 offset:{stp*2048 + tile*64 + 1024}")
    a(f"s_mov_b32 s48, {LOG2E}\ns_mov_b32 s49, {LOG2E}")
    a("v_mov_b32 v16, 0\nbuffer_load_dword v2, v16, s[24:27], 0 offen sc1", vtag="ini")
    a(f"s_barrier\nv_mov_b32 v0, v47\nv_add_u32 v1, {2*REG}, v47")
    for q in range(8): a(f"v_cvt_pk_bf16_f32 v{T0+q}, v{T0+2*q}, v{T0+2*q+1}")
    for q in range(4): a(f"v_cvt_pk_bf16_f32 v{56+q}, v{T3+2*q}, v{T3+2*q+1}")
    def feat(B):
        for stp in range(3):
            for tile, T in ((1, PX), (0, T1)):
                f = WP(tile, stp)
                a(f"v_mfma_f32_32x32x16_bf16 {vr(T,16)}, a[{f}:{f+3}], {vr(B[stp],4)}, {'0' if stp == 0 else vr(T,16)}")
    a("s_waitcnt lgkmcnt(0)")
    feat((48, 52, 56))
    for q in range(8): a(f"v_cvt_pk_bf16_f32 v{T2+q}, v{T2+2*q}, v{T2+2*q+1}")
    a(f"""v_and_b32 v16, 31, v15
    v_mul_u32_u24 v16, 144, v16
    v_lshrrev_b32 v17, 5, v15
    v_mul_u32_u24 v17, 4608, v17
    v_add3_u32 v8, v16, v17, s34
    s_lshr_b32 s36, s30, 1
    s_mul_i32 s36, s36, 4608
    s_and_b32 s37, s30, 1
    s_mul_i32 s37, s37, 40
    v_mul_u32_u24 v16, 144, v28
    v_lshl_add_u32 v16, v29, 3, v16
    v_add_u32 v10, s36, v16
    v_add_u32 v9, s37, v10
    v_add_u32 v10, 80, v10
    v_add_u32 v11, {2*REG}, v9
    v_add_u32 v12, {2*REG}, v10
    v_mov_b32 v4, v11
    v_mov_b32 v5, v31""".replace("v_add_u32 v11,", "v_add_u32 v3,"))
    a(f"v_mov_b32 v94, v{PX}\nv_mov_b32 v95, v{PX+1}")
    b = A("S"); softmax(b, 94, 72); sm = [x.text for x in b.l]
    per = len(sm) // (len(qq) + 1)
    for g in qq:
        for x in g: em((x[0].replace("v11,", "v4,").replace("v31,", "v5,"), x[1]) if isinstance(x, tuple) else x)
        for x in sm[:per]: a(x)
        sm = sm[per:]
    for x in sm: a(x)
    if "tw1" in opts: touch_w(a, 1)
    for blk, S in ((16, 94), (26, 72)):
        for q in range(8): a(f"v_cvt_pk_bf16_f32 v{blk+q}, v{S+2+2*q}, v{S+3+2*q}")
        a(f"v_cvt_pk_bf16_f32 v{blk+8}, v{S}, v{S+1}")
    for q in range(8): a(f"v_mov_b32 v{36+q}, v{T2+q}")
    a("v_mov_b32 v44, v58\nv_mov_b32 v45, 0x3f80")
    for q in range(7): a(f"ds_write_b128 v8, {vr(16+4*q,4)} offset:{16*q}")
    a("ds_write_b64 v8, v[44:45] offset:112")
    a.wait(v="wq")
    a("s_waitcnt lgkmcnt(0)\ns_barrier")
    st("smk")
    for stp in range(8):
        w = stp // 2; o = (w % 2) * REG + (stp % 2) * 16 * 144
        va, vb = (9, 10) if w < 2 else (3, 12)
        f = 8 * stp
        a(f"ds_read_b64_tr_b16 a[{f}:{f+1}], v{va} offset:{o}\nds_read_b64_tr_b16 a[{f+2}:{f+3}], v{va} offset:{o+576}", ltag=("Z", stp))
        a(f"ds_read_b64_tr_b16 a[{f+4}:{f+5}], v{vb} offset:{o}\nds_read_b64_tr_b16 a[{f+6}:{f+7}], v{vb} offset:{o+576}", ltag=("Z", stp))
        if stp >= 2:
            s2 = stp - 2; f = 8 * s2
            a.wait(l=("Z", s2))
            a(f"v_mfma_f32_32x32x16_bf16 v[64:79], a[{f}:{f+3}], a[{f+4}:{f+7}], {'0' if s2 == 0 else 'v[64:79]'}")
    for s2 in (6, 7):
        f = 8 * s2
        a.wait(l=("Z", s2))
        a(f"v_mfma_f32_32x32x16_bf16 v[64:79], a[{f}:{f+3}], a[{f+4}:{f+7}], v[64:79]")
    a(f"""s_lshl_b32 s36, s31, 6
    s_add_u32 s36, s36, s30
    s_mul_i32 s52, s36, {PB}
    s_add_u32 s52, s52, {KVP}
    s_mul_i32 s37, s32, {4*PB}
    s_add_u32 s37, s37, s52
    v_lshrrev_b32 v16, 5, v15
    v_mul_u32_u24 v16, 12, v16
    v_sub_u32 v16, v15, v16
    v_lshlrev_b32 v3, 4, v16
    v_and_b32 v16, 31, v15
    v_lshlrev_b32 v9, 2, v16
    v_lshlrev_b32 v8, 4, v15
    s_mov_b32 s54, 0xfffff
    s_mov_b32 s55, 0xfffff
    s_lshl_b32 s53, s31, 8
    s_add_u32 s53, s53, {C1}""")
    for q in range(5): a(f"v_cvt_pk_bf16_f32 v{16+q}, v{64+2*q}, v{65+2*q}")
    a("""s_mov_b64 exec, s[54:55]
    buffer_store_dwordx4 v[16:19], v3, s[20:23], s37 offen sc1
    s_mov_b32 exec_lo, -1
    s_mov_b32 exec_hi, 0
    buffer_store_dword v20, v9, s[20:23], s37 offen offset:640 sc1
    s_mov_b64 exec, -1""")
    st("kvmm")
    def sig1():
        a("s_waitcnt vmcnt(0)\ns_barrier")
        signal(a, "s53", check_init=2)
        st("kvst")
        if "tw2" in opts: touch_w(a, 2)
    HK = next((int(o[2:]) for o in opts if o.startswith("hk")), 20)
    gemm([(ks, T, ad, 80) for ks in range(36) for (T, ad) in ((T1, 6), (T3, 0))], [], {}, [], hook={HK: sig1})
    st("qgemm")
    poll(a, "s53", 16)
    st("sync1")
    a("s_mov_b64 exec, s[54:55]")
    for p in range(16):
        if p: a(f"s_add_u32 s52, s52, {4*PB}")
        a(f"buffer_load_dwordx4 {vr(112+4*p,4)}, v3, s[20:23], s52 offen sc1", vtag=("kv", p))
        a(f"buffer_load_dword v{176+p}, v9, s[20:23], s52 offen offset:640 sc1", vtag=("kv", p))
    a("s_mov_b64 exec, -1")
    for q in range(8): a(f"v_cvt_pk_bf16_f32 v{48+q}, v{T1+2*q}, v{T1+2*q+1}")
    for q in range(4): a(f"v_cvt_pk_bf16_f32 v{56+q}, v{T3+2*q}, v{T3+2*q+1}")
    feat((48, 52, 56))
    a(f"""v_bfe_u32 v16, v15, 2, 1
    v_lshrrev_b32 v17, 5, v15
    v_bfe_u32 v18, v15, 3, 2
    v_and_b32 v19, 3, v15
    v_lshl_add_u32 v20, v18, 2, v19
    v_mul_u32_u24 v20, 80, v20
    v_mul_u32_u24 v21, 1536, v17
    v_add_u32 v20, v20, v21
    v_add_u32 v20, {KVL}, v20
    v_mov_b32 v22, {ZERO}
    v_cmp_eq_u32 vcc, v16, v17
    v_cndmask_b32 v10, v22, v20, vcc
    v_add_u32 v20, 1280, v20
    v_cndmask_b32 v11, v22, v20, vcc
    v_cmp_eq_u32 vcc, 0, v18
    v_cndmask_b32 v11, v22, v11, vcc
    v_cmp_gt_u32 vcc, 3, v19
    v_cndmask_b32 v11, v22, v11, vcc
    v_and_b32 v16, 31, v15
    v_mul_u32_u24 v16, 80, v16
    s_lshr_b32 s36, s30, 1
    s_mul_i32 s36, s36, 1536
    s_add_u32 s36, s36, {KVL}
    s_and_b32 s37, s30, 1
    s_lshl_b32 s38, s37, 5
    s_lshl_b32 s37, s37, 2
    v_add_u32 v16, s36, v16
    v_lshl_add_u32 v13, v17, 4, v16
    v_add_u32 v13, s38, v13
    v_add_u32 v12, s37, v16""")
    a(f"v_mov_b32 v94, v{PX}\nv_mov_b32 v95, v{PX+1}")
    softmax(a, 94, 72)
    for sgn, S in ((0, 94), (1, 72)):
        for h in range(2):
            d = 48 + 8 * sgn + 4 * h
            for q in range(4):
                f = 4 * h + 2 * (q % 2) + 8 * (q // 2)
                a(f"v_cvt_pk_bf16_f32 v{d+q}, v{S+2+f}, v{S+3+f}")
        a(f"v_cvt_pk_bf16_f32 v{64+sgn}, v{S}, v{S+1}")
    a("v_mov_b32 v66, 0\nv_mov_b32 v67, 0")
    st("smq")
    a("s_mov_b32 s50, 0x3f80\ns_mov_b32 s51, 0x3f800000")
    for p in range(16):
        a.wait(v=("kv", p))
        for q in range(5):
            r = 112 + 4 * p + q if q < 4 else 176 + p
            c0 = f"v{72+2*q}" if p else "0"; c1 = f"v{73+2*q}" if p else "0"
            a(f"v_dot2_f32_bf16 v{72+2*q}, v{r}, s50, {c0}\nv_dot2_f32_bf16 v{73+2*q}, v{r}, s51, {c1}")
    for q in range(5): a(f"v_cvt_pk_bf16_f32 v{16+q}, v{72+2*q}, v{73+2*q}")
    a("""s_mov_b32 exec_lo, 0x7ffff
    s_mov_b32 exec_hi, 0x7ffff
    ds_write_b128 v13, v[16:19]
    s_mov_b32 exec_hi, 0
    ds_write_b32 v12, v20 offset:64
    s_mov_b64 exec, -1
    s_waitcnt lgkmcnt(0)
    s_barrier""")
    st("kvred")
    for stp in range(5):
        for tile in range(2):
            f = 8 * stp + 4 * tile
            a(f"ds_read_b128 a[{f}:{f+3}], v{10+tile} offset:{16*stp}", ltag=("K", stp))
    a(f"""s_mul_i32 s36, s35, 36864
    s_add_u32 s36, s36, {OFRAG}
    s_lshl_b32 s37, s31, 8
    s_add_u32 s37, s37, s36
    v_lshlrev_b32 v9, 2, v15
    s_add_u32 s37, s37, 32768
    s_lshl_b32 s38, s31, 11
    s_add_u32 s36, s36, s38
    s_lshl_b32 s53, s32, 8
    s_add_u32 s53, s53, {C2}""")
    for stp in range(5):
        a.wait(l=("K", stp))
        for tile, T in ((1, 96), (0, 80)):
            f = 8 * stp + 4 * tile
            a(f"v_mfma_f32_32x32x16_bf16 {vr(T,16)}, a[{f}:{f+3}], {vr(48+4*stp,4)}, {'0' if stp == 0 else vr(T,16)}")
    a("v_add_f32 v98, 0x358637bd, v98\nv_rcp_f32 v98, v98")
    for q in range(0, 18, 2):
        a(f"v_pk_mul_f32 v[{80+q}:{81+q}], v[{80+q}:{81+q}], v[98:99] op_sel_hi:[1,0]")
    for q in range(9): a(f"v_cvt_pk_bf16_f32 v{16+q}, v{80+2*q}, v{81+2*q}")
    a(f"""buffer_store_dwordx4 v[16:19], v8, s[20:23], s36 offen sc1
    buffer_store_dwordx4 v[20:23], v8, s[20:23], s36 offen offset:1024 sc1
    buffer_store_dword v24, v9, s[20:23], s37 offen sc1
    s_waitcnt vmcnt(0)
    s_barrier""")
    signal(a, "s53")
    st("ost")
    st.dump("s[20:23]", "s30", 16, 17)
    a("s_cmp_ge_u32 s28, 18\ns_cbranch_scc1 K_idle")
    p2b(a, st, opts)
    a("s_branch K_ffn\nK_idle:")
    if "tw3" in opts: touch_w(a, 3)
    a("K_ffn:")
    a.vm = ["unknown"] * 8
    a.spins = []
    (ffn16 if "f16" in opts else ffn17).ffn_body(a, st, opts, C3, C4)
    st.dump("s[20:23]", "s30", 16, 17)
    a("s_endpgm")
    for x in a.spins: a(x)
    a("K_end:\ns_endpgm")
    return a, st

def touch_w(a, which):
    if which == 1:
        a(f"s_mul_i32 s37, s28, {18*1152}")
        touch_rows(a, "s[44:47]", 9, 1152, "s37", 162, "a100")
    if which in (1, 2):
        a(f"s_mul_i32 s37, s28, {6*9216}\ns_mul_i32 s38, s29, 1152\ns_add_u32 s37, s37, s38\ns_add_u32 s37, s37, {(which-1)*192*9216}")
        for m in range(2):
            srd(a, 92, 4 + 2 * m, 5 + 2 * m, 576 * 9216)
            touch_rows(a, "s[92:95]", 9, 9216, "s37", 54, f"a{101+m}")
    else:
        a(f"s_sub_u32 s39, s28, 18\ns_mul_i32 s37, s39, {14*9216}\ns_mul_i32 s38, s29, 1152\ns_add_u32 s37, s37, s38\ns_add_u32 s37, s37, {384*9216}")
        for m in range(2):
            srd(a, 92, 4 + 2 * m, 5 + 2 * m, 576 * 9216)
            touch_rows(a, "s[92:95]", 9, 9216, "s37", 126, f"a{101+m}")
        a(f"s_mul_i32 s37, s39, {42*1152}\ns_mul_i32 s38, s29, {576*1152}\ns_add_u32 s37, s37, s38")
        srd(a, 92, 8, 9, 4608 * 1152)
        touch_rows(a, "s[92:95]", 9, 1152, "s37", 378, "a103")
        touch_rows(a, "s[92:95]", 9, 1152, "s37", 378, "a104", first=256)

def p2b(a, st, opts):
    O = lambda k: 112 + 4 * k
    a("""s_cmp_ge_u32 s28, 9
    s_cselect_b32 s31, 9, 0
    s_cselect_b32 s32, 1, 0
    s_sub_u32 s31, s28, s31
    s_lshl_b32 s33, s29, 1
    s_add_u32 s32, s32, s33""")
    a("""v_lshrrev_b32 v16, 3, v15
    v_and_b32 v17, 7, v15
    v_bfe_u32 v18, v15, 4, 1
    v_lshlrev_b32 v18, 2, v18
    v_xor_b32 v17, v17, v18
    v_lshlrev_b32 v17, 4, v17
    v_mul_u32_u24 v18, 1152, v16
    v_add_u32 v0, v18, v17
    v_lshrrev_b32 v18, 1, v16
    v_mul_u32_u24 v18, 36, v18
    v_and_b32 v16, 1, v16
    v_add_u32 v18, v18, v16
    v_mul_u32_u24 v18, 1152, v18
    v_add_u32 v1, v18, v17
    s_lshl_b32 s35, s32, 2
    s_add_u32 s35, s35, s30""")
    a(f"""s_and_b32 s33, s30, 1
    s_lshr_b32 s34, s30, 1
    s_mul_i32 s36, s33, {18*1152}
    s_lshl_b32 s37, s31, 7
    s_add_u32 s36, s36, s37
    s_mul_i32 s37, s34, {8*1152}
    s_add_u32 s38, s36, s37
    s_mul_i32 s37, s34, {144*1152}
    s_add_u32 s39, s36, s37
    s_add_u32 s39, s39, {16*1152}
    s_lshl_b32 s40, s30, 10
    s_mul_i32 s41, s35, 36864
    s_add_u32 s42, s41, {OFRAG}
    s_lshl_b32 s53, s32, 8
    s_add_u32 s53, s53, {C2}""")
    rot2 = "norot2" not in opts
    if rot2:
        a(f"""s_lshl_b32 s99, s31, 1
        s_and_b32 s99, s99, 15
        s_add_u32 s100, s38, {576*1152}
        s_mul_i32 s37, s99, {36*1152}
        s_add_u32 s38, s38, s37
        s_add_u32 s101, s42, 32768
        s_lshl_b32 s37, s99, 11
        s_add_u32 s42, s42, s37""")
    for i in range(18):
        a(f"s_add_u32 m0, s40, {i*4096}")
        if i < 16:
            a((f"s_add_u32 s38, s38, {36*1152}" + (f"\ns_cmp_ge_u32 s38, s100\ns_cselect_b32 s37, {576*1152}, 0\ns_sub_u32 s38, s38, s37" if rot2 else "")) if i else "s_nop 0")
            a("buffer_load_dwordx4 v0, s[44:47], s38 offen lds", vtag="w")
        else:
            a(f"s_add_u32 s39, s39, {288*1152}" if i == 17 else "s_nop 0")
            a("buffer_load_dwordx4 v1, s[44:47], s39 offen lds", vtag="w")
    a(f"""v_and_b32 v16, 31, v15
    v_mul_u32_u24 v16, 1152, v16
    v_lshrrev_b32 v17, 5, v15
    v_lshl_add_u32 v9, v17, 3, v16
    s_mul_i32 s36, s35, {32*1152}
    s_lshl_b32 s37, s31, 7
    s_add_u32 s36, s36, s37""")
    for t in range(2):
        for j in range(4):
            a(f"buffer_load_dwordx2 v[{32+8*t+2*j}:{33+8*t+2*j}], v9, s[12:15], s36 offen offset:{64*t+16*j}", vtag="x")
    a("""v_lshrrev_b32 v16, 5, v15
    v_lshlrev_b32 v16, 3, v16
    v_bfe_u32 v17, v15, 2, 2
    v_add_u32 v16, v16, v17
    v_lshlrev_b32 v16, 7, v16
    v_bfe_u32 v17, v15, 3, 1
    v_lshl_add_u32 v16, v17, 6, v16
    v_bfe_u32 v17, v15, 4, 1
    v_lshl_add_u32 v16, v17, 5, v16
    v_and_b32 v17, 3, v15
    v_lshl_add_u32 v2, v17, 3, v16
    v_xor_b32 v3, 64, v2
    v_add_u32 v4, 36864, v2
    v_add_u32 v5, 36864, v3""")
    a("""v_bfe_u32 v16, v15, 4, 1
    v_lshlrev_b32 v16, 10, v16
    v_lshrrev_b32 v17, 5, v15
    v_lshl_add_u32 v16, v17, 8, v16
    v_and_b32 v18, 15, v15
    v_lshl_add_u32 v10, v18, 4, v16
    v_lshlrev_b32 v12, 2, v15""")
    a.wait(v="w")
    st("wo")
    poll(a, "s53", 16)
    st("sync2")
    def adv(): a("s_add_u32 s42, s42, 4096" + ("\ns_cmp_ge_u32 s42, s101\ns_cselect_b32 s37, 32768, 0\ns_sub_u32 s42, s42, s37" if rot2 else ""))
    for k in range(36):
        if k % 4 == 0 and k: adv()
        a(f"buffer_load_dwordx4 {vr(O(k),4)}, v8, s[20:23], s42 offen offset:{(k%4)*1024} sc1", vtag=("o", k))
        if k == 15: break
    T = (48, 64)
    fr = [(ks, t) for ks in range(36) for t in range(2)]
    AF = lambda i: 4 * (i % 8)
    def reads(i):
        ks, t = fr[i]; f = AF(i); o = (ks % 18) * 2048; ad = 2 + t + 2 * (ks // 18)
        return [f"ds_read_b64_tr_b16 a[{f}:{f+1}], v{ad} offset:{o}", f"ds_read_b64_tr_b16 a[{f+2}:{f+3}], v{ad} offset:{o+512}"]
    D = 6; N = 72
    for i in range(D):
        for r in reads(i): a(r, ltag=("A", i))
    for i in range(N):
        ks, t = fr[i]
        a.wait(v=("o", ks), l=lambda tg: isinstance(tg, tuple) and tg[0] == "A" and tg[1] <= i)
        f = AF(i)
        a(f"v_mfma_f32_32x32x16_bf16 {vr(T[t],16)}, a[{f}:{f+3}], {vr(O(ks),4)}, {'0' if ks == 0 else vr(T[t],16)}")
        if i + D < N:
            for r in reads(i + D): a(r, ltag=("A", i + D))
        k = 16 + i
        if k < 32:
            if k % 4 == 0: adv()
            a(f"buffer_load_dwordx4 {vr(O(k),4)}, v8, s[20:23], s42 offen offset:{(k%4)*1024} sc1", vtag=("o", k))
        elif k < 48:
            if k == 32: a("s_mov_b32 s42, s101" if rot2 else "s_add_u32 s42, s42, 4096")
            e = k - 32
            a(f"buffer_load_dword v{O(32)+e}, v12, s[20:23], s42 offen offset:{e*256} sc1", vtag=("o", 32 + e // 4))
    st("gemm2")
    a("s_mov_b32 s50, 0x3f80\ns_mov_b32 s51, 0x3f800000")
    a(f"""s_lshl_b32 s37, s31, 12
    s_add_u32 s41, s41, s37
    s_mul_i32 s36, s35, 2304
    s_lshl_b32 s37, s31, 8
    s_add_u32 s36, s36, s37
    s_add_u32 s36, s36, {STATS}
    s_add_u32 s53, s53, 4096""")
    if HFRAG: a(f"s_add_u32 s41, s41, {HFRAG}")
    a.wait(v="x")
    for t in range(2):
        for q in range(8):
            a(f"v_dot2_f32_bf16 v{T[t]+2*q}, v{32+8*t+q}, s50, v{T[t]+2*q}\nv_dot2_f32_bf16 v{T[t]+2*q+1}, v{32+8*t+q}, s51, v{T[t]+2*q+1}")
    for t in range(2):
        for j in range(2):
            S = 80 + 8 * t + 4 * j
            for e in range(2):
                b = T[t] + 4 * (j + 2 * e)
                a(f"v_cvt_pk_bf16_f32 v{S+2*e}, v{b}, v{b+1}\nv_cvt_pk_bf16_f32 v{S+2*e+1}, v{b+2}, v{b+3}")
            a(f"buffer_store_dwordx4 {vr(S,4)}, v10, s[20:23], s41 offen offset:{t*2048 + j*512} sc1")
    a("s_mov_b32 s50, 0x3f803f80\nv_mov_b32 v24, 0\nv_mov_b32 v25, 0\nv_mov_b32 v26, 0\nv_mov_b32 v27, 0")
    for q in range(16):
        a(f"v_dot2_f32_bf16 v{24+2*(q&1)}, v{80+q}, s50, v{24+2*(q&1)}\nv_dot2_f32_bf16 v{25+2*(q&1)}, v{80+q}, v{80+q}, v{25+2*(q&1)}")
    a(f"""v_add_f32 v24, v24, v26
    v_add_f32 v25, v25, v27
    v_permlane32_swap_b32 v24, v25
    v_add_f32 v24, v24, v25
    buffer_store_dword v24, v12, s[20:23], s36 offen sc1
    s_waitcnt vmcnt(0)
    s_barrier""")
    st("hst")
    signal(a, "s53")
    st("sig3")
    st.dump("s[20:23]", "s30", 16, 17)

if __name__ == "__main__":
    out = sys.argv[1]; opts = sys.argv[2:]
    a, st = gen("cyc" if "cyc" in opts else "diag" in opts, opts)
    t = a.text()
    NAME = "sequential_preLN__linear_kernel_hedgehog__glu_gated_reglu__prompt_kernel"
    hdr = "".join(l for l in open("sequential_preLN__linear_kernel_hedgehog__glu_gated_reglu__prompt.s.ref") if l.startswith(";") and "@launch" not in l and "Override" not in l and "grid=" not in l)
    s = hdr + "; @launch grid=(256,1,1) block=(256,1,1) lds=163840\n" + '.amdgcn_target "amdgcn-amd-amdhsa--gfx950"\n.text\n' + kernel(NAME, t) + '.section .rodata,"a"\n' + descriptor(NAME, 512, 256)
    open(out, "w").write(s)
    json.dump(st.groups, open(out + ".json", "w"))
    print("nops", a.padded, "instrs", len(a.l), st.groups)
```

```python
import sys, json
from common import *
from p1 import softmax, LOG2E
from pk import divu, p2b
import ffn17

REG = 36864; SP = 4 * REG; MOFF = SP; KVL = SP + 6144; ZERO = KVL + 3072; STX = SP + 10240
KVS = 2816; QOFF = 9 * KVS; QS = 1280
C1, C2, C3, C4, C0 = FLAGS, FLAGS + 4096, FLAGS + 8192, FLAGS + 12288, FLAGS + 61440
PB = 768
OOB = 0x7fffff00

def touch_addr(a, dst, nrow_lines, rowstride, nitems, first=0):
    a(f"v_add_u32 v18, {first}, v14" if first else "v_mov_b32 v18, v14")
    divu(a, 16, 18, nrow_lines)
    a(f"""v_mul_u32_u24 v17, {nrow_lines}, v16
    v_sub_u32 v17, v18, v17
    v_mul_u32_u24 v16, {rowstride}, v16
    v_lshl_add_u32 v16, v17, 7, v16
    v_mov_b32 v17, {OOB}
    v_cmp_gt_u32 vcc, {nitems}, v18
    v_cndmask_b32 v{dst}, v17, v16, vcc""")

def gen(diag, opts):
    a = A("K"); st = Stamps(a, diag, 0)
    opt = lambda k, d: next((int(o[len(k):]) for o in opts if o.startswith(k)), d)
    X = lambda k: 64 + 4 * k
    T0, T2, T3, T1, PX = 48, 64, 80, 96, 32
    aT0, aT2, aT3, aT1, aT4 = 112, 114, 116, 118, 120
    aM, aZW, aZA, aZB, aP4, aP1, aN0, aN1, aKW4, aKW1, aINI, aMS0, aTWO, aTGU = 122, 123, 124, 126, 128, 129, 130, 131, 132, 133, 134, 136, 138, 139
    a("s_cmp_ge_u32 s2, 256\ns_cbranch_scc1 K_end")
    a("""s_load_dwordx4 s[4:7], s[0:1], 0
    s_load_dwordx4 s[8:11], s[0:1], 16
    s_load_dwordx4 s[88:91], s[0:1], 72""")
    st("entry")
    if "pf0" in opts: code_prefetch(a, "K_start", "K_end", 16, "a[0:1]", reps=1)
    a("""v_lshrrev_b32 v16, 6, v0
    v_and_b32 v15, 63, v0
    v_mov_b32 v14, v0
    v_readfirstlane_b32 s30, v16
    s_and_b32 s31, s2, 3
    s_lshl_b32 s31, s31, 2
    s_bfe_u32 s33, s2, 0x20003
    s_add_u32 s32, s31, s33
    s_bfe_u32 s31, s2, 0x10002
    s_lshl_b32 s31, s31, 3
    s_lshr_b32 s33, s2, 5
    s_add_u32 s31, s31, s33
    s_lshr_b32 s28, s2, 3
    s_and_b32 s29, s2, 7""")
    a(f"""v_and_b32 v16, 7, v15
    v_lshrrev_b32 v17, 3, v15
    v_mul_u32_u24 v5, 1152, v16
    v_lshl_add_u32 v5, v17, 4, v5
    v_lshlrev_b32 v6, 9, v17
    v_lshl_add_u32 v6, v16, 4, v6
    s_lshl_b32 s36, s32, 4
    s_add_u32 s36, s36, s31
    s_mul_i32 s36, s36, {8*1152}
    s_lshl_b32 s37, s30, 7
    s_add_u32 s36, s36, s37
    s_cmp_eq_u32 s30, 0
    s_cselect_b32 s37, 0, {OOB}
    s_add_u32 s37, s37, s36
    s_mul_i32 s34, s30, {REG}
    s_lshl_b32 s35, s32, 2
    s_add_u32 s35, s35, s30""")
    b = A("S")
    for i in range(3):
        b(f"v_add_u32 v16, {64*i}, v15")
        divu(b, 17, 16, 11)
        b(f"""v_mul_u32_u24 v18, 11, v17
        v_sub_u32 v18, v16, v18
        v_and_b32 v19, 3, v17
        v_lshrrev_b32 v17, 2, v17
        v_lshl_add_u32 v17, v19, 2, v17
        v_mul_u32_u24 v17, 3456, v17
        v_lshl_add_u32 v17, v18, 4, v17
        v_mov_b32 v19, {1152 + 2048 - i*1024}
        v_mov_b32 v16, {2304 - 80 + 2048 - i*1024}
        v_cmp_lt_u32 vcc, 4, v18
        v_cndmask_b32 v19, v19, v16, vcc
        v_mov_b32 v16, {2304 + 36 - 128 + 2048 - i*1024}
        v_cmp_lt_u32 vcc, 7, v18
        v_cndmask_b32 v19, v19, v16, vcc
        v_add_u32 v{i}, v17, v19""")
    b(f"""v_mov_b32 v16, {OOB}
    v_cmp_gt_u32 vcc, 48, v15
    v_cndmask_b32 v2, v16, v2, vcc""")
    kvaddr = [x.text for x in b.l]
    a("s_waitcnt lgkmcnt(0)")
    srd(a, 12, 4, 5, 2048 * 1152)
    a("""buffer_load_dwordx4 v[160:163], v5, s[12:15], s36 offen
    buffer_load_dwordx4 v[164:167], v5, s[12:15], s36 offen offset:512
    buffer_load_dwordx4 v[168:171], v5, s[12:15], s37 offen offset:1024""", vtag="x8")
    srd(a, 20, 90, 91, WS_BYTES)
    srd(a, 24, 88, 89, 256)
    st("start")
    sk = a.lab("noinit"); saved = list(a.vm)
    a(f"""s_lshl_b32 s33, s2, 2
    s_add_u32 s33, s33, s30
    s_cmp_lg_u32 s33, 512
    s_cbranch_scc1 {sk}
    v_lshlrev_b32 v16, 8, v15
    v_mov_b32 v17, 0
    s_mov_b32 s33, {FLAGS}""")
    for q in range(4):
        a("buffer_store_dword v17, v16, s[20:23], s33 offen sc1\ns_add_u32 s33, s33, 16384")
    a(f"""s_waitcnt vmcnt(0)
    v_mov_b32 v16, 1
    s_mov_b64 exec, 1
    buffer_store_dword v16, v17, s[24:27], 0 offen sc1
    s_mov_b64 exec, -1
    {sk}:""")
    a.vm = saved
    if "pf0" not in opts: code_prefetch(a, "K_start", "K_end", 16, "a[0:1]", reps=1)
    a("K_start:")
    for x in kvaddr: a(x)
    a(f"""s_sub_u32 s16, s6, 2048
    s_subb_u32 s17, s7, 0
    s_mov_b32 s18, {576*3456+2048}
    s_mov_b32 s19, 0x20000""")
    srd(a, 40, 8, 9, 32 * 648)
    srd(a, 44, 10, 11, 576 * 1152)
    a("s_load_dwordx8 s[4:11], s[0:1], 40")
    a("""s_and_b32 s37, s32, 3
    s_lshl_b32 s37, s37, 1
    s_and_b32 s99, s31, 7
    s_add_u32 s99, s99, s37
    s_cmp_ge_u32 s99, 9
    s_cselect_b32 s37, 9, 0
    s_sub_u32 s99, s99, s37""")
    a(f"""s_mul_i32 s101, s30, {16*3456}
    s_mul_i32 s37, s31, 72
    s_add_u32 s101, s101, s37
    s_add_u32 s100, s101, {576*3456}
    s_mul_i32 s37, s99, {64*3456}
    s_add_u32 s101, s101, s37
    s_mov_b32 s51, s101""")
    def em(x):
        if isinstance(x, tuple): a(x[0], vtag=x[1])
        else: a(x)
    def kvdma(j):
        r = [f"s_add_u32 m0, s34, {j*KVS}", f"s_add_u32 s101, s101, {64*3456}\ns_cmp_ge_u32 s101, s100\ns_cselect_b32 s37, {576*3456}, 0\ns_sub_u32 s101, s101, s37" if j else "s_nop 0"]
        r += [(f"buffer_load_dwordx4 v{i}, s[16:19], s101 offen offset:{i*1024} lds", ("w", j)) for i in range(3)]
        return r
    NK0 = opt("nka", 2); NK1 = opt("nkb", 3); NK2 = opt("nkc", 6)
    if NK0: a("s_barrier")
    for j in range(NK0): [em(x) for x in kvdma(j)]
    a(f"""s_mov_b32 s50, 0x3f803f80
    v_and_b32 v16, 7, v15
    v_lshrrev_b32 v17, 5, v15
    v_lshlrev_b32 v18, 4, v16
    v_lshl_add_u32 v19, v17, 7, v18
    s_lshl_b32 s37, s30, 2
    s_add_u32 s37, s37, {STX}
    v_add_u32 v19, s37, v19
    v_add_u32 v18, {STX}, v18""")
    a(f"""s_lshr_b32 s36, s31, 2
    s_lshl_b32 s37, s32, 2
    s_add_u32 s36, s36, s37
    s_mul_i32 s36, s36, 36864
    s_and_b32 s37, s31, 3
    s_lshl_b32 s37, s37, 7
    s_add_u32 s36, s36, s37
    s_lshl_b32 s37, s30, 12
    s_add_u32 s36, s36, s37
    s_add_u32 s36, s36, {XFRAG}
    s_add_u32 s38, s36, 16384
    s_cmp_eq_u32 s30, 0
    s_cselect_b32 s39, 0, {OOB}
    s_add_u32 s39, s39, s38
    s_add_u32 s39, s39, 16384
    s_lshl_b32 s53, s32, 8
    s_add_u32 s53, s53, {C0}""")
    a.wait(v="x8")
    st("x8")
    for j in range(12):
        c0 = "0" if j < 2 else f"v{24+(j&1)}"; c1 = "0" if j < 2 else f"v{26+(j&1)}"
        a(f"v_dot2_f32_bf16 v{24+(j&1)}, v{160+j}, s50, {c0}\nv_dot2_f32_bf16 v{26+(j&1)}, v{160+j}, v{160+j}, {c1}")
    a("""v_add_f32 v24, v24, v25
    v_add_f32 v26, v26, v27
    v_permlane32_swap_b32 v24, v26
    v_add_f32 v24, v24, v26
    v_mov_b32 v25, v24
    v_permlane16_swap_b32 v24, v25
    v_add_f32 v24, v24, v25
    v_add_f32_dpp v24, v24, v24 row_ror:8 row_mask:0xf bank_mask:0xf
    s_mov_b32 s50, 0xffff0000
    ds_write_b32 v19, v24""")
    for k in range(3):
        for j in range(4): a(f"v_lshlrev_b32_e32 v{176+8*k+2*j}, 16, v{160+4*k+j}\nv_and_b32_e32 v{177+8*k+2*j}, s50, v{160+4*k+j}")
    a("""s_waitcnt lgkmcnt(0)
    s_barrier
    ds_read_b128 v[24:27], v18
    ds_read_b128 v[28:31], v18 offset:128
    s_waitcnt lgkmcnt(0)
    v_pk_add_f32 v[24:25], v[24:25], v[26:27]
    v_pk_add_f32 v[28:29], v[28:29], v[30:31]
    v_add_f32 v24, v24, v25
    v_add_f32 v26, v28, v29
    v_mul_f32 v24, 0x3ae38e39, v24
    v_mul_f32 v26, 0x3ae38e39, v26
    v_fma_f32 v26, -v24, v24, v26
    v_max_f32 v26, 0, v26
    v_add_f32 v26, 0x3727c5ac, v26
    v_rsq_f32 v12, v26
    s_nop 0
    v_mul_f32_e64 v13, -v24, v12""")
    for k, so in ((0, "s36"), (1, "s38"), (2, "s39")):
        b_ = 160 + 4 * k; u = 176 + 8 * k
        for j in range(4): a(f"v_pk_fma_f32 v[{u+2*j}:{u+2*j+1}], v[{u+2*j}:{u+2*j+1}], v[12:13], v[12:13] op_sel:[0,0,1] op_sel_hi:[1,0,1]")
        for j in range(4): a(f"v_cvt_pk_bf16_f32 v{b_+j}, v{u+2*j}, v{u+2*j+1}")
        a(f"buffer_store_dwordx4 {vr(b_,4)}, v6, s[20:23], {so} offen sc1", vtag="xs")
    a(f"v_mov_b32 v16, 0\nbuffer_load_dword v{aINI}, v16, s[24:27], 0 offen sc1", vtag="xs")
    st("ln")
    if NK1 > NK0: a("s_barrier")
    for j in range(NK0, NK1): [em(x) for x in kvdma(j)]
    b = A("S")
    b(f"""v_lshlrev_b32 v5, 4, v15
    v_and_b32 v16, 31, v15
    v_lshrrev_b32 v17, 2, v16
    v_lshlrev_b32 v17, 1, v17
    v_and_b32 v18, 1, v16
    v_add_u32 v17, v17, v18
    v_lshrrev_b32 v19, 5, v15
    v_mul_u32_u24 v19, 9, v19
    v_add_lshl_u32 v19, v19, v17, 2
    v_mov_b32 v22, {OOB}
    v_cmp_gt_u32 vcc, 9, v17
    v_cndmask_b32 v19, v22, v19, vcc
    v_bfe_u32 v16, v16, 1, 1
    v_cmp_eq_u32 vcc, 0, v16
    v_cndmask_b32 v{aMS0}, v22, v19, vcc
    v_cndmask_b32 v{aMS0+1}, v19, v22, vcc""")
    b(f"""v_mov_b32 v24, 0
    v_mov_b32 v25, 0
    v_mov_b32 v26, 0
    v_mov_b32 v27, 0
    v_lshlrev_b32 v16, 4, v14
    v_add_u32 v16, {KVL}, v16
    ds_write_b128 v16, v[24:27]""")
    b(f"""v_lshrrev_b32 v16, 5, v15
    v_bfe_u32 v17, v15, 2, 2
    v_lshl_add_u32 v28, v16, 3, v17
    v_lshlrev_b32 v13, 1, v16
    v_lshl_add_u32 v13, v17, 2, v13
    v_bfe_u32 v18, v15, 4, 1
    v_and_b32 v19, 3, v15
    v_lshl_add_u32 v29, v18, 2, v19
    v_lshl_add_u32 v16, v16, 2, v17
    v_lshlrev_b32 v16, 7, v16
    v_lshl_add_u32 v16, v29, 3, v16
    v_add_u32 v{aM}, {MOFF}, v16""")
    b(f"""v_mul_u32_u24 v16, 176, v13
    v_lshl_add_u32 v{aT0}, v29, 3, v16
    v_and_b32 v17, 1, v29
    v_mul_u32_u24 v17, 48, v17
    v_lshrrev_b32 v18, 1, v29
    v_lshl_add_u32 v17, v18, 3, v17
    v_add3_u32 v{aT2}, v16, v17, 64
    v_add_u32 v{aT2}, 16, v{aT2}
    v_mov_b32 v17, 64
    v_mov_b32 v18, 112
    v_cmp_eq_u32 vcc, 2, v29
    v_cndmask_b32 v17, v17, v18, vcc
    v_mov_b32 v18, 160
    v_cmp_eq_u32 vcc, 3, v29
    v_cndmask_b32 v17, v17, v18, vcc
    v_add_u32 v{aT3}, v16, v17
    v_mul_u32_u24 v16, 80, v13
    v_lshl_add_u32 v{aT1}, v29, 3, v16
    v_add_u32 v{aT1}, {QOFF}, v{aT1}
    v_add_u32 v{aT4}, {QOFF+64}, v16""")
    for q in (aT0, aT2, aT3, aT1, aT4): b(f"v_add_u32 v{q+1}, {2*REG}, v{q}")
    setup1 = [x.text for x in b.l]
    b = A("S")
    for i, dst in ((0, 3), (1, 4)):
        b(f"v_add_u32 v16, {64*i}, v15")
        divu(b, 17, 16, 5)
        b(f"""v_mul_u32_u24 v18, 5, v17
        v_sub_u32 v18, v16, v18
        v_and_b32 v19, 3, v17
        v_lshrrev_b32 v17, 2, v17
        v_lshl_add_u32 v17, v19, 2, v17
        v_mul_u32_u24 v17, 3456, v17
        v_lshl_add_u32 v17, v18, 4, v17
        v_add_u32 v{dst}, {2048 - 1024*i}, v17""")
    b(f"""v_and_b32 v16, 31, v15
    v_mul_u32_u24 v16, 144, v16
    v_lshrrev_b32 v17, 5, v15
    v_mul_u32_u24 v17, 4608, v17
    v_add3_u32 v{aZW}, v16, v17, s34
    s_lshr_b32 s38, s30, 1
    s_mul_i32 s38, s38, 4608
    s_and_b32 s39, s30, 1
    s_mul_i32 s39, s39, 40
    v_mul_u32_u24 v16, 144, v28
    v_lshl_add_u32 v16, v29, 3, v16
    v_add_u32 v{aZB}, s38, v16
    v_add_u32 v{aZA}, s39, v{aZB}
    v_add_u32 v{aZB}, 80, v{aZB}
    v_add_u32 v{aZA+1}, {2*REG}, v{aZA}
    v_add_u32 v{aZB+1}, {2*REG}, v{aZB}""")
    b(f"""v_lshrrev_b32 v16, 5, v15
    v_mul_u32_u24 v16, 12, v16
    v_sub_u32 v16, v15, v16
    v_lshlrev_b32 v{aP4}, 4, v16
    v_and_b32 v16, 31, v15
    v_lshlrev_b32 v{aP1}, 2, v16
    v_lshlrev_b32 v6, 2, v15""")
    b(f"""v_bfe_u32 v16, v15, 2, 1
    v_lshrrev_b32 v17, 5, v15
    v_bfe_u32 v18, v15, 3, 2
    v_and_b32 v19, 3, v15
    v_lshl_add_u32 v20, v18, 2, v19
    v_mul_u32_u24 v20, 80, v20
    v_mul_u32_u24 v21, 1536, v17
    v_add_u32 v20, v20, v21
    v_add_u32 v20, {KVL}, v20
    v_mov_b32 v22, {ZERO}
    v_cmp_eq_u32 vcc, v16, v17
    v_cndmask_b32 v{aN0}, v22, v20, vcc
    v_add_u32 v20, 1280, v20
    v_cndmask_b32 v{aN1}, v22, v20, vcc
    v_cmp_eq_u32 vcc, 0, v18
    v_cndmask_b32 v{aN1}, v22, v{aN1}, vcc
    v_cmp_gt_u32 vcc, 3, v19
    v_cndmask_b32 v{aN1}, v22, v{aN1}, vcc
    v_and_b32 v16, 31, v15
    v_mul_u32_u24 v16, 80, v16
    s_lshr_b32 s38, s30, 1
    s_mul_i32 s38, s38, 1536
    s_add_u32 s38, s38, {KVL}
    s_and_b32 s39, s30, 1
    s_lshl_b32 s33, s39, 5
    s_lshl_b32 s39, s39, 2
    v_add_u32 v16, s38, v16
    v_lshl_add_u32 v{aKW4}, v17, 4, v16
    v_add_u32 v{aKW4}, s33, v{aKW4}
    v_add_u32 v{aKW1}, s39, v16""")
    touch_addr(b, aTWO, 9, 1152, 162)
    touch_addr(b, aTGU, 9, 9216, 54 * opt("tg", 1))
    b(f"""s_mov_b32 s48, {LOG2E}
    s_mov_b32 s49, {LOG2E}
    s_mov_b32 s54, 0xfffff
    s_mov_b32 s55, 0xfffff
    s_lshl_b32 s38, s31, 6
    s_add_u32 s38, s38, s30
    s_mul_i32 s52, s38, {PB}
    s_add_u32 s52, s52, {KVP}""")
    setup2 = [x.text for x in b.l]
    for x in setup1: a(x)
    a.wait(v="xs"); a("s_barrier")
    signal(a, "s53", check_init=aINI)
    st("sig0")
    per = len(setup2) // max(NK2 - NK1, 1) + 1
    for j in range(NK1, NK2):
        [em(x) for x in kvdma(j)]
        for x in setup2[:per]: a(x)
        setup2 = setup2[per:]
    for x in setup2: a(x)
    mq = ["s_mul_i32 s38, s30, 6\ns_mul_i32 s39, s31, 1296"]
    for i in range(6):
        mq += [f"""s_add_u32 s37, s38, {i}
        s_lshl_b32 s96, s37, 8
        s_add_u32 m0, s96, {MOFF}
        s_cmp_lt_u32 s37, 9
        s_cselect_b64 vcc, -1, 0
        v_cndmask_b32 v16, v{aMS0+1}, v{aMS0}, vcc
        s_mul_i32 s96, s37, 72
        s_add_u32 s96, s96, s39
        s_cmp_ge_u32 s37, 18
        s_cselect_b32 s96, 0x100000, s96""", ("buffer_load_dword v16, s[40:43], s96 offen lds", "wphi")]
    a(f"""s_mul_i32 s36, s35, 36864
    s_add_u32 s36, s36, {XFRAG}
    s_add_u32 s33, s36, 36864
    s_lshl_b32 s37, s99, 12
    s_add_u32 s36, s36, s37""")
    st("pre")
    poll(a, "s53", 16)
    st("sync0")
    def xload(g):
        r = [] if g == 0 else ["s_add_u32 s36, s36, 4096\ns_cmp_ge_u32 s36, s33\ns_cselect_b32 s37, 36864, 0\ns_sub_u32 s36, s36, s37"]
        return r + [(f"buffer_load_dwordx4 {vr(X(4*g+q),4,'a')}, v5, s[20:23], s36 offen offset:{q*1024} sc1", ("X", 4 * g + q)) for q in range(4)]
    NX0 = opt("nx", 2)
    for g in range(NX0): [em(x) for x in xload(g)]
    WP = lambda tile, stp: 232 + 4 * (3 * tile + stp)
    def mreads():
        for tile in range(2):
            for stp in range(3):
                f = WP(tile, stp)
                a(f"ds_read_b64_tr_b16 a[{f}:{f+1}], v{aM} offset:{stp*2048 + tile*64}\nds_read_b64_tr_b16 a[{f+2}:{f+3}], v{aM} offset:{stp*2048 + tile*64 + 1024}")
    AF = lambda i: 4 * (i % 8)
    def reads(i, lst):
        ks, T, ad, sz = lst[i]
        w, j = ks % 4, ks // 4
        o = (w % 2) * REG + j * 16 * sz; f = AF(i)
        return [f"ds_read_b64_tr_b16 a[{f}:{f+1}], v{ad + w//2} offset:{o}", f"ds_read_b64_tr_b16 a[{f+2}:{f+3}], v{ad + w//2} offset:{o+sz}"]
    D = 6
    def gemm(lst, bars, memq, mper=1, hook=None):
        N = len(lst); per = N // 36
        def flush(pred):
            while any(isinstance(x, tuple) and pred(x[1]) for x in memq): em(memq.pop(0))
        def maybe_bar(i):
            if i < N and i % (4 * per) == 0 and (i // (4 * per)) in bars:
                lim = bars[i // (4 * per)]
                pred = lambda t: (isinstance(t, tuple) and t[0] == "w" and t[1] <= lim) or (t == "wphi" and lim == 8)
                flush(pred); a.wait(v=pred); a("s_barrier")
        for i in range(D):
            maybe_bar(i)
            for r in reads(i, lst): a(r, ltag=("A", i))
        for i in range(N):
            ks, T, ad, sz = lst[i]
            flush(lambda t: t == ("X", ks))
            a.wait(v=("X", ks), l=lambda t: isinstance(t, tuple) and t[0] == "A" and t[1] <= i)
            f = AF(i)
            a(f"v_mfma_f32_32x32x16_bf16 {vr(T,16)}, a[{f}:{f+3}], {vr(X(ks),4,'a')}, {'0' if ks == 0 else vr(T,16)}")
            if i % 2 == 1: a.wait(l=lambda t: isinstance(t, tuple) and t[0] == "A" and t[1] <= i + 2)
            if i + D < N:
                maybe_bar(i + D)
                for r in reads(i + D, lst): a(r, ltag=("A", i + D))
            if hook and i in hook: hook[i]()
            if memq and i % mper == 0:
                while memq and not isinstance(memq[0], tuple): em(memq.pop(0))
                if memq: em(memq.pop(0))
        for x in memq: em(x)
    memq = []
    kvleft = list(range(NK2, 9))
    for g in range(NX0, 9):
        memq += xload(g)
        if kvleft and g >= opt("kx", 2): memq += kvdma(kvleft.pop(0))
    for j in kvleft: memq += kvdma(j)
    memq += mq
    qq = []
    for j in range(9):
        qq.append([f"s_add_u32 m0, s34, {QOFF + j*QS}", f"s_add_u32 s51, s51, {64*3456}\ns_cmp_ge_u32 s51, s100\ns_cselect_b32 s37, {576*3456}, 0\ns_sub_u32 s51, s51, s37" if j else "s_nop 0",
                 ("buffer_load_dwordx4 v3, s[16:19], s51 offen lds", "wq"), "s_mov_b64 exec, 0xffff",
                 ("buffer_load_dwordx4 v4, s[16:19], s51 offen offset:1024 lds\ns_mov_b64 exec, -1", "wq")])
    NQ = opt("nq", 2)
    for g in qq[:NQ]: memq += g
    qq = qq[NQ:]
    fr = [(ks, T, ad, 176) for ks in range(36) for (T, ad) in ((T0, aT0), (T3, aT3), (T2, aT2))]
    bars = {j: j for j in range(NK2, 9)}; bars.update({0: min(2, NK2 - 1), 3: NK2 - 1} if NK2 > 3 else {0: NK2 - 1}); bars[8] = 8
    gemm(fr, bars, memq, mper=opt("mp", 2), hook={100: mreads})
    st("gemm")
    if "fine" in opts: st.dump("s[20:23]", "s30", 16, 17); st.kidx += 1; st.groups.append([])
    def touch(which):
        if which == 1:
            a(f"s_mul_i32 s37, s28, {18*1152}")
            a(f"buffer_load_dword a208, v{aTWO}, s[44:47], s37 offen", vtag="touch")
        tg = opt("tg", 1)
        a(f"s_mul_i32 s37, s28, {6*tg*9216}\ns_mul_i32 s38, s29, 1152\ns_add_u32 s37, s37, s38")
        if which > 1: a(f"s_add_u32 s37, s37, {(which-1)*192*tg*9216}")
        for m in range(2):
            srd(a, 92, 4 + 2 * m, 5 + 2 * m, 576 * 9216)
            a(f"buffer_load_dword a{209+m}, v{aTGU}, s[92:95], s37 offen", vtag="touch")
    for q in range(8): a(f"v_cvt_pk_bf16_f32 v{T0+q}, v{T0+2*q}, v{T0+2*q+1}")
    for q in range(4): a(f"v_cvt_pk_bf16_f32 v{56+q}, v{T3+2*q}, v{T3+2*q+1}")
    def feat(B):
        for stp in range(3):
            for tile, T in ((1, PX), (0, T1)):
                f = WP(tile, stp)
                a(f"v_mfma_f32_32x32x16_bf16 {vr(T,16)}, a[{f}:{f+3}], {vr(B[stp],4)}, {'0' if stp == 0 else vr(T,16)}")
    feat((48, 52, 56))
    for g in qq[:2]: [em(x) for x in g]
    qq = qq[2:]
    for q in range(8): a(f"v_cvt_pk_bf16_f32 v{160+q}, v{T2+2*q}, v{T2+2*q+1}")
    a("v_mov_b32 v168, v58\nv_mov_b32 v169, 0x3f80\ns_barrier")
    a(f"ds_write_b128 v{aZW}, v[160:163] offset:80\nds_write_b128 v{aZW}, v[164:167] offset:96\nds_write_b64 v{aZW}, v[168:169] offset:112")
    a(f"v_mov_b32 v94, v{PX}\nv_mov_b32 v95, v{PX+1}")
    b = A("S"); softmax(b, 94, 72); sm = [x.text for x in b.l]
    per = len(sm) // (len(qq) + 1)
    for g in qq:
        [em(x) for x in g]
        for x in sm[:per]: a(x)
        sm = sm[per:]
    for x in sm: a(x)
    for blk, S in ((140, 94), (150, 72)):
        for q in range(8): a(f"v_cvt_pk_bf16_f32 v{blk+q}, v{S+2+2*q}, v{S+3+2*q}")
        a(f"v_cvt_pk_bf16_f32 v{blk+8}, v{S}, v{S+1}")
        if blk == 140: a(f"ds_write_b128 v{aZW}, v[140:143]\nds_write_b128 v{aZW}, v[144:147] offset:16")
    for q in range(2, 5): a(f"ds_write_b128 v{aZW}, {vr(140+4*q,4)} offset:{16*q}")
    a(f"""s_mul_i32 s37, s32, {4*PB}
    s_add_u32 s37, s37, s52
    s_lshl_b32 s53, s31, 8
    s_add_u32 s53, s53, {C1}""")
    a("s_waitcnt lgkmcnt(0)\ns_barrier")
    st("smk")
    for stp in range(8):
        w = stp // 2; o = (w % 2) * REG + (stp % 2) * 16 * 144
        va, vb = aZA + w // 2, aZB + w // 2
        f = 8 * stp
        a(f"ds_read_b64_tr_b16 a[{f}:{f+1}], v{va} offset:{o}\nds_read_b64_tr_b16 a[{f+2}:{f+3}], v{va} offset:{o+576}", ltag=("Z", stp))
        a(f"ds_read_b64_tr_b16 a[{f+4}:{f+5}], v{vb} offset:{o}\nds_read_b64_tr_b16 a[{f+6}:{f+7}], v{vb} offset:{o+576}", ltag=("Z", stp))
        if stp >= 2:
            s2 = stp - 2; f = 8 * s2
            a.wait(l=("Z", s2))
            a(f"v_mfma_f32_32x32x16_bf16 v[64:79], a[{f}:{f+3}], a[{f+4}:{f+7}], {'0' if s2 == 0 else 'v[64:79]'}")
    for s2 in (6, 7):
        f = 8 * s2
        a.wait(l=("Z", s2))
        a(f"v_mfma_f32_32x32x16_bf16 v[64:79], a[{f}:{f+3}], a[{f+4}:{f+7}], v[64:79]")
    def kvstore():
        for q in range(5): a(f"v_cvt_pk_bf16_f32 v{16+q}, v{64+2*q}, v{65+2*q}")
        a(f"""s_mov_b64 exec, s[54:55]
        buffer_store_dwordx4 v[16:19], v{aP4}, s[20:23], s37 offen sc1
        s_mov_b32 exec_lo, -1
        s_mov_b32 exec_hi, 0
        buffer_store_dword v20, v{aP1}, s[20:23], s37 offen offset:640 sc1
        s_mov_b64 exec, -1""")
        st("kvmm")
    def sig1():
        a("s_waitcnt vmcnt(0)\ns_barrier")
        signal(a, "s53")
        st("kvst")
        if "tw2" in opts: touch(1)
        if "tw1" in opts: touch(2)
    HK = opt("hk", 12)
    kvstore()
    a.wait(v="wq"); a("s_barrier")
    gemm([(ks, T, ad, 80) for ks in range(36) for (T, ad) in ((T1, aT1), (T3, aT4))], {}, [], hook={HK: sig1})
    for q in range(8): a(f"v_cvt_pk_bf16_f32 v{48+q}, v{T1+2*q}, v{T1+2*q+1}")
    for q in range(4): a(f"v_cvt_pk_bf16_f32 v{56+q}, v{T3+2*q}, v{T3+2*q+1}")
    feat((48, 52, 56))
    st("qgemm")
    poll(a, "s53", 16)
    st("sync1")
    a("s_mov_b64 exec, s[54:55]")
    for p in range(16):
        if p: a(f"s_add_u32 s52, s52, {4*PB}")
        a(f"buffer_load_dwordx4 {vr(176+4*p,4)}, v{aP4}, s[20:23], s52 offen sc1", vtag=("kv", p))
        a(f"buffer_load_dword v{240+p}, v{aP1}, s[20:23], s52 offen offset:640 sc1", vtag=("kv", p))
    a("s_mov_b64 exec, -1")
    a(f"v_mov_b32 v94, v{PX}\nv_mov_b32 v95, v{PX+1}")
    softmax(a, 94, 72)
    for sgn, S in ((0, 94), (1, 72)):
        for h in range(2):
            d = 48 + 8 * sgn + 4 * h
            for q in range(4):
                f = 4 * h + 2 * (q % 2) + 8 * (q // 2)
                a(f"v_cvt_pk_bf16_f32 v{d+q}, v{S+2+f}, v{S+3+f}")
        a(f"v_cvt_pk_bf16_f32 v{64+sgn}, v{S}, v{S+1}")
    a("v_mov_b32 v66, 0\nv_mov_b32 v67, 0")
    st("smq")
    a("s_mov_b32 s50, 0x3f80\ns_mov_b32 s51, 0x3f800000")
    for p in range(16):
        a.wait(v=("kv", p))
        for q in range(5):
            r = 176 + 4 * p + q if q < 4 else 240 + p
            c0 = f"v{72+2*q}" if p else "0"; c1 = f"v{73+2*q}" if p else "0"
            a(f"v_dot2_f32_bf16 v{72+2*q}, v{r}, s50, {c0}\nv_dot2_f32_bf16 v{73+2*q}, v{r}, s51, {c1}")
    for q in range(5): a(f"v_cvt_pk_bf16_f32 v{16+q}, v{72+2*q}, v{73+2*q}")
    a(f"""s_mov_b32 exec_lo, 0x7ffff
    s_mov_b32 exec_hi, 0x7ffff
    ds_write_b128 v{aKW4}, v[16:19]
    s_mov_b32 exec_hi, 0
    ds_write_b32 v{aKW1}, v20 offset:64
    s_mov_b64 exec, -1
    s_waitcnt lgkmcnt(0)
    s_barrier""")
    st("kvred")
    for stp in range(5):
        for tile in range(2):
            f = 8 * stp + 4 * tile
            a(f"ds_read_b128 a[{f}:{f+3}], v{aN0+tile} offset:{16*stp}", ltag=("K", stp))
    a(f"""s_mul_i32 s36, s35, 36864
    s_add_u32 s36, s36, {OFRAG}
    s_lshl_b32 s37, s31, 8
    s_add_u32 s37, s37, s36
    s_add_u32 s37, s37, 32768
    s_lshl_b32 s38, s31, 11
    s_add_u32 s36, s36, s38
    s_lshl_b32 s53, s32, 8
    s_add_u32 s53, s53, {C2}
    v_mov_b32 v8, v5""")
    for stp in range(5):
        a.wait(l=("K", stp))
        for tile, T in ((1, 96), (0, 80)):
            f = 8 * stp + 4 * tile
            a(f"v_mfma_f32_32x32x16_bf16 {vr(T,16)}, a[{f}:{f+3}], {vr(48+4*stp,4)}, {'0' if stp == 0 else vr(T,16)}")
    a("v_add_f32 v98, 0x358637bd, v98\nv_rcp_f32 v98, v98")
    for q in range(0, 18, 2):
        a(f"v_pk_mul_f32 v[{80+q}:{81+q}], v[{80+q}:{81+q}], v[98:99] op_sel_hi:[1,0]")
    for q in range(9): a(f"v_cvt_pk_bf16_f32 v{16+q}, v{80+2*q}, v{81+2*q}")
    a(f"""buffer_store_dwordx4 v[16:19], v8, s[20:23], s36 offen sc1
    buffer_store_dwordx4 v[20:23], v8, s[20:23], s36 offen offset:1024 sc1
    buffer_store_dword v24, v6, s[20:23], s37 offen sc1
    s_waitcnt vmcnt(0)
    s_barrier""")
    signal(a, "s53")
    st("ost")
    st.dump("s[20:23]", "s30", 16, 17)
    a("s_cmp_ge_u32 s28, 18\ns_cbranch_scc1 K_idle")
    p2b(a, st, opts)
    a("s_branch K_ffn\nK_idle:")
    if "tw3" in opts:
        from pk import touch_w
        touch_w(a, 3)
    a("K_ffn:")
    a.vm = ["unknown"] * 8
    a.spins = []
    ffn17.ffn_body(a, st, opts, C3, C4)
    st.dump("s[20:23]", "s30", 16, 17)
    a("s_endpgm")
    for x in a.spins: a(x)
    a("K_end:\ns_endpgm")
    return a, st

if __name__ == "__main__":
    out = sys.argv[1]; opts = sys.argv[2:]
    a, st = gen("cyc" if "cyc" in opts else "diag" in opts, opts)
    t = a.text()
    NAME = "sequential_preLN__linear_kernel_hedgehog__glu_gated_reglu__prompt_kernel"
    hdr = "".join(l for l in open("sequential_preLN__linear_kernel_hedgehog__glu_gated_reglu__prompt.s.ref") if l.startswith(";") and "@launch" not in l and "Override" not in l and "grid=" not in l)
    s = hdr + "; @launch grid=(256,1,1) block=(256,1,1) lds=163840\n" + '.amdgcn_target "amdgcn-amd-amdhsa--gfx950"\n.text\n' + kernel(NAME, t) + '.section .rodata,"a"\n' + descriptor(NAME, 512, 256)
    open(out, "w").write(s)
    json.dump(st.groups, open(out + ".json", "w"))
    print("nops", a.padded, "instrs", len(a.l), st.groups)
```

```python
from asmlib import *
from layout import *

class Stamps:
    def __init__(self, a, on, kidx=0):
        self.a = a; self.on = on; self.n = 0; self.kidx = kidx; self.names = []; self.groups = []
    def __call__(self, name):
        if not self.on: return
        self.a(f"{'s_memtime' if self.on == 'cyc' else 's_memrealtime'} s[{56+2*self.n}:{57+2*self.n}]")
        self.names.append(name); self.n += 1
        assert self.n <= 16
    def dump(self, srd, wave, va=0, vd=1):
        if not self.on: return
        a = self.a
        a(f"s_waitcnt lgkmcnt(0)\nv_mov_b32 v{vd}, 0")
        for q in range(self.n): a(f"v_writelane_b32 v{vd}, s{56+2*q}, {q}")
        a(f"""s_lshl_b32 s3, s2, 2
        s_add_u32 s3, s3, {wave}
        s_lshl_b32 s3, s3, 6
        s_add_u32 s3, s3, {TS + self.kidx * 0x10000}
        v_mbcnt_lo_u32_b32 v{va}, -1, 0
        v_lshlrev_b32 v{va}, 2, v{va}
        s_mov_b64 exec, 0xffff
        buffer_store_dword v{vd}, v{va}, {srd}, s3 offen
        s_mov_b64 exec, -1""")
        self.groups.append(self.names); self.names = []; self.n = 0; self.kidx += 1

def code_prefetch(a, lab_from, lab_to, vaddr, vdst, nwg_shift=3, reps=1):
    pc = a.lab("pc")
    a(f"""s_getpc_b64 s[92:93]
    {pc}:
    s_add_u32 s92, s92, {lab_from}-{pc}
    s_addc_u32 s93, s93, 0
    s_mov_b32 s94, {lab_to}-{lab_from}
    s_mov_b32 s95, 0x20000
    s_lshr_b32 s96, s2, {nwg_shift}
    s_lshl_b32 s96, s96, 11
    v_lshlrev_b32 v{vaddr}, 3, v0""")
    for r in range(reps):
        if r: a("s_add_u32 s96, s96, 0x10000")
        a(f"buffer_load_dwordx2 {vdst}, v{vaddr}, s[92:95], s96 offen", vtag="pf")

def srd(a, d, lo, hi, nbytes):
    a(f"s_mov_b32 s{d}, s{lo}\ns_mov_b32 s{d+1}, s{hi}\ns_mov_b32 s{d+2}, {nbytes}\ns_mov_b32 s{d+3}, 0x20000")

def signal(a, cnt_sreg, vt=None, check_init=False, cnt2=None):
    sk = a.lab("sig"); saved = list(a.lg)
    a(f"""s_cmp_lg_u32 s30, 0
    s_cbranch_scc1 {sk}""")
    if check_init:
        lp = a.lab("ini"); dn = a.lab("inid"); sv = list(a.vm)
        a(f"""s_mov_b32 s97, 0
        {lp}:
        v_readfirstlane_b32 s98, v{check_init}
        s_cmp_eq_u32 s98, 1
        s_cbranch_scc1 {dn}
        v_mov_b32 v16, 0
        buffer_load_dword v{check_init}, v16, s[24:27], 0 offen sc1
        s_add_u32 s97, s97, 1
        s_cmp_lt_u32 s97, 0x40000
        s_waitcnt vmcnt(0)
        s_cbranch_scc1 {lp}
        {dn}:""")
        a.vm = sv
    a(f"""s_mov_b32 s98, 1
    s_atomic_add s98, s[20:21], {cnt_sreg}""")
    if cnt2: a(f"s_atomic_add s98, s[20:21], {cnt2}")
    a(f"{sk}:")
    a.lg = saved

def poll(a, cnt_sreg, target, vt=None):
    sk = a.lab("pk"); lp = a.lab("poll"); dn = a.lab("done"); saved = list(a.lg)
    a(f"""s_cmp_lg_u32 s30, 0
    s_cbranch_scc1 {sk}
    s_mov_b32 s97, 0
    s_waitcnt lgkmcnt(0)
    {lp}:
    s_mov_b32 s98, 0
    s_atomic_add s98, s[20:21], {cnt_sreg} glc
    s_add_u32 s97, s97, 1
    s_waitcnt lgkmcnt(0)
    s_cmp_ge_u32 s98, {target}
    s_cbranch_scc1 {dn}
    s_cmp_lt_u32 s97, 0x40000
    s_cbranch_scc1 {lp}
    {dn}:
    {sk}:
    s_barrier""")
    a.lg = saved

def init_check(a, vreg):
    lp = a.lab("ini"); dn = a.lab("inid"); sv = list(a.vm)
    a(f"""s_cmp_lg_u32 s30, 0
    s_cbranch_scc1 {dn}
    s_mov_b32 s97, 0
    {lp}:
    v_readfirstlane_b32 s98, v{vreg}
    s_cmp_eq_u32 s98, 1
    s_cbranch_scc1 {dn}
    v_mov_b32 v16, 0
    buffer_load_dword v{vreg}, v16, s[24:27], 0 offen sc1
    s_add_u32 s97, s97, 1
    s_cmp_lt_u32 s97, 0x40000
    s_waitcnt vmcnt(0)
    s_cbranch_scc1 {lp}
    {dn}:""")
    a.vm = sv

def poll2(a, c0, t0, c1, t1):
    sk = a.lab("pk"); lp = a.lab("poll"); dn = a.lab("done"); saved = list(a.lg)
    a(f"""s_cmp_lg_u32 s30, 0
    s_cbranch_scc1 {sk}
    s_mov_b32 s97, 0
    s_waitcnt lgkmcnt(0)
    {lp}:
    s_mov_b32 s98, 0
    s_mov_b32 s96, 0
    s_atomic_add s98, s[20:21], {c0} glc
    s_atomic_add s96, s[20:21], {c1} glc
    s_add_u32 s97, s97, 1
    s_waitcnt lgkmcnt(0)
    s_cmp_ge_u32 s98, {t0}
    s_cselect_b32 s96, s96, 0
    s_cmp_ge_u32 s96, {t1}
    s_cbranch_scc1 {dn}
    s_cmp_lt_u32 s97, 0x40000
    s_cbranch_scc1 {lp}
    {dn}:
    {sk}:
    s_barrier""")
    a.lg = saved
```

```python
from common import *
from ffn16 import dma_offsets, store_setup
UNIT = 18432; SLOT = 2 * UNIT

def ffn_body(a, st, opts, C3, C4, front):
    opt = lambda k, d: next((int(o[len(k):]) for o in reversed(opts) if re.fullmatch(k + r'\d+', o)), d)
    diag = st.on
    T0 = 21
    G = lambda t: 64 + 8 * t
    def U(t): return ("v", 208 + 8 * t) if t < 6 else ("a", 96 + 8 * (t - 6))
    XR = lambda k: 32 + 8 * (k % 4)
    NF = opt("nf", 8); D = NF - 2; NA = opt("na", 3)
    AF = lambda i: 192 + 4 * (i % NF)
    def emit(it):
        if len(it) > 2 and it[2][0] == "F":
            saved = list(a.lg); a(it[1]); a.lg = saved
        elif len(it) > 2: a(it[1], vtag=it[2])
        else: a(it[1])
    def blocks(P):
        if P < 18 + NA: return [(J, cg) for J in range(9) for cg in range(NA)][9 * (P - 18):9 * (P - 17)]
        return [(J, P - 18) for J in range(9)]
    def dma_pair(P):
        r = []; slot = P % 4
        if P < 18:
            for i in range(9):
                if i % 4 == 0: r.append(("m", f"s_add_u32 m0, s37, {slot*SLOT + i*1024}"))
                r.append(("d", f"buffer_load_dwordx4 v{i}, s[12:15], s36 offen offset:{(i%4)*1024} lds", ("P", P)))
            return r + [("s", f"s_add_u32 s36, s36, {32*9216}")]
        for b, (J, cg) in enumerate(blocks(P)):
            r.append(("m", f"s_add_u32 m0, s40, {slot*SLOT + b*4096}"))
            r.append(("s", f"s_add_u32 s39, s38, {J*32*1152 + cg*128}"))
            r.append(("d", f"buffer_load_dwordx4 v0, s[16:19], s39 offen lds", ("P", P)))
        return r
    def setup():
        a(f"""v_mov_b32 v30, v15
        s_lshl_b32 s31, s29, 1
        s_and_b32 s33, s28, 1
        s_add_u32 s31, s31, s33
        s_lshr_b32 s32, s28, 1
        s_and_b32 s33, s30, 1
        s_lshr_b32 s34, s30, 1
        v_lshlrev_b32 v15, 4, v30""")
        for it in dma_offsets(9216): a(it)
        a(f"""s_cmp_eq_u32 s34, 0
        s_cselect_b32 s12, s4, s6
        s_cselect_b32 s13, s5, s7
        s_sub_u32 s12, s12, 3072
        s_subb_u32 s13, s13, 0
        s_mov_b32 s14, {576*9216+3072}
        s_mov_b32 s15, 0x20000""")
        srd(a, 16, 8, 9, 4608 * 1152)
        a(f"""s_mul_i32 s36, s31, 576
        s_mul_i32 s39, s33, {16*9216}
        s_add_u32 s36, s36, s39
        s_mul_i32 s37, s30, 9216""")
        a("""v_lshrrev_b32 v21, 2, v30
        v_mul_u32_u24 v9, 576, v21
        v_and_b32 v21, 3, v30
        v_lshl_add_u32 v9, v21, 3, v9
        v_bfe_u32 v21, v30, 4, 1
        v_lshlrev_b32 v21, 5, v21
        v_sub_u32 v16, v9, v21
        v_add_u32 v9, v9, v21
        v_add_u32 v10, 55296, v9
        v_add_u32 v11, 110592, v9
        v_add_u32 v17, 55296, v16
        v_add_u32 v18, 110592, v16""")
    def dma0(P):
        [emit(x) for x in dma_pair(P)]
    loop = "noloop" not in opts
    def zero(part):
        regs = []
        for t in range(18):
            for q in range(8):
                regs.append(("v", G(t) + q)); k, b = U(t); regs.append((k, b + q))
        for (k, r) in regs:
            late = (k == "v" and r >= 168) or (k == "a" and r < 136)
            if late == (part == 1): a(f"v_mov_b32 v{r}, 0" if k == "v" else f"v_accvgpr_write_b32 a{r}, 0")
    front(setup, dma0, zero)
    tl = "notl" not in opts
    if tl:
        a(f"""v_mul_u32_u24 v21, 7282, v30
        v_lshrrev_b32 v21, 16, v21
        v_mul_u32_u24 v22, 9, v21
        v_sub_u32 v22, v30, v22
        v_mul_u32_u24 v21, 9216, v21
        v_lshl_add_u32 v21, v22, 7, v21
        v_mov_b32 v22, 0x7fffff00
        v_cmp_gt_u32 vcc, 18, v30
        v_cndmask_b32 v31, v22, v21, vcc
        v_lshlrev_b32 v21, 7, v30
        v_cmp_gt_u32 vcc, 11, v30
        v_cndmask_b32 v14, v22, v21, vcc
        s_lshl_b32 s50, s28, 1
        s_add_u32 s50, s50, s33
        s_mul_i32 s50, s50, {2*9216}
        s_mul_i32 s51, s29, 1152
        s_add_u32 s50, s50, s51
        s_add_u32 s50, s50, {opt("tla", 256)*9216 + 3072}
        s_lshl_b32 s51, s28, 2
        s_add_u32 s51, s51, s30
        s_mul_i32 s51, s51, {11*128}
        s_mul_i32 s52, s29, {576*1152}
        s_add_u32 s51, s51, s52""")
    a(f"""s_lshl_b32 s35, s32, 2
    s_add_u32 s35, s35, s30
    s_mul_i32 s43, s35, 1536
    s_mul_i32 s35, s35, 36864
    s_add_u32 s43, s43, {STATS}
    s_mul_i32 s38, s31, {288*1152}
    s_mul_i32 s39, s30, {8*1152}
    s_add_u32 s38, s38, s39
    s_lshl_b32 s40, s30, 10
    s_mov_b32 s47, 0xffff0000
    s_lshl_b32 s53, s32, 8
    s_add_u32 s53, s53, {C3}
    v_and_b32 v29, 31, v30
    v_lshrrev_b32 v21, 5, v30
    v_mul_u32_u24 v21, 768, v21
    v_lshl_add_u32 v29, v29, 2, v21""")
    if HFRAG: a(f"s_add_u32 s35, s35, {HFRAG}")
    poll(a, "s53", 12)
    st("sync3")
    def xload(k):
        r = []
        for h in range(2):
            r.append(("x", f"buffer_load_dwordx4 {vr(XR(k)+4*h,4)}, v15, s[20:23], s35 offen offset:{h*1024} sc1", ("X", k)))
        return r + [("s", "s_add_u32 s35, s35, 2048")]
    for q in range(6): a(f"buffer_load_dword v{56+q}, v29, s[20:23], s43 offen offset:{128*q} sc1", vtag="st")
    for k in range(2): [emit(x) for x in xload(k)]
    if loop: zero(1)
    a.wait(v="st")
    a("""v_add_f32 v56, v56, v57
    v_add_f32 v58, v58, v59
    v_add_f32 v60, v60, v61
    v_add_f32 v56, v56, v58
    v_add_f32 v56, v56, v60
    v_mul_f32 v56, 0x3ae38e39, v56
    v_mov_b32 v57, v56
    v_permlane16_swap_b32 v56, v57
    v_fma_f32 v57, -v56, v56, v57
    v_max_f32 v57, 0, v57
    v_add_f32 v57, 0x3727c5ac, v57
    v_rsq_f32 v12, v57
    s_nop 0
    v_mul_f32_e64 v19, -v56, v12
    v_mov_b32 v13, v12
    v_mov_b32 v20, v19
    v_permlane32_swap_b32 v12, v13
    v_permlane32_swap_b32 v19, v20""")
    def norm(k):
        r = []
        if "xnonorm" in opts: return r
        for h in range(2):
            b = XR(k) + 4 * h
            for j in range(4):
                r.append(("v", f"v_lshlrev_b32_e32 v{T0+2*j}, 16, v{b+j}"))
                r.append(("v", f"v_and_b32_e32 v{T0+1+2*j}, s47, v{b+j}"))
            for j in range(8):
                r.append(("v", f"v_fma_f32 v{T0+j}, v{T0+j}, v{12+h}, v{19+h}"))
            for j in range(4):
                r.append(("v", f"v_cvt_pk_bf16_f32 v{b+j}, v{T0+2*j}, v{T0+1+2*j}"))
        return r
    def conv(J):
        r = []
        for h in range(2):
            for e in range(2):
                t = 2 * J + e; g = G(t) + 4 * h; k, u = U(t); u += 4 * h
                for q in range(4):
                    if k == "a": r.append(("v", f"v_accvgpr_read_b32 v{T0+q}, a{u+q}"))
                    r.append(("v", f"v_max_f32_e32 v{g+q}, 0, v{g+q}"))
                for q in range(4):
                    src = f"v{T0+q}" if k == "a" else f"v{u+q}"
                    r.append(("v", f"v_mul_f32_e32 v{g+q}, v{g+q}, {src}"))
                d = G(2 * J) + 4 * h + 2 * e
                for q in range(2):
                    r.append(("v", f"v_cvt_pk_bf16_f32 v{d+q}, v{g+2*q}, v{g+2*q+1}"))
        return r
    def acc2(c, t): return ("a", 8 * (4 * c + t)) if c < NA else ("v", G(2 * ((c % 2) * 4 + t) + 1))
    ecount = [0]
    def epi(c):
        r = []
        for tp in range(2):
            for h in range(2):
                S = 32 + 4 * (ecount[0] % 8); ecount[0] += 1
                for e in range(2):
                    k, b = acc2(c, 2 * tp + e); b += 4 * h
                    if k == "a":
                        for q in range(4): r.append(("v", f"v_accvgpr_read_b32 v{T0+4*e+q}, a{b+q}"))
                        b = T0 + 4 * e
                    for q in range(2): r.append(("v", f"v_cvt_pk_bf16_f32 v{S+2*e+q}, v{b+2*q}, v{b+2*q+1}"))
                o = (2 * c + tp) * 512
                r.append(("st", f"buffer_store_dwordx4 {vr(S,4)}, v15, s[20:23], s{44+3*h+o//4096} offen offset:{o%4096}{'' if 'xplain' in opts else ' sc1'}", ("ST", c)))
                if "xnost" in opts and c < 8: r.pop()
        return r
    a.wait(v=("X", 0))
    [emit(x) for x in norm(0)]
    fr = []
    for ks in range(18):
        for t in range(18):
            fr.append((ks, (0, t), "v", G(t), XR(ks), ks == 0 and not loop))
            k, b = U(t); fr.append((ks, (1, t), k, b, XR(ks), ks == 0 and not loop))
    for P in range(18, 27):
        for b_, (J, cg) in enumerate(blocks(P)):
            for t in range(4):
                k, b = acc2(cg, t)
                fr.append((P, (b_, t), k, b, G(2 * J), J == 0))
    N = len(fr)
    def reads(i):
        P, (x, t) = fr[i][0], fr[i][1]; f = AF(i)
        if P < 18:
            slot = (2 * P + x) % 8; base = (9 if t % 2 == 0 else 16) + slot // 3
            o = (slot % 3) * UNIT + t * 32; o2 = o + 9216
        else:
            base = 1 + t; o = x * 4096; o2 = o + 2048
        return [f"ds_read_b64_tr_b16 a[{f}:{f+1}], v{base} offset:{o}", f"ds_read_b64_tr_b16 a[{f+2}:{f+3}], v{base} offset:{o2}"]
    s2setup = ["v_lshrrev_b32 v0, 3, v30", "v_mul_u32_u24 v0, 1152, v0", "v_and_b32 v14, 7, v30", "v_lshlrev_b32 v14, 4, v14",
               "v_lshrrev_b32 v1, 4, v30", "v_lshlrev_b32 v1, 5, v1", "v_xor_b32 v14, v14, v1", "v_add_u32 v0, v0, v14"]
    s2read = ["v_lshrrev_b32 v1, 2, v30", "v_lshlrev_b32 v1, 7, v1", "v_and_b32 v14, 3, v30", "v_lshl_add_u32 v1, v14, 3, v1",
              "v_bfe_u32 v14, v30, 3, 2", "v_lshl_add_u32 v1, v14, 5, v1", f"v_add_u32 v1, {2*SLOT}, v1",
              "v_xor_b32 v2, 32, v1", "v_xor_b32 v3, 64, v1", "v_xor_b32 v4, 96, v1"]
    redsetup = ["v_lshrrev_b32 v14, 4, v30", "v_mul_u32_u24 v31, 9216, v14", "v_and_b32 v5, 15, v30", "v_lshl_add_u32 v31, v5, 4, v31",
                "v_bfe_u32 v6, v30, 3, 1", "v_lshlrev_b32 v7, 8, v6", "v_and_b32 v5, 7, v30", "v_lshl_add_u32 v7, v5, 4, v7",
                "v_mov_b32 v8, 0x7fffff00", "v_cmp_eq_u32 vcc, 0, v14", "v_mul_u32_u24 v5, 1152, v5", "v_lshl_add_u32 v5, v6, 3, v5", "v_cndmask_b32 v7, v8, v7, vcc",
                "v_lshrrev_b32 v6, 1, v14", "v_lshl_add_u32 v5, v6, 7, v5", "v_and_b32 v6, 1, v14", "v_lshl_add_u32 v5, v6, 5, v5",
                "v_mov_b32 v6, 0",
                "s_lshl_b32 s29, s32, 4", "s_add_u32 s29, s29, s31",
                "s_mul_i32 s88, s29, 147456", "s_lshl_b32 s89, s30, 8", "s_add_u32 s88, s88, s89", f"s_add_u32 s88, s88, {PART}",
                "s_add_u32 s89, s88, 36864", "s_add_u32 s90, s89, 36864", "s_add_u32 s91, s90, 36864",
                "s_lshr_b32 s92, s29, 2", "s_mul_i32 s92, s92, 36864", "s_bfe_u32 s93, s29, 0x10001", "s_lshl_b32 s93, s93, 10", "s_add_u32 s92, s92, s93",
                "s_and_b32 s93, s29, 1", "s_lshl_b32 s93, s93, 7", "s_add_u32 s92, s92, s93", "s_lshl_b32 s93, s34, 11", "s_add_u32 s92, s92, s93",
                "s_lshl_b32 s93, s33, 9", "s_add_u32 s92, s92, s93",
                f"s_mul_i32 s94, s29, {8*1152}", "s_lshl_b32 s93, s34, 6", "s_add_u32 s94, s94, s93", "s_lshl_b32 s93, s33, 4", "s_add_u32 s94, s94, s93",
                f"s_add_u32 s53, s53, {C4-C3}"]
    if HFRAG: redsetup.append(f"s_add_u32 s92, s92, {HFRAG}")
    PL = lambda c, i: (96 + 4 * (4 * c + i)) if c < 6 else 4 * (4 * (c - 6) + i)
    HL = lambda c: 48 + 4 * c
    def hload(c): return [("x", f"buffer_load_dwordx4 a[{HL(c)}:{HL(c)+3}], v7, s[20:23], s92 offen sc1", ("H", c)), ("s", "s_add_u32 s92, s92, 4096")]
    def pload(c):
        r = []
        if c and c % 4 == 0: r += [("s", f"s_add_u32 s{88+i}, s{88+i}, 4096") for i in range(4)]
        for i in range(4):
            r.append(("x", f"buffer_load_dwordx4 a[{PL(c,i)}:{PL(c,i)+3}], v31, s[20:23], s{88+i} offen offset:{(c%4)*1024} sc1", ("L", c)))
        return r
    sched = opt("sch", 1)
    if sched == 0: groups = [(range(9), None, None)]
    elif sched == 4: groups = [((0, 1, 2, 3, 4, 5), 26, None), ((6, 7, 8), None, None)]
    elif sched == 5: groups = [((0, 1, 2, 3, 4, 5), 26, None), ((6, 7), 27, None), ((8,), None, None)]
    elif sched == 6: groups = [((0, 1), 22, 23), ((2, 3, 4, 5), 26, None), ((6, 7, 8), None, None)]
    elif sched == 7: groups = [((0, 1, 2), 23, 24), ((3, 4, 5), 26, None), ((6, 7, 8), None, None)]
    elif sched == 8: groups = [((0,), 21, 22), ((1, 2), 23, 24), ((3, 4, 5), 26, None), ((6, 7, 8), None, None)]
    elif sched == 9: groups = [((0, 1), 22, 24), ((2, 3, 4, 5), 26, None), ((6, 7), 27, None), ((8,), None, None)]
    elif sched == 10: groups = [((0, 1), 24, 25), ((2, 3, 4, 5), 26, None), ((6, 7), 27, None), ((8,), None, None)]
    elif sched == 11: groups = [((0, 1, 2), 24, 25), ((3, 4, 5), 26, None), ((6, 7), 27, None), ((8,), None, None)]
    elif sched == 12: groups = [((0, 1, 2, 3), 24, 25), ((4, 5), 26, None), ((6, 7), 27, None), ((8,), None, None)]
    elif sched == 13: groups = [((0, 1, 2, 3, 4), 25, 26), ((5, 6, 7), 27, None), ((8,), None, None)]
    slowq = []; lper = opt("lper", 18)
    spins = []
    def sig(g):
        sk = a.lab("sg"); saved = list(a.lg)
        a(f"""s_cmp_lg_u32 s30, 0
        s_cbranch_scc1 {sk}
        s_add_u32 s95, s53, {4096*g}
        s_mov_b32 s98, 1
        s_atomic_add s98, s[20:21], s95
        {sk}:""")
        a.lg = saved
    def poll_issue(g):
        sk = a.lab("pi")
        return [("x", f"s_cmp_lg_u32 s30, 0\ns_cbranch_scc1 {sk}\ns_add_u32 s96, s53, {4096*g}\ns_mov_b32 s97, 0\ns_atomic_add s97, s[20:21], s96 glc\n{sk}:", ("F", g))]
    def poll_check(g):
        ok = a.lab("ok"); sp = a.lab("spin"); saved = list(a.lg)
        a(f"s_cmp_eq_u32 s30, 0\ns_cbranch_scc1 {sp}\n{ok}:")
        spins.append(f"""{sp}:
        s_mov_b32 s99, 0
        {sp}_l:
        s_waitcnt lgkmcnt(0)
        s_cmp_ge_u32 s97, 16
        s_cbranch_scc1 {ok}
        s_mov_b32 s97, 0
        s_atomic_add s97, s[20:21], s96 glc
        s_add_u32 s99, s99, 1
        s_cmp_lt_u32 s99, 0x40000
        s_cbranch_scc1 {sp}_l
        s_waitcnt lgkmcnt(0)
        s_branch {ok}""")
    st("pro")
    a("s_waitcnt vmcnt(0)\ns_barrier")
    st("bar0")
    if diag: a("s_waitcnt lgkmcnt(0)")
    for i in range(D):
        for r in reads(i): a(r, ltag=("A", i))
    memq = []; valq = []; pendbar = None
    budget = opt("bud", 2); mper = opt("mper", 4)
    def emitv(it):
        if it[0] == "w": return 1 if a.wait(v=it[1]) else 0
        emit(it); return 1
    marks = {}
    for i in range(N):
        P, xt, k, b, B, first = fr[i]
        s, pos = divmod(i, 36)
        if pos == 0 and s % 4 == 0 and s <= 16: marks[s] = len(a.l)
        if i == 648: st("s1")
        if (i + D) % 36 == 0 and i + D < N:
            sn = (i + D) // 36
            while any(len(x) > 2 and x[2][0] == "P" for x in memq) or (memq and memq[0][0] in "sv"): emit(memq.pop(0))
            pendbar = sn
            if sn > 18: valq = [(("v", f"v_add_u32 v{1+t}, {SLOT if sn % 4 else -3*SLOT}, v{1+t}"), i) for t in range(4)] + valq
        if pos == 0:
            Pn = s + 2; q = []
            if s <= 15: q += xload(s + 2)
            if Pn == 18: q += [("v", x) for x in s2setup]
            if Pn < 27: q += dma_pair(Pn)
            if Pn == 18: q += [("v", x) for x in s2read]
            if tl and s < 16 and s % 4 == 0: q += [("x", "buffer_load_dword a232, v31, s[12:15], s50 offen", ("T", s)), ("s", f"s_add_u32 s50, s50, {128*9216}")]
            if tl and s < 16 and s % 4 == 2: q += [("x", "buffer_load_dword a233, v14, s[16:19], s51 offen", ("T", s)), ("s", f"s_add_u32 s51, s51, {128*11*128}")]
            memq = q + memq
        if pos == 4 and s + 1 < 18:
            valq += [(("w", ("X", s + 1)), i + 31)] + [(x, i + 31) for x in norm(s + 1)]
        if i >= 612 and i < 648 and (i - 612) % 4 == 2 and (i - 612) // 4 >= 1:
            J = (i - 612) // 4 - 1
            valq += [(x, 648 + 4 * NA * J) for x in conv(J)]
        if i == 650: valq += [(x, 648 + 4 * NA * 8) for x in conv(8)]
        if i == 652: valq += [(("v", x), 648 + 36 * NA + 20) for x in store_setup() + redsetup]
        EP = opt("ep", 2)
        if i == 648 + 36 * NA + EP:
            for c in range(NA): valq += [(x, None) for x in epi(c)]
        if i >= 648 + 36 * (NA + 1) + 2 and pos == (EP if s < 25 else 2):
            c = s - 19
            valq += [(x, 648 + 36 * (c + 2)) for x in epi(c)]
        if i == opt('hl', N - 1):
            for c in range(9): slowq += hload(c)
        chks = []
        for g, (chs, sst, chk) in enumerate(groups):
            if chk is not None and i == 36 * chk - D - 16: memq = poll_issue(g) + memq
            if chk is not None and pendbar == chk:
                while any(len(x) > 2 and x[2] == ("F", g) for x in memq): emit(memq.pop(0))
                chks.append(g)
        if slowq and i % lper == opt("loff", 0):
            while True:
                x = slowq.pop(0); memq.append(x)
                if x[0] == "x" or not slowq: break
        sigs = [g for g, (chs, sst, chk) in enumerate(groups) if pendbar is not None and sst == pendbar]
        for g in sigs:
            last = max(groups[g][0])
            while any(len(x) > 2 and x[2][0] == "ST" and x[2][1] <= last for (x, _) in valq): emitv(valq.pop(0)[0])
        while any(d is not None and d <= i for (_, d) in valq): emitv(valq.pop(0)[0])
        lw = lambda lim: a.wait(l=lambda t: t is not None and t != "SMEM" and t[1] <= lim)
        lw(i)
        f = AF(i)
        rd = reads(i + D) if i + D < N else []
        behind = len(valq) > opt("beh", 60)
        for h in range(2):
            C = "0" if first else vr(b + 4 * h, 4, k)
            a(f"v_mfma_f32_16x16x32_bf16 {vr(b+4*h,4,k)}, a[{f}:{f+3}], {vr(B+4*h,4)}, {C}")
            sc_used = False
            if pendbar is not None:
                lasts = [max(groups[g][0]) for g in sigs]
                a.wait(v=lambda t: t == ("P", pendbar) or (isinstance(t, tuple) and t[0] == "ST" and any(t[1] <= l for l in lasts)))
                for g in chks: poll_check(g)
                a("s_barrier")
                for g in sigs: sig(g)
                for g in chks:
                    for c in groups[g][0]: slowq += pload(c)
                pendbar = None; sc_used = True
            if h == 1 and not sc_used: sc_used = lw(i + 1)
            if not sc_used:
                if memq and memq[0][0] in ("s", "m"):
                    emit(memq.pop(0)); sc_used = True
                    if "sc2" in opts and memq and memq[0][0] in ("s", "m"): emit(memq.pop(0))
                elif valq and valq[0][0][0] == "w": sc_used = emitv(valq.pop(0)[0])
                elif valq and valq[0][0][1].startswith("s_"): emitv(valq.pop(0)[0]); sc_used = True
            n = 0
            if rd: a(rd[h], ltag=("A", i + D)); n += 1
            mp = mper if s < 16 else opt("mq", 4)
            if memq and memq[0][0] in ("x", "d") and (2 * i + h) % mp == 0:
                emit(memq.pop(0)); n += 1
            elif memq and memq[0][0] == "v":
                emit(memq.pop(0)); n += 1
            while valq and n < budget + (1 if behind else 0) and valq[0][0][0] != "w" and not valq[0][0][1].startswith("s_"):
                n += emitv(valq.pop(0)[0])
    for it in memq: emit(it)
    for it, d in valq: emitv(it)
    tailq = slowq
    if loop:
        body = [[x.text for x in a.l[marks[s]:marks[s + 4]]] for s in (0, 4, 8, 12)]
        assert body[1] == body[2] == body[3], "loop bodies differ"
        pre = []
        if body[0][0] != body[1][0]:
            assert body[0][0].startswith("s_waitcnt lgkmcnt"); pre = [Ins(body[0][0])]; body[0] = body[0][1:]
        assert body[0] == [x for x in body[1] if not (x.startswith("s_waitcnt vmcnt") and x not in body[0])] or \
               [x for x in body[0] if "vmcnt" not in x] == [x for x in body[1] if "vmcnt" not in x]
        lp = a.lab("loop")
        a.l = a.l[:marks[0]] + pre + [Ins("s_mov_b32 s41, 0"), Ins(".p2align 3"), Ins(f"{lp}:")] + a.l[marks[4]:marks[8]] + \
              [Ins("s_add_u32 s41, s41, 1"), Ins("s_cmp_lt_u32 s41, 4"), Ins(f"s_cbranch_scc1 {lp}")] + a.l[marks[16]:]
    st("s2")
    rest = [g for g, (chs, sst, chk) in enumerate(groups) if sst is None or sst >= 27]
    late = [g for g, (chs, sst, chk) in enumerate(groups) if chk is None]
    srd(a, 12, 10, 11, 2048 * 1152)
    def red(c):
        T = 208 + 4 * (c // 2); S = 224 + 4 * (c % 2)
        a.wait(v=("H", c))
        a(f"v_mfma_f32_16x16x32_bf16 v[{T}:{T+3}], a[{S}:{S+3}], a[{HL(c)}:{HL(c)+3}], {'0' if c % 2 == 0 else f'v[{T}:{T+3}]'}")
        a.wait(v=("L", c))
        for i in range(4):
            a(f"v_mfma_f32_16x16x32_bf16 v[{T}:{T+3}], a[{S}:{S+3}], a[{PL(c,i)}:{PL(c,i)+3}], v[{T}:{T+3}]")
    def out(T):
        r = 208 + 4 * T
        a(f"v_cvt_pk_bf16_f32 v{r}, v{r}, v{r+1}\nv_cvt_pk_bf16_f32 v{r+1}, v{r+2}, v{r+3}")
        if T == 4: a("s_mov_b32 exec_hi, 0")
        a(f"buffer_store_dwordx2 v[{r}:{r+1}], v5, s[12:15], s94 offen offset:{256*T}")
        if T == 4: a("s_mov_b64 exec, -1")
    for g in rest:
        if groups[g][1] == 27:
            last = max(groups[g][0])
            a.wait(v=lambda t: isinstance(t, tuple) and t[0] == "ST" and t[1] <= last); a("s_barrier"); sig(g)
    for x in epi(8): emit(x)
    st("epi")
    done = 0
    pend = list(tailq)
    def issue(n):
        while pend and n > 0:
            x = pend.pop(0); emit(x)
            if x[0] == "x": n -= 1
    a.wait(v=lambda t: isinstance(t, tuple) and t[0] == "ST"); a("s_barrier")
    for g in rest:
        if groups[g][1] is None: sig(g)
    rest = [g for g in late if groups[g][1] is not None and groups[g][1] < 27] + rest
    st("drain")
    for g in rest:
        nx = sum(1 for x in pend if x[0] == "x")
        issue(nx - opt("keep", 6))
        [emit(x) for x in poll_issue(g)]
        issue(99)
        poll_check(g); a("s_barrier")
        if g == rest[-1]: st("sync4")
        for c in groups[g][0]: pend += pload(c)
    issue(99)
    for c in range(done, 9):
        red(c)
        if c >= 3 and c % 2 == 1: out(c // 2 - 1)
    st("loaded")
    out(3); out(4)
    st("end")
    a.spins = spins
```

```python
import os
BASE = int(os.environ.get('WSBASE', '0'), 0)
HFRAG = BASE + 0x000000
STATS = BASE + 0x240000
PART  = BASE + 0x280000
OFRAG = BASE + 0x2700000
KVP   = BASE + 0x2A00000
FLAGS = BASE + 0x2C00000
XFRAG = BASE + 0x2D00000
WSLAB = BASE + 0x3000000
HHX   = BASE + 0x3400000
WM    = BASE + 0x2CC0000
MX    = BASE + 0x2CC1000
PM    = BASE + 0x2CD0000
TS    = 0x8000000
WS_BYTES = 268435456
```

```python
from common import *
from pk import divu
WOB = 36864
OOB = 0x7fffff00

def p2c_setup(a):
    a("""s_mul_i32 s27, s28, 43
    s_lshr_b32 s27, s27, 8
    s_mul_i32 s26, s27, 6
    s_sub_u32 s26, s28, s26
    s_lshl_b32 s91, s29, 2
    s_add_u32 s27, s27, s91""")
    for i in range(3):
        a(f"v_add_u32 v16, {64*i}, v15")
        divu(a, 17, 16, 12)
        a(f"""v_mul_u32_u24 v18, 12, v17
        v_sub_u32 v18, v16, v18
        v_lshrrev_b32 v19, 3, v17
        v_lshlrev_b32 v19, 1, v19
        v_xor_b32 v18, v18, v19
        v_lshlrev_b32 v18, 4, v18
        v_add_u32 v18, {2048 - 1024*i}, v18
        v_mul_u32_u24 v19, 1152, v17
        v_add_u32 v{7+i}, v19, v18
        v_lshrrev_b32 v19, 1, v17
        v_mul_u32_u24 v19, 18, v19
        v_and_b32 v17, 1, v17
        v_add_u32 v19, v19, v17
        v_mul_u32_u24 v19, 1152, v19
        v_add_u32 v{10+i}, v19, v18""")
    a(f"""v_lshrrev_b32 v16, 4, v15
    v_bfe_u32 v17, v15, 2, 2
    v_lshl_add_u32 v17, v16, 3, v17
    v_mul_u32_u24 v17, 192, v17
    v_and_b32 v18, 3, v15
    v_lshl_add_u32 v17, v18, 3, v17
    v_add_u32 v17, {WOB}, v17
    v_and_b32 v16, 1, v16
    v_lshlrev_b32 v16, 5, v16
    v_add_u32 v170, v17, v16
    v_sub_u32 v171, v17, v16
    v_add_u32 v172, 55296, v170
    v_add_u32 v173, 55296, v171
    v_and_b32 v16, 15, v15
    v_mul_u32_u24 v17, 1152, v16
    v_lshrrev_b32 v18, 4, v15
    v_lshl_add_u32 v174, v18, 3, v17
    v_lshlrev_b32 v17, 8, v18
    v_lshl_add_u32 v175, v16, 2, v17""")
    a(f"s_sub_u32 s44, s44, 2048\ns_subb_u32 s45, s45, 0\ns_add_u32 s46, s46, 2048")

def p2c_wodma(a, rot=True):
    r = []
    r.append(f"""s_mul_i32 s38, s26, 192
    s_mul_i32 s37, s30, {18*1152}
    s_add_u32 s39, s38, s37
    s_mul_i32 s37, s30, {8*18*1152}
    s_add_u32 s38, s38, s37
    s_add_u32 s38, s38, {16*1152}
    s_mul_i32 s40, s30, 3072
    s_add_u32 s40, s40, {WOB}""")
    r0 = []
    for j in range(9):
        q = r0 if j == 0 else r
        q.append(f"s_add_u32 m0, s40, {j*4*3072}")
        if j < 8:
            q.append(f"s_add_u32 s39, s39, {4*18*1152}" if j else f"s_sub_u32 s39, s39, {7*4*18*1152}")
            q += [(f"buffer_load_dwordx4 v{7+i}, s[44:47], s39 offen offset:{i*1024} lds", "wo") for i in range(3)]
        else:
            q.append("s_nop 0")
            q += [(f"buffer_load_dwordx4 v{10+i}, s[44:47], s38 offen offset:{i*1024} lds", "wo") for i in range(3)]
    return r, r0

def p2c_xload(a):
    a(f"""s_lshl_b32 s35, s27, 2
    s_add_u32 s35, s35, s30
    s_mul_i32 s36, s35, {16*1152}
    s_mul_i32 s37, s26, 192
    s_add_u32 s36, s36, s37""")
    for t in range(6):
        a(f"buffer_load_dwordx2 v[{208+2*t}:{209+2*t}], v174, s[12:15], s36 offen offset:{32*t}", vtag="xr")

def p2c_main(a, st, C2, C3, mid=None):
    O = lambda k: 64 + 4 * k
    a(f"""s_lshr_b32 s53, s27, 1
    s_lshl_b32 s53, s53, 8
    s_add_u32 s53, s53, {C2}
    s_mul_i32 s48, s35, 18432
    s_add_u32 s48, s48, {OFRAG}
    s_add_u32 s38, s48, 16384""")
    a("v_lshlrev_b32 v169, 2, v30")
    a.wait(v="wo")
    st("wo")
    poll(a, "s53", 16)
    st("sync2")
    for k in range(16):
        if k % 4 == 0 and k: a("s_add_u32 s48, s48, 4096")
        a(f"buffer_load_dwordx4 {vr(O(k),4,'a')}, v15, s[20:23], s48 offen offset:{(k%4)*1024} sc1", vtag=("o", k))
    for e in range(8):
        a(f"buffer_load_dword a{O(16)+e}, v175, s[20:23], s38 offen offset:{(e//4)*1024 + (e%4)*64} sc1", vtag=("o", 16 + e // 4))
    T = lambda t: 220 + 4 * t
    fr = [(ks, t) for ks in range(18) for t in range(6)]
    NF = 12; D = 10
    AF = lambda i: 4 * (i % NF)
    def reads(i):
        ks, t = fr[i]; f = AF(i); o = (ks % 9) * 6144 + t * 32; ad = 170 + (t % 2) + 2 * (ks // 9)
        return [f"ds_read_b64_tr_b16 a[{f}:{f+1}], v{ad} offset:{o}", f"ds_read_b64_tr_b16 a[{f+2}:{f+3}], v{ad} offset:{o+768}"]
    N = len(fr)
    for i in range(7):
        for r in reads(i): a(r, ltag=("A", i))
    D = 7
    a(f"""s_lshr_b32 s49, s35, 1
    s_mul_i32 s48, s49, 36864
    s_and_b32 s38, s35, 1
    s_lshl_b32 s38, s38, 10
    s_add_u32 s48, s48, s38
    s_mul_i32 s38, s26, 6144
    s_add_u32 s48, s48, s38
    s_mul_i32 s39, s35, 768
    s_lshl_b32 s38, s26, 7
    s_add_u32 s39, s39, s38
    s_add_u32 s39, s39, {STATS}
    s_add_u32 s53, s53, {C3-C2}
    s_mov_b32 s50, 0x3f80
    s_mov_b32 s51, 0x3f800000""")
    if HFRAG: a(f"s_add_u32 s48, s48, {HFRAG}")
    for i in range(N):
        ks, t = fr[i]
        a.wait(v=("o", ks), l=lambda tg: isinstance(tg, tuple) and tg[0] == "A" and tg[1] <= i)
        f = AF(i)
        a(f"v_mfma_f32_16x16x32_bf16 {vr(T(t),4)}, a[{f}:{f+3}], {vr(O(ks),4,'a')}, {'0' if ks == 0 else vr(T(t),4)}")
        if i % 2 == 0: a.wait(l=lambda tg: isinstance(tg, tuple) and tg[0] == "A" and tg[1] <= i + 2)
        if i + D < N:
            for r in reads(i + D): a(r, ltag=("A", i + D))
    st("gemm2")
    a.wait(v="xr")
    for t in range(6):
        for q in range(2):
            a(f"v_dot2_f32_bf16 v{T(t)+2*q}, v{208+2*t+q}, s50, v{T(t)+2*q}\nv_dot2_f32_bf16 v{T(t)+2*q+1}, v{208+2*t+q}, s51, v{T(t)+2*q+1}")
    for tp in range(3):
        S = 244 + 4 * tp
        for e in range(2):
            b = T(2 * tp + e)
            a(f"v_cvt_pk_bf16_f32 v{S+2*e}, v{b}, v{b+1}\nv_cvt_pk_bf16_f32 v{S+2*e+1}, v{b+2}, v{b+3}")
        if tp == 2: a("s_add_u32 s48, s48, 4096")
        a(f"buffer_store_dwordx4 {vr(S,4)}, v15, s[20:23], s48 offen offset:{(tp%2)*2048} sc1", vtag="hs")
    a("s_mov_b32 s50, 0x3f803f80")
    for q in range(12):
        c0 = "0" if q < 2 else f"v{220+2*(q&1)}"; c1 = "0" if q < 2 else f"v{221+2*(q&1)}"
        a(f"v_dot2_f32_bf16 v{220+2*(q&1)}, v{244+q}, s50, {c0}\nv_dot2_f32_bf16 v{221+2*(q&1)}, v{244+q}, v{244+q}, {c1}")
    a(f"""v_add_f32 v220, v220, v222
    v_add_f32 v221, v221, v223
    v_permlane16_swap_b32 v220, v221
    v_add_f32 v220, v220, v221
    v_mov_b32 v221, v220
    v_permlane32_swap_b32 v220, v221
    v_add_f32 v220, v220, v221
    s_mov_b32 exec_hi, 0
    buffer_store_dword v220, v169, s[20:23], s39 offen sc1
    s_mov_b64 exec, -1""", vtag="hs")
    a("s_barrier")
    if mid: mid()
    a.wait(v="hs"); a("s_barrier")
    st("hst")
    signal(a, "s53")
```

```python
import sys, json
from common import *
from p1 import softmax, LOG2E
from pk import divu
from p2c import *
import ffn17

REG = 36864; SP = 4 * REG; MOFF = SP; KVL = SP + 6144; ZERO = KVL + 3072; STX = SP + 10240
KVS = 2816; QS = 1280; KVB = 36 * QS; KVR = 9 * KVS; QR = 9 * QS
C1, C2, C3, C4, C0 = FLAGS, FLAGS + 4096, FLAGS + 8192, FLAGS + 12288, FLAGS + 61440
PB = 768
OOB = 0x7fffff00

def touch_addr(a, dst, nrow_lines, rowstride, nitems, first=0):
    a(f"v_add_u32 v18, {first}, v14" if first else "v_mov_b32 v18, v14")
    divu(a, 16, 18, nrow_lines)
    a(f"""v_mul_u32_u24 v17, {nrow_lines}, v16
    v_sub_u32 v17, v18, v17
    v_mul_u32_u24 v16, {rowstride}, v16
    v_lshl_add_u32 v16, v17, 7, v16
    v_mov_b32 v17, {OOB}
    v_cmp_gt_u32 vcc, {nitems}, v18
    v_cndmask_b32 v{dst}, v17, v16, vcc""")

def touch3(a, first, rows):
    a("v_lshlrev_b32 v21, 6, v30\nv_lshrrev_b32 v21, 6, v21\ns_lshl_b32 s48, s30, 6\nv_add_u32 v21, s48, v30")
    def addr(first, stride, n):
        a(f"v_add_u32 v22, {first}, v21")
        a(f"""v_mul_u32_u24 v23, 7282, v22
        v_lshrrev_b32 v23, 16, v23
        v_mul_u32_u24 v24, 9, v23
        v_sub_u32 v24, v22, v24
        v_mul_u32_u24 v23, {stride}, v23
        v_lshl_add_u32 v23, v24, 7, v23
        v_mov_b32 v24, {OOB}
        v_cmp_gt_u32 vcc, {n}, v22
        v_cndmask_b32 v23, v24, v23, vcc""")
    a(f"s_sub_u32 s49, s28, 24\ns_mul_i32 s48, s49, {rows*9216}\ns_mul_i32 s38, s29, 1152\ns_add_u32 s48, s48, s38\ns_add_u32 s48, s48, {first*9216}")
    for q in range((rows * 9 + 255) // 256):
        addr(256 * q, 9216, rows * 9)
        for m in range(2):
            srd(a, 92, 4 + 2 * m, 5 + 2 * m, 576 * 9216)
            a(f"buffer_load_dword a{2+m}, v23, s[92:95], s48 offen")

def gen(diag, opts):
    a = A("K"); st = Stamps(a, diag, 0)
    opt = lambda k, d: next((int(o[len(k):]) for o in reversed(opts) if re.fullmatch(k + r'\d+', o)), d)
    X = lambda k: 64 + 4 * k
    T0, T2, T3, T1, PX = 48, 64, 80, 96, 32
    aT0, aT2, aT3, aT1, aT4 = 112, 114, 116, 118, 120
    aM, aZW, aZA, aZB, aP4, aP1, aN0, aN1, aKA, aKB, aINI, aMS0, aTWO, aTGU = 122, 123, 124, 126, 128, 129, 130, 131, 132, 133, 134, 136, 138, 139
    aPL, aKX = 135, 176
    a("s_cmp_ge_u32 s2, 256\ns_cbranch_scc1 K_end")
    a("""s_load_dwordx4 s[4:7], s[0:1], 0
    s_load_dwordx4 s[8:11], s[0:1], 16
    s_load_dwordx4 s[88:91], s[0:1], 72""")
    st("entry")
    if "pf0" in opts: code_prefetch(a, "K_start", "K_end", 16, "a[0:1]", reps=1)
    a("""v_lshrrev_b32 v16, 6, v0
    v_and_b32 v15, 63, v0
    v_mov_b32 v14, v0
    v_readfirstlane_b32 s30, v16
    s_and_b32 s31, s2, 3
    s_lshl_b32 s31, s31, 2
    s_bfe_u32 s33, s2, 0x20003
    s_add_u32 s32, s31, s33
    s_bfe_u32 s31, s2, 0x10002
    s_lshl_b32 s31, s31, 3
    s_lshr_b32 s33, s2, 5
    s_add_u32 s31, s31, s33
    s_lshr_b32 s28, s2, 3
    s_and_b32 s29, s2, 7""")
    a(f"""v_and_b32 v16, 7, v15
    v_lshrrev_b32 v17, 3, v15
    v_mul_u32_u24 v5, 1152, v16
    v_lshl_add_u32 v5, v17, 4, v5
    v_lshlrev_b32 v6, 9, v17
    v_lshl_add_u32 v6, v16, 4, v6
    s_lshl_b32 s36, s32, 4
    s_add_u32 s36, s36, s31
    s_mul_i32 s36, s36, {8*1152}
    s_lshl_b32 s37, s30, 7
    s_add_u32 s36, s36, s37
    s_cmp_eq_u32 s30, 0
    s_cselect_b32 s37, 0, {OOB}
    s_add_u32 s37, s37, s36
    s_mul_i32 s34, s30, {KVR}
    s_add_u32 s34, s34, {KVB}
    s_lshl_b32 s35, s32, 2
    s_add_u32 s35, s35, s30""")
    b = A("S")
    for i in range(3):
        b(f"v_add_u32 v16, {64*i}, v15")
        divu(b, 17, 16, 11)
        b(f"""v_mul_u32_u24 v18, 11, v17
        v_sub_u32 v18, v16, v18
        v_and_b32 v19, 3, v17
        v_lshrrev_b32 v17, 2, v17
        v_lshl_add_u32 v17, v19, 2, v17
        v_mul_u32_u24 v17, 3456, v17
        v_lshl_add_u32 v17, v18, 4, v17
        v_mov_b32 v19, {1152 + 2048 - i*1024}
        v_mov_b32 v16, {2304 - 80 + 2048 - i*1024}
        v_cmp_lt_u32 vcc, 4, v18
        v_cndmask_b32 v19, v19, v16, vcc
        v_mov_b32 v16, {2304 + 36 - 128 + 2048 - i*1024}
        v_cmp_lt_u32 vcc, 7, v18
        v_cndmask_b32 v19, v19, v16, vcc
        v_add_u32 v{i}, v17, v19
        v_cmp_eq_u32 vcc, 4, v18
        v_cndmask_b32_e64 v16, 0, 8, vcc
        v_sub_u32 v{i}, v{i}, v16
        v_cmp_eq_u32 vcc, 7, v18
        v_cndmask_b32_e64 v16, 0, 12, vcc
        v_cmp_eq_u32 vcc, 10, v18
        v_cndmask_b32_e64 v16, v16, 12, vcc
        v_sub_u32 v{i}, v{i}, v16""")
    kvaddr = [x.text for x in b.l]
    a("s_waitcnt lgkmcnt(0)")
    srd(a, 12, 4, 5, 2048 * 1152)
    srd(a, 20, 90, 91, WS_BYTES)
    sk = a.lab("noinit"); saved = list(a.vm)
    a(f"""s_lshl_b32 s33, s2, 2
    s_add_u32 s33, s33, s30
    s_cmp_lg_u32 s33, 515
    s_cbranch_scc1 {sk}
    v_lshlrev_b32 v16, 8, v15
    v_mov_b32 v17, 0
    s_mov_b32 s38, {FLAGS}""")
    for q in range(4):
        a("buffer_store_dword v17, v16, s[20:23], s38 offen sc1\ns_add_u32 s38, s38, 16384")
    a(f"{sk}:")
    a.vm = saved
    a("""buffer_load_dwordx4 v[160:163], v5, s[12:15], s36 offen
    buffer_load_dwordx4 v[164:167], v5, s[12:15], s36 offen offset:512
    buffer_load_dwordx4 v[168:171], v5, s[12:15], s37 offen offset:1024""", vtag="x8")
    srd(a, 24, 88, 89, 256)
    st("start")
    if "pf0" not in opts: code_prefetch(a, "K_start", "K_end", 16, "a[0:1]", reps=1)
    a("K_start:")
    for x in kvaddr: a(x)
    a(f"""s_sub_u32 s16, s6, 2048
    s_subb_u32 s17, s7, 0
    s_mov_b32 s18, {576*3456+2048}
    s_mov_b32 s19, 0x20000""")
    srd(a, 40, 8, 9, 32 * 648)
    srd(a, 44, 10, 11, 576 * 1152)
    a("s_load_dwordx8 s[4:11], s[0:1], 40")
    a("""s_and_b32 s37, s32, 3
    s_lshl_b32 s37, s37, 1
    s_and_b32 s99, s31, 7
    s_add_u32 s99, s99, s37
    s_cmp_ge_u32 s99, 9
    s_cselect_b32 s37, 9, 0
    s_sub_u32 s99, s99, s37""")
    a(f"""s_mul_i32 s101, s30, {16*3456}
    s_mul_i32 s37, s31, 72
    s_add_u32 s101, s101, s37
    s_add_u32 s100, s101, {576*3456}
    s_mul_i32 s37, s99, {64*3456}
    s_add_u32 s101, s101, s37
    s_mov_b32 s51, s101""")
    def em(x):
        if isinstance(x, tuple): a(x[0], vtag=x[1])
        else: a(x)
    def kvdma(j):
        r = [f"s_add_u32 m0, s34, {j*KVS}", f"s_add_u32 s101, s101, {64*3456}\ns_cmp_ge_u32 s101, s100\ns_cselect_b32 s37, {576*3456}, 0\ns_sub_u32 s101, s101, s37" if j else "s_nop 0"]
        r += [(f"buffer_load_dwordx4 v{i}, s[16:19], s101 offen offset:{i*1024} lds", ("w", j)) for i in range(2)]
        r += ["s_mov_b32 exec_hi, 0xffff", (f"buffer_load_dwordx4 v2, s[16:19], s101 offen offset:2048 lds\ns_mov_b32 exec_hi, -1", ("w", j))]
        return r
    NK0 = opt("nka", 2); NK1 = opt("nkb", 3); NK2 = opt("nkc", 6)
    if NK0: a("s_barrier")
    for j in range(NK0): [em(x) for x in kvdma(j)]
    a(f"""s_mov_b32 s50, 0x3f803f80
    v_and_b32 v16, 7, v15
    v_lshrrev_b32 v17, 5, v15
    v_lshlrev_b32 v18, 4, v16
    v_lshl_add_u32 v19, v17, 7, v18
    s_lshl_b32 s37, s30, 2
    s_add_u32 s37, s37, {STX}
    v_add_u32 v19, s37, v19
    v_add_u32 v18, {STX}, v18""")
    a(f"""s_lshr_b32 s36, s31, 2
    s_lshl_b32 s37, s32, 2
    s_add_u32 s36, s36, s37
    s_mul_i32 s36, s36, 36864
    s_and_b32 s37, s31, 3
    s_lshl_b32 s37, s37, 7
    s_add_u32 s36, s36, s37
    s_lshl_b32 s37, s30, 12
    s_add_u32 s36, s36, s37
    s_add_u32 s36, s36, {XFRAG}
    s_add_u32 s38, s36, 16384
    s_cmp_eq_u32 s30, 0
    s_cselect_b32 s39, 0, {OOB}
    s_add_u32 s39, s39, s38
    s_add_u32 s39, s39, 16384
    s_lshl_b32 s53, s32, 8
    s_add_u32 s53, s53, {C0}""")
    a.wait(v="x8")
    sk = a.lab("noflag"); saved = list(a.vm)
    a(f"""s_cmp_lg_u32 s33, 515
    s_cbranch_scc1 {sk}
    v_mov_b32 v16, 1
    v_mov_b32 v17, 0
    s_mov_b64 exec, 1
    buffer_store_dword v16, v17, s[24:27], 0 offen sc1
    s_mov_b64 exec, -1
    {sk}:""")
    a.vm = saved
    st("x8")
    for j in range(12):
        c0 = "0" if j < 2 else f"v{24+(j&1)}"; c1 = "0" if j < 2 else f"v{26+(j&1)}"
        a(f"v_dot2_f32_bf16 v{24+(j&1)}, v{160+j}, s50, {c0}\nv_dot2_f32_bf16 v{26+(j&1)}, v{160+j}, v{160+j}, {c1}")
    a("""v_add_f32 v24, v24, v25
    v_add_f32 v26, v26, v27
    v_permlane32_swap_b32 v24, v26
    v_add_f32 v24, v24, v26
    v_mov_b32 v25, v24
    v_permlane16_swap_b32 v24, v25
    v_add_f32 v24, v24, v25
    v_add_f32_dpp v24, v24, v24 row_ror:8 row_mask:0xf bank_mask:0xf
    s_mov_b32 s50, 0xffff0000
    ds_write_b32 v19, v24""")
    for k in range(3):
        for j in range(4): a(f"v_lshlrev_b32_e32 v{176+8*k+2*j}, 16, v{160+4*k+j}\nv_and_b32_e32 v{177+8*k+2*j}, s50, v{160+4*k+j}")
    a("""s_waitcnt lgkmcnt(0)
    s_barrier
    ds_read_b128 v[24:27], v18
    ds_read_b128 v[28:31], v18 offset:128
    s_waitcnt lgkmcnt(0)
    v_pk_add_f32 v[24:25], v[24:25], v[26:27]
    v_pk_add_f32 v[28:29], v[28:29], v[30:31]
    v_add_f32 v24, v24, v25
    v_add_f32 v26, v28, v29
    v_mul_f32 v24, 0x3ae38e39, v24
    v_mul_f32 v26, 0x3ae38e39, v26
    v_fma_f32 v26, -v24, v24, v26
    v_max_f32 v26, 0, v26
    v_add_f32 v26, 0x3727c5ac, v26
    v_rsq_f32 v12, v26
    s_nop 0
    v_mul_f32_e64 v13, -v24, v12""")
    for k, so in ((0, "s36"), (1, "s38"), (2, "s39")):
        b_ = 160 + 4 * k; u = 176 + 8 * k
        for j in range(4): a(f"v_pk_fma_f32 v[{u+2*j}:{u+2*j+1}], v[{u+2*j}:{u+2*j+1}], v[12:13], v[12:13] op_sel:[0,0,1] op_sel_hi:[1,0,1]")
        for j in range(4): a(f"v_cvt_pk_bf16_f32 v{b_+j}, v{u+2*j}, v{u+2*j+1}")
        a(f"buffer_store_dwordx4 {vr(b_,4)}, v6, s[20:23], {so} offen sc1", vtag="xs")
    a(f"v_mov_b32 v16, 0\nbuffer_load_dword v{aINI}, v16, s[24:27], 0 offen sc1", vtag="xs")
    st("ln")
    if NK1 > NK0: a("s_barrier")
    for j in range(NK0, NK1): [em(x) for x in kvdma(j)]
    b = A("S")
    b(f"""v_lshlrev_b32 v5, 4, v15
    v_and_b32 v16, 31, v15
    v_lshrrev_b32 v17, 2, v16
    v_lshlrev_b32 v17, 1, v17
    v_and_b32 v18, 1, v16
    v_add_u32 v17, v17, v18
    v_lshrrev_b32 v19, 5, v15
    v_mul_u32_u24 v19, 9, v19
    v_add_lshl_u32 v19, v19, v17, 2
    v_mov_b32 v22, {OOB}
    v_cmp_gt_u32 vcc, 9, v17
    v_cndmask_b32 v19, v22, v19, vcc
    v_bfe_u32 v16, v16, 1, 1
    v_cmp_eq_u32 vcc, 0, v16
    v_cndmask_b32 v{aMS0}, v22, v19, vcc
    v_cndmask_b32 v{aMS0+1}, v19, v22, vcc""")
    b(f"""v_mov_b32 v24, 0
    v_mov_b32 v25, 0
    v_mov_b32 v26, 0
    v_mov_b32 v27, 0
    v_lshlrev_b32 v16, 4, v14
    v_add_u32 v16, {KVL}, v16
    ds_write_b128 v16, v[24:27]""")
    b(f"""v_lshrrev_b32 v16, 5, v15
    v_bfe_u32 v17, v15, 2, 2
    v_lshl_add_u32 v28, v16, 3, v17
    v_lshlrev_b32 v13, 1, v16
    v_lshl_add_u32 v13, v17, 2, v13
    v_bfe_u32 v18, v15, 4, 1
    v_and_b32 v19, 3, v15
    v_lshl_add_u32 v29, v18, 2, v19
    v_lshl_add_u32 v16, v16, 2, v17
    v_lshlrev_b32 v16, 7, v16
    v_lshl_add_u32 v16, v29, 3, v16
    v_add_u32 v{aM}, {MOFF}, v16""")
    b(f"""v_mul_u32_u24 v16, 176, v13
    v_add_u32 v16, {KVB}, v16
    v_lshl_add_u32 v{aT0}, v29, 3, v16
    v_and_b32 v17, 1, v29
    v_mul_u32_u24 v17, 48, v17
    v_lshrrev_b32 v18, 1, v29
    v_lshl_add_u32 v17, v18, 3, v17
    v_add3_u32 v{aT2}, v16, v17, 64
    v_add_u32 v{aT2}, 16, v{aT2}
    v_mov_b32 v17, 72
    v_mov_b32 v18, 120
    v_cmp_eq_u32 vcc, 2, v29
    v_cndmask_b32 v17, v17, v18, vcc
    v_mov_b32 v18, 168
    v_cmp_eq_u32 vcc, 3, v29
    v_cndmask_b32 v17, v17, v18, vcc
    v_add_u32 v{aT3}, v16, v17
    v_mul_u32_u24 v16, 80, v13
    v_lshl_add_u32 v{aT1}, v29, 3, v16
    v_add_u32 v{aT4}, 72, v16""")
    for q in (aT0, aT2, aT3): b(f"v_add_u32 v{q+1}, {2*KVR}, v{q}")
    touch_addr(b, aTWO, 9, 1152, 162)
    setup1 = [x.text for x in b.l]
    b = A("S")
    for i, dst in ((0, 3), (1, 4)):
        b(f"v_add_u32 v16, {64*i}, v15")
        divu(b, 17, 16, 5)
        b(f"""v_mul_u32_u24 v18, 5, v17
        v_sub_u32 v18, v16, v18
        v_and_b32 v19, 3, v17
        v_lshrrev_b32 v17, 2, v17
        v_lshl_add_u32 v17, v19, 2, v17
        v_mul_u32_u24 v17, 3456, v17
        v_lshl_add_u32 v17, v18, 4, v17
        v_add_u32 v{dst}, {2048 - 1024*i}, v17
        v_cmp_eq_u32 vcc, 4, v18
        v_cndmask_b32_e64 v16, 0, 8, vcc
        v_sub_u32 v{dst}, v{dst}, v16""")
    b(f"""v_and_b32 v16, 31, v15
    v_mul_u32_u24 v16, 144, v16
    v_lshrrev_b32 v17, 5, v15
    v_mul_u32_u24 v17, 4608, v17
    v_add3_u32 v{aZW}, v16, v17, s34
    s_lshr_b32 s38, s30, 1
    s_mul_i32 s38, s38, 4608
    s_add_u32 s38, s38, {KVB}
    s_and_b32 s39, s30, 1
    s_mul_i32 s39, s39, 40
    v_mul_u32_u24 v16, 144, v28
    v_lshl_add_u32 v16, v29, 3, v16
    v_add_u32 v{aZB}, s38, v16
    v_add_u32 v{aZA}, s39, v{aZB}
    v_add_u32 v{aZB}, 80, v{aZB}
    v_add_u32 v{aZA+1}, {2*KVR}, v{aZA}
    v_add_u32 v{aZB+1}, {2*KVR}, v{aZB}""")
    b(f"""v_lshrrev_b32 v16, 5, v15
    v_mul_u32_u24 v16, 12, v16
    v_sub_u32 v16, v15, v16
    v_lshlrev_b32 v{aP4}, 4, v16
    v_and_b32 v16, 31, v15
    v_lshlrev_b32 v{aP1}, 2, v16
    v_lshlrev_b32 v6, 2, v15""")
    b(f"""v_bfe_u32 v16, v15, 2, 1
    v_lshrrev_b32 v17, 5, v15
    v_bfe_u32 v18, v15, 3, 2
    v_and_b32 v19, 3, v15
    v_lshl_add_u32 v20, v18, 2, v19
    v_mul_u32_u24 v20, 80, v20
    v_mul_u32_u24 v21, 1536, v17
    v_add_u32 v20, v20, v21
    v_add_u32 v20, {KVL}, v20
    v_mov_b32 v22, {ZERO}
    v_cmp_eq_u32 vcc, v16, v17
    v_cndmask_b32 v{aN0}, v22, v20, vcc
    v_add_u32 v20, 1280, v20
    v_cndmask_b32 v{aN1}, v22, v20, vcc
    v_cmp_eq_u32 vcc, 0, v18
    v_cndmask_b32 v{aN1}, v22, v{aN1}, vcc
    v_cmp_gt_u32 vcc, 3, v19
    v_cndmask_b32 v{aN1}, v22, v{aN1}, vcc
    s_lshr_b32 s38, s30, 1
    s_mul_i32 s38, s38, 1536
    s_add_u32 s38, s38, {KVL}
    s_and_b32 s39, s30, 1
    s_lshl_b32 s33, s39, 5
    s_add_u32 s33, s33, s38
    s_lshl_b32 s39, s39, 2
    s_add_u32 s39, s39, s38
    v_and_b32 v16, 15, v15
    v_lshrrev_b32 v17, 4, v15
    v_mul_u32_u24 v18, {4*PB}, v17
    v_lshl_add_u32 v{aPL}, v16, 4, v18
    v_and_b32 v20, 1, v17
    v_lshrrev_b32 v17, 1, v17
    v_lshl_add_u32 v18, v17, 4, v16
    v_mov_b32 v22, {STX}
    v_cmp_lt_u32 vcc, 19, v18
    v_cndmask_b32_e64 v19, 0, 20, vcc
    v_cndmask_b32_e64 v21, 0, 16, vcc
    v_sub_u32 v19, v18, v19
    v_mul_u32_u24 v23, 80, v19
    v_lshl_add_u32 v21, v20, 3, v21
    v_add3_u32 v23, v23, v21, s33
    v_cmp_gt_u32 vcc, 19, v19
    v_cndmask_b32 v{aKA}, v22, v23, vcc
    v_add_u32 v19, 12, v16
    v_mul_u32_u24 v23, 80, v19
    v_lshlrev_b32 v21, 3, v20
    v_add3_u32 v23, v23, v21, s33
    v_add_u32 v23, 16, v23
    v_cmp_gt_u32 vcc, 19, v19
    v_cndmask_b32 v23, v22, v23, vcc
    v_cmp_eq_u32 vcc, 0, v17
    v_cndmask_b32 v{aKB}, v22, v23, vcc
    v_subrev_u32 v19, 8, v16
    v_lshlrev_b32 v19, 2, v19
    v_lshl_add_u32 v19, v20, 1, v19
    v_lshl_add_u32 v19, v17, 8, v19
    v_mul_u32_u24 v23, 80, v19
    v_add3_u32 v23, v23, 64, s39
    v_cmp_gt_u32 vcc, 19, v19
    v_cndmask_b32 v{aKX}, v22, v23, vcc
    v_add_u32 v23, 80, v23
    v_cmp_gt_u32 vcc, 18, v19
    v_cndmask_b32 v{aKX+1}, v22, v23, vcc""")
    b("v_mov_b32 v22, 0x3f80\nv_mov_b32 v23, 0x3f800000")
    for hi in range(2):
        for j in range(4):
            b(f"""v_cmp_eq_u32 vcc, {8*hi+2*j}, v16
            v_cndmask_b32 v24, 0, v22, vcc
            v_cmp_eq_u32 vcc, {8*hi+2*j+1}, v16
            v_cndmask_b32 v24, v24, v23, vcc
            v_accvgpr_write_b32 a{224+4*hi+j}, v24""")
    touch_addr(b, aTGU, 9, 9216, 54 * opt("tg", 1))
    b(f"""s_mov_b32 s48, {LOG2E}
    s_mov_b32 s49, {LOG2E}
    s_mov_b32 s54, 0xfffff
    s_mov_b32 s55, 0xfffff
    s_lshl_b32 s38, s31, 6
    s_add_u32 s38, s38, s30
    s_mul_i32 s52, s38, {PB}
    s_add_u32 s52, s52, {KVP}""")
    setup2 = [x.text for x in b.l]
    for x in setup1: a(x)
    a.wait(v="xs"); a("s_barrier")
    signal(a, "s53", check_init=aINI)
    st("sig0")
    for j in range(NK1, NK2): [em(x) for x in kvdma(j)]
    setup2 = [x.replace("s33", "s88").replace("s38", "s89").replace("s39", "s90") for x in setup2]
    NS = opt("ns", 60)
    for x in setup2[:NS]: a(x)
    setup2 = setup2[NS:]
    b = A("S"); p2c_setup(b); setup3 = [x.text for x in b.l]; setup3 = setup3[:-3] + ['\n'.join(setup3[-3:])]
    mq = ["s_mul_i32 s38, s30, 6\ns_mul_i32 s39, s31, 1296"]
    for i in range(6):
        mq += [f"""s_add_u32 s37, s38, {i}
        s_lshl_b32 s96, s37, 8
        s_add_u32 m0, s96, {MOFF}
        s_cmp_lt_u32 s37, 9
        s_cselect_b64 vcc, -1, 0
        v_cndmask_b32 v16, v{aMS0+1}, v{aMS0}, vcc
        s_mul_i32 s96, s37, 72
        s_add_u32 s96, s96, s39
        s_cmp_ge_u32 s37, 18
        s_cselect_b32 s96, 0x100000, s96""", ("buffer_load_dword v16, s[40:43], s96 offen lds", "wphi")]
    a(f"""s_mul_i32 s36, s35, 36864
    s_add_u32 s36, s36, {XFRAG}
    s_add_u32 s33, s36, 36864
    s_lshl_b32 s37, s99, 12
    s_add_u32 s36, s36, s37""")
    if "two" in opts:
        a(f"s_mul_i32 s37, s28, {18*1152}")
        a(f"buffer_load_dword a208, v{aTWO}, s[44:47], s37 offen", vtag="touch")
    st("pre")
    poll(a, "s53", 16)
    st("sync0")
    def xload(g):
        r = [] if g == 0 else ["s_add_u32 s36, s36, 4096\ns_cmp_ge_u32 s36, s33\ns_cselect_b32 s37, 36864, 0\ns_sub_u32 s36, s36, s37"]
        return r + [(f"buffer_load_dwordx4 {vr(X(4*g+q),4,'a')}, v5, s[20:23], s36 offen offset:{q*1024} sc1", ("X", 4 * g + q)) for q in range(4)]
    NX0 = opt("nx", 2)
    for g in range(NX0): [em(x) for x in xload(g)]
    for x in setup2: a(x)
    for x in mq: em(x)
    mq = []
    WP = lambda tile, stp: 232 + 4 * (3 * tile + stp)
    def mreads():
        for tile in range(2):
            for stp in range(3):
                f = WP(tile, stp)
                a(f"ds_read_b64_tr_b16 a[{f}:{f+1}], v{aM} offset:{stp*2048 + tile*64}\nds_read_b64_tr_b16 a[{f+2}:{f+3}], v{aM} offset:{stp*2048 + tile*64 + 1024}")
    AF = lambda i: 4 * (i % 8)
    def reads(i, lst):
        ks, T, ad, sz = lst[i]
        w, j = ks % 4, ks // 4
        f = AF(i)
        if sz == 176: o = (w % 2) * KVR + j * KVS; ad += w // 2
        else: o = w * QR + j * QS
        return [f"ds_read_b64_tr_b16 a[{f}:{f+1}], v{ad} offset:{o}", f"ds_read_b64_tr_b16 a[{f+2}:{f+3}], v{ad} offset:{o+sz}"]
    D = 6
    def gemm(lst, bars, memq, mper=1, hook=None, mstart=0, valq=()):
        valq = list(valq)
        N = len(lst); per = N // 36
        def flush(pred):
            while any(isinstance(x, tuple) and pred(x[1]) for x in memq): em(memq.pop(0))
        def maybe_bar(i):
            if i < N and i % (4 * per) == 0 and (i // (4 * per)) in bars:
                lim = bars[i // (4 * per)]
                pred = lambda t: (isinstance(t, tuple) and t[0] == "w" and t[1] <= lim) or (t == "wphi" and lim == 8)
                flush(pred); a.wait(v=pred); a("s_barrier")
        for i in range(D):
            maybe_bar(i)
            for r in reads(i, lst): a(r, ltag=("A", i))
        for i in range(N):
            ks, T, ad, sz = lst[i]
            flush(lambda t: t == ("X", ks))
            a.wait(v=("X", ks), l=lambda t: isinstance(t, tuple) and t[0] == "A" and t[1] <= i)
            f = AF(i)
            a(f"v_mfma_f32_32x32x16_bf16 {vr(T,16)}, a[{f}:{f+3}], {vr(X(ks),4,'a')}, {'0' if ks == 0 else vr(T,16)}")
            if i % 2 == 1: a.wait(l=lambda t: isinstance(t, tuple) and t[0] == "A" and t[1] <= i + 2)
            if i + D < N:
                maybe_bar(i + D)
                for r in reads(i + D, lst): a(r, ltag=("A", i + D))
            if hook and i in hook: hook[i]()
            if memq and i % mper == 0 and i >= mstart:
                while memq and not isinstance(memq[0], tuple): em(memq.pop(0))
                if memq: em(memq.pop(0))
            for _ in range(2):
                if valq: a(valq.pop(0))
        for x in memq: em(x)
        for x in valq: a(x)
    memq = []
    kvleft = list(range(NK2, 9))
    for g in range(NX0, 9):
        memq += xload(g)
        if kvleft and g >= opt("kx", 2): memq += kvdma(kvleft.pop(0))
    for j in kvleft: memq += kvdma(j)
    memq += mq
    qq = []
    for j in range(9):
        qq.append([f"s_mul_i32 s37, s30, {QR}\ns_add_u32 m0, s37, {j*QS}", f"s_add_u32 s51, s51, {64*3456}\ns_cmp_ge_u32 s51, s100\ns_cselect_b32 s37, {576*3456}, 0\ns_sub_u32 s51, s51, s37" if j else "s_nop 0",
                 ("buffer_load_dwordx4 v3, s[16:19], s51 offen lds", "wq"), "s_mov_b64 exec, 0xffff",
                 ("buffer_load_dwordx4 v4, s[16:19], s51 offen offset:1024 lds\ns_mov_b64 exec, -1", "wq")])
    NQ = opt("nq", 2)
    for g in qq[:NQ]: memq += g
    qq = qq[NQ:]
    fr = [(ks, T, ad, 176) for ks in range(36) for (T, ad) in ((T0, aT0), (T3, aT3), (T2, aT2))]
    bars = {j: j for j in range(NK2, 9)}; bars.update({0: min(2, NK2 - 1), 3: NK2 - 1} if NK2 > 3 else {0: NK2 - 1}); bars[8] = 8
    gemm(fr, bars, memq, mper=opt("mp", 2), hook={100: mreads}, valq=setup3)
    st("gemm")
    if "fine" in opts: st.dump("s[20:23]", "s30", 16, 17); st.kidx += 1; st.groups.append([])
    def touch(which):
        if which == 1 and "two" not in opts:
            a(f"s_mul_i32 s37, s28, {18*1152}\ns_add_u32 s37, s37, 2048")
            a(f"buffer_load_dword a208, v{aTWO}, s[44:47], s37 offen", vtag="touch")
        tg = opt("tg", 1)
        a(f"s_mul_i32 s37, s28, {6*tg*9216}\ns_mul_i32 s38, s29, 1152\ns_add_u32 s37, s37, s38")
        if which > 1: a(f"s_add_u32 s37, s37, {(which-1)*192*tg*9216}")
        for m in range(2):
            srd(a, 92, 4 + 2 * m, 5 + 2 * m, 576 * 9216)
            a(f"buffer_load_dword a{209+m}, v{aTGU}, s[92:95], s37 offen", vtag="touch")
    for q in range(8): a(f"v_cvt_pk_bf16_f32 v{T0+q}, v{T0+2*q}, v{T0+2*q+1}")
    for q in range(4): a(f"v_cvt_pk_bf16_f32 v{56+q}, v{T3+2*q}, v{T3+2*q+1}")
    def feat(B):
        for stp in range(3):
            for tile, T in ((1, PX), (0, T1)):
                f = WP(tile, stp)
                a(f"v_mfma_f32_32x32x16_bf16 {vr(T,16)}, a[{f}:{f+3}], {vr(B[stp],4)}, {'0' if stp == 0 else vr(T,16)}")
    feat((48, 52, 56))
    for g in qq[:2]: [em(x) for x in g]
    qq = qq[2:]
    for q in range(8): a(f"v_cvt_pk_bf16_f32 v{160+q}, v{T2+2*q}, v{T2+2*q+1}")
    a("v_mov_b32 v168, v59\nv_mov_b32 v169, 0x3f80\ns_barrier")
    a(f"ds_write_b128 v{aZW}, v[160:163] offset:80\nds_write_b128 v{aZW}, v[164:167] offset:96\nds_write_b64 v{aZW}, v[168:169] offset:112")
    a(f"v_mov_b32 v94, v{PX}\nv_mov_b32 v95, v{PX+1}")
    b = A("S"); softmax(b, 94, 72); sm = [x.text for x in b.l]
    per = len(sm) // (len(qq) + 1)
    for g in qq:
        [em(x) for x in g]
        for x in sm[:per]: a(x)
        sm = sm[per:]
    for x in sm: a(x)
    for blk, S in ((140, 94), (150, 72)):
        for q in range(8): a(f"v_cvt_pk_bf16_f32 v{blk+q}, v{S+2+2*q}, v{S+3+2*q}")
        a(f"v_cvt_pk_bf16_f32 v{blk+8}, v{S}, v{S+1}")
        if blk == 140: a(f"ds_write_b128 v{aZW}, v[140:143]\nds_write_b128 v{aZW}, v[144:147] offset:16")
    for q in range(2, 5): a(f"ds_write_b128 v{aZW}, {vr(140+4*q,4)} offset:{16*q}")
    a(f"""s_mul_i32 s37, s32, {4*PB}
    s_add_u32 s37, s37, s52
    s_lshl_b32 s53, s31, 8
    s_add_u32 s53, s53, {C1}""")
    a("s_waitcnt lgkmcnt(0)\ns_barrier")
    st("smk")
    for stp in range(8):
        w = stp // 2; o = (w % 2) * KVR + (stp % 2) * 16 * 144
        va, vb = aZA + w // 2, aZB + w // 2
        f = 8 * stp
        a(f"ds_read_b64_tr_b16 a[{f}:{f+1}], v{va} offset:{o}\nds_read_b64_tr_b16 a[{f+2}:{f+3}], v{va} offset:{o+576}", ltag=("Z", stp))
        a(f"ds_read_b64_tr_b16 a[{f+4}:{f+5}], v{vb} offset:{o}\nds_read_b64_tr_b16 a[{f+6}:{f+7}], v{vb} offset:{o+576}", ltag=("Z", stp))
        if stp >= 2:
            s2 = stp - 2; f = 8 * s2
            a.wait(l=("Z", s2))
            a(f"v_mfma_f32_32x32x16_bf16 v[64:79], a[{f}:{f+3}], a[{f+4}:{f+7}], {'0' if s2 == 0 else 'v[64:79]'}")
    for s2 in (6, 7):
        f = 8 * s2
        a.wait(l=("Z", s2))
        a(f"v_mfma_f32_32x32x16_bf16 v[64:79], a[{f}:{f+3}], a[{f+4}:{f+7}], v[64:79]")
    def kvstore():
        for q in range(5): a(f"v_cvt_pk_bf16_f32 v{16+q}, v{64+2*q}, v{65+2*q}")
        a(f"""s_mov_b64 exec, s[54:55]
        buffer_store_dwordx4 v[16:19], v{aP4}, s[20:23], s37 offen sc1
        s_mov_b32 exec_lo, -1
        s_mov_b32 exec_hi, 0
        buffer_store_dword v20, v{aP1}, s[20:23], s37 offen offset:640 sc1
        s_mov_b64 exec, -1""", vtag="kvs")
        st("kvmm")
    def sig1():
        a.wait(v="kvs"); a("s_barrier")
        signal(a, "s53")
        st("kvst")
        if "tw2" in opts: touch(1)
        if "tw1" in opts: touch(2)
    HK = opt("hk", 12)
    kvstore()
    a.wait(v="wq"); a("s_barrier")
    a("s_cmp_ge_u32 s28, 24\ns_cselect_b32 s46, 0, s46")
    wq, wq0 = p2c_wodma(a)
    gemm([(ks, T, ad, 80) for ks in range(36) for (T, ad) in ((T1, aT1), (T3, aT4))], {}, wq, mper=opt("wp", 2), hook={HK: sig1}, mstart=opt("wst", HK + 1))
    for q in range(8): a(f"v_cvt_pk_bf16_f32 v{48+q}, v{T1+2*q}, v{T1+2*q+1}")
    for q in range(4): a(f"v_cvt_pk_bf16_f32 v{56+q}, v{T3+2*q}, v{T3+2*q+1}")
    feat((48, 52, 56))
    st("qgemm")
    poll(a, "s53", 16)
    st("sync1")
    for i in range(4):
        if i: a(f"s_add_u32 s52, s52, {16*PB}")
        for u in range(3):
            r = 64 + 12 * i + 4 * u
            a(f"buffer_load_dwordx4 a[{r}:{r+3}], v{aPL}, s[20:23], s52 offen offset:{256*u} sc1", vtag=("kv", i))
    a(f"v_mov_b32 v94, v{PX}\nv_mov_b32 v95, v{PX+1}")
    for x in wq0: em(x)
    softmax(a, 94, 72)
    for i in range(4):
        a.wait(v=("kv", i))
        for u in range(3):
            r = 64 + 12 * i + 4 * u; T = 32 if u < 2 else 36; S = 228 if u == 1 else 224
            a(f"v_mfma_f32_16x16x32_bf16 v[{T}:{T+3}], a[{S}:{S+3}], a[{r}:{r+3}], {'0' if (i == 0 and u != 1) else f'v[{T}:{T+3}]'}")
    for sgn, S in ((0, 94), (1, 72)):
        for h in range(2):
            d = 48 + 8 * sgn + 4 * h
            for q in range(4):
                f = 4 * h + 2 * (q % 2) + 8 * (q // 2)
                a(f"v_cvt_pk_bf16_f32 v{d+q}, v{S+2+f}, v{S+3+f}")
        a(f"v_cvt_pk_bf16_f32 v{64+sgn}, v{S}, v{S+1}")
    a("v_mov_b32 v66, 0\nv_mov_b32 v67, 0")
    st("smq")
    a(f"""v_cvt_pk_bf16_f32 v16, v32, v33
    v_cvt_pk_bf16_f32 v17, v34, v35
    v_cvt_pk_bf16_f32 v18, v36, v37
    v_cvt_pk_bf16_f32 v19, v38, v39
    ds_write_b64 v{aKA}, v[16:17]
    ds_write_b64 v{aKB}, v[18:19]
    ds_write_b32 v{aKX}, v18
    ds_write_b32 v{aKX+1}, v19
    s_waitcnt lgkmcnt(0)
    s_barrier""")
    st("kvred")
    for stp in range(5):
        for tile in range(2):
            f = 8 * stp + 4 * tile
            a(f"ds_read_b128 a[{f}:{f+3}], v{aN0+tile} offset:{16*stp}", ltag=("K", stp))
    a(f"""s_mul_i32 s36, s35, 36864
    s_add_u32 s36, s36, {OFRAG}
    s_lshl_b32 s37, s31, 7
    s_add_u32 s37, s37, s36
    s_add_u32 s37, s37, 16384
    s_lshl_b32 s38, s31, 10
    s_add_u32 s36, s36, s38
    s_lshl_b32 s53, s32, 8
    s_add_u32 s53, s53, {C2}
    v_bfe_u32 v26, v15, 4, 1
    v_mul_u32_u24 v26, 18432, v26
    v_lshrrev_b32 v27, 5, v15
    v_and_b32 v28, 15, v15
    v_lshl_add_u32 v29, v27, 9, v26
    v_lshl_add_u32 v29, v28, 4, v29
    v_lshl_add_u32 v30, v27, 6, v26
    v_lshl_add_u32 v30, v28, 2, v30""")
    for stp in range(5):
        a.wait(l=("K", stp))
        for tile, T in ((1, 96), (0, 80)):
            f = 8 * stp + 4 * tile
            a(f"v_mfma_f32_32x32x16_bf16 {vr(T,16)}, a[{f}:{f+3}], {vr(48+4*stp,4)}, {'0' if stp == 0 else vr(T,16)}")
    a("v_add_f32 v98, 0x358637bd, v98\nv_rcp_f32 v98, v98")
    for q in range(0, 18, 2):
        a(f"v_pk_mul_f32 v[{80+q}:{81+q}], v[{80+q}:{81+q}], v[98:99] op_sel_hi:[1,0]")
    for q in range(9): a(f"v_cvt_pk_bf16_f32 v{16+q}, v{80+2*q}, v{81+2*q}")
    a(f"""buffer_store_dwordx4 v[16:19], v29, s[20:23], s36 offen sc1
    buffer_store_dwordx4 v[20:23], v29, s[20:23], s36 offen offset:256 sc1
    buffer_store_dword v24, v30, s[20:23], s37 offen sc1
    s_waitcnt vmcnt(0)
    s_barrier""")
    signal(a, "s53")
    st("ost")
    st.dump("s[20:23]", "s30", 16, 17)
    def front(setup, dma0, zero):
        p2c_xload(a)
        setup(); dma0(0)
        if "noloop" not in opts: zero(0)
        a("s_cmp_ge_u32 s28, 24\ns_cbranch_scc1 K_idle")
        sv = list(a.vm)
        p2c_main(a, st, C2, C3, mid=lambda: dma0(1))
        st.dump("s[20:23]", "s30", 21, 22)
        a("s_branch K_ffn\nK_idle:")
        a.vm = sv
        dma0(1)
        if "tw3" in opts: touch3(a, opt("t3f", 64), opt("t3r", 24))
        a("K_ffn:")
        a.vm = ["unknown"] * 8
    a.spins = []
    ffn17.ffn_body(a, st, opts, C3, C4, front)
    st.dump("s[20:23]", "s30", 16, 17)
    a("s_endpgm")
    for x in a.spins: a(x)
    a("K_end:\ns_endpgm")
    return a, st

if __name__ == "__main__":
    out = sys.argv[1]; opts = sys.argv[2:]
    a, st = gen("cyc" if "cyc" in opts else "dbg" if "dbg" in opts else "diag" in opts, opts)
    t = a.text()
    NAME = "sequential_preLN__linear_kernel_hedgehog__glu_gated_reglu__prompt_kernel"
    hdr = "".join(l for l in open("sequential_preLN__linear_kernel_hedgehog__glu_gated_reglu__prompt.s.ref") if l.startswith(";") and "@launch" not in l and "Override" not in l and "grid=" not in l)
    s = hdr + "; @launch grid=(256,1,1) block=(256,1,1) lds=163840\n" + '.amdgcn_target "amdgcn-amd-amdhsa--gfx950"\n.text\n' + kernel(NAME, t) + '.section .rodata,"a"\n' + descriptor(NAME, 512, 256)
    open(out, "w").write(s)
    json.dump(st.groups, open(out + ".json", "w"))
    print("nops", a.padded, "instrs", len(a.l), st.groups)
```

```python
from asmlib import *
from layout import *

class Stamps:
    def __init__(self, a, on, kidx=0):
        self.a = a; self.on = on; self.n = 0; self.kidx = kidx; self.names = []; self.groups = []
    def __call__(self, name):
        if not self.on: return
        if self.on == "dbg" and name not in ("entry", "x8", "sync0", "gemm", "kvst", "sync1", "ost", "sync2", "sync3", "bar0", "s1", "s2", "drain", "sync4", "end"): return
        self.a(f"{'s_memtime' if self.on == 'cyc' else 's_memrealtime'} s[{56+2*self.n}:{57+2*self.n}]")
        self.names.append(name); self.n += 1
        assert self.n <= 16
    def dump(self, srd, wave, va=0, vd=1):
        if not self.on: return
        a = self.a
        if self.on == "dbg":
            if self.names[-1] != "end": return
            sk = a.lab("nodbg")
            a(f"""s_load_dwordx2 s[4:5], s[0:1], 72
            s_waitcnt lgkmcnt(0)
            s_lshl_b32 s3, s2, 2
            s_add_u32 s3, s3, {wave}
            s_cmp_lg_u32 s3, 28
            s_cbranch_scc1 {sk}
            s_mov_b32 s6, 256
            s_mov_b32 s7, 0x20000
            v_mov_b32 v{vd}, 0""")
            for q in range(1, self.n): a(f"s_sub_u32 s3, s{56+2*q}, s56\nv_writelane_b32 v{vd}, s3, {q}")
            a(f"""v_mbcnt_lo_u32_b32 v{va}, -1, 0
            v_lshlrev_b32 v{va}, 2, v{va}
            s_mov_b64 exec, 0xfffe
            buffer_store_dword v{vd}, v{va}, s[4:7], 0 offen
            s_mov_b64 exec, -1
            {sk}:""")
            self.groups.append(self.names)
            return
        a(f"s_waitcnt lgkmcnt(0)\nv_mov_b32 v{vd}, 0")
        for q in range(self.n): a(f"v_writelane_b32 v{vd}, s{56+2*q}, {q}")
        a(f"""s_lshl_b32 s3, s2, 2
        s_add_u32 s3, s3, {wave}
        s_lshl_b32 s3, s3, 6
        s_add_u32 s3, s3, {TS + self.kidx * 0x10000}
        v_mbcnt_lo_u32_b32 v{va}, -1, 0
        v_lshlrev_b32 v{va}, 2, v{va}
        s_mov_b64 exec, 0xffff
        buffer_store_dword v{vd}, v{va}, {srd}, s3 offen
        s_mov_b64 exec, -1""")
        self.groups.append(self.names); self.names = []; self.n = 0; self.kidx += 1

def code_prefetch(a, lab_from, lab_to, vaddr, vdst, nwg_shift=3, reps=1):
    pc = a.lab("pc")
    a(f"""s_getpc_b64 s[92:93]
    {pc}:
    s_add_u32 s92, s92, {lab_from}-{pc}
    s_addc_u32 s93, s93, 0
    s_mov_b32 s94, {lab_to}-{lab_from}
    s_mov_b32 s95, 0x20000
    s_lshr_b32 s96, s2, {nwg_shift}
    s_lshl_b32 s96, s96, 11
    v_lshlrev_b32 v{vaddr}, 3, v0""")
    for r in range(reps):
        if r: a("s_add_u32 s96, s96, 0x10000")
        a(f"buffer_load_dwordx2 {vdst}, v{vaddr}, s[92:95], s96 offen", vtag="pf")

def srd(a, d, lo, hi, nbytes):
    a(f"s_mov_b32 s{d}, s{lo}\ns_mov_b32 s{d+1}, s{hi}\ns_mov_b32 s{d+2}, {nbytes}\ns_mov_b32 s{d+3}, 0x20000")

def signal(a, cnt_sreg, vt=None, check_init=False, cnt2=None):
    sk = a.lab("sig"); saved = list(a.lg)
    a(f"""s_cmp_lg_u32 s30, 0
    s_cbranch_scc1 {sk}""")
    if check_init:
        lp = a.lab("ini"); dn = a.lab("inid"); sv = list(a.vm)
        a(f"""s_mov_b32 s97, 0
        {lp}:
        v_readfirstlane_b32 s98, v{check_init}
        s_cmp_eq_u32 s98, 1
        s_cbranch_scc1 {dn}
        v_mov_b32 v16, 0
        buffer_load_dword v{check_init}, v16, s[24:27], 0 offen sc1
        s_add_u32 s97, s97, 1
        s_cmp_lt_u32 s97, 0x40000
        s_waitcnt vmcnt(0)
        s_cbranch_scc1 {lp}
        {dn}:""")
        a.vm = sv
    a(f"""s_mov_b32 s98, 1
    s_atomic_add s98, s[20:21], {cnt_sreg}""")
    if cnt2: a(f"s_atomic_add s98, s[20:21], {cnt2}")
    a(f"{sk}:")
    a.lg = saved

def poll(a, cnt_sreg, target, vt=None):
    sk = a.lab("pk"); lp = a.lab("poll"); dn = a.lab("done"); saved = list(a.lg)
    a(f"""s_cmp_lg_u32 s30, 0
    s_cbranch_scc1 {sk}
    s_mov_b32 s97, 0
    s_waitcnt lgkmcnt(0)
    {lp}:
    s_mov_b32 s98, 0
    s_atomic_add s98, s[20:21], {cnt_sreg} glc
    s_add_u32 s97, s97, 1
    s_waitcnt lgkmcnt(0)
    s_cmp_ge_u32 s98, {target}
    s_cbranch_scc1 {dn}
    s_cmp_lt_u32 s97, 0x40000
    s_cbranch_scc1 {lp}
    {dn}:
    {sk}:
    s_barrier""")
    a.lg = saved

def init_check(a, vreg):
    lp = a.lab("ini"); dn = a.lab("inid"); sv = list(a.vm)
    a(f"""s_cmp_lg_u32 s30, 0
    s_cbranch_scc1 {dn}
    s_mov_b32 s97, 0
    {lp}:
    v_readfirstlane_b32 s98, v{vreg}
    s_cmp_eq_u32 s98, 1
    s_cbranch_scc1 {dn}
    v_mov_b32 v16, 0
    buffer_load_dword v{vreg}, v16, s[24:27], 0 offen sc1
    s_add_u32 s97, s97, 1
    s_cmp_lt_u32 s97, 0x40000
    s_waitcnt vmcnt(0)
    s_cbranch_scc1 {lp}
    {dn}:""")
    a.vm = sv

def poll2(a, c0, t0, c1, t1):
    sk = a.lab("pk"); lp = a.lab("poll"); dn = a.lab("done"); saved = list(a.lg)
    a(f"""s_cmp_lg_u32 s30, 0
    s_cbranch_scc1 {sk}
    s_mov_b32 s97, 0
    s_waitcnt lgkmcnt(0)
    {lp}:
    s_mov_b32 s98, 0
    s_mov_b32 s96, 0
    s_atomic_add s98, s[20:21], {c0} glc
    s_atomic_add s96, s[20:21], {c1} glc
    s_add_u32 s97, s97, 1
    s_waitcnt lgkmcnt(0)
    s_cmp_ge_u32 s98, {t0}
    s_cselect_b32 s96, s96, 0
    s_cmp_ge_u32 s96, {t1}
    s_cbranch_scc1 {dn}
    s_cmp_lt_u32 s97, 0x40000
    s_cbranch_scc1 {lp}
    {dn}:
    {sk}:
    s_barrier""")
    a.lg = saved
```

```python
from asmlib import *
from layout import *

class Stamps:
    def __init__(self, a, on, kidx=0):
        self.a = a; self.on = on; self.n = 0; self.kidx = kidx; self.names = []; self.groups = []
    def __call__(self, name):
        if not self.on: return
        if self.on == "dbg" and name not in ("entry", "x8", "sync0", "gemm", "kvst", "sync1", "ost", "sync2", "sync3", "bar0", "s1", "s2", "drain", "sync4", "end"): return
        self.a(f"{'s_memtime' if self.on == 'cyc' else 's_memrealtime'} s[{56+2*self.n}:{57+2*self.n}]")
        self.names.append(name); self.n += 1
        assert self.n <= 16
    def dump(self, srd, wave, va=0, vd=1):
        if not self.on: return
        a = self.a
        if self.on == "dbg":
            if self.names[-1] != "end": return
            sk = a.lab("nodbg")
            a(f"""s_load_dwordx2 s[4:5], s[0:1], 72
            s_waitcnt lgkmcnt(0)
            s_lshl_b32 s3, s2, 2
            s_add_u32 s3, s3, {wave}
            s_cmp_lg_u32 s3, 28
            s_cbranch_scc1 {sk}
            s_mov_b32 s6, 256
            s_mov_b32 s7, 0x20000
            v_mov_b32 v{vd}, 0""")
            for q in range(1, self.n): a(f"s_sub_u32 s3, s{56+2*q}, s56\nv_writelane_b32 v{vd}, s3, {q}")
            a(f"""v_mbcnt_lo_u32_b32 v{va}, -1, 0
            v_lshlrev_b32 v{va}, 2, v{va}
            s_mov_b64 exec, 0xfffe
            buffer_store_dword v{vd}, v{va}, s[4:7], 0 offen
            s_mov_b64 exec, -1
            {sk}:""")
            self.groups.append(self.names)
            return
        a(f"s_waitcnt lgkmcnt(0)\nv_mov_b32 v{vd}, 0")
        for q in range(self.n): a(f"v_writelane_b32 v{vd}, s{56+2*q}, {q}")
        a(f"""s_lshl_b32 s3, s2, 2
        s_add_u32 s3, s3, {wave}
        s_lshl_b32 s3, s3, 6
        s_add_u32 s3, s3, {TS + self.kidx * 0x10000}
        v_mbcnt_lo_u32_b32 v{va}, -1, 0
        v_lshlrev_b32 v{va}, 2, v{va}
        s_mov_b64 exec, 0xffff
        buffer_store_dword v{vd}, v{va}, {srd}, s3 offen
        s_mov_b64 exec, -1""")
        self.groups.append(self.names); self.names = []; self.n = 0; self.kidx += 1

def code_prefetch(a, lab_from, lab_to, vaddr, vdst, nwg_shift=3, reps=1, wide=False):
    pc = a.lab("pc")
    a(f"""s_getpc_b64 s[92:93]
    {pc}:
    s_add_u32 s92, s92, {lab_from}-{pc}
    s_addc_u32 s93, s93, 0
    s_mov_b32 s94, {lab_to}-{lab_from}
    s_mov_b32 s95, 0x20000
    s_lshr_b32 s96, s2, {nwg_shift}
    s_mul_i32 s96, s96, {3072 if wide else 2048}
    v_mul_u32_u24 v{vaddr}, {12 if wide else 8}, v0""")
    for r in range(reps):
        if r: a("s_add_u32 s96, s96, 0x10000")
        a(f"buffer_load_dwordx{3 if wide else 2} {vdst}, v{vaddr}, s[92:95], s96 offen", vtag="pf")

def srd(a, d, lo, hi, nbytes):
    a(f"s_mov_b32 s{d}, s{lo}\ns_mov_b32 s{d+1}, s{hi}\ns_mov_b32 s{d+2}, {nbytes}\ns_mov_b32 s{d+3}, 0x20000")

def signal(a, cnt_sreg, vt=None, check_init=False, cnt2=None):
    sk = a.lab("sig"); saved = list(a.lg)
    a(f"""s_cmp_lg_u32 s30, 0
    s_cbranch_scc1 {sk}""")
    if check_init:
        lp = a.lab("ini"); dn = a.lab("inid"); sv = list(a.vm)
        a(f"""s_mov_b32 s97, 0
        {lp}:
        v_readfirstlane_b32 s98, v{check_init}
        s_cmp_eq_u32 s98, 1
        s_cbranch_scc1 {dn}
        v_mov_b32 v16, 0
        buffer_load_dword v{check_init}, v16, s[24:27], 0 offen sc1
        s_add_u32 s97, s97, 1
        s_cmp_lt_u32 s97, 0x40000
        s_waitcnt vmcnt(0)
        s_cbranch_scc1 {lp}
        {dn}:""")
        a.vm = sv
    a(f"""s_mov_b32 s98, 1
    s_atomic_add s98, s[20:21], {cnt_sreg}""")
    if cnt2: a(f"s_atomic_add s98, s[20:21], {cnt2}")
    a(f"{sk}:")
    a.lg = saved

def poll(a, cnt_sreg, target, vt=None):
    sk = a.lab("pk"); lp = a.lab("poll"); dn = a.lab("done"); saved = list(a.lg)
    a(f"""s_cmp_lg_u32 s30, 0
    s_cbranch_scc1 {sk}
    s_mov_b32 s97, 0
    s_waitcnt lgkmcnt(0)
    {lp}:
    s_mov_b32 s98, 0
    s_atomic_add s98, s[20:21], {cnt_sreg} glc
    s_add_u32 s97, s97, 1
    s_waitcnt lgkmcnt(0)
    s_cmp_ge_u32 s98, {target}
    s_cbranch_scc1 {dn}
    s_cmp_lt_u32 s97, 0x40000
    s_cbranch_scc1 {lp}
    {dn}:
    {sk}:
    s_barrier""")
    a.lg = saved

def init_check(a, vreg):
    lp = a.lab("ini"); dn = a.lab("inid"); sv = list(a.vm)
    a(f"""s_cmp_lg_u32 s30, 0
    s_cbranch_scc1 {dn}
    s_mov_b32 s97, 0
    {lp}:
    v_readfirstlane_b32 s98, v{vreg}
    s_cmp_eq_u32 s98, 1
    s_cbranch_scc1 {dn}
    v_mov_b32 v16, 0
    buffer_load_dword v{vreg}, v16, s[24:27], 0 offen sc1
    s_add_u32 s97, s97, 1
    s_cmp_lt_u32 s97, 0x40000
    s_waitcnt vmcnt(0)
    s_cbranch_scc1 {lp}
    {dn}:""")
    a.vm = sv

def poll2(a, c0, t0, c1, t1):
    sk = a.lab("pk"); lp = a.lab("poll"); dn = a.lab("done"); saved = list(a.lg)
    a(f"""s_cmp_lg_u32 s30, 0
    s_cbranch_scc1 {sk}
    s_mov_b32 s97, 0
    s_waitcnt lgkmcnt(0)
    {lp}:
    s_mov_b32 s98, 0
    s_mov_b32 s96, 0
    s_atomic_add s98, s[20:21], {c0} glc
    s_atomic_add s96, s[20:21], {c1} glc
    s_add_u32 s97, s97, 1
    s_waitcnt lgkmcnt(0)
    s_cmp_ge_u32 s98, {t0}
    s_cselect_b32 s96, s96, 0
    s_cmp_ge_u32 s96, {t1}
    s_cbranch_scc1 {dn}
    s_cmp_lt_u32 s97, 0x40000
    s_cbranch_scc1 {lp}
    {dn}:
    {sk}:
    s_barrier""")
    a.lg = saved

class Table:
    def __init__(self, label):
        self.label = label; self.chunks = []
    def chunk(self, fns):
        fns = list(fns) + [lambda l: 0] * (4 - len(fns))
        self.chunks.append([[f(l) & 0xffffffff for f in fns] for l in range(64)])
        return len(self.chunks) - 1
    def srd(self, a, d):
        pc = a.lab("tpc")
        a(f"""s_getpc_b64 s[{d}:{d+1}]
        {pc}:
        s_add_u32 s{d}, s{d}, {self.label}-{pc}
        s_addc_u32 s{d+1}, s{d+1}, 0
        s_mov_b32 s{d+2}, {self.label}_end-{self.label}
        s_mov_b32 s{d+3}, 0x20000""")
    def load(self, dst, fns, vaddr, d, kind="v"):
        c = self.chunk(fns)
        so = "0" if c < 4 else None
        if c < 4: return f"buffer_load_dwordx4 {kind}[{dst}:{dst+3}], v{vaddr}, s[{d}:{d+3}], 0 offen offset:{c*1024}"
        return f"s_movk_i32 s3, {(c//4)*4096}\nbuffer_load_dwordx4 {kind}[{dst}:{dst+3}], v{vaddr}, s[{d}:{d+3}], s3 offen offset:{(c%4)*1024}"
    def text(self):
        s = f".p2align 7\n.type {self.label},@object\n{self.label}:\n"
        for ch in self.chunks:
            for l in range(64): s += ".long " + ", ".join(f"{v:#x}" for v in ch[l]) + "\n"
        return s + f"{self.label}_end:\n.size {self.label}, {self.label}_end-{self.label}\n"

def poll_start(a, cnt_sreg):
    sk = a.lab("ps"); saved = list(a.lg)
    a(f"""s_cmp_lg_u32 s30, 0
    s_cbranch_scc1 {sk}
    s_waitcnt lgkmcnt(0)
    s_mov_b32 s98, 0
    s_atomic_add s98, s[20:21], {cnt_sreg} glc
    {sk}:""")
    a.lg = saved

def poll_finish(a, cnt_sreg, target):
    sk = a.lab("pf"); lp = a.lab("pfl"); saved = list(a.lg)
    a(f"""s_cmp_lg_u32 s30, 0
    s_cbranch_scc1 {sk}
    s_mov_b32 s97, 0
    {lp}:
    s_waitcnt lgkmcnt(0)
    s_cmp_ge_u32 s98, {target}
    s_cbranch_scc1 {sk}
    s_mov_b32 s98, 0
    s_atomic_add s98, s[20:21], {cnt_sreg} glc
    s_add_u32 s97, s97, 1
    s_cmp_lt_u32 s97, 0x40000
    s_cbranch_scc1 {lp}
    s_waitcnt lgkmcnt(0)
    {sk}:
    s_barrier""")
    a.lg = saved
```

```python
from common import *
from ffn16 import dma_offsets, store_setup
UNIT = 18432; SLOT = 2 * UNIT

def ffn_body(a, st, opts, C3, C4, front, tb=None):
    opt = lambda k, d: next((int(o[len(k):]) for o in reversed(opts) if re.fullmatch(k + r'\d+', o)), d)
    diag = st.on
    T0 = 21
    G = lambda t: 64 + 8 * t
    def U(t): return ("v", 208 + 8 * t) if t < 6 else ("a", 96 + 8 * (t - 6))
    XR = lambda k: 32 + 8 * (k % 4)
    NF = opt("nf", 8); D = NF - 2; NA = opt("na", 3)
    AF = lambda i: 192 + 4 * (i % NF)
    def emit(it):
        if len(it) > 2 and it[2][0] == "F":
            saved = list(a.lg); a(it[1]); a.lg = saved
        elif len(it) > 2: a(it[1], vtag=it[2])
        else: a(it[1])
    def blocks(P):
        if P < 18 + NA: return [(J, cg) for J in range(9) for cg in range(NA)][9 * (P - 18):9 * (P - 17)]
        return [(J, P - 18) for J in range(9)]
    def dma_pair(P):
        r = []; slot = P % 4
        if P < 18:
            for i in range(9):
                if i % 4 == 0: r.append(("m", f"s_add_u32 m0, s37, {slot*SLOT + i*1024}"))
                r.append(("d", f"buffer_load_dwordx4 v{i}, s[12:15], s36 offen offset:{(i%4)*1024} lds", ("P", P)))
            return r + [("s", f"s_add_u32 s36, s36, {32*9216}")]
        for b, (J, cg) in enumerate(blocks(P)):
            r.append(("m", f"s_add_u32 m0, s40, {slot*SLOT + b*4096}"))
            r.append(("s", f"s_add_u32 s39, s38, {J*32*1152 + cg*128}"))
            r.append(("d", f"buffer_load_dwordx4 v0, s[16:19], s39 offen lds", ("P", P)))
        return r
    def dsrc(i):
        def f(l):
            p = i * 1024 + l * 16; row, col = divmod(p, 576)
            return row * 9216 + (col ^ (32 if row & 4 else 0)) + 3072 - (i % 4) * 1024
        return f
    rdb = lambda l, sg: (l >> 2) * 576 + 8 * (l & 3) + sg * 32 * ((l >> 4) & 1)
    OOBV = 0x7fffff00
    def setup():
        a(f"""v_mov_b32 v30, v15
        s_lshl_b32 s31, s29, 1
        s_and_b32 s33, s28, 1
        s_add_u32 s31, s31, s33
        s_lshr_b32 s32, s28, 1
        s_and_b32 s33, s30, 1
        s_lshr_b32 s34, s30, 1
        v_lshlrev_b32 v15, 4, v30""")
        for x in (tb.load(0, [dsrc(i) for i in range(4)], 15, 88), tb.load(4, [dsrc(i) for i in range(4, 8)], 15, 88),
                  tb.load(8, [dsrc(8)] + [(lambda l, q=q: rdb(l, 1) + 55296 * q) for q in range(3)], 15, 88),
                  tb.load(16, [(lambda l, q=q: rdb(l, -1) + 55296 * q) for q in range(3)], 15, 88),
                  tb.load(24, [lambda l: (l // 9) * 9216 + (l % 9) * 128 if l < 18 else OOBV, lambda l: l * 128 if l < 11 else OOBV,
                               lambda l: (l >> 5) * 768 + (l & 31) * 4], 15, 88),
                  tb.load(236, [lambda l: (l >> 3) * 1152 + (((l & 7) << 4) ^ ((l >> 4) << 5))] +
                               [(lambda l, t=t: 2 * SLOT + (l >> 2) * 128 + 8 * (l & 3) + 32 * (((l >> 3) & 3) ^ t)) for t in range(3)], 15, 88, "a"),
                  tb.load(240, [lambda l: 2 * SLOT + (l >> 2) * 128 + 8 * (l & 3) + 32 * (((l >> 3) & 3) ^ 3),
                                lambda l: (l & 7) * 1152 + 8 * ((l >> 3) & 1) + 128 * (l >> 5) + 32 * ((l >> 4) & 1),
                                lambda l: ((l >> 3) & 1) * 256 + (l & 7) * 16 if l < 16 else OOBV,
                                lambda l: (l >> 4) * 9216 + (l & 15) * 16], 15, 88, "a"),
                  tb.load(244, [lambda l: ((l >> 3) & 1) * 147456 + (l >> 4) * 128 + (l & 7) * 16], 15, 88, "a")):
            a(x, vtag="ftab")
        a(f"""s_cmp_eq_u32 s34, 0
        s_cselect_b32 s12, s4, s6
        s_cselect_b32 s13, s5, s7
        s_sub_u32 s12, s12, 3072
        s_subb_u32 s13, s13, 0
        s_mov_b32 s14, {576*9216+3072}
        s_mov_b32 s15, 0x20000""")
        srd(a, 16, 8, 9, 4608 * 1152)
        a(f"""s_mul_i32 s36, s31, 576
        s_mul_i32 s39, s33, {16*9216}
        s_add_u32 s36, s36, s39
        s_mul_i32 s37, s30, 9216""")
    def dma0(P):
        a.wait(v="ftab")
        [emit(x) for x in dma_pair(P)]
    loop = "noloop" not in opts
    def zero(part):
        regs = []
        for t in range(18):
            for q in range(8):
                regs.append(("v", G(t) + q)); k, b = U(t); regs.append((k, b + q))
        for (k, r) in regs:
            late = (k == "v" and r >= 168) or (k == "a" and r < 136)
            if late == (part == 1): a(f"v_mov_b32 v{r}, 0" if k == "v" else f"v_accvgpr_write_b32 a{r}, 0")
    front(setup, dma0, zero)
    tl = "notl" not in opts
    if tl:
        a(f"""v_mov_b32 v31, v24
        v_mov_b32 v14, v25
        s_lshl_b32 s50, s28, 1
        s_add_u32 s50, s50, s33
        s_mul_i32 s50, s50, {2*9216}
        s_mul_i32 s51, s29, 1152
        s_add_u32 s50, s50, s51
        s_add_u32 s50, s50, {opt("tla", 256)*9216 + 3072}
        s_lshl_b32 s51, s28, 2
        s_add_u32 s51, s51, s30
        s_mul_i32 s51, s51, {11*128}
        s_mul_i32 s52, s29, {576*1152}
        s_add_u32 s51, s51, s52""")
    a(f"""s_lshl_b32 s35, s32, 2
    s_add_u32 s35, s35, s30
    s_mul_i32 s43, s35, 1536
    s_mul_i32 s35, s35, 36864
    s_add_u32 s43, s43, {STATS}
    s_mul_i32 s38, s31, {288*1152}
    s_mul_i32 s39, s30, {8*1152}
    s_add_u32 s38, s38, s39
    s_lshl_b32 s40, s30, 10
    s_mov_b32 s47, 0xffff0000
    s_lshl_b32 s53, s32, 8
    s_add_u32 s53, s53, {C3}
    v_mov_b32 v29, v26""")
    if HFRAG: a(f"s_add_u32 s35, s35, {HFRAG}")
    poll(a, "s53", 12)
    st("sync3")
    def xload(k):
        r = []
        for h in range(2):
            r.append(("x", f"buffer_load_dwordx4 {vr(XR(k)+4*h,4)}, v15, s[20:23], s35 offen offset:{h*1024} sc1", ("X", k)))
        return r + [("s", "s_add_u32 s35, s35, 2048")]
    for q in range(6): a(f"buffer_load_dword v{56+q}, v29, s[20:23], s43 offen offset:{128*q} sc1", vtag="st")
    XA = opt("xa", 2)
    for k in range(3 if XA == 3 else 2): [emit(x) for x in xload(k)]
    if loop: zero(1)
    a.wait(v="st")
    a("""v_add_f32 v56, v56, v57
    v_add_f32 v58, v58, v59
    v_add_f32 v60, v60, v61
    v_add_f32 v56, v56, v58
    v_add_f32 v56, v56, v60
    v_mul_f32 v56, 0x3ae38e39, v56
    v_mov_b32 v57, v56
    v_permlane16_swap_b32 v56, v57
    v_fma_f32 v57, -v56, v56, v57
    v_max_f32 v57, 0, v57
    v_add_f32 v57, 0x3727c5ac, v57
    v_rsq_f32 v12, v57
    s_nop 0
    v_mul_f32_e64 v19, -v56, v12
    v_mov_b32 v13, v12
    v_mov_b32 v20, v19
    v_permlane32_swap_b32 v12, v13
    v_permlane32_swap_b32 v19, v20""")
    def norm(k):
        r = []
        if "xnonorm" in opts: return r
        for h in range(2):
            b = XR(k) + 4 * h
            for j in range(4):
                r.append(("v", f"v_lshlrev_b32_e32 v{T0+2*j}, 16, v{b+j}"))
                r.append(("v", f"v_and_b32_e32 v{T0+1+2*j}, s47, v{b+j}"))
            for j in range(8):
                r.append(("v", f"v_fma_f32 v{T0+j}, v{T0+j}, v{12+h}, v{19+h}"))
            for j in range(4):
                r.append(("v", f"v_cvt_pk_bf16_f32 v{b+j}, v{T0+2*j}, v{T0+1+2*j}"))
        return r
    def conv(J):
        r = []
        for h in range(2):
            for e in range(2):
                t = 2 * J + e; g = G(t) + 4 * h; k, u = U(t); u += 4 * h
                for q in range(4):
                    if k == "a": r.append(("v", f"v_accvgpr_read_b32 v{T0+q}, a{u+q}"))
                    r.append(("v", f"v_max_f32_e32 v{g+q}, 0, v{g+q}"))
                for q in range(4):
                    src = f"v{T0+q}" if k == "a" else f"v{u+q}"
                    r.append(("v", f"v_mul_f32_e32 v{g+q}, v{g+q}, {src}"))
                d = G(2 * J) + 4 * h + 2 * e
                for q in range(2):
                    r.append(("v", f"v_cvt_pk_bf16_f32 v{d+q}, v{g+2*q}, v{g+2*q+1}"))
        return r
    def acc2(c, t): return ("a", 8 * (4 * c + t)) if c < NA else ("v", G(2 * ((c % 2) * 4 + t) + 1))
    ecount = [0]
    def epi(c):
        r = []
        for tp in range(2):
            for h in range(2):
                S = 32 + 4 * (ecount[0] % 8); ecount[0] += 1
                for e in range(2):
                    k, b = acc2(c, 2 * tp + e); b += 4 * h
                    if k == "a":
                        for q in range(4): r.append(("v", f"v_accvgpr_read_b32 v{T0+4*e+q}, a{b+q}"))
                        b = T0 + 4 * e
                    for q in range(2): r.append(("v", f"v_cvt_pk_bf16_f32 v{S+2*e+q}, v{b+2*q}, v{b+2*q+1}"))
                o = (2 * c + tp) * 512
                r.append(("st", f"buffer_store_dwordx4 {vr(S,4)}, v15, s[20:23], s{44+3*h+o//4096} offen offset:{o%4096}{'' if 'xplain' in opts else ' sc1'}", ("ST", c)))
                if "xnost" in opts and c < 8: r.pop()
        return r
    a.wait(v=("X", 0))
    [emit(x) for x in norm(0)]
    fr = []
    for ks in range(18):
        for t in range(18):
            fr.append((ks, (0, t), "v", G(t), XR(ks), ks == 0 and not loop))
            k, b = U(t); fr.append((ks, (1, t), k, b, XR(ks), ks == 0 and not loop))
    for P in range(18, 27):
        for b_, (J, cg) in enumerate(blocks(P)):
            for t in range(4):
                k, b = acc2(cg, t)
                fr.append((P, (b_, t), k, b, G(2 * J), J == 0))
    N = len(fr)
    def reads(i):
        P, (x, t) = fr[i][0], fr[i][1]; f = AF(i)
        if P < 18:
            slot = (2 * P + x) % 8; base = (9 if t % 2 == 0 else 16) + slot // 3
            o = (slot % 3) * UNIT + t * 32; o2 = o + 9216
        else:
            base = 1 + t; o = x * 4096; o2 = o + 2048
        return [f"ds_read_b64_tr_b16 a[{f}:{f+1}], v{base} offset:{o}", f"ds_read_b64_tr_b16 a[{f+2}:{f+3}], v{base} offset:{o2}"]
    s2setup = ["v_accvgpr_read_b32 v0, a236"]
    s2read = [f"v_accvgpr_read_b32 v{1+t}, a{237+t}" for t in range(4)]
    redsetup = ["v_accvgpr_read_b32 v5, a241", "v_accvgpr_read_b32 v7, a242", "v_accvgpr_read_b32 v31, a243",
                "s_lshl_b32 s29, s32, 4", "s_add_u32 s29, s29, s31",
                "s_mul_i32 s88, s29, 147456", "s_lshl_b32 s89, s30, 8", "s_add_u32 s88, s88, s89", f"s_add_u32 s88, s88, {PART}",
                "s_add_u32 s89, s88, 36864", "s_add_u32 s90, s89, 36864", "s_add_u32 s91, s90, 36864",
                "s_lshr_b32 s92, s29, 2", "s_mul_i32 s92, s92, 36864", "s_bfe_u32 s93, s29, 0x10001", "s_lshl_b32 s93, s93, 10", "s_add_u32 s92, s92, s93",
                "s_and_b32 s93, s29, 1", "s_lshl_b32 s93, s93, 7", "s_add_u32 s92, s92, s93", "s_lshl_b32 s93, s34, 11", "s_add_u32 s92, s92, s93",
                "s_lshl_b32 s93, s33, 9", "s_add_u32 s92, s92, s93",
                f"s_mul_i32 s94, s29, {8*1152}", "s_lshl_b32 s93, s34, 6", "s_add_u32 s94, s94, s93", "s_lshl_b32 s93, s33, 4", "s_add_u32 s94, s94, s93",
                f"s_add_u32 s53, s53, {C4-C3}"]
    if HFRAG: redsetup.append(f"s_add_u32 s92, s92, {HFRAG}")
    PL = lambda c, i: (96 + 4 * (4 * c + i)) if c < 6 else 4 * (4 * (c - 6) + i)
    HL = lambda c: 48 + 4 * c
    def hload(c): return [("x", f"buffer_load_dwordx4 a[{HL(c)}:{HL(c)+3}], v7, s[20:23], s92 offen sc1", ("H", c)), ("s", "s_add_u32 s92, s92, 4096")]
    def pload(c):
        r = []
        if c and c % 4 == 0: r += [("s", f"s_add_u32 s{88+i}, s{88+i}, 4096") for i in range(4)]
        for i in range(4):
            r.append(("x", f"buffer_load_dwordx4 a[{PL(c,i)}:{PL(c,i)+3}], v31, s[20:23], s{88+i} offen offset:{(c%4)*1024} sc1", ("L", c)))
        return r
    sched = opt("sch", 1)
    if sched == 0: groups = [(range(9), None, None)]
    elif sched == 4: groups = [((0, 1, 2, 3, 4, 5), 26, None), ((6, 7, 8), None, None)]
    elif sched == 5: groups = [((0, 1, 2, 3, 4, 5), 26, None), ((6, 7), 27, None), ((8,), None, None)]
    elif sched == 6: groups = [((0, 1), 22, 23), ((2, 3, 4, 5), 26, None), ((6, 7, 8), None, None)]
    elif sched == 7: groups = [((0, 1, 2), 23, 24), ((3, 4, 5), 26, None), ((6, 7, 8), None, None)]
    elif sched == 8: groups = [((0,), 21, 22), ((1, 2), 23, 24), ((3, 4, 5), 26, None), ((6, 7, 8), None, None)]
    elif sched == 9: groups = [((0, 1), 22, 24), ((2, 3, 4, 5), 26, None), ((6, 7), 27, None), ((8,), None, None)]
    elif sched == 10: groups = [((0, 1), 24, 25), ((2, 3, 4, 5), 26, None), ((6, 7), 27, None), ((8,), None, None)]
    elif sched == 11: groups = [((0, 1, 2), 24, 25), ((3, 4, 5), 26, None), ((6, 7), 27, None), ((8,), None, None)]
    elif sched == 12: groups = [((0, 1, 2, 3), 24, 25), ((4, 5), 26, None), ((6, 7), 27, None), ((8,), None, None)]
    elif sched == 13: groups = [((0, 1, 2, 3, 4), 25, 26), ((5, 6, 7), 27, None), ((8,), None, None)]
    slowq = []; lper = opt("lper", 18)
    spins = []
    def sig(g):
        sk = a.lab("sg"); saved = list(a.lg)
        a(f"""s_cmp_lg_u32 s30, 0
        s_cbranch_scc1 {sk}
        s_add_u32 s95, s53, {4096*g}
        s_mov_b32 s98, 1
        s_atomic_add s98, s[20:21], s95
        {sk}:""")
        a.lg = saved
    def poll_issue(g):
        sk = a.lab("pi")
        return [("x", f"s_cmp_lg_u32 s30, 0\ns_cbranch_scc1 {sk}\ns_add_u32 s96, s53, {4096*g}\ns_mov_b32 s97, 0\ns_atomic_add s97, s[20:21], s96 glc\n{sk}:", ("F", g))]
    def poll_check(g):
        ok = a.lab("ok"); sp = a.lab("spin"); saved = list(a.lg)
        a(f"s_cmp_eq_u32 s30, 0\ns_cbranch_scc1 {sp}\n{ok}:")
        spins.append(f"""{sp}:
        s_mov_b32 s99, 0
        {sp}_l:
        s_waitcnt lgkmcnt(0)
        s_cmp_ge_u32 s97, 16
        s_cbranch_scc1 {ok}
        s_mov_b32 s97, 0
        s_atomic_add s97, s[20:21], s96 glc
        s_add_u32 s99, s99, 1
        s_cmp_lt_u32 s99, 0x40000
        s_cbranch_scc1 {sp}_l
        s_waitcnt lgkmcnt(0)
        s_branch {ok}""")
    st("pro")
    a("s_waitcnt vmcnt(0)\ns_barrier")
    st("bar0")
    if diag: a("s_waitcnt lgkmcnt(0)")
    for i in range(D):
        for r in reads(i): a(r, ltag=("A", i))
    memq = []; valq = []; pendbar = None
    budget = opt("bud", 2); mper = opt("mper", 4)
    def emitv(it):
        if it[0] == "w": return 1 if a.wait(v=it[1]) else 0
        emit(it); return 1
    marks = {}
    for i in range(N):
        P, xt, k, b, B, first = fr[i]
        s, pos = divmod(i, 36)
        if pos == 0 and s % 4 == 0 and s <= 16: marks[s] = len(a.l)
        if i == 648: st("s1")
        if (i + D) % 36 == 0 and i + D < N:
            sn = (i + D) // 36
            while any(len(x) > 2 and x[2][0] == "P" for x in memq) or (memq and memq[0][0] in "sv"): emit(memq.pop(0))
            pendbar = sn
            if sn > 18: valq = [(("v", f"v_add_u32 v{1+t}, {SLOT if sn % 4 else -3*SLOT}, v{1+t}"), i) for t in range(4)] + valq
        if pos == 0:
            Pn = s + 2; q = []
            if s <= 15 and "xnox" not in opts and XA == 2: q += xload(s + 2)
            if Pn == 18: q += [("v", x) for x in s2setup]
            if Pn < 27 and not ("xnodma" in opts and Pn < 18): q += dma_pair(Pn)
            if Pn == 18: q += [("v", x) for x in s2read]
            if s <= 15 and XA == 3: q += xload(s + 3)
            if s <= 15 and XA == 4: q += xload(s + 2)
            if tl and s < 16 and s % 4 == 0: q += [("x", "buffer_load_dword a232, v31, s[12:15], s50 offen", ("T", s)), ("s", f"s_add_u32 s50, s50, {128*9216}")]
            if tl and s < 16 and s % 4 == 2: q += [("x", "buffer_load_dword a233, v14, s[16:19], s51 offen", ("T", s)), ("s", f"s_add_u32 s51, s51, {128*11*128}")]
            memq = q + memq
        if pos == 4 and s + 1 < 18:
            valq += [(("w", ("X", s + 1)), i + 31)] + [(x, i + 31) for x in norm(s + 1)]
        if i >= 612 and i < 648 and (i - 612) % 4 == 2 and (i - 612) // 4 >= 1:
            J = (i - 612) // 4 - 1
            valq += [(x, 648 + 4 * NA * J) for x in conv(J)]
        if i == 650: valq += [(x, 648 + 4 * NA * 8) for x in conv(8)]
        if i == 652: valq += [(("v", x), 648 + 36 * NA + 20) for x in ['v_accvgpr_read_b32 v15, a244'] + [y for y in store_setup() if y.startswith('s_')] + redsetup]
        EP = opt("ep", 2)
        if i == 648 + 36 * NA + EP:
            for c in range(NA): valq += [(x, None) for x in epi(c)]
        if i >= 648 + 36 * (NA + 1) + 2 and pos == (EP if s < 25 else 2):
            c = s - 19
            valq += [(x, 648 + 36 * (c + 2)) for x in epi(c)]
        if i == opt('hl', N - 1):
            for c in range(9): slowq += hload(c)
        chks = []
        if "t2" in opts and i == N - 20: memq = poll_issue(0) + memq
        for g, (chs, sst, chk) in enumerate(groups):
            if chk is not None and i == 36 * chk - D - 16: memq = poll_issue(g) + memq
            if chk is not None and pendbar == chk:
                while any(len(x) > 2 and x[2] == ("F", g) for x in memq): emit(memq.pop(0))
                chks.append(g)
        if slowq and i % lper == opt("loff", 0):
            while True:
                x = slowq.pop(0); memq.append(x)
                if x[0] == "x" or not slowq: break
        sigs = [g for g, (chs, sst, chk) in enumerate(groups) if pendbar is not None and sst == pendbar]
        for g in sigs:
            last = max(groups[g][0])
            while any(len(x) > 2 and x[2][0] == "ST" and x[2][1] <= last for (x, _) in valq): emitv(valq.pop(0)[0])
        while any(d is not None and d <= i for (_, d) in valq): emitv(valq.pop(0)[0])
        lw = lambda lim: a.wait(l=lambda t: t is not None and t != "SMEM" and t[1] <= lim)
        lw(i)
        f = AF(i)
        rd = reads(i + D) if i + D < N else []
        behind = len(valq) > opt("beh", 60)
        for h in range(2):
            C = "0" if first else vr(b + 4 * h, 4, k)
            a(f"v_mfma_f32_16x16x32_bf16 {vr(b+4*h,4,k)}, a[{f}:{f+3}], {vr(B+4*h,4)}, {C}")
            sc_used = False
            if pendbar is not None:
                lasts = [max(groups[g][0]) for g in sigs]
                a.wait(v=lambda t: t == ("P", pendbar) or (isinstance(t, tuple) and t[0] == "ST" and any(t[1] <= l for l in lasts)))
                for g in chks: poll_check(g)
                if "xnobar" not in opts or s >= 16: a("s_barrier")
                for g in sigs: sig(g)
                for g in chks:
                    for c in groups[g][0]: slowq += pload(c)
                pendbar = None; sc_used = True
            if h == 1 and not sc_used: sc_used = lw(i + 1)
            if not sc_used:
                if memq and memq[0][0] in ("s", "m"):
                    emit(memq.pop(0)); sc_used = True
                    if "sc2" in opts and memq and memq[0][0] in ("s", "m"): emit(memq.pop(0))
                elif valq and valq[0][0][0] == "w": sc_used = emitv(valq.pop(0)[0])
                elif valq and valq[0][0][1].startswith("s_"): emitv(valq.pop(0)[0]); sc_used = True
            n = 0
            if rd: a(rd[h], ltag=("A", i + D)); n += 1
            mp = mper if s < 16 else opt("mq", 4)
            if memq and memq[0][0] in ("x", "d") and (2 * i + h) % mp == 0:
                emit(memq.pop(0)); n += 1
            elif memq and memq[0][0] == "v":
                emit(memq.pop(0)); n += 1
            while valq and n < budget + (1 if behind else 0) and valq[0][0][0] != "w" and not valq[0][0][1].startswith("s_"):
                n += emitv(valq.pop(0)[0])
    for it in memq: emit(it)
    for it, d in valq: emitv(it)
    tailq = slowq
    if loop:
        body = [[x.text for x in a.l[marks[s]:marks[s + 4]]] for s in (0, 4, 8, 12)]
        assert body[1] == body[2] == body[3], "loop bodies differ"
        pre = []
        if body[0][0] != body[1][0]:
            assert body[0][0].startswith("s_waitcnt lgkmcnt"); pre = [Ins(body[0][0])]; body[0] = body[0][1:]
        assert body[0] == [x for x in body[1] if not (x.startswith("s_waitcnt vmcnt") and x not in body[0])] or \
               [x for x in body[0] if "vmcnt" not in x] == [x for x in body[1] if "vmcnt" not in x]
        lp = a.lab("loop")
        a.l = a.l[:marks[0]] + pre + [Ins("s_mov_b32 s41, 0"), Ins(".p2align 3"), Ins(f"{lp}:")] + a.l[marks[4]:marks[8]] + \
              [Ins("s_add_u32 s41, s41, 1"), Ins("s_cmp_lt_u32 s41, 4"), Ins(f"s_cbranch_scc1 {lp}")] + a.l[marks[16]:]
    st("s2")
    rest = [g for g, (chs, sst, chk) in enumerate(groups) if sst is None or sst >= 27]
    late = [g for g, (chs, sst, chk) in enumerate(groups) if chk is None]
    srd(a, 12, 10, 11, 2048 * 1152)
    def red(c):
        T = 208 + 4 * (c // 2); S = 224 + 4 * (c % 2)
        a.wait(v=("H", c))
        a(f"v_mfma_f32_16x16x32_bf16 v[{T}:{T+3}], a[{S}:{S+3}], a[{HL(c)}:{HL(c)+3}], {'0' if c % 2 == 0 else f'v[{T}:{T+3}]'}")
        a.wait(v=("L", c))
        for i in range(4):
            a(f"v_mfma_f32_16x16x32_bf16 v[{T}:{T+3}], a[{S}:{S+3}], a[{PL(c,i)}:{PL(c,i)+3}], v[{T}:{T+3}]")
    def out(T):
        r = 208 + 4 * T
        a(f"v_cvt_pk_bf16_f32 v{r}, v{r}, v{r+1}\nv_cvt_pk_bf16_f32 v{r+1}, v{r+2}, v{r+3}")
        if T == 4: a("s_mov_b32 exec_hi, 0")
        a(f"buffer_store_dwordx2 v[{r}:{r+1}], v5, s[12:15], s94 offen offset:{256*T}" + (" sc1" if "osc1" in opts else " nt" if "ont" in opts else " sc0 sc1" if "osc01" in opts else ""))
        if T == 4: a("s_mov_b64 exec, -1")
    t2 = "t2" in opts
    for g in rest:
        if groups[g][1] == 27:
            last = max(groups[g][0])
            a.wait(v=lambda t: isinstance(t, tuple) and t[0] == "ST" and t[1] <= last)
            if t2: poll_check(0)
            a("s_barrier"); sig(g)
    for x in epi(8): emit(x)
    st("epi")
    done = 0
    pend = list(tailq)
    def issue(n):
        while pend and n > 0:
            x = pend.pop(0); emit(x)
            if x[0] == "x": n -= 1
    if t2:
        for c in groups[0][0]: pend += pload(c)
        issue(opt("pre", 6))
    a.wait(v=lambda t: isinstance(t, tuple) and t[0] == "ST"); a("s_barrier")
    for g in rest:
        if groups[g][1] is None: sig(g)
    rest = [g for g in late if groups[g][1] is not None and groups[g][1] < 27 and not (t2 and g == 0)] + rest
    st("drain")
    for g in rest:
        nx = sum(1 for x in pend if x[0] == "x")
        issue(nx - opt("keep", 6))
        [emit(x) for x in poll_issue(g)]
        issue(99)
        poll_check(g); a("s_barrier")
        if g == rest[-1]: st("sync4")
        for c in groups[g][0]: pend += pload(c)
    issue(99)
    for c in range(done, 9):
        red(c)
        if c >= 3 and c % 2 == 1: out(c // 2 - 1)
    st("loaded")
    out(3); out(4)
    st("end")
    a.spins = spins
```

```python
from common import *
from pk import divu
WOB = 36864
OOB = 0x7fffff00

def p2c_setup(a):
    a("""s_mul_i32 s27, s28, 43
    s_lshr_b32 s27, s27, 8
    s_mul_i32 s26, s27, 6
    s_sub_u32 s26, s28, s26
    s_lshl_b32 s91, s29, 2
    s_add_u32 s27, s27, s91""")
    for i in range(3):
        a(f"v_add_u32 v16, {64*i}, v15")
        divu(a, 17, 16, 12)
        a(f"""v_mul_u32_u24 v18, 12, v17
        v_sub_u32 v18, v16, v18
        v_lshrrev_b32 v19, 3, v17
        v_lshlrev_b32 v19, 1, v19
        v_xor_b32 v18, v18, v19
        v_lshlrev_b32 v18, 4, v18
        v_add_u32 v18, {2048 - 1024*i}, v18
        v_mul_u32_u24 v19, 1152, v17
        v_add_u32 v{7+i}, v19, v18
        v_lshrrev_b32 v19, 1, v17
        v_mul_u32_u24 v19, 18, v19
        v_and_b32 v17, 1, v17
        v_add_u32 v19, v19, v17
        v_mul_u32_u24 v19, 1152, v19
        v_add_u32 v{10+i}, v19, v18""")
    a(f"""v_lshrrev_b32 v16, 4, v15
    v_bfe_u32 v17, v15, 2, 2
    v_lshl_add_u32 v17, v16, 3, v17
    v_mul_u32_u24 v17, 192, v17
    v_and_b32 v18, 3, v15
    v_lshl_add_u32 v17, v18, 3, v17
    v_add_u32 v17, {WOB}, v17
    v_and_b32 v16, 1, v16
    v_lshlrev_b32 v16, 5, v16
    v_add_u32 v170, v17, v16
    v_sub_u32 v171, v17, v16
    v_add_u32 v172, 55296, v170
    v_add_u32 v173, 55296, v171
    v_and_b32 v16, 15, v15
    v_mul_u32_u24 v17, 1152, v16
    v_lshrrev_b32 v18, 4, v15
    v_lshl_add_u32 v174, v18, 3, v17
    v_lshlrev_b32 v17, 8, v18
    v_lshl_add_u32 v175, v16, 2, v17""")
    a(f"s_sub_u32 s44, s44, 2048\ns_subb_u32 s45, s45, 0\ns_add_u32 s46, s46, 2048")

def p2c_wodma(a, rot=True):
    r = []
    r.append(f"""s_mul_i32 s38, s26, 192
    s_mul_i32 s37, s30, {18*1152}
    s_add_u32 s39, s38, s37
    s_mul_i32 s37, s30, {8*18*1152}
    s_add_u32 s38, s38, s37
    s_add_u32 s38, s38, {16*1152}
    s_mul_i32 s40, s30, 3072
    s_add_u32 s40, s40, {WOB}""")
    r0 = []
    for j in range(9):
        q = r0 if j == 0 else r
        q.append(f"s_add_u32 m0, s40, {j*4*3072}")
        if j < 8:
            q.append(f"s_add_u32 s39, s39, {4*18*1152}" if j else f"s_sub_u32 s39, s39, {7*4*18*1152}")
            q += [(f"buffer_load_dwordx4 v{7+i}, s[44:47], s39 offen offset:{i*1024} lds", "wo") for i in range(3)]
        else:
            q.append("s_nop 0")
            q += [(f"buffer_load_dwordx4 v{10+i}, s[44:47], s38 offen offset:{i*1024} lds", "wo") for i in range(3)]
    return r, r0

def p2c_xload(a):
    a(f"""s_lshl_b32 s35, s27, 2
    s_add_u32 s35, s35, s30
    s_mul_i32 s36, s35, {16*1152}
    s_mul_i32 s37, s26, 192
    s_add_u32 s36, s36, s37""")
    for t in range(6):
        a(f"buffer_load_dwordx2 v[{208+2*t}:{209+2*t}], v174, s[12:15], s36 offen offset:{32*t}", vtag="xr")

def p2c_main(a, st, C2, C3, mid=None, early=None, late=None):
    O = lambda k: 64 + 4 * k
    a(f"""s_lshr_b32 s53, s27, 1
    s_lshl_b32 s53, s53, 8
    s_add_u32 s53, s53, {C2}
    s_mul_i32 s48, s35, 18432
    s_add_u32 s48, s48, {OFRAG}
    s_add_u32 s38, s48, 16384""")
    a("v_lshlrev_b32 v169, 2, v30")
    a.wait(v="wo")
    st("wo")
    poll(a, "s53", 16)
    st("sync2")
    for k in range(16):
        if k % 4 == 0 and k: a("s_add_u32 s48, s48, 4096")
        a(f"buffer_load_dwordx4 {vr(O(k),4,'a')}, v15, s[20:23], s48 offen offset:{(k%4)*1024} sc1", vtag=("o", k))
    for e in range(8):
        a(f"buffer_load_dword a{O(16)+e}, v175, s[20:23], s38 offen offset:{(e//4)*1024 + (e%4)*64} sc1", vtag=("o", 16 + e // 4))
    if early: early()
    T = lambda t: 220 + 4 * t
    fr = [(ks, t) for ks in range(18) for t in range(6)]
    NF = 12; D = 10
    AF = lambda i: 4 * (i % NF)
    def reads(i):
        ks, t = fr[i]; f = AF(i); o = (ks % 9) * 6144 + t * 32; ad = 170 + (t % 2) + 2 * (ks // 9)
        return [f"ds_read_b64_tr_b16 a[{f}:{f+1}], v{ad} offset:{o}", f"ds_read_b64_tr_b16 a[{f+2}:{f+3}], v{ad} offset:{o+768}"]
    N = len(fr)
    for i in range(7):
        for r in reads(i): a(r, ltag=("A", i))
    D = 7
    a(f"""s_lshr_b32 s49, s35, 1
    s_mul_i32 s48, s49, 36864
    s_and_b32 s38, s35, 1
    s_lshl_b32 s38, s38, 10
    s_add_u32 s48, s48, s38
    s_mul_i32 s38, s26, 6144
    s_add_u32 s48, s48, s38
    s_mul_i32 s39, s35, 768
    s_lshl_b32 s38, s26, 7
    s_add_u32 s39, s39, s38
    s_add_u32 s39, s39, {STATS}
    s_add_u32 s53, s53, {C3-C2}
    s_mov_b32 s50, 0x3f80
    s_mov_b32 s51, 0x3f800000""")
    if HFRAG: a(f"s_add_u32 s48, s48, {HFRAG}")
    for i in range(N):
        ks, t = fr[i]
        a.wait(v=("o", ks), l=lambda tg: isinstance(tg, tuple) and tg[0] == "A" and tg[1] <= i)
        f = AF(i)
        a(f"v_mfma_f32_16x16x32_bf16 {vr(T(t),4)}, a[{f}:{f+3}], {vr(O(ks),4,'a')}, {'0' if ks == 0 else vr(T(t),4)}")
        if i % 2 == 0: a.wait(l=lambda tg: isinstance(tg, tuple) and tg[0] == "A" and tg[1] <= i + 2)
        if i + D < N:
            for r in reads(i + D): a(r, ltag=("A", i + D))
    st("gemm2")
    a.wait(v="xr")
    for t in range(6):
        for q in range(2):
            a(f"v_dot2_f32_bf16 v{T(t)+2*q}, v{208+2*t+q}, s50, v{T(t)+2*q}\nv_dot2_f32_bf16 v{T(t)+2*q+1}, v{208+2*t+q}, s51, v{T(t)+2*q+1}")
    for tp in range(3):
        S = 244 + 4 * tp
        for e in range(2):
            b = T(2 * tp + e)
            a(f"v_cvt_pk_bf16_f32 v{S+2*e}, v{b}, v{b+1}\nv_cvt_pk_bf16_f32 v{S+2*e+1}, v{b+2}, v{b+3}")
        if tp == 2: a("s_add_u32 s48, s48, 4096")
        a(f"buffer_store_dwordx4 {vr(S,4)}, v15, s[20:23], s48 offen offset:{(tp%2)*2048} sc1", vtag="hs")
    a("s_mov_b32 s50, 0x3f803f80")
    for q in range(12):
        c0 = "0" if q < 2 else f"v{220+2*(q&1)}"; c1 = "0" if q < 2 else f"v{221+2*(q&1)}"
        a(f"v_dot2_f32_bf16 v{220+2*(q&1)}, v{244+q}, s50, {c0}\nv_dot2_f32_bf16 v{221+2*(q&1)}, v{244+q}, v{244+q}, {c1}")
    a(f"""v_add_f32 v220, v220, v222
    v_add_f32 v221, v221, v223
    v_permlane16_swap_b32 v220, v221
    v_add_f32 v220, v220, v221
    v_mov_b32 v221, v220
    v_permlane32_swap_b32 v220, v221
    v_add_f32 v220, v220, v221
    s_mov_b32 exec_hi, 0
    buffer_store_dword v220, v169, s[20:23], s39 offen sc1
    s_mov_b64 exec, -1""", vtag="hs")
    if mid:
        a("s_barrier"); mid()
    a.wait(v="hs"); a("s_barrier")
    st("hst")
    signal(a, "s53")
    if late: late()
```

```python
import sys, json
from common import *
from p1 import softmax, LOG2E
from pk import divu
from p2c import *
import ffn17

REG = 36864; SP = 4 * REG; MOFF = SP; KVL = SP + 6144; ZERO = KVL + 3072; STX = SP + 10240
KVS = 2816; QS = 1280; KVB = 36 * QS; KVR = 9 * KVS; QR = 9 * QS
C1, C2, C3, C4, C0 = FLAGS, FLAGS + 4096, FLAGS + 8192, FLAGS + 12288, FLAGS + 61440
PB = 768
OOB = 0x7fffff00

def touch_addr(a, dst, nrow_lines, rowstride, nitems, first=0):
    a(f"v_add_u32 v18, {first}, v14" if first else "v_mov_b32 v18, v14")
    divu(a, 16, 18, nrow_lines)
    a(f"""v_mul_u32_u24 v17, {nrow_lines}, v16
    v_sub_u32 v17, v18, v17
    v_mul_u32_u24 v16, {rowstride}, v16
    v_lshl_add_u32 v16, v17, 7, v16
    v_mov_b32 v17, {OOB}
    v_cmp_gt_u32 vcc, {nitems}, v18
    v_cndmask_b32 v{dst}, v17, v16, vcc""")

def touch3(a, first, rows):
    a("v_lshlrev_b32 v40, 6, v30\nv_lshrrev_b32 v40, 6, v40\ns_lshl_b32 s48, s30, 6\nv_add_u32 v40, s48, v30")
    def addr(first, stride, n):
        a(f"v_add_u32 v41, {first}, v40")
        a(f"""v_mul_u32_u24 v42, 7282, v41
        v_lshrrev_b32 v42, 16, v42
        v_mul_u32_u24 v43, 9, v42
        v_sub_u32 v43, v41, v43
        v_mul_u32_u24 v42, {stride}, v42
        v_lshl_add_u32 v42, v43, 7, v42
        v_mov_b32 v43, {OOB}
        v_cmp_gt_u32 vcc, {n}, v41
        v_cndmask_b32 v42, v43, v42, vcc""")
    a(f"s_sub_u32 s49, s28, 24\ns_mul_i32 s48, s49, {rows*9216}\ns_mul_i32 s38, s29, 1152\ns_add_u32 s48, s48, s38\ns_add_u32 s48, s48, {first*9216}")
    for q in range((rows * 9 + 255) // 256):
        addr(256 * q, 9216, rows * 9)
        for m in range(2):
            srd(a, 92, 4 + 2 * m, 5 + 2 * m, 576 * 9216)
            a(f"buffer_load_dword a{2+m}, v42, s[92:95], s48 offen")

def gen(diag, opts):
    a = A("K"); st = Stamps(a, diag, 0)
    opt = lambda k, d: next((int(o[len(k):]) for o in reversed(opts) if re.fullmatch(k + r'\d+', o)), d)
    X = lambda k: 64 + 4 * k
    T0, T2, T3, T1, PX = 48, 64, 80, 96, 32
    aT0, aT2, aT3, aT1, aT4 = 112, 114, 116, 118, 120
    aM, aZW, aZA, aZB, aP4, aP1, aN0, aN1, aKA, aKB, aINI, aMS0, aTWO, aTGU = 122, 123, 124, 126, 128, 129, 130, 131, 132, 133, 134, 136, 138, 139
    aPL, aKX = 135, 176
    a("s_cmp_ge_u32 s2, 256\ns_cbranch_scc1 K_end")
    a("""s_load_dwordx4 s[4:7], s[0:1], 0
    s_load_dwordx4 s[8:11], s[0:1], 16
    s_load_dwordx4 s[88:91], s[0:1], 72""")
    st("entry")
    if "pf0" in opts: code_prefetch(a, "K_start", "K_end", 16, "a[0:1]", reps=1)
    a("""v_lshrrev_b32 v16, 6, v0
    v_and_b32 v15, 63, v0
    v_mov_b32 v14, v0
    v_readfirstlane_b32 s30, v16
    s_and_b32 s31, s2, 3
    s_lshl_b32 s31, s31, 2
    s_bfe_u32 s33, s2, 0x20003
    s_add_u32 s32, s31, s33
    s_bfe_u32 s31, s2, 0x10002
    s_lshl_b32 s31, s31, 3
    s_lshr_b32 s33, s2, 5
    s_add_u32 s31, s31, s33
    s_lshr_b32 s28, s2, 3
    s_and_b32 s29, s2, 7""")
    a(f"""v_and_b32 v16, 7, v15
    v_lshrrev_b32 v17, 3, v15
    v_mul_u32_u24 v5, 1152, v16
    v_lshl_add_u32 v5, v17, 4, v5
    v_lshlrev_b32 v6, 9, v17
    v_lshl_add_u32 v6, v16, 4, v6
    s_lshl_b32 s36, s32, 4
    s_add_u32 s36, s36, s31
    s_mul_i32 s36, s36, {8*1152}
    s_lshl_b32 s37, s30, 7
    s_add_u32 s36, s36, s37
    s_cmp_eq_u32 s30, 0
    s_cselect_b32 s37, 0, {OOB}
    s_add_u32 s37, s37, s36
    s_mul_i32 s34, s30, {KVR}
    s_add_u32 s34, s34, {KVB}
    s_lshl_b32 s35, s32, 2
    s_add_u32 s35, s35, s30""")
    b = A("S")
    for i in range(3):
        b(f"v_add_u32 v16, {64*i}, v15")
        divu(b, 17, 16, 11)
        b(f"""v_mul_u32_u24 v18, 11, v17
        v_sub_u32 v18, v16, v18
        v_and_b32 v19, 3, v17
        v_lshrrev_b32 v17, 2, v17
        v_lshl_add_u32 v17, v19, 2, v17
        v_mul_u32_u24 v17, 3456, v17
        v_lshl_add_u32 v17, v18, 4, v17
        v_mov_b32 v19, {1152 + 2048 - i*1024}
        v_mov_b32 v16, {2304 - 80 + 2048 - i*1024}
        v_cmp_lt_u32 vcc, 4, v18
        v_cndmask_b32 v19, v19, v16, vcc
        v_mov_b32 v16, {2304 + 36 - 128 + 2048 - i*1024}
        v_cmp_lt_u32 vcc, 7, v18
        v_cndmask_b32 v19, v19, v16, vcc
        v_add_u32 v{i}, v17, v19
        v_cmp_eq_u32 vcc, 4, v18
        v_cndmask_b32_e64 v16, 0, 8, vcc
        v_sub_u32 v{i}, v{i}, v16
        v_cmp_eq_u32 vcc, 7, v18
        v_cndmask_b32_e64 v16, 0, 12, vcc
        v_cmp_eq_u32 vcc, 10, v18
        v_cndmask_b32_e64 v16, v16, 12, vcc
        v_sub_u32 v{i}, v{i}, v16""")
    kvaddr = [x.text for x in b.l]
    a("s_waitcnt lgkmcnt(0)")
    srd(a, 12, 4, 5, 2048 * 1152)
    srd(a, 20, 90, 91, WS_BYTES)
    sk = a.lab("noinit"); saved = list(a.vm)
    a(f"""s_lshl_b32 s33, s2, 2
    s_add_u32 s33, s33, s30
    s_cmp_lg_u32 s33, 515
    s_cbranch_scc1 {sk}
    v_lshlrev_b32 v16, 8, v15
    v_mov_b32 v17, 0
    s_mov_b32 s38, {FLAGS}""")
    for q in range(4):
        a("buffer_store_dword v17, v16, s[20:23], s38 offen sc1\ns_add_u32 s38, s38, 16384")
    a(f"{sk}:")
    a.vm = saved
    a("""buffer_load_dwordx4 v[160:163], v5, s[12:15], s36 offen
    buffer_load_dwordx4 v[164:167], v5, s[12:15], s36 offen offset:512
    buffer_load_dwordx4 v[168:171], v5, s[12:15], s37 offen offset:1024""", vtag="x8")
    srd(a, 24, 88, 89, 256)
    st("start")
    if "pf0" not in opts: code_prefetch(a, "K_start", "K_end", 16, "a[0:1]", reps=1)
    a("K_start:")
    for x in kvaddr: a(x)
    a(f"""s_sub_u32 s16, s6, 2048
    s_subb_u32 s17, s7, 0
    s_mov_b32 s18, {576*3456+2048}
    s_mov_b32 s19, 0x20000""")
    srd(a, 40, 8, 9, 32 * 648)
    srd(a, 44, 10, 11, 576 * 1152)
    a("s_load_dwordx8 s[4:11], s[0:1], 40")
    a("""s_and_b32 s37, s32, 3
    s_lshl_b32 s37, s37, 1
    s_and_b32 s99, s31, 7
    s_add_u32 s99, s99, s37
    s_cmp_ge_u32 s99, 9
    s_cselect_b32 s37, 9, 0
    s_sub_u32 s99, s99, s37""")
    a(f"""s_mul_i32 s101, s30, {16*3456}
    s_mul_i32 s37, s31, 72
    s_add_u32 s101, s101, s37
    s_add_u32 s100, s101, {576*3456}
    s_mul_i32 s37, s99, {64*3456}
    s_add_u32 s101, s101, s37
    s_mov_b32 s51, s101""")
    def em(x):
        if isinstance(x, tuple): a(x[0], vtag=x[1])
        else: a(x)
    def kvdma(j):
        r = [f"s_add_u32 m0, s34, {j*KVS}", f"s_add_u32 s101, s101, {64*3456}\ns_cmp_ge_u32 s101, s100\ns_cselect_b32 s37, {576*3456}, 0\ns_sub_u32 s101, s101, s37" if j else "s_nop 0"]
        r += [(f"buffer_load_dwordx4 v{i}, s[16:19], s101 offen offset:{i*1024} lds", ("w", j)) for i in range(2)]
        r += ["s_mov_b32 exec_hi, 0xffff", (f"buffer_load_dwordx4 v2, s[16:19], s101 offen offset:2048 lds\ns_mov_b32 exec_hi, -1", ("w", j))]
        return r
    if "tlb" in opts:
        a(f"""s_waitcnt lgkmcnt(0)
        s_cmp_lg_u32 s30, 1
        s_cbranch_scc1 K_notlb
        v_mov_b32 v16, 0
        s_lshl_b32 s37, s28, 21
        s_add_u32 s37, s37, {BASE + 0x1fff00}
        s_mov_b64 exec, 1
        buffer_load_dword a210, v16, s[20:23], s37 offen
        s_and_b32 s38, s28, 3
        s_lshl_b32 s37, s38, 21
        s_lshr_b32 s38, s28, 2
        s_cmp_eq_u32 s38, 1
        s_cselect_b32 s92, s6, s4
        s_cselect_b32 s93, s7, s5
        s_cmp_eq_u32 s38, 2
        s_cselect_b32 s92, s8, s92
        s_cselect_b32 s93, s9, s93
        s_cmp_eq_u32 s38, 3
        s_cselect_b32 s92, s10, s92
        s_cselect_b32 s93, s11, s93
        s_cselect_b32 s94, 2359296, s94
        s_cmp_lt_u32 s38, 3
        s_cselect_b32 s94, {576*9216}, s94
        s_cmp_gt_u32 s38, 3
        s_cselect_b32 s94, 0, s94
        s_mov_b32 s95, 0x20000
        buffer_load_dword a211, v16, s[92:95], s37 offen
        s_mov_b64 exec, -1
        K_notlb:""")
        a.vm = a.vm[:-2]
    NK0 = opt("nka", 2); NK1 = opt("nkb", 3); NK2 = opt("nkc", 6)
    if NK0: a("s_barrier")
    for j in range(NK0): [em(x) for x in kvdma(j)]
    a(f"""s_mov_b32 s50, 0x3f803f80
    v_and_b32 v16, 7, v15
    v_lshrrev_b32 v17, 5, v15
    v_lshlrev_b32 v18, 4, v16
    v_lshl_add_u32 v19, v17, 7, v18
    s_lshl_b32 s37, s30, 2
    s_add_u32 s37, s37, {STX}
    v_add_u32 v19, s37, v19
    v_add_u32 v18, {STX}, v18""")
    a(f"""s_lshr_b32 s36, s31, 2
    s_lshl_b32 s37, s32, 2
    s_add_u32 s36, s36, s37
    s_mul_i32 s36, s36, 36864
    s_and_b32 s37, s31, 3
    s_lshl_b32 s37, s37, 7
    s_add_u32 s36, s36, s37
    s_lshl_b32 s37, s30, 12
    s_add_u32 s36, s36, s37
    s_add_u32 s36, s36, {XFRAG}
    s_add_u32 s38, s36, 16384
    s_cmp_eq_u32 s30, 0
    s_cselect_b32 s39, 0, {OOB}
    s_add_u32 s39, s39, s38
    s_add_u32 s39, s39, 16384
    s_lshl_b32 s53, s32, 8
    s_add_u32 s53, s53, {C0}""")
    a.wait(v="x8")
    sk = a.lab("noflag"); saved = list(a.vm)
    a(f"""s_cmp_lg_u32 s33, 515
    s_cbranch_scc1 {sk}
    v_mov_b32 v16, 1
    v_mov_b32 v17, 0
    s_mov_b64 exec, 1
    buffer_store_dword v16, v17, s[24:27], 0 offen sc1
    s_mov_b64 exec, -1
    {sk}:""")
    a.vm = saved
    st("x8")
    for j in range(12):
        c0 = "0" if j < 2 else f"v{24+(j&1)}"; c1 = "0" if j < 2 else f"v{26+(j&1)}"
        a(f"v_dot2_f32_bf16 v{24+(j&1)}, v{160+j}, s50, {c0}\nv_dot2_f32_bf16 v{26+(j&1)}, v{160+j}, v{160+j}, {c1}")
    a("""v_add_f32 v24, v24, v25
    v_add_f32 v26, v26, v27
    v_permlane32_swap_b32 v24, v26
    v_add_f32 v24, v24, v26
    v_mov_b32 v25, v24
    v_permlane16_swap_b32 v24, v25
    v_add_f32 v24, v24, v25
    v_add_f32_dpp v24, v24, v24 row_ror:8 row_mask:0xf bank_mask:0xf
    s_mov_b32 s50, 0xffff0000
    ds_write_b32 v19, v24""")
    for k in range(3):
        for j in range(4): a(f"v_lshlrev_b32_e32 v{176+8*k+2*j}, 16, v{160+4*k+j}\nv_and_b32_e32 v{177+8*k+2*j}, s50, v{160+4*k+j}")
    a("""s_waitcnt lgkmcnt(0)
    s_barrier
    ds_read_b128 v[24:27], v18
    ds_read_b128 v[28:31], v18 offset:128
    s_waitcnt lgkmcnt(0)
    v_pk_add_f32 v[24:25], v[24:25], v[26:27]
    v_pk_add_f32 v[28:29], v[28:29], v[30:31]
    v_add_f32 v24, v24, v25
    v_add_f32 v26, v28, v29
    v_mul_f32 v24, 0x3ae38e39, v24
    v_mul_f32 v26, 0x3ae38e39, v26
    v_fma_f32 v26, -v24, v24, v26
    v_max_f32 v26, 0, v26
    v_add_f32 v26, 0x3727c5ac, v26
    v_rsq_f32 v12, v26
    s_nop 0
    v_mul_f32_e64 v13, -v24, v12""")
    for k, so in ((0, "s36"), (1, "s38"), (2, "s39")):
        b_ = 160 + 4 * k; u = 176 + 8 * k
        for j in range(4): a(f"v_pk_fma_f32 v[{u+2*j}:{u+2*j+1}], v[{u+2*j}:{u+2*j+1}], v[12:13], v[12:13] op_sel:[0,0,1] op_sel_hi:[1,0,1]")
        for j in range(4): a(f"v_cvt_pk_bf16_f32 v{b_+j}, v{u+2*j}, v{u+2*j+1}")
        a(f"buffer_store_dwordx4 {vr(b_,4)}, v6, s[20:23], {so} offen sc1", vtag="xs")
    a(f"v_mov_b32 v16, 0\nbuffer_load_dword v{aINI}, v16, s[24:27], 0 offen sc1", vtag="xs")
    st("ln")
    if NK1 > NK0: a("s_barrier")
    for j in range(NK0, NK1): [em(x) for x in kvdma(j)]
    b = A("S")
    b(f"""v_lshlrev_b32 v5, 4, v15
    v_and_b32 v16, 31, v15
    v_lshrrev_b32 v17, 2, v16
    v_lshlrev_b32 v17, 1, v17
    v_and_b32 v18, 1, v16
    v_add_u32 v17, v17, v18
    v_lshrrev_b32 v19, 5, v15
    v_mul_u32_u24 v19, 9, v19
    v_add_lshl_u32 v19, v19, v17, 2
    v_mov_b32 v22, {OOB}
    v_cmp_gt_u32 vcc, 9, v17
    v_cndmask_b32 v19, v22, v19, vcc
    v_bfe_u32 v16, v16, 1, 1
    v_cmp_eq_u32 vcc, 0, v16
    v_cndmask_b32 v{aMS0}, v22, v19, vcc
    v_cndmask_b32 v{aMS0+1}, v19, v22, vcc""")
    b(f"""v_mov_b32 v24, 0
    v_mov_b32 v25, 0
    v_mov_b32 v26, 0
    v_mov_b32 v27, 0
    v_lshlrev_b32 v16, 4, v14
    v_add_u32 v16, {KVL}, v16
    ds_write_b128 v16, v[24:27]""")
    b(f"""v_lshrrev_b32 v16, 5, v15
    v_bfe_u32 v17, v15, 2, 2
    v_lshl_add_u32 v28, v16, 3, v17
    v_lshlrev_b32 v13, 1, v16
    v_lshl_add_u32 v13, v17, 2, v13
    v_bfe_u32 v18, v15, 4, 1
    v_and_b32 v19, 3, v15
    v_lshl_add_u32 v29, v18, 2, v19
    v_lshl_add_u32 v16, v16, 2, v17
    v_lshlrev_b32 v16, 7, v16
    v_lshl_add_u32 v16, v29, 3, v16
    v_add_u32 v{aM}, {MOFF}, v16""")
    b(f"""v_mul_u32_u24 v16, 176, v13
    v_add_u32 v16, {KVB}, v16
    v_lshl_add_u32 v{aT0}, v29, 3, v16
    v_and_b32 v17, 1, v29
    v_mul_u32_u24 v17, 48, v17
    v_lshrrev_b32 v18, 1, v29
    v_lshl_add_u32 v17, v18, 3, v17
    v_add3_u32 v{aT2}, v16, v17, 64
    v_add_u32 v{aT2}, 16, v{aT2}
    v_mov_b32 v17, 72
    v_mov_b32 v18, 120
    v_cmp_eq_u32 vcc, 2, v29
    v_cndmask_b32 v17, v17, v18, vcc
    v_mov_b32 v18, 168
    v_cmp_eq_u32 vcc, 3, v29
    v_cndmask_b32 v17, v17, v18, vcc
    v_add_u32 v{aT3}, v16, v17
    v_mul_u32_u24 v16, 80, v13
    v_lshl_add_u32 v{aT1}, v29, 3, v16
    v_add_u32 v{aT4}, 72, v16""")
    for q in (aT0, aT2, aT3): b(f"v_add_u32 v{q+1}, {2*KVR}, v{q}")
    touch_addr(b, aTWO, 9, 1152, 162)
    setup1 = [x.text for x in b.l]
    b = A("S")
    for i, dst in ((0, 3), (1, 4)):
        b(f"v_add_u32 v16, {64*i}, v15")
        divu(b, 17, 16, 5)
        b(f"""v_mul_u32_u24 v18, 5, v17
        v_sub_u32 v18, v16, v18
        v_and_b32 v19, 3, v17
        v_lshrrev_b32 v17, 2, v17
        v_lshl_add_u32 v17, v19, 2, v17
        v_mul_u32_u24 v17, 3456, v17
        v_lshl_add_u32 v17, v18, 4, v17
        v_add_u32 v{dst}, {2048 - 1024*i}, v17
        v_cmp_eq_u32 vcc, 4, v18
        v_cndmask_b32_e64 v16, 0, 8, vcc
        v_sub_u32 v{dst}, v{dst}, v16""")
    b(f"""v_and_b32 v16, 31, v15
    v_mul_u32_u24 v16, 144, v16
    v_lshrrev_b32 v17, 5, v15
    v_mul_u32_u24 v17, 4608, v17
    v_add3_u32 v{aZW}, v16, v17, s34
    s_lshr_b32 s38, s30, 1
    s_mul_i32 s38, s38, 4608
    s_add_u32 s38, s38, {KVB}
    s_and_b32 s39, s30, 1
    s_mul_i32 s39, s39, 40
    v_mul_u32_u24 v16, 144, v28
    v_lshl_add_u32 v16, v29, 3, v16
    v_add_u32 v{aZB}, s38, v16
    v_add_u32 v{aZA}, s39, v{aZB}
    v_add_u32 v{aZB}, 80, v{aZB}
    v_add_u32 v{aZA+1}, {2*KVR}, v{aZA}
    v_add_u32 v{aZB+1}, {2*KVR}, v{aZB}""")
    b(f"""v_lshrrev_b32 v16, 5, v15
    v_mul_u32_u24 v16, 12, v16
    v_sub_u32 v16, v15, v16
    v_lshlrev_b32 v{aP4}, 4, v16
    v_and_b32 v16, 31, v15
    v_lshlrev_b32 v{aP1}, 2, v16
    v_lshlrev_b32 v6, 2, v15""")
    b(f"""v_bfe_u32 v16, v15, 2, 1
    v_lshrrev_b32 v17, 5, v15
    v_bfe_u32 v18, v15, 3, 2
    v_and_b32 v19, 3, v15
    v_lshl_add_u32 v20, v18, 2, v19
    v_mul_u32_u24 v20, 80, v20
    v_mul_u32_u24 v21, 1536, v17
    v_add_u32 v20, v20, v21
    v_add_u32 v20, {KVL}, v20
    v_mov_b32 v22, {ZERO}
    v_cmp_eq_u32 vcc, v16, v17
    v_cndmask_b32 v{aN0}, v22, v20, vcc
    v_add_u32 v20, 1280, v20
    v_cndmask_b32 v{aN1}, v22, v20, vcc
    v_cmp_eq_u32 vcc, 0, v18
    v_cndmask_b32 v{aN1}, v22, v{aN1}, vcc
    v_cmp_gt_u32 vcc, 3, v19
    v_cndmask_b32 v{aN1}, v22, v{aN1}, vcc
    s_lshr_b32 s38, s30, 1
    s_mul_i32 s38, s38, 1536
    s_add_u32 s38, s38, {KVL}
    s_and_b32 s39, s30, 1
    s_lshl_b32 s33, s39, 5
    s_add_u32 s33, s33, s38
    s_lshl_b32 s39, s39, 2
    s_add_u32 s39, s39, s38
    v_and_b32 v16, 15, v15
    v_lshrrev_b32 v17, 4, v15
    v_mul_u32_u24 v18, {4*PB}, v17
    v_lshl_add_u32 v{aPL}, v16, 4, v18
    v_and_b32 v20, 1, v17
    v_lshrrev_b32 v17, 1, v17
    v_lshl_add_u32 v18, v17, 4, v16
    v_mov_b32 v22, {STX}
    v_cmp_lt_u32 vcc, 19, v18
    v_cndmask_b32_e64 v19, 0, 20, vcc
    v_cndmask_b32_e64 v21, 0, 16, vcc
    v_sub_u32 v19, v18, v19
    v_mul_u32_u24 v23, 80, v19
    v_lshl_add_u32 v21, v20, 3, v21
    v_add3_u32 v23, v23, v21, s33
    v_cmp_gt_u32 vcc, 19, v19
    v_cndmask_b32 v{aKA}, v22, v23, vcc
    v_add_u32 v19, 12, v16
    v_mul_u32_u24 v23, 80, v19
    v_lshlrev_b32 v21, 3, v20
    v_add3_u32 v23, v23, v21, s33
    v_add_u32 v23, 16, v23
    v_cmp_gt_u32 vcc, 19, v19
    v_cndmask_b32 v23, v22, v23, vcc
    v_cmp_eq_u32 vcc, 0, v17
    v_cndmask_b32 v{aKB}, v22, v23, vcc
    v_subrev_u32 v19, 8, v16
    v_lshlrev_b32 v19, 2, v19
    v_lshl_add_u32 v19, v20, 1, v19
    v_lshl_add_u32 v19, v17, 8, v19
    v_mul_u32_u24 v23, 80, v19
    v_add3_u32 v23, v23, 64, s39
    v_cmp_gt_u32 vcc, 19, v19
    v_cndmask_b32 v{aKX}, v22, v23, vcc
    v_add_u32 v23, 80, v23
    v_cmp_gt_u32 vcc, 18, v19
    v_cndmask_b32 v{aKX+1}, v22, v23, vcc""")
    b("v_mov_b32 v22, 0x3f80\nv_mov_b32 v23, 0x3f800000")
    for hi in range(2):
        for j in range(4):
            b(f"""v_cmp_eq_u32 vcc, {8*hi+2*j}, v16
            v_cndmask_b32 v24, 0, v22, vcc
            v_cmp_eq_u32 vcc, {8*hi+2*j+1}, v16
            v_cndmask_b32 v24, v24, v23, vcc
            v_accvgpr_write_b32 a{224+4*hi+j}, v24""")
    touch_addr(b, aTGU, 9, 9216, 54 * opt("tg", 1))
    b(f"""s_mov_b32 s48, {LOG2E}
    s_mov_b32 s49, {LOG2E}
    s_mov_b32 s54, 0xfffff
    s_mov_b32 s55, 0xfffff
    s_lshl_b32 s38, s31, 6
    s_add_u32 s38, s38, s30
    s_mul_i32 s52, s38, {PB}
    s_add_u32 s52, s52, {KVP}""")
    setup2 = [x.text for x in b.l]
    for x in setup1: a(x)
    a.wait(v="xs"); a("s_barrier")
    signal(a, "s53", check_init=aINI)
    st("sig0")
    for j in range(NK1, NK2): [em(x) for x in kvdma(j)]
    setup2 = [x.replace("s33", "s88").replace("s38", "s89").replace("s39", "s90") for x in setup2]
    NS = opt("ns", 60)
    for x in setup2[:NS]: a(x)
    setup2 = setup2[NS:]
    b = A("S"); p2c_setup(b); setup3 = [x.text for x in b.l]; setup3 = setup3[:-3] + ['\n'.join(setup3[-3:])]
    mq = ["s_mul_i32 s38, s30, 6\ns_mul_i32 s39, s31, 1296"]
    for i in range(6):
        mq += [f"""s_add_u32 s37, s38, {i}
        s_lshl_b32 s96, s37, 8
        s_add_u32 m0, s96, {MOFF}
        s_cmp_lt_u32 s37, 9
        s_cselect_b64 vcc, -1, 0
        v_cndmask_b32 v16, v{aMS0+1}, v{aMS0}, vcc
        s_mul_i32 s96, s37, 72
        s_add_u32 s96, s96, s39
        s_cmp_ge_u32 s37, 18
        s_cselect_b32 s96, 0x100000, s96""", ("buffer_load_dword v16, s[40:43], s96 offen lds", "wphi")]
    a(f"""s_mul_i32 s36, s35, 36864
    s_add_u32 s36, s36, {XFRAG}
    s_add_u32 s33, s36, 36864
    s_lshl_b32 s37, s99, 12
    s_add_u32 s36, s36, s37""")
    if "two" in opts:
        a(f"s_mul_i32 s37, s28, {18*1152}")
        a(f"buffer_load_dword a208, v{aTWO}, s[44:47], s37 offen", vtag="touch")
    st("pre")
    poll(a, "s53", 16)
    st("sync0")
    def xload(g):
        r = [] if g == 0 else ["s_add_u32 s36, s36, 4096\ns_cmp_ge_u32 s36, s33\ns_cselect_b32 s37, 36864, 0\ns_sub_u32 s36, s36, s37"]
        return r + [(f"buffer_load_dwordx4 {vr(X(4*g+q),4,'a')}, v5, s[20:23], s36 offen offset:{q*1024} sc1", ("X", 4 * g + q)) for q in range(4)]
    NX0 = opt("nx", 2)
    for g in range(NX0): [em(x) for x in xload(g)]
    for x in setup2: a(x)
    for x in mq: em(x)
    mq = []
    WP = lambda tile, stp: 232 + 4 * (3 * tile + stp)
    def mreads():
        for tile in range(2):
            for stp in range(3):
                f = WP(tile, stp)
                a(f"ds_read_b64_tr_b16 a[{f}:{f+1}], v{aM} offset:{stp*2048 + tile*64}\nds_read_b64_tr_b16 a[{f+2}:{f+3}], v{aM} offset:{stp*2048 + tile*64 + 1024}")
    AF = lambda i: 4 * (i % 8)
    def reads(i, lst):
        ks, T, ad, sz = lst[i]
        w, j = ks % 4, ks // 4
        f = AF(i)
        if sz == 176: o = (w % 2) * KVR + j * KVS; ad += w // 2
        else: o = w * QR + j * QS
        return [f"ds_read_b64_tr_b16 a[{f}:{f+1}], v{ad} offset:{o}", f"ds_read_b64_tr_b16 a[{f+2}:{f+3}], v{ad} offset:{o+sz}"]
    D = 6
    def gemm(lst, bars, memq, mper=1, hook=None, mstart=0, valq=()):
        valq = list(valq)
        N = len(lst); per = N // 36
        def flush(pred):
            while any(isinstance(x, tuple) and pred(x[1]) for x in memq): em(memq.pop(0))
        def maybe_bar(i):
            if i < N and i % (4 * per) == 0 and (i // (4 * per)) in bars:
                lim = bars[i // (4 * per)]
                pred = lambda t: (isinstance(t, tuple) and t[0] == "w" and t[1] <= lim) or (t == "wphi" and lim == 8)
                flush(pred); a.wait(v=pred); a("s_barrier")
        for i in range(D):
            maybe_bar(i)
            for r in reads(i, lst): a(r, ltag=("A", i))
        for i in range(N):
            ks, T, ad, sz = lst[i]
            flush(lambda t: t == ("X", ks))
            a.wait(v=("X", ks), l=lambda t: isinstance(t, tuple) and t[0] == "A" and t[1] <= i)
            f = AF(i)
            a(f"v_mfma_f32_32x32x16_bf16 {vr(T,16)}, a[{f}:{f+3}], {vr(X(ks),4,'a')}, {'0' if ks == 0 else vr(T,16)}")
            if i % 2 == 1: a.wait(l=lambda t: isinstance(t, tuple) and t[0] == "A" and t[1] <= i + 2)
            if i + D < N:
                maybe_bar(i + D)
                for r in reads(i + D, lst): a(r, ltag=("A", i + D))
            if hook and i in hook: hook[i]()
            if memq and i % mper == 0 and i >= mstart:
                while memq and not isinstance(memq[0], tuple): em(memq.pop(0))
                if memq: em(memq.pop(0))
            for _ in range(2):
                if valq: a(valq.pop(0))
        for x in memq: em(x)
        for x in valq: a(x)
    memq = []
    kvleft = list(range(NK2, 9))
    for g in range(NX0, 9):
        memq += xload(g)
        if kvleft and g >= opt("kx", 2): memq += kvdma(kvleft.pop(0))
    for j in kvleft: memq += kvdma(j)
    memq += mq
    qq = []
    for j in range(9):
        qq.append([f"s_mul_i32 s37, s30, {QR}\ns_add_u32 m0, s37, {j*QS}", f"s_add_u32 s51, s51, {64*3456}\ns_cmp_ge_u32 s51, s100\ns_cselect_b32 s37, {576*3456}, 0\ns_sub_u32 s51, s51, s37" if j else "s_nop 0",
                 ("buffer_load_dwordx4 v3, s[16:19], s51 offen lds", "wq"), "s_mov_b64 exec, 0xffff",
                 ("buffer_load_dwordx4 v4, s[16:19], s51 offen offset:1024 lds\ns_mov_b64 exec, -1", "wq")])
    NQ = opt("nq", 2)
    for g in qq[:NQ]: memq += g
    qq = qq[NQ:]
    fr = [(ks, T, ad, 176) for ks in range(36) for (T, ad) in ((T0, aT0), (T3, aT3), (T2, aT2))]
    bars = {j: j for j in range(NK2, 9)}; bars.update({0: min(2, NK2 - 1), 3: NK2 - 1} if NK2 > 3 else {0: NK2 - 1}); bars[8] = 8
    gemm(fr, bars, memq, mper=opt("mp", 2), hook={100: mreads}, valq=setup3)
    st("gemm")
    if "fine" in opts: st.dump("s[20:23]", "s30", 16, 17); st.kidx += 1; st.groups.append([])
    def touch(which):
        if which == 1 and "two" not in opts:
            a(f"s_mul_i32 s37, s28, {18*1152}\ns_add_u32 s37, s37, 2048")
            a(f"buffer_load_dword a208, v{aTWO}, s[44:47], s37 offen", vtag="touch")
        tg = opt("tg", 1)
        a(f"s_mul_i32 s37, s28, {6*tg*9216}\ns_mul_i32 s38, s29, 1152\ns_add_u32 s37, s37, s38")
        if which > 1: a(f"s_add_u32 s37, s37, {(which-1)*192*tg*9216}")
        for m in range(2):
            srd(a, 92, 4 + 2 * m, 5 + 2 * m, 576 * 9216)
            a(f"buffer_load_dword a{209+m}, v{aTGU}, s[92:95], s37 offen", vtag="touch")
    for q in range(8): a(f"v_cvt_pk_bf16_f32 v{T0+q}, v{T0+2*q}, v{T0+2*q+1}")
    for q in range(4): a(f"v_cvt_pk_bf16_f32 v{56+q}, v{T3+2*q}, v{T3+2*q+1}")
    def feat(B):
        for stp in range(3):
            for tile, T in ((1, PX), (0, T1)):
                f = WP(tile, stp)
                a(f"v_mfma_f32_32x32x16_bf16 {vr(T,16)}, a[{f}:{f+3}], {vr(B[stp],4)}, {'0' if stp == 0 else vr(T,16)}")
    feat((48, 52, 56))
    for g in qq[:2]: [em(x) for x in g]
    qq = qq[2:]
    for q in range(8): a(f"v_cvt_pk_bf16_f32 v{160+q}, v{T2+2*q}, v{T2+2*q+1}")
    a("v_mov_b32 v168, v59\nv_mov_b32 v169, 0x3f80\ns_barrier")
    a(f"ds_write_b128 v{aZW}, v[160:163] offset:80\nds_write_b128 v{aZW}, v[164:167] offset:96\nds_write_b64 v{aZW}, v[168:169] offset:112")
    a(f"v_mov_b32 v94, v{PX}\nv_mov_b32 v95, v{PX+1}")
    b = A("S"); softmax(b, 94, 72); sm = [x.text for x in b.l]
    per = len(sm) // (len(qq) + 1)
    for g in qq:
        [em(x) for x in g]
        for x in sm[:per]: a(x)
        sm = sm[per:]
    for x in sm: a(x)
    for blk, S in ((140, 94), (150, 72)):
        for q in range(8): a(f"v_cvt_pk_bf16_f32 v{blk+q}, v{S+2+2*q}, v{S+3+2*q}")
        a(f"v_cvt_pk_bf16_f32 v{blk+8}, v{S}, v{S+1}")
        if blk == 140: a(f"ds_write_b128 v{aZW}, v[140:143]\nds_write_b128 v{aZW}, v[144:147] offset:16")
    for q in range(2, 5): a(f"ds_write_b128 v{aZW}, {vr(140+4*q,4)} offset:{16*q}")
    a(f"""s_mul_i32 s37, s32, {4*PB}
    s_add_u32 s37, s37, s52
    s_lshl_b32 s53, s31, 8
    s_add_u32 s53, s53, {C1}""")
    a("s_waitcnt lgkmcnt(0)\ns_barrier")
    st("smk")
    for stp in range(8):
        w = stp // 2; o = (w % 2) * KVR + (stp % 2) * 16 * 144
        va, vb = aZA + w // 2, aZB + w // 2
        f = 8 * stp
        a(f"ds_read_b64_tr_b16 a[{f}:{f+1}], v{va} offset:{o}\nds_read_b64_tr_b16 a[{f+2}:{f+3}], v{va} offset:{o+576}", ltag=("Z", stp))
        a(f"ds_read_b64_tr_b16 a[{f+4}:{f+5}], v{vb} offset:{o}\nds_read_b64_tr_b16 a[{f+6}:{f+7}], v{vb} offset:{o+576}", ltag=("Z", stp))
        if stp >= 2:
            s2 = stp - 2; f = 8 * s2
            a.wait(l=("Z", s2))
            a(f"v_mfma_f32_32x32x16_bf16 v[64:79], a[{f}:{f+3}], a[{f+4}:{f+7}], {'0' if s2 == 0 else 'v[64:79]'}")
    for s2 in (6, 7):
        f = 8 * s2
        a.wait(l=("Z", s2))
        a(f"v_mfma_f32_32x32x16_bf16 v[64:79], a[{f}:{f+3}], a[{f+4}:{f+7}], v[64:79]")
    def kvstore():
        for q in range(5): a(f"v_cvt_pk_bf16_f32 v{16+q}, v{64+2*q}, v{65+2*q}")
        a(f"""s_mov_b64 exec, s[54:55]
        buffer_store_dwordx4 v[16:19], v{aP4}, s[20:23], s37 offen sc1
        s_mov_b32 exec_lo, -1
        s_mov_b32 exec_hi, 0
        buffer_store_dword v20, v{aP1}, s[20:23], s37 offen offset:640 sc1
        s_mov_b64 exec, -1""", vtag="kvs")
        st("kvmm")
    def sig1():
        a.wait(v="kvs"); a("s_barrier")
        signal(a, "s53")
        st("kvst")
        if "tw2" in opts: touch(1)
        if "tw1" in opts: touch(2)
    HK = opt("hk", 12)
    kvstore()
    a.wait(v="wq"); a("s_barrier")
    a("s_cmp_ge_u32 s28, 24\ns_cselect_b32 s46, 0, s46")
    wq, wq0 = p2c_wodma(a)
    gemm([(ks, T, ad, 80) for ks in range(36) for (T, ad) in ((T1, aT1), (T3, aT4))], {}, wq, mper=opt("wp", 2), hook={HK: sig1}, mstart=opt("wst", HK + 1))
    for q in range(8): a(f"v_cvt_pk_bf16_f32 v{48+q}, v{T1+2*q}, v{T1+2*q+1}")
    for q in range(4): a(f"v_cvt_pk_bf16_f32 v{56+q}, v{T3+2*q}, v{T3+2*q+1}")
    feat((48, 52, 56))
    st("qgemm")
    poll(a, "s53", 16)
    st("sync1")
    for i in range(4):
        if i: a(f"s_add_u32 s52, s52, {16*PB}")
        for u in range(3):
            r = 64 + 12 * i + 4 * u
            a(f"buffer_load_dwordx4 a[{r}:{r+3}], v{aPL}, s[20:23], s52 offen offset:{256*u} sc1", vtag=("kv", i))
    a(f"v_mov_b32 v94, v{PX}\nv_mov_b32 v95, v{PX+1}")
    for x in wq0: em(x)
    softmax(a, 94, 72)
    for i in range(4):
        a.wait(v=("kv", i))
        for u in range(3):
            r = 64 + 12 * i + 4 * u; T = 32 if u < 2 else 36; S = 228 if u == 1 else 224
            a(f"v_mfma_f32_16x16x32_bf16 v[{T}:{T+3}], a[{S}:{S+3}], a[{r}:{r+3}], {'0' if (i == 0 and u != 1) else f'v[{T}:{T+3}]'}")
    for sgn, S in ((0, 94), (1, 72)):
        for h in range(2):
            d = 48 + 8 * sgn + 4 * h
            for q in range(4):
                f = 4 * h + 2 * (q % 2) + 8 * (q // 2)
                a(f"v_cvt_pk_bf16_f32 v{d+q}, v{S+2+f}, v{S+3+f}")
        a(f"v_cvt_pk_bf16_f32 v{64+sgn}, v{S}, v{S+1}")
    a("v_mov_b32 v66, 0\nv_mov_b32 v67, 0")
    st("smq")
    a(f"""v_cvt_pk_bf16_f32 v16, v32, v33
    v_cvt_pk_bf16_f32 v17, v34, v35
    v_cvt_pk_bf16_f32 v18, v36, v37
    v_cvt_pk_bf16_f32 v19, v38, v39
    ds_write_b64 v{aKA}, v[16:17]
    ds_write_b64 v{aKB}, v[18:19]
    ds_write_b32 v{aKX}, v18
    ds_write_b32 v{aKX+1}, v19
    s_waitcnt lgkmcnt(0)
    s_barrier""")
    st("kvred")
    for stp in range(5):
        for tile in range(2):
            f = 8 * stp + 4 * tile
            a(f"ds_read_b128 a[{f}:{f+3}], v{aN0+tile} offset:{16*stp}", ltag=("K", stp))
    a(f"""s_mul_i32 s36, s35, 36864
    s_add_u32 s36, s36, {OFRAG}
    s_lshl_b32 s37, s31, 7
    s_add_u32 s37, s37, s36
    s_add_u32 s37, s37, 16384
    s_lshl_b32 s38, s31, 10
    s_add_u32 s36, s36, s38
    s_lshl_b32 s53, s32, 8
    s_add_u32 s53, s53, {C2}
    v_bfe_u32 v26, v15, 4, 1
    v_mul_u32_u24 v26, 18432, v26
    v_lshrrev_b32 v27, 5, v15
    v_and_b32 v28, 15, v15
    v_lshl_add_u32 v29, v27, 9, v26
    v_lshl_add_u32 v29, v28, 4, v29
    v_lshl_add_u32 v30, v27, 6, v26
    v_lshl_add_u32 v30, v28, 2, v30""")
    for stp in range(5):
        a.wait(l=("K", stp))
        for tile, T in ((1, 96), (0, 80)):
            f = 8 * stp + 4 * tile
            a(f"v_mfma_f32_32x32x16_bf16 {vr(T,16)}, a[{f}:{f+3}], {vr(48+4*stp,4)}, {'0' if stp == 0 else vr(T,16)}")
    a("v_add_f32 v98, 0x358637bd, v98\nv_rcp_f32 v98, v98")
    for q in range(0, 18, 2):
        a(f"v_pk_mul_f32 v[{80+q}:{81+q}], v[{80+q}:{81+q}], v[98:99] op_sel_hi:[1,0]")
    for q in range(9): a(f"v_cvt_pk_bf16_f32 v{16+q}, v{80+2*q}, v{81+2*q}")
    a(f"""buffer_store_dwordx4 v[16:19], v29, s[20:23], s36 offen sc1
    buffer_store_dwordx4 v[20:23], v29, s[20:23], s36 offen offset:256 sc1
    buffer_store_dword v24, v30, s[20:23], s37 offen sc1
    s_waitcnt vmcnt(0)
    s_barrier""")
    signal(a, "s53")
    st("ost")
    st.dump("s[20:23]", "s30", 16, 17)
    def front(setup, dma0, zero):
        p2c_xload(a)
        setup(); dma0(0)
        if "noloop" not in opts: zero(0)
        a("s_cmp_ge_u32 s28, 24\ns_cbranch_scc1 K_idle")
        sv = list(a.vm)
        p2c_main(a, st, C2, C3, mid=lambda: dma0(1))
        st.dump("s[20:23]", "s30", 21, 22)
        a("s_branch K_ffn\nK_idle:")
        a.vm = sv
        dma0(1)
        if "tw3" in opts: touch3(a, opt("t3f", 64), opt("t3r", 24))
        a("K_ffn:")
        a.vm = ["unknown"] * 8
    a.spins = []
    ffn17.ffn_body(a, st, opts, C3, C4, front)
    st.dump("s[20:23]", "s30", 16, 17)
    a("s_endpgm")
    for x in a.spins: a(x)
    a("K_end:\ns_endpgm")
    return a, st

if __name__ == "__main__":
    out = sys.argv[1]; opts = sys.argv[2:]
    a, st = gen("cyc" if "cyc" in opts else "dbg" if "dbg" in opts else "diag" in opts, opts)
    t = a.text()
    NAME = "sequential_preLN__linear_kernel_hedgehog__glu_gated_reglu__prompt_kernel"
    hdr = "".join(l for l in open("sequential_preLN__linear_kernel_hedgehog__glu_gated_reglu__prompt.s.ref") if l.startswith(";") and "@launch" not in l and "Override" not in l and "grid=" not in l)
    s = hdr + "; @launch grid=(256,1,1) block=(256,1,1) lds=163840\n" + '.amdgcn_target "amdgcn-amd-amdhsa--gfx950"\n.text\n' + kernel(NAME, t) + '.section .rodata,"a"\n' + descriptor(NAME, 512, 256)
    open(out, "w").write(s)
    json.dump(st.groups, open(out + ".json", "w"))
    print("nops", a.padded, "instrs", len(a.l), st.groups)
```

```python
import sys, json
from common import *
from pk import divu
import ffn17
from p2c import p2c_wodma, p2c_xload, p2c_main, WOB
from pk2 import touch3

LOG2E = 0x3fb8aa3b
SP = 147456; MOFF = SP; KVL = SP + 6144; ZERO = KVL + 3840; STX = SP + 10240
KVS = 2816; QS = 1280; KVB = 36 * QS; KVR = 9 * KVS; QR = 9 * QS
C1, C2, C3, C4, C0 = FLAGS, FLAGS + 4096, FLAGS + 8192, FLAGS + 12288, FLAGS + 61440
PB = 1024
OOB = 0x7fffff00

def softmax16(a, P, E, vmask):
    for b in range(2):
        p = P[b]
        a(f"v_max3_f32 v{16+b}, v{p}, v{p+1}, v{p+2}\nv_min3_f32 v{18+b}, v{p}, v{p+1}, v{p+2}")
    for i in (3, 5, 7):
        for b in range(2):
            p = P[b]
            a(f"v_max3_f32 v{16+b}, v{16+b}, v{p+i}, v{p+i+1}\nv_min3_f32 v{18+b}, v{18+b}, v{p+i}, v{p+i+1}")
    for b in range(2):
        p = P[b]
        a(f"v_max_f32 v{16+b}, v{16+b}, v{p+9}\nv_min_f32 v{18+b}, v{18+b}, v{p+9}")
    a("""v_permlane16_swap_b32 v16, v17
    v_permlane16_swap_b32 v18, v19
    v_max_f32 v16, v16, v17
    v_min_f32 v18, v18, v19
    v_mul_f32 v20, s48, v16
    v_mul_f32 v24, s48, v18
    v_mov_b32 v22, v20
    v_mov_b32 v26, v24
    v_permlane16_swap_b32 v20, v22
    v_permlane16_swap_b32 v24, v26""")
    for b in range(2):
        for i in range(0, 10, 2):
            p = P[b] + i; e = E[b] + i
            a(f"v_pk_fma_f32 v[{e}:{e+1}], v[{p}:{p+1}], s[48:49], v[{24+2*b}:{25+2*b}] op_sel_hi:[1,0,0] neg_lo:[1,0,0] neg_hi:[1,0,0]")
            a(f"v_pk_fma_f32 v[{p}:{p+1}], v[{p}:{p+1}], s[48:49], v[{20+2*b}:{21+2*b}] op_sel_hi:[1,0,0] neg_lo:[0,0,1] neg_hi:[0,0,1]")
    for b in range(2):
        for i in range(10): a(f"v_exp_f32 v{P[b]+i}, v{P[b]+i}\nv_exp_f32 v{E[b]+i}, v{E[b]+i}")
    sets = [P[0], P[1], E[0], E[1]]
    for s in sets: a(f"v_pk_mul_f32 v[{s+8}:{s+9}], v[{s+8}:{s+9}], v[{vmask}:{vmask+1}] op_sel_hi:[1,0]")
    for k, s in enumerate(sets): a(f"v_pk_add_f32 v[{16+2*k}:{17+2*k}], v[{s}:{s+1}], v[{s+2}:{s+3}]")
    for k, s in enumerate(sets): a(f"v_pk_add_f32 v[{24+2*k}:{25+2*k}], v[{s+4}:{s+5}], v[{s+6}:{s+7}]")
    for k, s in enumerate(sets): a(f"v_pk_add_f32 v[{16+2*k}:{17+2*k}], v[{16+2*k}:{17+2*k}], v[{s+8}:{s+9}]")
    for k in range(4): a(f"v_pk_add_f32 v[{16+2*k}:{17+2*k}], v[{16+2*k}:{17+2*k}], v[{24+2*k}:{25+2*k}]")
    for k in range(4): a(f"v_add_f32 v{16+2*k}, v{16+2*k}, v{17+2*k}")
    a("""v_permlane16_swap_b32 v16, v18
    v_permlane16_swap_b32 v20, v22
    v_add_f32 v16, v16, v18
    v_add_f32 v20, v20, v22
    v_rcp_f32 v16, v16
    v_rcp_f32 v20, v20
    s_nop 0
    v_mov_b32 v18, v16
    v_mov_b32 v22, v20
    v_permlane16_swap_b32 v16, v18
    v_permlane16_swap_b32 v20, v22""")
    for k, s in enumerate(sets):
        for i in range(0, 10, 2): a(f"v_pk_mul_f32 v[{s+i}:{s+i+1}], v[{s+i}:{s+i+1}], v[{16+2*k}:{17+2*k}] op_sel_hi:[1,0]")

def gen(diag, opts):
    a = A("K"); st = Stamps(a, diag, 0); tb = Table("K_tab")
    opt = lambda k, d: next((int(o[len(k):]) for o in reversed(opts) if re.fullmatch(k + r'\d+', o)), d)
    X = lambda k: 64 + 4 * k
    K0, K1, V0, V1, EE = 48, 56, 64, 72, 80
    B0, B1 = 32, 40
    P = (88, 100); E = (140, 152); Z = (176, 188); VP = 200
    a("s_cmp_ge_u32 s2, 256\ns_cbranch_scc1 K_end")
    a("""s_load_dwordx4 s[4:7], s[0:1], 0
    s_load_dwordx4 s[8:11], s[0:1], 16
    s_load_dwordx4 s[88:91], s[0:1], 72""")
    st("entry")
    code_prefetch(a, "K_start", "K_tab_end", 16, "a[0:2]", wide=True)
    a("K_start:")
    a("""v_lshrrev_b32 v16, 6, v0
    v_and_b32 v15, 63, v0
    v_mov_b32 v14, v0
    v_readfirstlane_b32 s30, v16
    s_and_b32 s31, s2, 3
    s_lshl_b32 s31, s31, 2
    s_bfe_u32 s33, s2, 0x20003
    s_add_u32 s32, s31, s33
    s_bfe_u32 s31, s2, 0x10002
    s_lshl_b32 s31, s31, 3
    s_lshr_b32 s33, s2, 5
    s_add_u32 s31, s31, s33
    s_lshr_b32 s28, s2, 3
    s_and_b32 s29, s2, 7""")
    a(f"""v_and_b32 v16, 7, v15
    v_lshrrev_b32 v17, 3, v15
    v_mul_u32_u24 v13, 1152, v16
    v_lshl_add_u32 v13, v17, 4, v13
    v_lshlrev_b32 v5, 4, v15
    s_lshl_b32 s36, s32, 4
    s_add_u32 s36, s36, s31
    s_mul_i32 s36, s36, {8*1152}
    s_lshl_b32 s37, s30, 7
    s_add_u32 s36, s36, s37
    s_cmp_eq_u32 s30, 0
    s_cselect_b32 s37, 0, {OOB}
    s_add_u32 s37, s37, s36
    s_mul_i32 s34, s30, {KVR}
    s_add_u32 s34, s34, {KVB}
    s_lshl_b32 s35, s32, 2
    s_add_u32 s35, s35, s30""")
    a("s_waitcnt lgkmcnt(0)")
    srd(a, 12, 4, 5, 2048 * 1152)
    srd(a, 20, 90, 91, WS_BYTES)
    sk = a.lab("noinit"); saved = list(a.vm)
    a(f"""s_lshl_b32 s33, s2, 2
    s_add_u32 s33, s33, s30
    s_cmp_lg_u32 s33, 515
    s_cbranch_scc1 {sk}
    v_lshlrev_b32 v16, 8, v15
    v_mov_b32 v17, 0
    s_mov_b32 s38, {FLAGS}""")
    for q in range(4):
        a("buffer_store_dword v17, v16, s[20:23], s38 offen sc1\ns_add_u32 s38, s38, 16384")
    a(f"{sk}:")
    a.vm = saved
    a("""buffer_load_dwordx4 v[160:163], v13, s[12:15], s36 offen
    buffer_load_dwordx4 v[164:167], v13, s[12:15], s36 offen offset:512
    buffer_load_dwordx4 v[168:171], v13, s[12:15], s37 offen offset:1024""", vtag="x8")
    srd(a, 24, 88, 89, 256)
    if "fine" not in opts: st("start")
    for i in range(3):
        a(f"v_add_u32 v16, {64*i}, v15")
        divu(a, 17, 16, 11)
        a(f"""v_mul_u32_u24 v18, 11, v17
        v_sub_u32 v18, v16, v18
        v_and_b32 v19, 8, v17
        v_and_b32 v20, 1, v17
        v_lshl_add_u32 v19, v20, 2, v19
        v_bfe_u32 v17, v17, 1, 2
        v_add_u32 v17, v17, v19
        v_mul_u32_u24 v17, 3456, v17
        v_lshl_add_u32 v17, v18, 4, v17
        v_mov_b32 v19, {1152 + 2048 - i*1024}
        v_mov_b32 v16, {2304 - 80 + 2048 - i*1024}
        v_cmp_lt_u32 vcc, 4, v18
        v_mov_b32 v20, {2304 + 36 - 128 + 2048 - i*1024}
        v_cmp_lt_u32 s[38:39], 7, v18
        v_cndmask_b32 v19, v19, v16, vcc
        v_cmp_eq_u32 vcc, 4, v18
        v_cndmask_b32_e64 v19, v19, v20, s[38:39]
        v_cmp_eq_u32 s[38:39], 7, v18
        v_cndmask_b32_e64 v16, 0, 8, vcc
        v_cmp_eq_u32 vcc, 10, v18
        v_cndmask_b32_e64 v16, v16, 12, s[38:39]
        v_add_u32 v{i}, v17, v19
        v_cndmask_b32_e64 v16, v16, 12, vcc
        v_sub_u32 v{i}, v{i}, v16""")
    a(f"""s_sub_u32 s16, s6, 2048
    s_subb_u32 s17, s7, 0
    s_mov_b32 s18, {576*3456+2048}
    s_mov_b32 s19, 0x20000""")
    if "twq" in opts:
        nseg = opt("tseg", 2)
        for q in range(1 if nseg == 2 else 2):
            a(f"""v_add_u32 v18, {256*q}, v14
            v_mul_u32_u24 v16, {65536//(5*nseg)+1}, v18
            v_lshrrev_b32 v16, 16, v16
            v_mul_u32_u24 v17, {5*nseg}, v16
            v_sub_u32 v17, v18, v17
            v_mul_u32_u24 v19, 13108, v17
            v_lshrrev_b32 v19, 16, v19
            v_lshl_add_u32 v17, v19, 2, v17
            v_mul_u32_u24 v16, 3456, v16
            v_lshl_add_u32 v16, v17, 7, v16
            v_mov_b32 v17, {OOB}
            v_cmp_gt_u32 vcc, {18*5*nseg}, v18
            s_mul_i32 s37, s28, {18*3456}
            s_lshr_b32 s38, s29, 2
            s_lshl_b32 s38, s38, 9
            s_add_u32 s37, s37, s38
            s_add_u32 s37, s37, {2048 + (1152 if nseg == 2 else 0)}
            v_cndmask_b32 v16, v17, v16, vcc""")
            a(f"buffer_load_dword a{4+q}, v16, s[16:19], s37 offen", vtag="touch")
    srd(a, 40, 8, 9, 32 * 648)
    if "mearly" in opts:
        a(f"""v_bfe_u32 v16, v15, 3, 2
        v_bfe_u32 v17, v15, 1, 1
        v_and_b32 v18, 1, v15
        v_mul_u32_u24 v19, 5, v17
        v_lshl_add_u32 v19, v16, 1, v19
        v_add_u32 v19, v19, v18
        v_lshlrev_b32 v20, 2, v17
        v_add_u32 v20, 4, v20
        v_cmp_eq_u32 vcc, 2, v16
        v_lshl_add_u32 v16, v16, 1, v18
        v_lshrrev_b32 v21, 5, v15
        v_cndmask_b32 v19, v19, v20, vcc
        v_mul_u32_u24 v21, 9, v21
        v_add_lshl_u32 v19, v19, v21, 2
        v_mov_b32 v22, {OOB}
        v_cmp_gt_u32 vcc, 5, v16
        v_bfe_u32 v17, v15, 2, 1
        s_mul_i32 s38, s30, 6
        v_cndmask_b32 v19, v22, v19, vcc
        v_cmp_eq_u32 vcc, 0, v17
        s_mul_i32 s39, s31, 1296
        s_nop 0
        v_cndmask_b32 v20, v22, v19, vcc
        v_cndmask_b32 v21, v19, v22, vcc""")
        for i in range(6):
            a(f"""s_add_u32 s37, s38, {i}
            s_lshl_b32 s96, s37, 8
            s_add_u32 m0, s96, {MOFF}
            s_cmp_lt_u32 s37, 9
            s_cselect_b64 vcc, -1, 0
            s_mul_i32 s96, s37, 72
            s_add_u32 s96, s96, s39
            v_cndmask_b32 v16, v21, v20, vcc
            s_cmp_ge_u32 s37, 18
            s_cselect_b32 s96, 0x100000, s96""")
            a("buffer_load_dword v16, s[40:43], s96 offen lds", vtag="wphi")
    a(f"""s_sub_u32 s44, s10, 2048
    s_subb_u32 s45, s11, 0
    s_mov_b32 s46, {576*1152+2048}
    s_mov_b32 s47, 0x20000""")
    a("s_load_dwordx8 s[4:11], s[0:1], 40")
    tb.srd(a, 88)
    a("""s_and_b32 s37, s32, 3
    s_lshl_b32 s37, s37, 1
    s_and_b32 s99, s31, 7
    s_add_u32 s99, s99, s37
    s_cmp_ge_u32 s99, 9
    s_cselect_b32 s37, 9, 0
    s_sub_u32 s99, s99, s37""")
    a(f"""s_mul_i32 s101, s30, {16*3456}
    s_mul_i32 s37, s31, 72
    s_add_u32 s101, s101, s37
    s_add_u32 s100, s101, {576*3456}
    s_mul_i32 s37, s99, {64*3456}
    s_add_u32 s101, s101, s37
    s_mov_b32 s51, s101""")
    def em(x):
        if isinstance(x, tuple) and x[1] == "qwait": a.wait(v="tab2")
        elif isinstance(x, tuple): a(x[0], vtag=x[1])
        else: a(x)
    def kvdma(j):
        r = [f"s_add_u32 m0, s34, {j*KVS}", f"s_add_u32 s101, s101, {64*3456}\ns_cmp_ge_u32 s101, s100\ns_cselect_b32 s37, {576*3456}, 0\ns_sub_u32 s101, s101, s37" if j else "s_nop 0"]
        r += [(f"buffer_load_dwordx4 v{i}, s[16:19], s101 offen offset:{i*1024} lds", ("w", j)) for i in range(2)]
        r += ["s_mov_b32 exec_hi, 0xffff", (f"buffer_load_dwordx4 v2, s[16:19], s101 offen offset:2048 lds\ns_mov_b32 exec_hi, -1", ("w", j))]
        return r
    NK0 = opt("nka", 2); NK2 = opt("nkc", 7)
    if NK0: a("s_barrier")
    for j in range(NK0): [em(x) for x in kvdma(j)]
    a(f"""s_mov_b32 s50, 0x3f803f80
    v_and_b32 v16, 7, v15
    v_lshrrev_b32 v17, 5, v15
    v_lshlrev_b32 v18, 4, v16
    v_lshl_add_u32 v19, v17, 7, v18
    v_lshl_add_u32 v6, v17, 11, v18
    v_bfe_u32 v17, v15, 3, 2
    v_lshl_add_u32 v6, v17, 8, v6
    s_lshl_b32 s37, s30, 2
    s_add_u32 s37, s37, {STX}
    v_add_u32 v19, s37, v19
    v_add_u32 v18, {STX}, v18""")
    a(f"""s_lshr_b32 s36, s31, 2
    s_lshl_b32 s37, s32, 2
    s_add_u32 s36, s36, s37
    s_mul_i32 s36, s36, 36864
    s_bfe_u32 s37, s31, 0x10001
    s_lshl_b32 s37, s37, 10
    s_add_u32 s36, s36, s37
    s_and_b32 s37, s31, 1
    s_lshl_b32 s37, s37, 7
    s_add_u32 s36, s36, s37
    s_lshl_b32 s37, s30, 12
    s_add_u32 s36, s36, s37
    s_add_u32 s36, s36, {XFRAG}
    s_add_u32 s38, s36, 16384
    s_cmp_eq_u32 s30, 0
    s_cselect_b32 s39, 0, {OOB}
    s_add_u32 s39, s39, s38
    s_add_u32 s39, s39, 16384
    s_lshl_b32 s53, s32, 8
    s_add_u32 s53, s53, {C0}""")
    a.wait(v="x8")
    sk = a.lab("noflag"); saved = list(a.vm)
    a(f"""s_cmp_lg_u32 s33, 515
    s_cbranch_scc1 {sk}
    v_mov_b32 v16, 1
    v_mov_b32 v17, 0
    s_mov_b64 exec, 1
    buffer_store_dword v16, v17, s[24:27], 0 offen sc1
    s_mov_b64 exec, -1
    {sk}:""")
    a.vm = saved
    if "fine" not in opts: st("x8")
    for j in range(12):
        c0 = "0" if j < 2 else f"v{24+(j&1)}"; c1 = "0" if j < 2 else f"v{26+(j&1)}"
        a(f"v_dot2_f32_bf16 v{24+(j&1)}, v{160+j}, s50, {c0}\nv_dot2_f32_bf16 v{26+(j&1)}, v{160+j}, v{160+j}, {c1}")
    a("""v_add_f32 v24, v24, v25
    v_add_f32 v26, v26, v27
    v_permlane32_swap_b32 v24, v26
    v_add_f32 v24, v24, v26
    v_mov_b32 v25, v24
    v_permlane16_swap_b32 v24, v25
    v_add_f32 v24, v24, v25
    v_add_f32_dpp v24, v24, v24 row_ror:8 row_mask:0xf bank_mask:0xf
    s_mov_b32 s50, 0xffff0000
    ds_write_b32 v19, v24""")
    for k in range(3):
        for j in range(4): a(f"v_lshlrev_b32_e32 v{176+8*k+2*j}, 16, v{160+4*k+j}\nv_and_b32_e32 v{177+8*k+2*j}, s50, v{160+4*k+j}")
    a("""s_waitcnt lgkmcnt(0)
    s_barrier
    ds_read_b128 v[24:27], v18
    ds_read_b128 v[28:31], v18 offset:128
    s_waitcnt lgkmcnt(0)
    v_pk_add_f32 v[24:25], v[24:25], v[26:27]
    v_pk_add_f32 v[28:29], v[28:29], v[30:31]
    v_add_f32 v24, v24, v25
    v_add_f32 v26, v28, v29
    v_mul_f32 v24, 0x3ae38e39, v24
    v_mul_f32 v26, 0x3ae38e39, v26
    v_fma_f32 v26, -v24, v24, v26
    v_max_f32 v26, 0, v26
    v_add_f32 v26, 0x3727c5ac, v26
    v_rsq_f32 v12, v26
    s_nop 0
    v_mul_f32_e64 v13, -v24, v12""")
    for k, so in ((0, "s36"), (1, "s38"), (2, "s39")):
        b_ = 160 + 4 * k; u = 176 + 8 * k
        for j in range(4): a(f"v_pk_fma_f32 v[{u+2*j}:{u+2*j+1}], v[{u+2*j}:{u+2*j+1}], v[12:13], v[12:13] op_sel:[0,0,1] op_sel_hi:[1,0,1]")
        for j in range(4): a(f"v_cvt_pk_bf16_f32 v{b_+j}, v{u+2*j}, v{u+2*j+1}")
        a(f"buffer_store_dwordx4 {vr(b_,4)}, v6, s[20:23], {so} offen sc1", vtag="xs")
    aINI = 31
    a(f"v_mov_b32 v16, 0\nbuffer_load_dword v{aINI}, v16, s[24:27], 0 offen sc1", vtag="xs")
    st("ln")
    g_ = lambda l: l >> 4
    r_ = lambda l: (l >> 2) & 3
    c_ = lambda l: l & 3
    n_ = lambda l: l & 15
    pos = lambda l: 8 * (g_(l) & 1) + 2 * r_(l)
    row_of = lambda p: 8 * (p >> 3) + 4 * (p & 1) + ((p >> 1) & 3)
    kvb = lambda l: KVB + (g_(l) >> 1) * KVR + pos(l) * 176
    def qsrc(i):
        def f(l):
            p = 64 * i + l; ps, pc = divmod(p, 5)
            return row_of(ps & 15) * 3456 + pc * 16 - (8 if pc == 4 else 0) + 2048 - 1024 * i
        return f
    def msrc(head):
        def f(l):
            u = l & 31; p = u >> 3; gp = (u >> 1) & 3; pair = u & 1; half = gp & 1
            if p > 2 or (p == 2 and pair) or gp >> 1 != head: return OOB
            fp = 5 * half + 2 * p + pair if p < 2 else (4 if half == 0 else 8)
            return ((l >> 5) * 9 + fp) * 4
        return f
    def nrd(p2):
        def f(l):
            i = n_(l); g2 = i >> 2; r = i & 3; gp = g_(l)
            if g2 >> 1 != gp >> 1 or (p2 and r == 3): return ZERO
            d = (16 + r) if p2 else 8 * (g2 & 1) + r
            return KVL + (gp >> 1) * 1920 + d * 96 + (gp & 1) * 48
        return f
    def kwr(tile):
        def f(l):
            gam = 32 * tile + 16 * (g_(l) >> 1) + n_(l); e = g_(l) & 1
            if gam < 40: hf, d = divmod(gam, 20); q = 2 * e + hf
            elif gam < 56: d = 2 * (gam - 40) + e; q = 4
            else: d = 99; q = 0
            if d >= 19: return 0x40000000
            return KVL + d * 96 + (q // 3) * 48 + (q % 3) * 8
        return f
    sel = lambda hi, j: (lambda l: (0x3f80 if n_(l) == 8 * hi + 2 * j else 0) | (0x3f800000 if n_(l) == 8 * hi + 2 * j + 1 else 0))
    def wosrc(i, extra):
        def f(l):
            p = 64 * i + l; row, pc = divmod(p, 12); pc ^= 2 * (row >> 3)
            srow = (row >> 1) * 18 + (row & 1) if extra else row
            return srow * 1152 + pc * 16 + 2048 - 1024 * i
        return f
    word = lambda l: WOB + (8 * g_(l) + r_(l)) * 192 + 8 * c_(l)
    def touch9(stride, n, w):
        return lambda l: ((64 * w + l) // 9) * stride + ((64 * w + l) % 9) * 128 if 64 * w + l < n else OOB
    aT, aTE, aQ, aQE, aM = 112, 114, 116, 117, 118
    aMS0 = 120; aZW, aZV, aZX = 122, 123, 124; aZA, aZB = 125, 127
    aP4, aP2, aPL, aPL3 = 129, 130, 131, 132; aN0, aN2, aKA, aKB = 133, 134, 135, 136; aMK, aOX = 138, 137
    zrd = lambda l: KVB + (8 * (l >> 5) + r_(l)) * 144 + (4 * ((l >> 4) & 1) + c_(l)) * 8
    T = "tab"
    tl = [tb.load(112, [lambda l: kvb(l) + 8 * c_(l), lambda l: kvb(l) + 8 * c_(l) + 2 * KVR,
                        lambda l: kvb(l) + (72, 120, 168, 72)[c_(l)], lambda l: kvb(l) + (72, 120, 168, 72)[c_(l)] + 2 * KVR], 5, 88),
          tb.load(116, [lambda l: (g_(l) >> 1) * QR + pos(l) * 80 + 8 * c_(l), lambda l: (g_(l) >> 1) * QR + pos(l) * 80 + 72,
                        lambda l: MOFF + (4 * g_(l) + r_(l)) * 128 + 8 * c_(l), lambda l: nrd(0)(l) + (0 if nrd(0)(l) == ZERO else 384)], 5, 88),
          tb.load(120, [msrc(0), msrc(1), lambda l: (g_(l) >> 1) * 4608 + n_(l) * 144 + (g_(l) & 1) * 24, lambda l: n_(l) * 144 + 96 + 8 * g_(l)], 5, 88),
          tb.load(124, [lambda l: (g_(l) - 1) * 4608 + n_(l) * 144 + 128 if g_(l) in (1, 2) else 0x40000000, zrd, lambda l: zrd(l) + 2 * KVR, lambda l: zrd(l) + 96], 5, 88),
          tb.load(128, [lambda l: zrd(l) + 96 + 2 * KVR, lambda l: (l - 12 * (l >> 5)) * 16, lambda l: 640 + (l & 31) * 8, lambda l: g_(l) * 4 * PB + n_(l) * 16], 5, 88),
          tb.load(132, [lambda l: g_(l) * 4 * PB + n_(l) * 16 if n_(l) < 8 else OOB, nrd(0), nrd(1), kwr(0)], 5, 88),
          tb.load(136, [kwr(1), lambda l: 16384 + (g_(l) >> 1) * 64 + n_(l) * 4 if g_(l) % 2 == 0 else OOB, lambda l: 0 if g_(l) & 1 else 0x3f800000, lambda l: 0], 5, 88),
          tb.load(164, [qsrc(0), qsrc(1), lambda l: 0, lambda l: 0], 5, 88),
          tb.load(8, [wosrc(1, 0), wosrc(2, 0), wosrc(0, 1), wosrc(1, 1)], 5, 88),
          tb.load(168, [wosrc(0, 0), wosrc(2, 1), lambda l: word(l) + 32 * (g_(l) & 1), lambda l: word(l) - 32 * (g_(l) & 1)], 5, 88),
          tb.load(172, [lambda l: word(l) + 32 * (g_(l) & 1) + 55296, lambda l: word(l) - 32 * (g_(l) & 1) + 55296, lambda l: n_(l) * 1152 + 8 * g_(l), lambda l: 256 * g_(l) + 4 * n_(l)], 5, 88),
          tb.load(224, [sel(0, j) for j in range(4)], 5, 88, "a"),
          tb.load(228, [sel(1, j) for j in range(4)], 5, 88, "a")]
    a(f"""v_mov_b32 v24, 0
    v_mov_b32 v25, 0
    v_mov_b32 v26, 0
    v_mov_b32 v27, 0
    v_lshlrev_b32 v16, 4, v14
    v_add_u32 v16, {KVL}, v16
    ds_write_b128 v16, v[24:27]
    s_mov_b32 s48, {LOG2E}
    s_mov_b32 s49, {LOG2E}
    s_mov_b32 s54, 0xfffff
    s_mov_b32 s55, 0xfffff
    s_lshl_b32 s38, s31, 6
    s_add_u32 s38, s38, s30
    s_mul_i32 s52, s38, {PB}
    s_add_u32 s52, s52, {KVP}""")
    for q in range(6): a(f"v_accvgpr_write_b32 a{246+4*(q//2)+(q%2)}, 0")
    for q in (5, 11): a(f"v_mov_b32 v{Z[0]+q}, 0\nv_mov_b32 v{Z[1]+q}, 0")
    for b_ in range(2): a(f"v_mov_b32 v{B1+4*b_+2}, 0\nv_mov_b32 v{B1+4*b_+3}, 0\nv_mov_b32 v{VP+9+2*b_}, 0x3f80")
    def touch_wo():
        a(f"""v_mul_u32_u24 v16, 7282, v14
        v_lshrrev_b32 v16, 16, v16
        v_mul_u32_u24 v17, 9, v16
        v_sub_u32 v17, v14, v17
        v_mul_u32_u24 v16, 1152, v16
        v_lshl_add_u32 v16, v17, 7, v16
        v_mov_b32 v17, {OOB}
        v_cmp_gt_u32 vcc, 162, v14
        s_mul_i32 s96, s28, {18*1152}
        s_add_u32 s96, s96, 2048
        v_cndmask_b32 v16, v17, v16, vcc""")
        a(f"buffer_load_dword a208, v16, s[44:47], s96 offen", vtag="touch")
    def touch_gu(rows):
        n = rows // 64
        a(f"""v_mul_u32_u24 v16, 7282, v15
        v_lshrrev_b32 v16, 16, v16
        v_mul_u32_u24 v17, 9, v16
        v_sub_u32 v17, v15, v17
        v_mul_u32_u24 v16, 9216, v16
        v_lshl_add_u32 v16, v17, 7, v16
        v_mov_b32 v17, {OOB}
        v_cmp_gt_u32 vcc, {9*n}, v15
        s_cmp_lt_u32 s30, 2
        s_cselect_b32 s92, s4, s6
        s_cselect_b32 s93, s5, s7
        s_mov_b32 s94, {576*9216}
        s_mov_b32 s95, 0x20000
        s_lshl_b32 s96, s28, 1
        s_and_b32 s97, s30, 1
        s_add_u32 s96, s96, s97
        s_mul_i32 s96, s96, {n*9216}
        s_mul_i32 s97, s29, 1152
        s_add_u32 s96, s96, s97
        v_cndmask_b32 v16, v17, v16, vcc""")
        a(f"buffer_load_dword a209, v16, s[92:95], s96 offen", vtag="touch")
    if "tabln" in opts:
        for x in tl: a(x.replace("v[164:167]", "v[212:215]").replace("v[168:171]", "v[216:219]"), vtag=T)
        tl = []
    if "tw0" in opts: touch_wo()
    if opt("gu", 0): touch_gu(opt("gu", 0))
    a.wait(v="xs"); a("s_barrier")
    signal(a, "s53", check_init=aINI)
    st("sig0")
    urgent = range(13) if 'taball' in opts else (0, 2)
    for q in urgent:
        if tl: a(tl[q], vtag=T)
    tl = [(x, "tab2") for q, x in enumerate(tl) if q not in urgent]
    a("""s_mul_i32 s27, s28, 43
    s_lshr_b32 s27, s27, 8
    s_mul_i32 s26, s27, 6
    s_sub_u32 s26, s28, s26
    s_lshl_b32 s37, s29, 2
    s_add_u32 s27, s27, s37""")
    PA = opt("pa", 2)
    for j in range(NK0, NK2):
        if j == NK2 - PA: poll_start(a, "s53")
        [em(x) for x in kvdma(j)]
    if PA == 0: poll_start(a, "s53")
    if "two" in opts: touch_wo()
    a(f"""s_mul_i32 s36, s35, 36864
    s_add_u32 s36, s36, {XFRAG}
    s_add_u32 s33, s36, 36864
    s_lshl_b32 s37, s99, 12
    s_add_u32 s36, s36, s37""")
    st("pre")
    poll_finish(a, "s53", 16)
    st("sync0")
    def xload(g):
        r = [] if g == 0 else ["s_add_u32 s36, s36, 4096\ns_cmp_ge_u32 s36, s33\ns_cselect_b32 s37, 36864, 0\ns_sub_u32 s36, s36, s37"]
        return r + [(f"buffer_load_dwordx4 {vr(X(4*g+q),4,'a')}, v5, s[20:23], s36 offen offset:{q*1024} sc1", ("X", 2 * g + q // 2)) for q in range(4)]
    NX0 = opt("nx", 2)
    for g in range(NX0): [em(x) for x in xload(g)]
    a.wait(v=T)
    if "tabln" in opts:
        for q in range(8): a(f"v_mov_b32 v{164+q}, v{212+q}")
    def fixups():
        a.wait(v="tab2")
        a(f"""v_mov_b32 v7, v168
        v_mov_b32 v12, v169
        v_add_u32 v{aZW}, s34, v{aZW}
        v_add_u32 v{aZV}, s34, v{aZV}
        v_add_u32 v{aZX}, s34, v{aZX}
        v_min_u32 v{aZX}, {STX}, v{aZX}
        s_lshr_b32 s92, s30, 1
        s_and_b32 s93, s30, 1
        s_mul_i32 s96, s92, 4608
        s_mul_i32 s97, s93, 48
        s_add_u32 s97, s97, s96
        v_add_u32 v{aZA}, s97, v{aZA}
        v_add_u32 v{aZA+1}, s97, v{aZA+1}
        v_add_u32 v{aZB}, s96, v{aZB}
        v_add_u32 v{aZB+1}, s96, v{aZB+1}
        s_mul_i32 s96, s92, 1920
        s_mul_i32 s97, s93, 24
        s_add_u32 s97, s97, s96
        v_add_u32 v{aKA}, s97, v{aKA}
        v_add_u32 v{aKB}, s97, v{aKB}
        v_min_u32 v{aKA}, {STX}, v{aKA}
        v_min_u32 v{aKB}, {STX}, v{aKB}""")
    mq = ["s_mul_i32 s38, s30, 6\ns_mul_i32 s39, s31, 1296"]
    for i in range(6):
        mq += [f"""s_add_u32 s37, s38, {i}
        s_lshl_b32 s96, s37, 8
        s_add_u32 m0, s96, {MOFF}
        s_cmp_lt_u32 s37, 9
        s_cselect_b64 vcc, -1, 0
        s_mul_i32 s96, s37, 72
        s_add_u32 s96, s96, s39
        v_cndmask_b32 v16, v{aMS0+1}, v{aMS0}, vcc
        s_cmp_ge_u32 s37, 18
        s_cselect_b32 s96, 0x100000, s96""", ("buffer_load_dword v16, s[40:43], s96 offen lds", "wphi")]
    WP = lambda stp, p: 232 + 12 * stp + 4 * p
    def mreads():
        a.wait(v="tab2")
        for p in range(3):
            f = WP(0, p); f1 = WP(1, p)
            a(f"ds_read_b64_tr_b16 a[{f}:{f+1}], v{aM} offset:{32*p}\nds_read_b64_tr_b16 a[{f+2}:{f+3}], v{aM} offset:{32*p+2048}\nds_read_b64_tr_b16 a[{f1}:{f1+1}], v{aM} offset:{32*p+4096}")
    AF = lambda i: 4 * (i % 8)
    def reads(i, lst):
        ks, T_, ad, off, sz = lst[i]
        j = ks // 2; f = AF(i)
        if sz == 176: o = j * KVS + off; ad += ks % 2
        else: o = 2 * (ks % 2) * QR + j * QS + off
        return [f"ds_read_b64_tr_b16 a[{f}:{f+1}], v{ad} offset:{o}", f"ds_read_b64_tr_b16 a[{f+2}:{f+3}], v{ad} offset:{o+sz}"]
    D = 6
    def gemm(lst, bars, memq, mper=1, hook=None, mstart=0):
        N = len(lst); per = N // 9
        def flush(pred):
            while any(isinstance(x, tuple) and pred(x[1]) for x in memq): em(memq.pop(0))
        def maybe_bar(i):
            if i < N and i % per == 0 and (i // per) in bars:
                lim = bars[i // per]
                pred = lambda t: (isinstance(t, tuple) and t[0] == "w" and t[1] <= lim) or (t in ("wphi", "tab2") and i // per == 8)
                flush(pred); a.wait(v=pred); a("s_barrier")
        lw = lambda lim: a.wait(l=lambda t: isinstance(t, tuple) and t[0] == "A" and t[1] <= lim)
        for i in range(D):
            maybe_bar(i)
            for r in reads(i, lst): a(r, ltag=("A", i))
        for i in range(N):
            ks, T_, ad, off, sz = lst[i]
            flush(lambda t: t == ("X", ks))
            a.wait(v=("X", ks)); lw(i)
            f = AF(i)
            rd = reads(i + D, lst) if i + D < N else []
            for b_ in range(2):
                a(f"v_mfma_f32_16x16x32_bf16 {vr(T_+4*b_,4)}, a[{f}:{f+3}], {vr(X(2*ks+b_),4,'a')}, {'0' if ks == 0 else vr(T_+4*b_,4)}")
                if b_ == 0 and i + D < N: maybe_bar(i + D)
                if b_ == 1: lw(i + 1)
                if rd: a(rd[b_], ltag=("A", i + D))
            if hook and i in hook: hook[i]()
            if memq and i % mper == 0 and i >= mstart:
                while memq and not isinstance(memq[0], tuple): em(memq.pop(0))
                if memq: em(memq.pop(0))
        for x in memq: em(x)
    memq = []
    kvleft = list(range(NK2, 9))
    for g in range(NX0, 9):
        memq += xload(g)
        if kvleft and g >= opt("kx", 2): memq += kvdma(kvleft.pop(0))
    for j in kvleft: memq += kvdma(j)
    MP = opt("mqp", 99)
    memq = memq[:MP] + ([] if "mearly" in opts else mq) + tl + memq[MP:]
    qq = []
    for j in range(9):
        qq.append([f"s_mul_i32 s37, s30, {QR}\ns_add_u32 m0, s37, {j*QS}", f"s_add_u32 s51, s51, {64*3456}\ns_cmp_ge_u32 s51, s100\ns_cselect_b32 s37, {576*3456}, 0\ns_sub_u32 s51, s51, s37" if j else "s_nop 0",
                 ("buffer_load_dwordx4 v164, s[16:19], s51 offen lds", "wq"), "s_mov_b64 exec, 0xffff",
                 ("buffer_load_dwordx4 v165, s[16:19], s51 offen offset:1024 lds\ns_mov_b64 exec, -1", "wq")])
    NQ = opt("nq", 3)
    QW = ("s_nop 0", "qwait")
    if NQ: memq.append(QW)
    for g in qq[:NQ]: memq += g
    qq = qq[NQ:]
    fr = [(ks, T_, ad, off, 176) for ks in range(18) for (T_, ad, off) in ((K0, aT, 0), (K1, aT, 32), (EE, aTE, 0), (V0, aT, 80), (V1, aT, 128))]
    bars = {j: j for j in range(NK2, 9)}; bars.update({0: min(2, NK2 - 1), 3: NK2 - 1} if NK2 > 3 else {0: NK2 - 1}); bars[8] = 8
    hk = {82: mreads}
    if "fine" in opts:
        st("setup")
        for q in (0, 10, 20, 30, 40, 50, 60, 70): hk[q] = (lambda q=q: st(f"g{q}"))
    if "xnoq" in opts: memq = [x for x in memq if not (isinstance(x, tuple) and x[1] == "wq") and x != "s_mov_b64 exec, 0xffff"]
    gemm(fr, bars, memq, mper=opt("mp", 2), hook=hk)
    fixups()
    if "twl" in opts: touch_wo()
    st("gemm")
    if "fine" in opts: st.dump("s[20:23]", "s30", 16, 17); st.kidx += 1; st.groups.append([])
    def packB():
        for b_ in range(2):
            a(f"""v_cvt_pk_bf16_f32 v{B0+4*b_}, v{K0+4*b_}, v{K0+4*b_+1}
            v_cvt_pk_bf16_f32 v{B0+4*b_+1}, v{K0+4*b_+2}, v{K0+4*b_+3}
            v_cvt_pk_bf16_f32 v{B0+4*b_+2}, v{K1+4*b_}, v{K1+4*b_+1}
            v_cvt_pk_bf16_f32 v{B0+4*b_+3}, v{K1+4*b_+2}, v{K1+4*b_+3}
            v_cvt_pk_bf16_f32 v{B1+4*b_}, v{EE+4*b_}, v{EE+4*b_+1}
            v_cvt_pk_bf16_f32 v{B1+4*b_+1}, v{EE+4*b_+2}, v{EE+4*b_+3}""")
    def feat():
        for stp in range(2):
            for b_ in range(2):
                for p in range(3):
                    f = WP(stp, p); d = P[b_] + 4 * p
                    a(f"v_mfma_f32_16x16x32_bf16 {vr(d,4)}, a[{f}:{f+3}], {vr((B0, B1)[stp]+4*b_,4)}, {'0' if stp == 0 else vr(d,4)}")
    def packZ(b_):
        for sg, S in ((0, P), (1, E)):
            for q in range(5): a(f"v_cvt_pk_bf16_f32 v{Z[b_]+6*sg+q}, v{S[b_]+2*q}, v{S[b_]+2*q+1}")
    packB()
    a("s_waitcnt lgkmcnt(0)")
    feat()
    for g in qq[:2]: [em(x) for x in g]
    qq = qq[2:]
    for b_ in range(2):
        for h, V in ((0, V0), (1, V1)):
            d = VP + 4 * b_ + 2 * h
            a(f"v_cvt_pk_bf16_f32 v{d}, v{V+4*b_}, v{V+4*b_+1}\nv_cvt_pk_bf16_f32 v{d+1}, v{V+4*b_+2}, v{V+4*b_+3}")
        a(f"v_mov_b32 v{VP+8+2*b_}, v{B1+4*b_+1}")
    a("s_barrier")
    for b_ in range(2):
        for h in range(2): a(f"ds_write_b64 v{aZV}, {vr(VP+4*b_+2*h,2)} offset:{h*4608 + b_*2304}")
        a(f"ds_write_b64 v{aZX}, {vr(VP+8+2*b_,2)} offset:{b_*2304}")
    sub = "sub" in opts
    def call_sm():
        pc = a.lab("cs")
        a(f"""s_getpc_b64 s[92:93]
        {pc}:
        s_add_u32 s92, s92, K_sm-{pc}
        s_addc_u32 s93, s93, 0
        s_nop 7
        s_swappc_b64 s[94:95], s[92:93]""")
    if sub:
        for g in qq: [em(x) for x in g]
        call_sm()
    else:
        b = A("S"); softmax16(b, P, E, aMK); sm = [x.text for x in b.l]
        per = len(sm) // (len(qq) + opt('qs', 1))
        for g in qq:
            [em(x) for x in g]
            for x in sm[:per]: a(x)
            sm = sm[per:]
        for x in sm: a(x)
    if "twm" in opts: touch_wo()
    if opt("gv", 0): touch_gu(opt("gv", 0))
    for b_ in range(2):
        if not sub: packZ(b_)
        for sg in range(2):
            for q in range(3): a(f"ds_write_b64 v{aZW}, {vr(Z[b_]+6*sg+2*q,2)} offset:{b_*2304 + 48*sg + 8*q}")
    a(f"""s_mul_i32 s37, s32, {4*PB}
    s_add_u32 s37, s37, s52
    s_lshl_b32 s53, s31, 8
    s_add_u32 s53, s53, {C1}""")
    a("s_waitcnt lgkmcnt(0)\ns_barrier")
    st("smk")
    for stp in range(8):
        w = stp // 2; o = (w % 2) * KVR + (stp % 2) * 16 * 144
        va, vb = aZA + w // 2, aZB + w // 2
        f = 8 * stp
        a(f"ds_read_b64_tr_b16 a[{f}:{f+1}], v{va} offset:{o}\nds_read_b64_tr_b16 a[{f+2}:{f+3}], v{va} offset:{o+576}", ltag=("Z", stp))
        a(f"ds_read_b64_tr_b16 a[{f+4}:{f+5}], v{vb} offset:{o}\nds_read_b64_tr_b16 a[{f+6}:{f+7}], v{vb} offset:{o+576}", ltag=("Z", stp))
        if stp >= 2:
            s2 = stp - 2; f = 8 * s2
            a.wait(l=("Z", s2))
            a(f"v_mfma_f32_32x32x16_bf16 v[64:79], a[{f}:{f+3}], a[{f+4}:{f+7}], {'0' if s2 == 0 else 'v[64:79]'}")
    for s2 in (6, 7):
        f = 8 * s2
        a.wait(l=("Z", s2))
        a(f"v_mfma_f32_32x32x16_bf16 v[64:79], a[{f}:{f+3}], a[{f+4}:{f+7}], v[64:79]")
    for q in range(6): a(f"v_cvt_pk_bf16_f32 v{16+q}, v{64+2*q}, v{65+2*q}")
    a(f"""s_mov_b64 exec, s[54:55]
    buffer_store_dwordx4 v[16:19], v{aP4}, s[20:23], s37 offen sc1
    s_mov_b32 exec_lo, -1
    s_mov_b32 exec_hi, 0
    buffer_store_dwordx2 v[20:21], v{aP2}, s[20:23], s37 offen sc1
    s_mov_b64 exec, -1""", vtag="kvs")
    st("kvmm")
    if "twk" in opts: touch_wo()
    if opt("gw", 0): touch_gu(opt("gw", 0))
    def sig1():
        a.wait(v="kvs"); a("s_barrier")
        signal(a, "s53")
        st("kvst")
    a.wait(v="wq"); a("s_barrier")
    a("s_cmp_ge_u32 s28, 24\ns_cselect_b32 s46, 0, s46")
    wq, wq0 = p2c_wodma(a)
    gemm([(ks, T_, ad, off, 80) for ks in range(18) for (T_, ad, off) in ((K0, aQ, 0), (K1, aQ, 32), (EE, aQE, 0))], {}, wq, mper=opt("wp", 2), hook={opt("hk", 12): sig1, opt("p1", 44): lambda: poll_start(a, "s53")}, mstart=opt("wst", 0))
    packB()
    feat()
    st("qgemm")
    early = "smfirst" in opts
    def smq():
        if sub: call_sm()
        else: softmax16(a, P, E, aMK); packZ(0); packZ(1)
    if early: smq()
    poll_finish(a, "s53", 16)
    st("sync1")
    rot1 = "norot1" not in opts
    if rot1: a(f"s_add_u32 s36, s52, {64*PB}\ns_and_b32 s37, s32, 3\ns_mul_i32 s37, s37, {16*PB}\ns_add_u32 s52, s52, s37")
    for i in range(4):
        if i: a(f"s_add_u32 s52, s52, {16*PB}" + (f"\ns_cmp_ge_u32 s52, s36\ns_cselect_b32 s37, {64*PB}, 0\ns_sub_u32 s52, s52, s37" if rot1 else ""))
        for u in range(4):
            r = 64 + 16 * i + 4 * u
            a(f"buffer_load_dwordx4 a[{r}:{r+3}], v{aPL3 if u == 3 else aPL}, s[20:23], s52 offen offset:{256*u} sc1", vtag=("kv", i))
    for x in wq0: em(x)
    if not early: smq()
    for i in range(4):
        a.wait(v=("kv", i))
        for u in range(4):
            r = 64 + 16 * i + 4 * u; T_ = 48 + 4 * (u // 2); S = 224 + 4 * (u % 2)
            a(f"v_mfma_f32_16x16x32_bf16 v[{T_}:{T_+3}], a[{S}:{S+3}], a[{r}:{r+3}], {'0' if (i == 0 and u % 2 == 0) else f'v[{T_}:{T_+3}]'}")
    st("smq")
    a(f"""s_mul_i32 s36, s35, 36864
    s_add_u32 s36, s36, {OFRAG}
    s_lshl_b32 s37, s31, 7
    s_add_u32 s37, s37, s36
    s_add_u32 s39, s37, 18432
    s_lshl_b32 s38, s31, 10
    s_add_u32 s36, s36, s38
    s_add_u32 s38, s36, 18432
    s_lshl_b32 s53, s32, 8
    s_add_u32 s53, s53, {C2}
    v_cvt_pk_bf16_f32 v16, v48, v49
    v_cvt_pk_bf16_f32 v17, v50, v51
    v_cvt_pk_bf16_f32 v18, v52, v53
    v_cvt_pk_bf16_f32 v19, v54, v55
    ds_write_b64 v{aKA}, v[16:17]
    ds_write_b64 v{aKB}, v[18:19]
    s_waitcnt lgkmcnt(0)
    s_barrier""")
    st("kvred")
    for t in range(3):
        for p in (2, 0, 1):
            f = 12 * t + 4 * p
            a(f"ds_read_b128 a[{f}:{f+3}], v{(aN0, 119, aN2)[p]} offset:{16*t}", ltag=("K", t))
    for t in range(3):
        a.wait(l=("K", t))
        for p in (2, 0, 1):
            for b_ in range(2):
                f = 12 * t + 4 * p; d = P[b_] + 4 * p
                a(f"v_mfma_f32_16x16x32_bf16 {vr(d,4)}, a[{f}:{f+3}], {vr(Z[b_]+4*t,4)}, {'0' if t == 0 else vr(d,4)}")
    for b_ in range(2): a(f"v_add_f32 v{P[b_]+10}, 0x358637bd, v{P[b_]+10}")
    for b_ in range(2): a(f"v_rcp_f32 v{P[b_]+10}, v{P[b_]+10}")
    for b_ in range(2):
        p = P[b_]
        for q in range(0, 10, 2): a(f"v_pk_mul_f32 v[{p+q}:{p+q+1}], v[{p+q}:{p+q+1}], v[{p+10}:{p+11}] op_sel_hi:[1,0]")
        for q in range(5): a(f"v_cvt_pk_bf16_f32 v{16+8*b_+q}, v{p+2*q}, v{p+2*q+1}")
        a(f"buffer_store_dwordx4 {vr(16+8*b_,4)}, v5, s[20:23], {('s36', 's38')[b_]} offen sc1\nbuffer_store_dword v{20+8*b_}, v{aOX}, s[20:23], {('s37', 's39')[b_]} offen sc1")
    a("s_waitcnt vmcnt(0)\ns_barrier")
    signal(a, "s53")
    st("ost")
    st.dump("s[20:23]", "s30", 16, 17)
    def front(setup, dma0, zero):
        p2c_xload(a)
        setup()
        a("s_cmp_ge_u32 s28, 24\ns_cbranch_scc1 K_idle")
        sv = list(a.vm)
        if "fd0" in opts: p2c_main(a, st, C2, C3, late=lambda: (dma0(0), dma0(1)))
        else: p2c_main(a, st, C2, C3, early=lambda: dma0(0), late=lambda: dma0(1))
        st.dump("s[20:23]", "s30", 21, 22)
        a("s_branch K_ffn\nK_idle:")
        a.vm = sv
        if "tw3" in opts: touch3(a, opt("t3f", 64), opt("t3r", 24))
        dma0(0); dma0(1)
        a("K_ffn:")
        if "noloop" not in opts: zero(0)
        a.vm = ["unknown"] * 8
    a.spins = []
    ffn17.ffn_body(a, st, opts, C3, C4, front, tb)
    st.dump("s[20:23]", "s30", 16, 17)
    a("s_endpgm")
    for x in a.spins: a(x)
    if sub:
        a(".p2align 3\nK_sm:"); softmax16(a, P, E, aMK); packZ(0); packZ(1); a("s_nop 1\ns_setpc_b64 s[94:95]")
    a("K_end:\ns_endpgm")
    return a, st, tb

if __name__ == "__main__":
    out = sys.argv[1]; opts = sys.argv[2:]
    amp = next((o[4:].split(",") for o in opts if o.startswith("amp=")), None)
    a, st, tb = gen((amp[0], amp[1], int(amp[2])) if amp else "cyc" if "cyc" in opts else "dbg" if "dbg" in opts else "diag" in opts, opts)
    t = a.text() + tb.text()
    NAME = "sequential_preLN__linear_kernel_hedgehog__glu_gated_reglu__prompt_kernel"
    hdr = "".join(l for l in open("sequential_preLN__linear_kernel_hedgehog__glu_gated_reglu__prompt.s.ref") if l.startswith(";") and "@launch" not in l and "Override" not in l and "grid=" not in l)
    s = hdr + "; @launch grid=(256,1,1) block=(256,1,1) lds=163840\n" + '.amdgcn_target "amdgcn-amd-amdhsa--gfx950"\n.text\n' + kernel(NAME, t) + '.section .rodata,"a"\n' + descriptor(NAME, 512, 256)
    open(out, "w").write(s)
    json.dump(st.groups, open(out + ".json", "w"))
    print("nops", a.padded, "instrs", len(a.l), st.groups)
```

```python
from asmlib import *
from layout import *

class Stamps:
    def __init__(self, a, on, kidx=0):
        self.a = a; self.on = on; self.n = 0; self.kidx = kidx; self.names = []; self.groups = []
    def __call__(self, name):
        if not self.on: return
        if isinstance(self.on, tuple):
            if name == self.on[0]: self.a("s_memrealtime s[56:57]")
            if name == self.on[1]: self.a("s_memrealtime s[58:59]")
            self.names.append(name)
            return
        if self.on == "dbg" and name not in ("entry", "x8", "sync0", "gemm", "kvst", "sync1", "ost", "sync2", "sync3", "bar0", "s1", "s2", "drain", "sync4", "end"): return
        self.a(f"{'s_memtime' if self.on == 'cyc' else 's_memrealtime'} s[{56+2*self.n}:{57+2*self.n}]")
        self.names.append(name); self.n += 1
        assert self.n <= 16
    def dump(self, srd, wave, va=0, vd=1):
        if not self.on: return
        a = self.a
        if isinstance(self.on, tuple):
            if self.names[-1] != "end": return
            sk = a.lab("noamp"); lp = a.lab("amp")
            a(f"""s_waitcnt lgkmcnt(0)
            s_lshl_b32 s3, s2, 2
            s_add_u32 s3, s3, {wave}
            s_cmp_lg_u32 s3, {self.on[2] * 4}
            s_cbranch_scc1 {sk}
            s_sub_u32 s58, s58, s56
            s_mul_i32 s58, s58, 4
            s_min_u32 s58, s58, 100000
            s_memrealtime s[60:61]
            s_waitcnt lgkmcnt(0)
            {lp}:
            s_memrealtime s[62:63]
            s_waitcnt lgkmcnt(0)
            s_sub_u32 s62, s62, s60
            s_cmp_lt_u32 s62, s58
            s_cbranch_scc1 {lp}
            {sk}:""")
            return
        if self.on == "dbg":
            if self.names[-1] != "end": return
            sk = a.lab("nodbg")
            a(f"""s_load_dwordx2 s[4:5], s[0:1], 72
            s_waitcnt lgkmcnt(0)
            s_lshl_b32 s3, s2, 2
            s_add_u32 s3, s3, {wave}
            s_cmp_lg_u32 s3, 28
            s_cbranch_scc1 {sk}
            s_mov_b32 s6, 256
            s_mov_b32 s7, 0x20000
            v_mov_b32 v{vd}, 0""")
            for q in range(1, self.n): a(f"s_sub_u32 s3, s{56+2*q}, s56\nv_writelane_b32 v{vd}, s3, {q}")
            a(f"""v_mbcnt_lo_u32_b32 v{va}, -1, 0
            v_lshlrev_b32 v{va}, 2, v{va}
            s_mov_b64 exec, 0xfffe
            buffer_store_dword v{vd}, v{va}, s[4:7], 0 offen
            s_mov_b64 exec, -1
            {sk}:""")
            self.groups.append(self.names)
            return
        a(f"s_waitcnt lgkmcnt(0)\nv_mov_b32 v{vd}, 0")
        for q in range(self.n): a(f"v_writelane_b32 v{vd}, s{56+2*q}, {q}")
        a(f"""s_lshl_b32 s3, s2, 2
        s_add_u32 s3, s3, {wave}
        s_lshl_b32 s3, s3, 6
        s_add_u32 s3, s3, {TS + self.kidx * 0x10000}
        v_mbcnt_lo_u32_b32 v{va}, -1, 0
        v_lshlrev_b32 v{va}, 2, v{va}
        s_mov_b64 exec, 0xffff
        buffer_store_dword v{vd}, v{va}, {srd}, s3 offen
        s_mov_b64 exec, -1""")
        self.groups.append(self.names); self.names = []; self.n = 0; self.kidx += 1

def code_prefetch(a, lab_from, lab_to, vaddr, vdst, nwg_shift=3, reps=1, wide=False):
    pc = a.lab("pc")
    a(f"""s_getpc_b64 s[92:93]
    {pc}:
    s_add_u32 s92, s92, {lab_from}-{pc}
    s_addc_u32 s93, s93, 0
    s_mov_b32 s94, {lab_to}-{lab_from}
    s_mov_b32 s95, 0x20000
    s_lshr_b32 s96, s2, {nwg_shift}
    s_mul_i32 s96, s96, {3072 if wide else 2048}
    v_mul_u32_u24 v{vaddr}, {12 if wide else 8}, v0""")
    for r in range(reps):
        if r: a("s_add_u32 s96, s96, 0x10000")
        a(f"buffer_load_dwordx{3 if wide else 2} {vdst}, v{vaddr}, s[92:95], s96 offen", vtag="pf")

def srd(a, d, lo, hi, nbytes):
    a(f"s_mov_b32 s{d}, s{lo}\ns_mov_b32 s{d+1}, s{hi}\ns_mov_b32 s{d+2}, {nbytes}\ns_mov_b32 s{d+3}, 0x20000")

def signal(a, cnt_sreg, vt=None, check_init=False, cnt2=None):
    sk = a.lab("sig"); saved = list(a.lg)
    a(f"""s_cmp_lg_u32 s30, 0
    s_cbranch_scc1 {sk}""")
    if check_init:
        lp = a.lab("ini"); dn = a.lab("inid"); sv = list(a.vm)
        a(f"""s_mov_b32 s97, 0
        {lp}:
        v_readfirstlane_b32 s98, v{check_init}
        s_cmp_eq_u32 s98, 1
        s_cbranch_scc1 {dn}
        v_mov_b32 v16, 0
        buffer_load_dword v{check_init}, v16, s[24:27], 0 offen sc1
        s_add_u32 s97, s97, 1
        s_cmp_lt_u32 s97, 0x40000
        s_waitcnt vmcnt(0)
        s_cbranch_scc1 {lp}
        {dn}:""")
        a.vm = sv
    a(f"""s_mov_b32 s98, 1
    s_atomic_add s98, s[20:21], {cnt_sreg}""")
    if cnt2: a(f"s_atomic_add s98, s[20:21], {cnt2}")
    a(f"{sk}:")
    a.lg = saved

def poll(a, cnt_sreg, target, vt=None):
    sk = a.lab("pk"); lp = a.lab("poll"); dn = a.lab("done"); saved = list(a.lg)
    a(f"""s_cmp_lg_u32 s30, 0
    s_cbranch_scc1 {sk}
    s_mov_b32 s97, 0
    s_waitcnt lgkmcnt(0)
    {lp}:
    s_mov_b32 s98, 0
    s_atomic_add s98, s[20:21], {cnt_sreg} glc
    s_add_u32 s97, s97, 1
    s_waitcnt lgkmcnt(0)
    s_cmp_ge_u32 s98, {target}
    s_cbranch_scc1 {dn}
    s_cmp_lt_u32 s97, 0x40000
    s_cbranch_scc1 {lp}
    {dn}:
    {sk}:
    s_barrier""")
    a.lg = saved

def init_check(a, vreg):
    lp = a.lab("ini"); dn = a.lab("inid"); sv = list(a.vm)
    a(f"""s_cmp_lg_u32 s30, 0
    s_cbranch_scc1 {dn}
    s_mov_b32 s97, 0
    {lp}:
    v_readfirstlane_b32 s98, v{vreg}
    s_cmp_eq_u32 s98, 1
    s_cbranch_scc1 {dn}
    v_mov_b32 v16, 0
    buffer_load_dword v{vreg}, v16, s[24:27], 0 offen sc1
    s_add_u32 s97, s97, 1
    s_cmp_lt_u32 s97, 0x40000
    s_waitcnt vmcnt(0)
    s_cbranch_scc1 {lp}
    {dn}:""")
    a.vm = sv

def poll2(a, c0, t0, c1, t1):
    sk = a.lab("pk"); lp = a.lab("poll"); dn = a.lab("done"); saved = list(a.lg)
    a(f"""s_cmp_lg_u32 s30, 0
    s_cbranch_scc1 {sk}
    s_mov_b32 s97, 0
    s_waitcnt lgkmcnt(0)
    {lp}:
    s_mov_b32 s98, 0
    s_mov_b32 s96, 0
    s_atomic_add s98, s[20:21], {c0} glc
    s_atomic_add s96, s[20:21], {c1} glc
    s_add_u32 s97, s97, 1
    s_waitcnt lgkmcnt(0)
    s_cmp_ge_u32 s98, {t0}
    s_cselect_b32 s96, s96, 0
    s_cmp_ge_u32 s96, {t1}
    s_cbranch_scc1 {dn}
    s_cmp_lt_u32 s97, 0x40000
    s_cbranch_scc1 {lp}
    {dn}:
    {sk}:
    s_barrier""")
    a.lg = saved

class Table:
    def __init__(self, label):
        self.label = label; self.chunks = []
    def chunk(self, fns):
        fns = list(fns) + [lambda l: 0] * (4 - len(fns))
        self.chunks.append([[f(l) & 0xffffffff for f in fns] for l in range(64)])
        return len(self.chunks) - 1
    def srd(self, a, d):
        pc = a.lab("tpc")
        a(f"""s_getpc_b64 s[{d}:{d+1}]
        {pc}:
        s_add_u32 s{d}, s{d}, {self.label}-{pc}
        s_addc_u32 s{d+1}, s{d+1}, 0
        s_mov_b32 s{d+2}, {self.label}_end-{self.label}
        s_mov_b32 s{d+3}, 0x20000""")
    def load(self, dst, fns, vaddr, d, kind="v"):
        c = self.chunk(fns)
        so = "0" if c < 4 else None
        if c < 4: return f"buffer_load_dwordx4 {kind}[{dst}:{dst+3}], v{vaddr}, s[{d}:{d+3}], 0 offen offset:{c*1024}"
        return f"s_movk_i32 s3, {(c//4)*4096}\nbuffer_load_dwordx4 {kind}[{dst}:{dst+3}], v{vaddr}, s[{d}:{d+3}], s3 offen offset:{(c%4)*1024}"
    def text(self):
        s = f".p2align 7\n.type {self.label},@object\n{self.label}:\n"
        for ch in self.chunks:
            for l in range(64): s += ".long " + ", ".join(f"{v:#x}" for v in ch[l]) + "\n"
        return s + f"{self.label}_end:\n.size {self.label}, {self.label}_end-{self.label}\n"

def poll_start(a, cnt_sreg):
    sk = a.lab("ps"); saved = list(a.lg)
    a(f"""s_cmp_lg_u32 s30, 0
    s_cbranch_scc1 {sk}
    s_waitcnt lgkmcnt(0)
    s_mov_b32 s98, 0
    s_atomic_add s98, s[20:21], {cnt_sreg} glc
    {sk}:""")
    a.lg = saved

def poll_finish(a, cnt_sreg, target):
    sk = a.lab("pf"); lp = a.lab("pfl"); saved = list(a.lg)
    a(f"""s_cmp_lg_u32 s30, 0
    s_cbranch_scc1 {sk}
    s_mov_b32 s97, 0
    {lp}:
    s_waitcnt lgkmcnt(0)
    s_cmp_ge_u32 s98, {target}
    s_cbranch_scc1 {sk}
    s_mov_b32 s98, 0
    s_atomic_add s98, s[20:21], {cnt_sreg} glc
    s_add_u32 s97, s97, 1
    s_cmp_lt_u32 s97, 0x40000
    s_cbranch_scc1 {lp}
    s_waitcnt lgkmcnt(0)
    {sk}:
    s_barrier""")
    a.lg = saved
```

```python
import re
REG = re.compile(r'^(-?\|?|abs\()?([vas])(\d+)\|?\)?$')
RNG = re.compile(r'^(-?)([vas])\[(\d+):(\d+)\]$')
TRANS = ("v_exp_f32", "v_log_f32", "v_rcp_f32", "v_rsq_f32", "v_sqrt_f32", "v_sin_f32", "v_cos_f32", "v_rcp_iflag_f32")

def regs(tok):
    tok = tok.strip()
    m = RNG.match(tok)
    if m: return [f"{m.group(2)}{i}" for i in range(int(m.group(3)), int(m.group(4)) + 1)]
    m = REG.match(tok)
    if m: return [f"{m.group(2)}{m.group(3)}"]
    if tok == "vcc": return ["vcc"]
    if tok in ("m0",): return ["m0"]
    if tok in ("exec",): return ["exec"]
    return []

class Ins:
    def __init__(self, text):
        self.text = text
        t = text.split(";")[0].strip()
        self.label = t.endswith(":")
        self.directive = t.startswith(".")
        self.defs, self.uses = set(), set()
        self.kind = "other"; self.op = ""; self.srcc = set(); self.srcab = set(); self.data = set(); self.nop = 1
        if self.label or self.directive or not t:
            self.nop = 0; return
        sp = t.split(None, 1)
        op = sp[0]; self.op = op
        ops = []
        if len(sp) > 1:
            parts = [p.strip() for p in sp[1].split(",")]
            for p in parts:
                ops.append(p.split()[0] if p else p)
            self.mods = sp[1]
        else: self.mods = ""
        R = [regs(o) for o in ops]
        base = re.sub(r'_(e32|e64|dpp|sdwa)$', '', op)
        self.base = base
        if op.startswith("v_mfma"):
            self.kind = "mfma"; self.defs = set(R[0]); self.srcab = set(R[1]) | set(R[2]); self.srcc = set(R[3]); self.uses = self.srcab | self.srcc
            self.passes = 8 if "32x32x16" in op else 4
            self.dlist = R[0]; self.clist = R[3]
        elif op.startswith("ds_"):
            self.kind = "ds"
            if op.startswith("ds_read") or "permute" in op or "swizzle" in op or "_rtn" in op:
                self.defs = set(R[0]); [self.uses.update(r) for r in R[1:]]
            else:
                [self.uses.update(r) for r in R]
        elif op.startswith("buffer_") or op.startswith("global_"):
            self.kind = "vmem"
            if op in ("buffer_wbl2", "buffer_inv"): pass
            elif " lds" in " " + self.mods + " " and re.search(r'\blds\b', self.mods):
                [self.uses.update(r) for r in R]; self.uses.add("m0"); self.dma = True
            elif "load" in op:
                self.defs = set(R[0]); [self.uses.update(r) for r in R[1:]]
            elif "atomic" in op:
                [self.uses.update(r) for r in R]
                if re.search(r'\bsc0\b', self.mods): self.defs = set(R[0])
            else:
                [self.uses.update(r) for r in R]
                if op.endswith("x4") or op.endswith("x3"): self.data = set(R[0])
        elif op.startswith("v_"):
            self.kind = "valu"
            if base.startswith("v_cmp"):
                self.defs = set(R[0]); [self.uses.update(r) for r in R[1:]]
                if base.startswith("v_cmpx"): self.defs.add("exec")
            elif "permlane" in base and "swap" in base:
                self.defs = set(R[0]) | set(R[1]); self.uses = set(self.defs)
            elif base in ("v_add_co_u32", "v_sub_co_u32", "v_addc_co_u32", "v_subb_co_u32", "v_div_scale_f32"):
                self.defs = set(R[0]) | set(R[1]); [self.uses.update(r) for r in R[2:]]
            else:
                self.defs = set(R[0]); [self.uses.update(r) for r in R[1:]]
                if base in ("v_fmac_f32", "v_dot2c_f32_bf16", "v_writelane_b32") or "dpp" in op or "row_" in self.mods or "quad_perm" in self.mods: self.uses |= set(R[0])
                if base == "v_cndmask_b32" and len(R) == 3: self.uses.add("vcc")
            self.trans = base in TRANS
            self.dot = base.startswith("v_dot")
            self.dpp = ("dpp" in op) or ("row_" in self.mods) or ("quad_perm" in self.mods)
            if self.dot: self.srcc = set(R[3]) if len(R) > 3 else set(R[0])
        elif op.startswith("s_"):
            self.kind = "salu"
            if op == "s_nop": self.nop = int(ops[0], 0) + 1
            elif op.startswith("s_load") or op.startswith("s_buffer_load") or op.startswith("s_atomic") or op in ("s_memtime", "s_memrealtime"):
                self.kind = "smem"; self.defs = set(R[0]); [self.uses.update(r) for r in R[1:]]
            elif op.startswith("s_cmp") or op.startswith("s_cbranch") or op in ("s_waitcnt", "s_barrier", "s_branch", "s_endpgm", "s_sleep", "s_setprio", "s_setpc_b64", "s_swappc_b64"):
                [self.uses.update(r) for r in R]
            else:
                if R: self.defs = set(R[0])
                [self.uses.update(r) for r in R[1:]]
                if "saveexec" in op: self.defs.add("exec")

def need(p, c):
    n = 0
    vdefs = {r for r in p.defs if r[0] in "va" and r != "vcc"}
    sdefs = p.defs - vdefs
    if p.kind == "valu":
        if c.kind == "mfma" and vdefs & c.uses: n = max(n, 2)
        if c.kind == "mfma" and "exec" in p.defs: n = max(n, 4)
        if c.kind == "valu":
            if p.trans and not c.trans and vdefs & c.uses: n = max(n, 1)
            if p.trans and c.trans and vdefs & c.uses: n = max(n, 1)
            if c.base in ("v_readfirstlane_b32", "v_readlane_b32") and vdefs & c.uses: n = max(n, 1)
            if ("permlane" in c.base or c.dpp) and vdefs & c.uses: n = max(n, 2)
            if sdefs & c.uses: n = max(n, 4 if c.base in ("v_readlane_b32", "v_writelane_b32", "v_div_fmas_f32") else 2)
            if "exec" in p.defs and (c.dpp or "permlane" in c.base or "lane" in c.base): n = max(n, 5)
            if "op_sel" in p.mods or "sdwa" in p.op:
                if vdefs & (c.uses | c.defs): n = max(n, 1)
        if p.dot and vdefs & (c.uses | c.defs):
            if c.kind == "valu" and c.base == p.base and not (vdefs & (c.uses - c.srcc)) : pass
            else: n = max(n, 3)
        if c.kind == "vmem" and sdefs & c.uses: n = max(n, 5)
        if c.kind in ("salu", "smem") and sdefs & c.uses: n = max(n, 1)
    if p.kind == "mfma":
        big = p.passes == 8
        if c.kind == "mfma":
            if p.defs & c.srcab: n = max(n, 12 if big else 8)
            if p.defs & c.srcc and not (p.dlist == c.clist and p.passes == c.passes): n = max(n, 10 if big else 6)
        elif c.kind in ("valu", "vmem", "ds"):
            if p.defs & (c.uses | c.defs): n = max(n, 12 if big else 8)
            if c.kind == "valu" and p.srcc & c.defs: n = max(n, 7 if big else 3)
    if p.kind == "salu" and "m0" in p.defs and c.kind == "vmem" and "m0" in c.uses: n = max(n, 1)
    if p.kind == "vmem" and p.data & c.defs: n = max(n, 2)
    return n

class A:
    def __init__(self, prefix="L"):
        self.l = []; self.nlab = 0; self.prefix = prefix
        self.vm = []; self.lg = []
    def __call__(self, s, vtag=None, ltag=None):
        for x in s.split("\n"):
            x = x.strip()
            if not x or x.startswith(";"): continue
            i = Ins(x); self.l.append(i)
            if i.kind == "vmem": self.vm.append(vtag)
            if i.kind == "ds": self.lg.append(ltag)
            if i.kind == "smem": self.lg.append("SMEM")
            if i.op == "s_waitcnt":
                m = re.search(r'vmcnt\((\d+)\)', x)
                if m: n = int(m.group(1)); self.vm = self.vm[len(self.vm) - n:] if n < len(self.vm) else self.vm
                if m and int(m.group(1)) == 0: self.vm = []
                m = re.search(r'lgkmcnt\((\d+)\)', x)
                if m:
                    n = int(m.group(1))
                    assert n == 0 or "SMEM" not in self.lg, "counted lgkm wait with SMEM outstanding"
                    self.lg = self.lg[len(self.lg) - n:] if 0 < n < len(self.lg) else ([] if n == 0 else self.lg)
    def lab(self, p=""):
        self.nlab += 1
        return f"{self.prefix}{p}_{self.nlab}"
    @staticmethod
    def _cnt(q, pred):
        last = -1
        for k, t in enumerate(q):
            if pred(t): last = k
        return None if last < 0 else len(q) - 1 - last
    def wait(self, v=None, l=None):
        parts = []
        if v is not None:
            n = self._cnt(self.vm, v if callable(v) else (lambda t: t == v))
            if n is not None: parts.append(f"vmcnt({min(n,63)})")
        if l is not None:
            n = self._cnt(self.lg, l if callable(l) else (lambda t: t == l))
            if n is not None:
                if "SMEM" in self.lg: n = 0
                parts.append(f"lgkmcnt({min(n,15)})")
        if parts: self("s_waitcnt " + " ".join(parts))
        return bool(parts)
    def pad(self):
        added = 0
        l = self.l
        def edges():
            pos = {x.text.rstrip(":"): k for k, x in enumerate(l) if x.label}
            preds = {}
            for k, x in enumerate(l):
                if x.op.startswith("s_cbranch") or x.op == "s_branch":
                    t = x.text.split()[-1]
                    if t in pos: preds.setdefault(pos[t], []).append(k)
            return preds
        for _ in range(2):
            preds = edges(); k = 0
            while k < len(l):
                c = l[k]
                if c.nop and c.op != "s_nop":
                    req = self._req(l, preds, k)
                    if req > 0:
                        l.insert(k, Ins(f"s_nop {req-1}")); added += req; k += 1
                        preds = edges()
                k += 1
        return added
    @staticmethod
    def _req(l, preds, k):
        c = l[k]; req = 0
        stack = [(k - 1, 0, False)]; seen = set()
        while stack:
            j, d, via = stack.pop()
            while j >= 0 and d < 20:
                if (j, d, via) in seen: break
                seen.add((j, d, via))
                p = l[j]
                if p.label:
                    for b in preds.get(j, []): stack.append((b, d, True))
                elif p.nop:
                    if p.op in ("s_branch", "s_endpgm", "s_setpc_b64") and not via: break
                    r = need(p, c)
                    if r - d > req: req = r - d
                    d += p.nop
                via = False
                j -= 1
        return req
    def text(self):
        self.padded = self.pad()
        return "\n".join(("" if i.label else "    ") + i.text for i in self.l) + "\n"

def header(launches, comment=""):
    s = comment
    for (k, g, b, lds) in launches:
        s += f"; @launch kernel={k} grid=({g},1,1) block=({b},1,1) lds={lds}\n"
    s += '.amdgcn_target "amdgcn-amd-amdhsa--gfx950"\n.text\n'
    return s

def kernel(name, body):
    return f".globl {name}\n.p2align 8\n.type {name},@function\n{name}:\n{body}"

def descriptor(name, vgpr=512, accum=256, sgpr=102):
    return f""".p2align 6
.amdhsa_kernel {name}
  .amdhsa_next_free_vgpr {vgpr}
  .amdhsa_next_free_sgpr {sgpr}
  .amdhsa_accum_offset {accum}
  .amdhsa_group_segment_fixed_size 0
  .amdhsa_kernarg_size 88
  .amdhsa_user_sgpr_count 2
  .amdhsa_user_sgpr_kernarg_segment_ptr 1
  .amdhsa_system_sgpr_workgroup_id_x 1
  .amdhsa_float_denorm_mode_32 3
.end_amdhsa_kernel
"""
def program(launches, kernels, comment=""):
    s = header(launches, comment)
    for (n, b, v, a) in kernels: s += kernel(n, b)
    s += '.section .rodata,"a"\n'
    for (n, b, v, a) in kernels: s += descriptor(n, v, a)
    return s

def vr(b, n, k="v"): return f"{k}[{b}:{b+n-1}]" if n > 1 else f"{k}{b}"
```

```python
from asmlib import *
from layout import *

class Stamps:
    def __init__(self, a, on, kidx=0):
        self.a = a; self.on = on; self.n = 0; self.kidx = kidx; self.names = []; self.groups = []
    def __call__(self, name):
        if not self.on: return
        if isinstance(self.on, tuple):
            if name == self.on[0]: self.a("s_memrealtime s[56:57]")
            if name == self.on[1]: self.a("s_memrealtime s[58:59]")
            self.names.append(name)
            return
        if self.on in ("dbg", "lite") and name not in ("entry", "x8", "sync0", "gemm", "kvst", "sync1", "ost", "sync2", "sync3", "bar0", "s1", "s2", "drain", "sync4", "end"): return
        saved = list(self.a.lg)
        self.a(f"{'s_memtime' if self.on == 'cyc' else 's_memrealtime'} s[{56+2*self.n}:{57+2*self.n}]")
        if self.on == "lite": self.a.lg = saved
        self.names.append(name); self.n += 1
        assert self.n <= 16
    def dump(self, srd, wave, va=0, vd=1):
        if not self.on: return
        a = self.a
        if isinstance(self.on, tuple):
            if self.names[-1] != "end": return
            sk = a.lab("noamp"); lp = a.lab("amp")
            a(f"""s_waitcnt lgkmcnt(0)
            s_lshl_b32 s3, s2, 2
            s_add_u32 s3, s3, {wave}
            s_cmp_lg_u32 s3, {self.on[2] * 4}
            s_cbranch_scc1 {sk}
            s_sub_u32 s58, s58, s56
            s_mul_i32 s58, s58, 4
            s_min_u32 s58, s58, 100000
            s_memrealtime s[60:61]
            s_waitcnt lgkmcnt(0)
            {lp}:
            s_memrealtime s[62:63]
            s_waitcnt lgkmcnt(0)
            s_sub_u32 s62, s62, s60
            s_cmp_lt_u32 s62, s58
            s_cbranch_scc1 {lp}
            {sk}:""")
            return
        if self.on == "lite" and self.names[-1] != "end": return
        if self.on == "dbg":
            if self.names[-1] != "end": return
            sk = a.lab("nodbg")
            a(f"""s_load_dwordx2 s[4:5], s[0:1], 72
            s_waitcnt lgkmcnt(0)
            s_lshl_b32 s3, s2, 2
            s_add_u32 s3, s3, {wave}
            s_cmp_lg_u32 s3, 28
            s_cbranch_scc1 {sk}
            s_mov_b32 s6, 256
            s_mov_b32 s7, 0x20000
            v_mov_b32 v{vd}, 0""")
            for q in range(1, self.n): a(f"s_sub_u32 s3, s{56+2*q}, s56\nv_writelane_b32 v{vd}, s3, {q}")
            a(f"""v_mbcnt_lo_u32_b32 v{va}, -1, 0
            v_lshlrev_b32 v{va}, 2, v{va}
            s_mov_b64 exec, 0xfffe
            buffer_store_dword v{vd}, v{va}, s[4:7], 0 offen
            s_mov_b64 exec, -1
            {sk}:""")
            self.groups.append(self.names)
            return
        a(f"s_waitcnt lgkmcnt(0)\nv_mov_b32 v{vd}, 0")
        for q in range(self.n): a(f"v_writelane_b32 v{vd}, s{56+2*q}, {q}")
        a(f"""s_lshl_b32 s3, s2, 2
        s_add_u32 s3, s3, {wave}
        s_lshl_b32 s3, s3, 6
        s_add_u32 s3, s3, {TS + self.kidx * 0x10000}
        v_mbcnt_lo_u32_b32 v{va}, -1, 0
        v_lshlrev_b32 v{va}, 2, v{va}
        s_mov_b64 exec, 0xffff
        buffer_store_dword v{vd}, v{va}, {srd}, s3 offen
        s_mov_b64 exec, -1""")
        self.groups.append(self.names); self.names = []; self.n = 0; self.kidx += 1

def code_prefetch(a, lab_from, lab_to, vaddr, vdst, nwg_shift=3, reps=1, wide=False):
    pc = a.lab("pc")
    a(f"""s_getpc_b64 s[92:93]
    {pc}:
    s_add_u32 s92, s92, {lab_from}-{pc}
    s_addc_u32 s93, s93, 0
    s_mov_b32 s94, {lab_to}-{lab_from}
    s_mov_b32 s95, 0x20000
    s_lshr_b32 s96, s2, {nwg_shift}
    s_mul_i32 s96, s96, {3072 if wide else 2048}
    v_mul_u32_u24 v{vaddr}, {12 if wide else 8}, v0""")
    for r in range(reps):
        if r: a("s_add_u32 s96, s96, 0x10000")
        a(f"buffer_load_dwordx{3 if wide else 2} {vdst}, v{vaddr}, s[92:95], s96 offen", vtag="pf")

def srd(a, d, lo, hi, nbytes):
    a(f"s_mov_b32 s{d}, s{lo}\ns_mov_b32 s{d+1}, s{hi}\ns_mov_b32 s{d+2}, {nbytes}\ns_mov_b32 s{d+3}, 0x20000")

def signal(a, cnt_sreg, vt=None, check_init=False, cnt2=None):
    sk = a.lab("sig"); saved = list(a.lg)
    a(f"""s_cmp_lg_u32 s30, 0
    s_cbranch_scc1 {sk}""")
    if check_init:
        lp = a.lab("ini"); dn = a.lab("inid"); sv = list(a.vm)
        a(f"""s_mov_b32 s97, 0
        {lp}:
        v_readfirstlane_b32 s98, v{check_init}
        s_cmp_eq_u32 s98, 1
        s_cbranch_scc1 {dn}
        v_mov_b32 v16, 0
        buffer_load_dword v{check_init}, v16, s[24:27], 0 offen sc1
        s_add_u32 s97, s97, 1
        s_cmp_lt_u32 s97, 0x40000
        s_waitcnt vmcnt(0)
        s_cbranch_scc1 {lp}
        {dn}:""")
        a.vm = sv
    a(f"""s_mov_b32 s98, 1
    s_atomic_add s98, s[20:21], {cnt_sreg}""")
    if cnt2: a(f"s_atomic_add s98, s[20:21], {cnt2}")
    a(f"{sk}:")
    a.lg = saved

def poll(a, cnt_sreg, target, vt=None):
    sk = a.lab("pk"); lp = a.lab("poll"); dn = a.lab("done"); saved = list(a.lg)
    a(f"""s_cmp_lg_u32 s30, 0
    s_cbranch_scc1 {sk}
    s_mov_b32 s97, 0
    s_waitcnt lgkmcnt(0)
    {lp}:
    s_mov_b32 s98, 0
    s_atomic_add s98, s[20:21], {cnt_sreg} glc
    s_add_u32 s97, s97, 1
    s_waitcnt lgkmcnt(0)
    s_cmp_ge_u32 s98, {target}
    s_cbranch_scc1 {dn}
    s_cmp_lt_u32 s97, 0x40000
    s_cbranch_scc1 {lp}
    {dn}:
    {sk}:
    s_barrier""")
    a.lg = saved

def init_check(a, vreg):
    lp = a.lab("ini"); dn = a.lab("inid"); sv = list(a.vm)
    a(f"""s_cmp_lg_u32 s30, 0
    s_cbranch_scc1 {dn}
    s_mov_b32 s97, 0
    {lp}:
    v_readfirstlane_b32 s98, v{vreg}
    s_cmp_eq_u32 s98, 1
    s_cbranch_scc1 {dn}
    v_mov_b32 v16, 0
    buffer_load_dword v{vreg}, v16, s[24:27], 0 offen sc1
    s_add_u32 s97, s97, 1
    s_cmp_lt_u32 s97, 0x40000
    s_waitcnt vmcnt(0)
    s_cbranch_scc1 {lp}
    {dn}:""")
    a.vm = sv

def poll2(a, c0, t0, c1, t1):
    sk = a.lab("pk"); lp = a.lab("poll"); dn = a.lab("done"); saved = list(a.lg)
    a(f"""s_cmp_lg_u32 s30, 0
    s_cbranch_scc1 {sk}
    s_mov_b32 s97, 0
    s_waitcnt lgkmcnt(0)
    {lp}:
    s_mov_b32 s98, 0
    s_mov_b32 s96, 0
    s_atomic_add s98, s[20:21], {c0} glc
    s_atomic_add s96, s[20:21], {c1} glc
    s_add_u32 s97, s97, 1
    s_waitcnt lgkmcnt(0)
    s_cmp_ge_u32 s98, {t0}
    s_cselect_b32 s96, s96, 0
    s_cmp_ge_u32 s96, {t1}
    s_cbranch_scc1 {dn}
    s_cmp_lt_u32 s97, 0x40000
    s_cbranch_scc1 {lp}
    {dn}:
    {sk}:
    s_barrier""")
    a.lg = saved

class Table:
    def __init__(self, label):
        self.label = label; self.chunks = []
    def chunk(self, fns):
        fns = list(fns) + [lambda l: 0] * (4 - len(fns))
        self.chunks.append([[f(l) & 0xffffffff for f in fns] for l in range(64)])
        return len(self.chunks) - 1
    def srd(self, a, d):
        pc = a.lab("tpc")
        a(f"""s_getpc_b64 s[{d}:{d+1}]
        {pc}:
        s_add_u32 s{d}, s{d}, {self.label}-{pc}
        s_addc_u32 s{d+1}, s{d+1}, 0
        s_mov_b32 s{d+2}, {self.label}_end-{self.label}
        s_mov_b32 s{d+3}, 0x20000""")
    def load(self, dst, fns, vaddr, d, kind="v"):
        c = self.chunk(fns)
        so = "0" if c < 4 else None
        if c < 4: return f"buffer_load_dwordx4 {kind}[{dst}:{dst+3}], v{vaddr}, s[{d}:{d+3}], 0 offen offset:{c*1024}"
        return f"s_movk_i32 s3, {(c//4)*4096}\nbuffer_load_dwordx4 {kind}[{dst}:{dst+3}], v{vaddr}, s[{d}:{d+3}], s3 offen offset:{(c%4)*1024}"
    def text(self):
        s = f".p2align 7\n.type {self.label},@object\n{self.label}:\n"
        for ch in self.chunks:
            for l in range(64): s += ".long " + ", ".join(f"{v:#x}" for v in ch[l]) + "\n"
        return s + f"{self.label}_end:\n.size {self.label}, {self.label}_end-{self.label}\n"

def poll_start(a, cnt_sreg):
    sk = a.lab("ps"); saved = list(a.lg)
    a(f"""s_cmp_lg_u32 s30, 0
    s_cbranch_scc1 {sk}
    s_mov_b32 s96, 0
    s_atomic_add s96, s[20:21], {cnt_sreg} glc
    {sk}:""")
    a.lg = saved

def poll_finish(a, cnt_sreg, target):
    sk = a.lab("pf"); lp = a.lab("pfl"); saved = list(a.lg)
    a(f"""s_cmp_lg_u32 s30, 0
    s_cbranch_scc1 {sk}
    s_mov_b32 s97, 0
    {lp}:
    s_waitcnt lgkmcnt(0)
    s_cmp_ge_u32 s96, {target}
    s_cbranch_scc1 {sk}
    s_mov_b32 s96, 0
    s_atomic_add s96, s[20:21], {cnt_sreg} glc
    s_add_u32 s97, s97, 1
    s_cmp_lt_u32 s97, 0x40000
    s_cbranch_scc1 {lp}
    s_waitcnt lgkmcnt(0)
    {sk}:
    s_barrier""")
    a.lg = saved
```

```python
from common import *
from ffn16 import dma_offsets, store_setup
UNIT = 18432; SLOT = 2 * UNIT

def ffn_body(a, st, opts, C3, C4, front, tb=None):
    opt = lambda k, d: next((int(o[len(k):]) for o in reversed(opts) if re.fullmatch(k + r'\d+', o)), d)
    diag = st.on
    T0 = 21
    G = lambda t: 64 + 8 * t
    def U(t): return ("v", 208 + 8 * t) if t < 6 else ("a", 96 + 8 * (t - 6))
    XR = lambda k: 32 + 8 * (k % 4)
    NF = opt("nf", 8); D = NF - 2; NA = opt("na", 3)
    AF = lambda i: 192 + 4 * (i % NF)
    def emit(it):
        if len(it) > 2 and it[2][0] == "F":
            saved = list(a.lg); a(it[1]); a.lg = saved
        elif len(it) > 2: a(it[1], vtag=it[2])
        else: a(it[1])
    def blocks(P):
        if P < 18 + NA: return [(J, cg) for J in range(9) for cg in range(NA)][9 * (P - 18):9 * (P - 17)]
        return [(J, P - 18) for J in range(9)]
    def dma_pair(P):
        r = []; slot = P % 4
        if P < 18:
            for i in range(9):
                if i % 4 == 0: r.append(("m", f"s_add_u32 m0, s37, {slot*SLOT + i*1024}"))
                r.append(("d", f"buffer_load_dwordx4 v{i}, s[12:15], s36 offen offset:{(i%4)*1024} lds", ("P", P)))
            return r + [("s", f"s_add_u32 s36, s36, {32*9216}")]
        for b, (J, cg) in enumerate(blocks(P)):
            r.append(("m", f"s_add_u32 m0, s40, {slot*SLOT + b*4096}"))
            r.append(("s", f"s_add_u32 s39, s38, {J*32*1152 + cg*128}"))
            r.append(("d", f"buffer_load_dwordx4 v0, s[16:19], s39 offen lds", ("P", P)))
        return r
    def dsrc(i):
        def f(l):
            p = i * 1024 + l * 16; row, col = divmod(p, 576)
            return row * 9216 + (col ^ (32 if row & 4 else 0)) + 3072 - (i % 4) * 1024
        return f
    rdb = lambda l, sg: (l >> 2) * 576 + 8 * (l & 3) + sg * 32 * ((l >> 4) & 1)
    OOBV = 0x7fffff00
    def setup():
        a(f"""v_mov_b32 v30, v15
        s_lshl_b32 s31, s29, 1
        s_and_b32 s33, s28, 1
        s_add_u32 s31, s31, s33
        s_lshr_b32 s32, s28, 1
        s_and_b32 s33, s30, 1
        s_lshr_b32 s34, s30, 1
        v_lshlrev_b32 v15, 4, v30""")
        for x in (tb.load(0, [dsrc(i) for i in range(4)], 15, 88), tb.load(4, [dsrc(i) for i in range(4, 8)], 15, 88),
                  tb.load(8, [dsrc(8)] + [(lambda l, q=q: rdb(l, 1) + 55296 * q) for q in range(3)], 15, 88),
                  tb.load(16, [(lambda l, q=q: rdb(l, -1) + 55296 * q) for q in range(3)], 15, 88),
                  tb.load(24, [lambda l: (l // 9) * 9216 + (l % 9) * 128 if l < 18 else OOBV, lambda l: l * 128 if l < 11 else OOBV,
                               lambda l: (l >> 5) * 768 + (l & 31) * 4], 15, 88),
                  tb.load(236, [lambda l: (l >> 3) * 1152 + (((l & 7) << 4) ^ ((l >> 4) << 5))] +
                               [(lambda l, t=t: 2 * SLOT + (l >> 2) * 128 + 8 * (l & 3) + 32 * (((l >> 3) & 3) ^ t)) for t in range(3)], 15, 88, "a"),
                  tb.load(240, [lambda l: 2 * SLOT + (l >> 2) * 128 + 8 * (l & 3) + 32 * (((l >> 3) & 3) ^ 3),
                                lambda l: (l & 7) * 1152 + 8 * ((l >> 3) & 1) + 128 * (l >> 5) + 32 * ((l >> 4) & 1),
                                lambda l: ((l >> 3) & 1) * 256 + (l & 7) * 16 if l < 16 else OOBV,
                                lambda l: (l >> 4) * 9216 + (l & 15) * 16], 15, 88, "a"),
                  tb.load(244, [lambda l: ((l >> 3) & 1) * 147456 + (l >> 4) * 128 + (l & 7) * 16,
                                lambda l: (l // 48) * 1152 + (l % 48) * 16, lambda l: 1152 + (l + 16) * 16 if l < 32 else OOBV,
                                lambda l: (l // 24) * 1152 + 768 + (l % 24) * 16 if l < 48 else OOBV], 15, 88, "a")):
            a(x, vtag="ftab")
        a(f"""s_cmp_eq_u32 s34, 0
        s_cselect_b32 s12, s4, s6
        s_cselect_b32 s13, s5, s7
        s_sub_u32 s12, s12, 3072
        s_subb_u32 s13, s13, 0
        s_mov_b32 s14, {576*9216+3072}
        s_mov_b32 s15, 0x20000""")
        srd(a, 16, 8, 9, 4608 * 1152)
        a(f"""s_mul_i32 s36, s31, 576
        s_mul_i32 s39, s33, {16*9216}
        s_add_u32 s36, s36, s39
        s_mul_i32 s37, s30, 9216""")
    def dma0(P):
        a.wait(v="ftab")
        [emit(x) for x in dma_pair(P)]
    loop = "noloop" not in opts
    def zero(part):
        if "mz" in opts:
            if part == 0:
                for q in range(4): a(f"v_mov_b32 v{60+q}, 0")
            blk = [("v", r) for r in range(64, 160, 16)] + [("a", r) for r in (144, 160, 176)] if part == 0 else [("v", r) for r in range(160, 256, 16)] + [("a", r) for r in (96, 112, 128)]
            for k, r in blk: a(f"v_mfma_f32_32x32x16_bf16 {vr(r,16,k)}, v[60:63], v[60:63], 0")
            return
        regs = []
        for t in range(18):
            for q in range(8):
                regs.append(("v", G(t) + q)); k, b = U(t); regs.append((k, b + q))
        for (k, r) in regs:
            late = (k == "v" and r >= 168) or (k == "a" and r < 136)
            if late == (part == 1): a(f"v_mov_b32 v{r}, 0" if k == "v" else f"v_accvgpr_write_b32 a{r}, 0")
    front(setup, dma0, zero)
    o2 = "ord2" in opts
    if o2:
        a(f"s_lshl_b32 s53, s32, 8\ns_add_u32 s53, s53, {C3}")
        poll_start(a, "s53")
        dma0(0)
    tl = "notl" not in opts
    if tl:
        a(f"""v_mov_b32 v31, v24
        v_mov_b32 v14, v25
        s_lshl_b32 s50, s28, 1
        s_add_u32 s50, s50, s33
        s_mul_i32 s50, s50, {2*9216}
        s_mul_i32 s51, s29, 1152
        s_add_u32 s50, s50, s51
        s_add_u32 s50, s50, {opt("tla", 256)*9216 + 3072}
        s_lshl_b32 s51, s28, 2
        s_add_u32 s51, s51, s30
        s_mul_i32 s51, s51, {11*128}
        s_mul_i32 s52, s29, {576*1152}
        s_add_u32 s51, s51, s52""")
    a(f"""s_lshl_b32 s35, s32, 2
    s_add_u32 s35, s35, s30
    s_mul_i32 s43, s35, 1536
    s_mul_i32 s35, s35, 36864
    s_add_u32 s43, s43, {STATS}
    s_mul_i32 s38, s31, {288*1152}
    s_mul_i32 s39, s30, {8*1152}
    s_add_u32 s38, s38, s39
    s_lshl_b32 s40, s30, 10
    s_mov_b32 s47, 0xffff0000
    s_lshl_b32 s53, s32, 8
    s_add_u32 s53, s53, {C3}
    v_mov_b32 v29, v26""")
    if HFRAG: a(f"s_add_u32 s35, s35, {HFRAG}")
    if o2: poll_finish(a, "s53", 12)
    else: poll(a, "s53", 12)
    st("sync3")
    def xload(k):
        r = []
        for h in range(2):
            r.append(("x", f"buffer_load_dwordx4 {vr(XR(k)+4*h,4)}, v15, s[20:23], s35 offen offset:{h*1024} sc1", ("X", k)))
        return r + [("s", "s_add_u32 s35, s35, 2048")]
    for q in range(6): a(f"buffer_load_dword v{(56,57,58,59,27,28)[q]}, v29, s[20:23], s43 offen offset:{128*q} sc1", vtag="st")
    XA = opt("xa", 2)
    for k in range(3 if XA == 3 else 2): [emit(x) for x in xload(k)]
    if o2: dma0(1)
    if loop: zero(1)
    a.wait(v="st")
    a("""v_add_f32 v56, v56, v57
    v_add_f32 v58, v58, v59
    v_add_f32 v27, v27, v28
    v_add_f32 v56, v56, v58
    v_add_f32 v56, v56, v27
    v_mul_f32 v56, 0x3ae38e39, v56
    v_mov_b32 v57, v56
    v_permlane16_swap_b32 v56, v57
    v_fma_f32 v57, -v56, v56, v57
    v_max_f32 v57, 0, v57
    v_add_f32 v57, 0x3727c5ac, v57
    v_rsq_f32 v12, v57
    s_nop 0
    v_mul_f32_e64 v19, -v56, v12
    v_mov_b32 v13, v12
    v_mov_b32 v20, v19
    v_permlane32_swap_b32 v12, v13
    v_permlane32_swap_b32 v19, v20""")
    def norm(k):
        r = []
        if "xnonorm" in opts: return r
        for h in range(2):
            b = XR(k) + 4 * h
            for j in range(4):
                r.append(("v", f"v_lshlrev_b32_e32 v{T0+2*j}, 16, v{b+j}"))
                r.append(("v", f"v_and_b32_e32 v{T0+1+2*j}, s47, v{b+j}"))
            for j in range(8):
                r.append(("v", f"v_fma_f32 v{T0+j}, v{T0+j}, v{12+h}, v{19+h}"))
            for j in range(4):
                r.append(("v", f"v_cvt_pk_bf16_f32 v{b+j}, v{T0+2*j}, v{T0+1+2*j}"))
        return r
    def conv(J):
        r = []
        for h in range(2):
            for e in range(2):
                t = 2 * J + e; g = G(t) + 4 * h; k, u = U(t); u += 4 * h
                for q in range(4):
                    if k == "a": r.append(("v", f"v_accvgpr_read_b32 v{T0+q}, a{u+q}"))
                    r.append(("v", f"v_max_f32_e32 v{g+q}, 0, v{g+q}"))
                for q in range(4):
                    src = f"v{T0+q}" if k == "a" else f"v{u+q}"
                    r.append(("v", f"v_mul_f32_e32 v{g+q}, v{g+q}, {src}"))
                d = G(2 * J) + 4 * h + 2 * e
                for q in range(2):
                    r.append(("v", f"v_cvt_pk_bf16_f32 v{d+q}, v{g+2*q}, v{g+2*q+1}"))
            if "emu" in opts:
                r.append(("st", f"buffer_store_dwordx4 {vr(G(2*J)+4*h,4)}, v29, s[20:23], s43 offen offset:{h*1024} sc1", ("HS", J)))
                if h: r.append(("s", "s_add_u32 s43, s43, 2048"))
        return r
    def acc2(c, t): return ("a", 8 * (4 * c + t)) if c < NA else ("v", G(2 * ((c % 2) * 4 + t) + 1))
    ecount = [0]
    def epi(c):
        r = []
        if "emu" in opts and c < 4: return r
        for tp in range(2):
            for h in range(2):
                S = 32 + 4 * (ecount[0] % 8); ecount[0] += 1
                for e in range(2):
                    k, b = acc2(c, 2 * tp + e); b += 4 * h
                    if k == "a":
                        for q in range(4): r.append(("v", f"v_accvgpr_read_b32 v{T0+4*e+q}, a{b+q}"))
                        b = T0 + 4 * e
                    for q in range(2): r.append(("v", f"v_cvt_pk_bf16_f32 v{S+2*e+q}, v{b+2*q}, v{b+2*q+1}"))
                o = (2 * c + tp) * 512
                r.append(("st", f"buffer_store_dwordx4 {vr(S,4)}, v15, s[20:23], s{44+3*h+o//4096} offen offset:{o%4096}{'' if 'xplain' in opts else ' sc1'}", ("ST", c)))
                if "xnost" in opts and c < 8: r.pop()
        return r
    a.wait(v=("X", 0))
    [emit(x) for x in norm(0)]
    fr = []
    for ks in range(18):
        for t in range(18):
            fr.append((ks, (0, t), "v", G(t), XR(ks), ks == 0 and not loop))
            k, b = U(t); fr.append((ks, (1, t), k, b, XR(ks), ks == 0 and not loop))
    for P in range(18, 27):
        for b_, (J, cg) in enumerate(blocks(P)):
            for t in range(4):
                k, b = acc2(cg, t)
                fr.append((P, (b_, t), k, b, G(2 * J), J == 0))
    N = len(fr)
    def reads(i):
        P, (x, t) = fr[i][0], fr[i][1]; f = AF(i)
        if P < 18:
            slot = (2 * P + x) % 8; base = (9 if t % 2 == 0 else 16) + slot // 3
            o = (slot % 3) * UNIT + t * 32; o2 = o + 9216
        else:
            base = 1 + t; o = x * 4096; o2 = o + 2048
        return [f"ds_read_b64_tr_b16 a[{f}:{f+1}], v{base} offset:{o}", f"ds_read_b64_tr_b16 a[{f+2}:{f+3}], v{base} offset:{o2}"]
    s2setup = ["v_accvgpr_read_b32 v0, a236"]
    s2read = [f"v_accvgpr_read_b32 v{1+t}, a{237+t}" for t in range(4)]
    redsetup = ["v_accvgpr_read_b32 v5, a241", "v_accvgpr_read_b32 v7, a242", "v_accvgpr_read_b32 v31, a243",
                "s_lshl_b32 s29, s32, 4", "s_add_u32 s29, s29, s31",
                "s_mul_i32 s88, s29, 147456", "s_lshl_b32 s89, s30, 8", "s_add_u32 s88, s88, s89", f"s_add_u32 s88, s88, {PART}",
                "s_add_u32 s89, s88, 36864", "s_add_u32 s90, s89, 36864", "s_add_u32 s91, s90, 36864",
                "s_lshr_b32 s92, s29, 2", "s_mul_i32 s92, s92, 36864", "s_bfe_u32 s93, s29, 0x10001", "s_lshl_b32 s93, s93, 10", "s_add_u32 s92, s92, s93",
                "s_and_b32 s93, s29, 1", "s_lshl_b32 s93, s93, 7", "s_add_u32 s92, s92, s93", "s_lshl_b32 s93, s34, 11", "s_add_u32 s92, s92, s93",
                "s_lshl_b32 s93, s33, 9", "s_add_u32 s92, s92, s93",
                f"s_mul_i32 s94, s29, {8*1152}", "s_lshl_b32 s93, s34, 6", "s_add_u32 s94, s94, s93", "s_lshl_b32 s93, s33, 4", "s_add_u32 s94, s94, s93",
                f"s_add_u32 s53, s53, {C4-C3}"]
    if "xown" in opts:
        redsetup += ["v_mov_b32 v14, 0x7fffff00", "v_cmp_gt_u32 vcc, 16, v30", "s_nop 0", "v_cndmask_b32 v14, v31, v14, vcc"]
    if HFRAG: redsetup.append(f"s_add_u32 s92, s92, {HFRAG}")
    PL = lambda c, i: (96 + 4 * (4 * c + i)) if c < 6 else 4 * (4 * (c - 6) + i)
    HL = lambda c: 48 + 4 * c
    def hload(c): return [("x", f"buffer_load_dwordx4 a[{HL(c)}:{HL(c)+3}], v7, s[20:23], s92 offen sc1", ("H", c)), ("s", "s_add_u32 s92, s92, 4096")]
    def pload(c):
        r = []
        if c and c % 4 == 0: r += [("s", f"s_add_u32 s{88+i}, s{88+i}, 4096") for i in range(4)]
        for i in range(4 if ("emu" not in opts or c == 4) else 2):
            r.append(("x", f"buffer_load_dwordx4 a[{PL(c,i)}:{PL(c,i)+3}], v{14 if 'xown' in opts and i == 0 else 31}, s[20:23], s{88+i} offen offset:{(c%4)*1024} sc1", ("L", c)))
        return r
    sched = opt("sch", 1)
    if sched == 0: groups = [(range(9), None, None)]
    elif sched == 4: groups = [((0, 1, 2, 3, 4, 5), 26, None), ((6, 7, 8), None, None)]
    elif sched == 5: groups = [((0, 1, 2, 3, 4, 5), 26, None), ((6, 7), 27, None), ((8,), None, None)]
    elif sched == 6: groups = [((0, 1), 22, 23), ((2, 3, 4, 5), 26, None), ((6, 7, 8), None, None)]
    elif sched == 7: groups = [((0, 1, 2), 23, 24), ((3, 4, 5), 26, None), ((6, 7, 8), None, None)]
    elif sched == 8: groups = [((0,), 21, 22), ((1, 2), 23, 24), ((3, 4, 5), 26, None), ((6, 7, 8), None, None)]
    elif sched == 9: groups = [((0, 1), 22, 24), ((2, 3, 4, 5), 26, None), ((6, 7), 27, None), ((8,), None, None)]
    elif sched == 10: groups = [((0, 1), 24, 25), ((2, 3, 4, 5), 26, None), ((6, 7), 27, None), ((8,), None, None)]
    elif sched == 11: groups = [((0, 1, 2), 24, 25), ((3, 4, 5), 26, None), ((6, 7), 27, None), ((8,), None, None)]
    elif sched == 12: groups = [((0, 1, 2, 3), 24, 25), ((4, 5), 26, None), ((6, 7), 27, None), ((8,), None, None)]
    elif sched == 13: groups = [((0, 1, 2, 3, 4), 25, 26), ((5, 6, 7), 27, None), ((8,), None, None)]
    elif sched == 14: groups = [((0, 1), 22, 23), ((2, 3, 4, 5), 26, None), ((6, 7), 27, None), ((8,), None, None)]
    elif sched == 15: groups = [((0,), 21, 22), ((1, 2), 23, 24), ((3, 4, 5), 26, None), ((6, 7), 27, None), ((8,), None, None)]
    elif sched == 16: groups = [((0,), 21, 22), ((1,), 22, 23), ((2,), 23, 24), ((3,), 24, 25), ((4, 5), 26, None), ((6, 7), 27, None), ((8,), None, None)]
    elif sched == 17: groups = [((0,), 21, 22), ((1,), 22, 23), ((2,), 23, 24), ((3,), 24, 25), ((4,), 25, 26), ((5,), 26, None), ((6, 7), 27, None), ((8,), None, None)]
    elif sched == 18: groups = [((0,), 20, 21), ((1,), 21, 22), ((2,), 22, 23), ((3,), 23, 24), ((4,), 24, 25), ((5,), 25, 26), ((6, 7), 27, None), ((8,), None, None)]
    elif sched == 19: groups = [((0,), 21, 22), ((1, 2), 23, 24), ((3, 4), 25, 26), ((5, 6, 7), 27, None), ((8,), None, None)]
    elif sched == 20: groups = [((0,), 21, 22), ((1,), 22, 23), ((2,), 23, 24), ((3,), 24, 25), ((4, 5), 26, None), ((6, 7, 8), None, None)]
    slowq = []; lper = opt("lper", 18)
    spins = []
    def sig(g):
        sk = a.lab("sg"); saved = list(a.lg)
        a(f"""s_cmp_lg_u32 s30, 0
        s_cbranch_scc1 {sk}
        s_add_u32 s95, s53, {4096*g}
        s_mov_b32 s98, 1
        s_atomic_add s98, s[20:21], s95
        {sk}:""")
        a.lg = saved
    def poll_issue(g):
        sk = a.lab("pi")
        return [("x", f"s_cmp_lg_u32 s30, 0\ns_cbranch_scc1 {sk}\ns_add_u32 s96, s53, {4096*g}\ns_mov_b32 s97, 0\ns_atomic_add s97, s[20:21], s96 glc\n{sk}:", ("F", g))]
    def poll_check(g):
        ok = a.lab("ok"); sp = a.lab("spin"); saved = list(a.lg)
        a(f"s_cmp_eq_u32 s30, 0\ns_cbranch_scc1 {sp}\n{ok}:")
        spins.append(f"""{sp}:
        s_mov_b32 s99, 0
        {sp}_l:
        s_waitcnt lgkmcnt(0)
        s_cmp_ge_u32 s97, 16
        s_cbranch_scc1 {ok}
        s_mov_b32 s97, 0
        s_atomic_add s97, s[20:21], s96 glc
        s_add_u32 s99, s99, 1
        s_cmp_lt_u32 s99, 0x40000
        s_cbranch_scc1 {sp}_l
        s_waitcnt lgkmcnt(0)
        s_branch {ok}""")
    st("pro")
    if o2 and "w1" in opts:
        a.wait(v=lambda t: t == ("P", 0) or (isinstance(t, tuple) and t[0] == "X")); a("s_barrier"); early_p1 = True
    else:
        a("s_waitcnt vmcnt(0)\ns_barrier")
    st("bar0")
    if diag and diag != "lite": a("s_waitcnt lgkmcnt(0)")
    for i in range(D):
        for r in reads(i): a(r, ltag=("A", i))
    memq = []; valq = []; pendbar = None
    budget = opt("bud", 2); mper = opt("mper", 4)
    def emitv(it):
        if it[0] == "w": return 1 if a.wait(v=it[1]) else 0
        emit(it); return 1
    marks = {}
    for i in range(N):
        P, xt, k, b, B, first = fr[i]
        s, pos = divmod(i, 36)
        if pos == 0 and s % 4 == 0 and s <= 16: marks[s] = len(a.l)
        if i == 648: st("s1")
        if (i + D) % 36 == 0 and i + D < N:
            sn = (i + D) // 36
            while any(len(x) > 2 and x[2][0] == "P" and x[2][1] <= sn + 1 for x in memq) or (memq and memq[0][0] in "sv"): emit(memq.pop(0))
            pendbar = sn
            if sn > 18: valq = [(("v", f"v_add_u32 v{1+t}, {SLOT if sn % 4 else -3*SLOT}, v{1+t}"), i) for t in range(4)] + valq
        if pos == 0:
            Pn = s + 2; q = []
            if s <= 15 and "xnox" not in opts and XA == 2: q += xload(s + 2)
            if Pn == 18: q += [("v", x) for x in s2setup]
            A3 = opt("a3", 99)
            if s < A3:
                if Pn < 27 and not ("xnodma" in opts and Pn < 18): q += dma_pair(Pn)
            else:
                if s == A3: q += dma_pair(Pn)
                if Pn + 1 < 27: q += dma_pair(Pn + 1)
            if Pn == 18: q += [("v", x) for x in s2read]
            if s <= 15 and XA == 3: q += xload(s + 3)
            if s <= 15 and XA == 4: q += xload(s + 2)
            if "emu" in opts and s == 16:
                q += [("v", "v_lshlrev_b32 v29, 4, v30"), ("s", "s_lshl_b32 s43, s2, 2"), ("s", "s_add_u32 s43, s43, s30"), ("s", "s_mul_i32 s43, s43, 18432"), ("s", f"s_add_u32 s43, s43, {0x4000000}"), ("s", "s_xor_b32 s52, s2, 8"), ("s", "s_lshl_b32 s52, s52, 2"), ("s", "s_add_u32 s52, s52, s30"), ("s", "s_mul_i32 s52, s52, 18432"), ("s", f"s_add_u32 s52, s52, {0x4000000}")]
            if "emu" in opts and s in (21, 22):
                for J in (range(5) if s == 21 else range(5, 9)):
                    q += [("x", f"buffer_load_dwordx4 a[{96+8*J+4*h}:{99+8*J+4*h}], v29, s[20:23], s52 offen offset:{h*1024} sc1", ("HL", J)) for h in range(2)] + [("s", "s_add_u32 s52, s52, 2048")]
            if tl and s < 16 and s % 4 == 0: q += [("x", "buffer_load_dword a232, v31, s[12:15], s50 offen", ("T", s)), ("s", f"s_add_u32 s50, s50, {128*9216}")]
            if tl and s < 16 and s % 4 == 2: q += [("x", "buffer_load_dword a233, v14, s[16:19], s51 offen", ("T", s)), ("s", f"s_add_u32 s51, s51, {128*11*128}")]
            memq = ([x for x in memq] + q) if any(len(x) > 2 and x[2][0] == 'P' for x in memq) else q + memq
        if pos == 4 and s + 1 < 18:
            valq += [(("w", ("X", s + 1)), i + 31)] + [(x, i + 31) for x in norm(s + 1)]
        if i >= 612 and i < 648 and (i - 612) % 4 == 2 and (i - 612) // 4 >= 1:
            J = (i - 612) // 4 - 1
            valq += [(x, 648 + 4 * NA * J) for x in conv(J)]
        if i == 650: valq += [(x, 648 + 4 * NA * 8) for x in conv(8)]
        if i == 652: valq += [(("v", x), 648 + 36 * NA + 20) for x in ['v_accvgpr_read_b32 v15, a244'] + [y for y in store_setup() if y.startswith('s_')] + redsetup]
        EP = opt("ep", 2)
        if i == 648 + 36 * NA + EP:
            for c in range(NA): valq += [(x, None) for x in epi(c)]
        if i >= 648 + 36 * (NA + 1) + 2 and pos == (EP if s < 25 else 2):
            c = s - 19
            valq += [(x, 648 + 36 * (c + 2)) for x in epi(c)]
        if i == opt('hl', N - 1):
            for c in range(9): slowq += hload(c)
        chks = []
        if "t2" in opts and i == N - 20: memq = poll_issue(0) + memq
        for g, (chs, sst, chk) in enumerate(groups):
            if chk is not None and i == 36 * chk - D - 16: memq = poll_issue(g) + memq
            if chk is not None and pendbar == chk:
                while any(len(x) > 2 and x[2] == ("F", g) for x in memq): emit(memq.pop(0))
                chks.append(g)
        if slowq and i % lper == opt("loff", 0):
            while True:
                x = slowq.pop(0); memq.append(x)
                if x[0] == "x" or not slowq: break
        sigs = [g for g, (chs, sst, chk) in enumerate(groups) if pendbar is not None and sst == pendbar]
        for g in sigs:
            last = max(groups[g][0])
            while any(len(x) > 2 and x[2][0] == "ST" and x[2][1] <= last for (x, _) in valq): emitv(valq.pop(0)[0])
        while any(d is not None and d <= i for (_, d) in valq): emitv(valq.pop(0)[0])
        lw = lambda lim: a.wait(l=lambda t: t is not None and t != "SMEM" and t[1] <= lim)
        lw(i)
        f = AF(i)
        rd = reads(i + D) if i + D < N else []
        behind = len(valq) > opt("beh", 60)
        for h in range(2):
            C = "0" if first else vr(b + 4 * h, 4, k)
            a(f"v_mfma_f32_16x16x32_bf16 {vr(b+4*h,4,k)}, a[{f}:{f+3}], {vr(B+4*h,4)}, {C}")
            sc_used = False
            if pendbar is not None:
                lasts = [max(groups[g][0]) for g in sigs]
                a.wait(v=lambda t: t == ("P", pendbar) or (isinstance(t, tuple) and t[0] == "ST" and any(t[1] <= l for l in lasts)))
                for g in chks: poll_check(g)
                if "xnobar" not in opts or s >= 16: a("s_barrier")
                for g in sigs: sig(g)
                for g in chks:
                    for c in groups[g][0]: slowq += pload(c)
                pendbar = None; sc_used = True
            if h == 1 and not sc_used: sc_used = lw(i + 1)
            if not sc_used:
                if memq and memq[0][0] in ("s", "m"):
                    emit(memq.pop(0)); sc_used = True
                    if "sc2" in opts and memq and memq[0][0] in ("s", "m"): emit(memq.pop(0))
                elif valq and valq[0][0][0] == "w": sc_used = emitv(valq.pop(0)[0])
                elif valq and valq[0][0][1].startswith("s_"): emitv(valq.pop(0)[0]); sc_used = True
            n = 0
            if rd: a(rd[h], ltag=("A", i + D)); n += 1
            mp = mper if s < 16 else opt("mq", 4)
            if memq and memq[0][0] in ("x", "d") and (2 * i + h) % mp == 0:
                emit(memq.pop(0)); n += 1
            elif memq and memq[0][0] == "v":
                emit(memq.pop(0)); n += 1
            while valq and n < budget + (1 if behind else 0) and valq[0][0][0] != "w" and not valq[0][0][1].startswith("s_"):
                n += emitv(valq.pop(0)[0])
    for it in memq: emit(it)
    for it, d in valq: emitv(it)
    tailq = slowq
    if loop:
        body = [[x.text for x in a.l[marks[s]:marks[s + 4]]] for s in (0, 4, 8, 12)]
        assert body[1] == body[2] == body[3], "loop bodies differ"
        pre = []
        if body[0][0] != body[1][0]:
            assert body[0][0].startswith("s_waitcnt lgkmcnt"); pre = [Ins(body[0][0])]; body[0] = body[0][1:]
        assert body[0] == [x for x in body[1] if not (x.startswith("s_waitcnt vmcnt") and x not in body[0])] or \
               [x for x in body[0] if "vmcnt" not in x] == [x for x in body[1] if "vmcnt" not in x]
        lp = a.lab("loop")
        a.l = a.l[:marks[0]] + pre + [Ins("s_mov_b32 s41, 0"), Ins(f".p2align {opt('al', 3)}")] + [Ins("s_nop 0")] * opt("ao", 0) + [Ins(f"{lp}:")] + a.l[marks[4]:marks[8]] + \
              [Ins("s_add_u32 s41, s41, 1"), Ins("s_cmp_lt_u32 s41, 4"), Ins(f"s_cbranch_scc1 {lp}")] + a.l[marks[16]:]
    st("s2")
    rest = [g for g, (chs, sst, chk) in enumerate(groups) if sst is None or sst >= 27]
    late = [g for g, (chs, sst, chk) in enumerate(groups) if chk is None]
    srd(a, 12, 10, 11, 2048 * 1152)
    def red(c):
        T = 208 + 4 * (c // 2); S = 224 + 4 * (c % 2)
        a.wait(v=("H", c))
        a(f"v_mfma_f32_16x16x32_bf16 v[{T}:{T+3}], a[{S}:{S+3}], a[{HL(c)}:{HL(c)+3}], {'0' if c % 2 == 0 else f'v[{T}:{T+3}]'}")
        a.wait(v=("L", c))
        for i in range(4):
            a(f"v_mfma_f32_16x16x32_bf16 v[{T}:{T+3}], a[{S}:{S+3}], a[{PL(c,i)}:{PL(c,i)+3}], v[{T}:{T+3}]")
    lds_out = "lout" in opts
    osc = " sc1" if "osc1" in opts else " nt" if "ont" in opts else ""
    OST = 147456 + 1024
    def out(T):
        r = 208 + 4 * T
        a(f"v_cvt_pk_bf16_f32 v{r}, v{r}, v{r+1}\nv_cvt_pk_bf16_f32 v{r+1}, v{r+2}, v{r+3}")
        if T == 4: a("s_mov_b32 exec_hi, 0")
        if lds_out: a(f"ds_write_b64 v6, v[{r}:{r+1}] offset:{256*T}")
        elif "xnoout" not in opts: a(f"buffer_store_dwordx2 v[{r}:{r+1}], v5, s[12:15], s94 offen offset:{256*T}" + osc)
        if T == 4: a("s_mov_b64 exec, -1")
    def flush_out(part):
        a("s_waitcnt lgkmcnt(0)\ns_barrier")
        regs = (8, 9) if part == 0 else (10,)
        for q, r in enumerate(regs): a(f"ds_read_b128 v[{32+4*(r-8)}:{35+4*(r-8)}], v{r+3}")
        a("s_waitcnt lgkmcnt(0)")
        for q, r in enumerate(regs): a(f"buffer_store_dwordx4 v[{32+4*(r-8)}:{35+4*(r-8)}], v{r}, s[12:15], s43 offen" + osc)
    if lds_out:
        a(f"""v_accvgpr_read_b32 v8, a245
        v_accvgpr_read_b32 v9, a246
        v_accvgpr_read_b32 v10, a247
        s_lshl_b32 s93, s34, 6
        s_lshl_b32 s43, s33, 4
        s_add_u32 s93, s93, s43
        s_add_u32 s93, s93, {OST}
        v_add_u32 v6, s93, v5
        s_mul_i32 s93, s30, 2304
        s_mul_i32 s43, s29, {8*1152}
        s_add_u32 s43, s43, s93
        s_add_u32 s93, s93, {OST}
        v_min_u32 v11, 2288, v8
        v_min_u32 v12, 2288, v9
        v_min_u32 v13, 2288, v10
        v_add_u32 v11, s93, v11
        v_add_u32 v12, s93, v12
        v_add_u32 v13, s93, v13""")
    t2 = "t2" in opts
    for g in rest:
        if groups[g][1] == 27:
            last = max(groups[g][0])
            a.wait(v=lambda t: isinstance(t, tuple) and t[0] == "ST" and t[1] <= last)
            if t2: poll_check(0)
            a("s_barrier"); sig(g)
    for x in epi(8): emit(x)
    st("epi")
    done = 0
    pend = list(tailq)
    def issue(n):
        while pend and n > 0:
            x = pend.pop(0); emit(x)
            if x[0] == "x": n -= 1
    if t2:
        for c in groups[0][0]: pend += pload(c)
        issue(opt("pre", 6))
    a.wait(v=lambda t: isinstance(t, tuple) and t[0] == "ST"); a("s_barrier")
    for g in rest:
        if groups[g][1] is None: sig(g)
    rest = [g for g in late if groups[g][1] is not None and groups[g][1] < 27 and not (t2 and g == 0)] + rest
    st("drain")
    for g in rest:
        nx = sum(1 for x in pend if x[0] == "x")
        issue(nx - opt("keep", 6))
        [emit(x) for x in poll_issue(g)]
        issue(99)
        poll_check(g); a("s_barrier")
        if g == rest[-1]: st("sync4")
        for c in groups[g][0]: pend += pload(c)
    issue(99)
    for c in range(done, 9):
        red(c)
        if c >= 3 and c % 2 == 1 and not (lds_out and c == 7): out(c // 2 - 1)
        if lds_out and c == 5:
            out(2); flush_out(0)
    st("loaded")
    out(3); out(4)
    if lds_out: flush_out(1)
    st("end")
    a.spins = spins
```

```python
from common import *
from pk import divu
WOB = 36864
OOB = 0x7fffff00

def p2c_setup(a):
    a("""s_mul_i32 s27, s28, 43
    s_lshr_b32 s27, s27, 8
    s_mul_i32 s26, s27, 6
    s_sub_u32 s26, s28, s26
    s_lshl_b32 s91, s29, 2
    s_add_u32 s27, s27, s91""")
    for i in range(3):
        a(f"v_add_u32 v16, {64*i}, v15")
        divu(a, 17, 16, 12)
        a(f"""v_mul_u32_u24 v18, 12, v17
        v_sub_u32 v18, v16, v18
        v_lshrrev_b32 v19, 3, v17
        v_lshlrev_b32 v19, 1, v19
        v_xor_b32 v18, v18, v19
        v_lshlrev_b32 v18, 4, v18
        v_add_u32 v18, {2048 - 1024*i}, v18
        v_mul_u32_u24 v19, 1152, v17
        v_add_u32 v{7+i}, v19, v18
        v_lshrrev_b32 v19, 1, v17
        v_mul_u32_u24 v19, 18, v19
        v_and_b32 v17, 1, v17
        v_add_u32 v19, v19, v17
        v_mul_u32_u24 v19, 1152, v19
        v_add_u32 v{10+i}, v19, v18""")
    a(f"""v_lshrrev_b32 v16, 4, v15
    v_bfe_u32 v17, v15, 2, 2
    v_lshl_add_u32 v17, v16, 3, v17
    v_mul_u32_u24 v17, 192, v17
    v_and_b32 v18, 3, v15
    v_lshl_add_u32 v17, v18, 3, v17
    v_add_u32 v17, {WOB}, v17
    v_and_b32 v16, 1, v16
    v_lshlrev_b32 v16, 5, v16
    v_add_u32 v170, v17, v16
    v_sub_u32 v171, v17, v16
    v_add_u32 v172, 55296, v170
    v_add_u32 v173, 55296, v171
    v_and_b32 v16, 15, v15
    v_mul_u32_u24 v17, 1152, v16
    v_lshrrev_b32 v18, 4, v15
    v_lshl_add_u32 v174, v18, 3, v17
    v_lshlrev_b32 v17, 8, v18
    v_lshl_add_u32 v175, v16, 2, v17""")
    a(f"s_sub_u32 s44, s44, 2048\ns_subb_u32 s45, s45, 0\ns_add_u32 s46, s46, 2048")

def p2c_wodma(a, rot=True):
    r = []
    r.append(f"""s_mul_i32 s38, s26, 192
    s_mul_i32 s37, s30, {18*1152}
    s_add_u32 s39, s38, s37
    s_mul_i32 s37, s30, {8*18*1152}
    s_add_u32 s38, s38, s37
    s_add_u32 s38, s38, {16*1152}
    s_mul_i32 s40, s30, 3072
    s_add_u32 s40, s40, {WOB}""")
    r0 = []
    step = 4 * 18 * 1152
    if rot:
        r.append(f"s_add_u32 s43, s39, {8*step}\ns_mul_i32 s37, s26, {step}\ns_add_u32 s39, s39, s37\ns_mov_b32 s42, s39")
    for j in range(9):
        q = r0 if j == 0 else r
        q.append(f"s_add_u32 m0, s40, {j*4*3072}")
        if j < 8:
            if rot: q.append(f"s_add_u32 s39, s39, {step}\ns_cmp_ge_u32 s39, s43\ns_cselect_b32 s37, {8*step}, 0\ns_sub_u32 s39, s39, s37" if j else "s_mov_b32 s39, s42")
            else: q.append(f"s_add_u32 s39, s39, {step}" if j else f"s_sub_u32 s39, s39, {7*step}")
            q += [(f"buffer_load_dwordx4 v{7+i}, s[44:47], s39 offen offset:{i*1024} lds", "wo") for i in range(3)]
        else:
            q.append("s_nop 0")
            q += [(f"buffer_load_dwordx4 v{10+i}, s[44:47], s38 offen offset:{i*1024} lds", "wo") for i in range(3)]
    return r, r0

def p2c_xload(a):
    a(f"""s_lshl_b32 s35, s27, 2
    s_add_u32 s35, s35, s30
    s_mul_i32 s36, s35, {16*1152}
    s_mul_i32 s37, s26, 192
    s_add_u32 s36, s36, s37""")
    for t in range(6):
        a(f"buffer_load_dwordx2 v[{208+2*t}:{209+2*t}], v174, s[12:15], s36 offen offset:{32*t}", vtag="xr")

def p2c_prepoll(a, C2):
    a(f"""s_lshr_b32 s53, s27, 1
    s_lshl_b32 s53, s53, 8
    s_add_u32 s53, s53, {C2}""")
    poll_start(a, "s53")

def p2c_main(a, st, C2, C3, mid=None, early=None, late=None, pre=False, opts=()):
    O = lambda k: 64 + 4 * k
    if not pre: p2c_prepoll(a, C2)
    a(f"""s_mul_i32 s48, s35, 18432
    s_add_u32 s48, s48, {OFRAG}
    s_add_u32 s38, s48, 16384""")
    a("v_lshlrev_b32 v169, 2, v30")
    a.wait(v="wo")
    st("wo")
    poll_finish(a, "s53", 16)
    st("sync2")
    rot = "rot2" in opts
    if rot: a("s_lshl_b32 s49, s26, 11\ns_add_u32 s48, s48, s49")
    for k in range(16):
        if rot:
            if k % 2 == 0 and k: a("s_add_u32 s48, s48, 2048\ns_cmp_ge_u32 s48, s38\ns_cselect_b32 s49, 16384, 0\ns_sub_u32 s48, s48, s49")
            o = (k % 2) * 1024
        else:
            if k % 4 == 0 and k: a("s_add_u32 s48, s48, 4096")
            o = (k % 4) * 1024
        a(f"buffer_load_dwordx4 {vr(O(k),4,'a')}, v15, s[20:23], s48 offen offset:{o} sc1", vtag=("o", k))
    for e in range(8):
        a(f"buffer_load_dword a{O(16)+e}, v175, s[20:23], s38 offen offset:{(e//4)*1024 + (e%4)*64} sc1", vtag=("o", 16 + e // 4))
    if early: early()
    T = lambda t: 220 + 4 * t
    fr = [(ks, t) for ks in range(18) for t in range(6)]
    NF = 12; D = 10
    AF = lambda i: 4 * (i % NF)
    def reads(i):
        ks, t = fr[i]; f = AF(i); o = (ks % 9) * 6144 + t * 32; ad = 170 + (t % 2) + 2 * (ks // 9)
        return [f"ds_read_b64_tr_b16 a[{f}:{f+1}], v{ad} offset:{o}", f"ds_read_b64_tr_b16 a[{f+2}:{f+3}], v{ad} offset:{o+768}"]
    N = len(fr)
    for i in range(7):
        for r in reads(i): a(r, ltag=("A", i))
    D = 7
    a(f"""s_lshr_b32 s49, s35, 1
    s_mul_i32 s48, s49, 36864
    s_and_b32 s38, s35, 1
    s_lshl_b32 s38, s38, 10
    s_add_u32 s48, s48, s38
    s_mul_i32 s38, s26, 6144
    s_add_u32 s48, s48, s38
    s_mul_i32 s39, s35, 768
    s_lshl_b32 s38, s26, 7
    s_add_u32 s39, s39, s38
    s_add_u32 s39, s39, {STATS}
    s_add_u32 s53, s53, {C3-C2}
    s_mov_b32 s50, 0x3f80
    s_mov_b32 s51, 0x3f800000""")
    if HFRAG: a(f"s_add_u32 s48, s48, {HFRAG}")
    for i in range(N):
        ks, t = fr[i]
        a.wait(v=("o", ks), l=lambda tg: isinstance(tg, tuple) and tg[0] == "A" and tg[1] <= i)
        f = AF(i)
        a(f"v_mfma_f32_16x16x32_bf16 {vr(T(t),4)}, a[{f}:{f+3}], {vr(O(ks),4,'a')}, {'0' if ks == 0 else vr(T(t),4)}")
        if i % 2 == 0: a.wait(l=lambda tg: isinstance(tg, tuple) and tg[0] == "A" and tg[1] <= i + 2)
        if i + D < N and not ("xhalf2" in opts and i % 2):
            for r in reads(i + D): a(r, ltag=("A", i + D))
    st("gemm2")
    a.wait(v="xr")
    for t in range(6):
        for q in range(2):
            a(f"v_dot2_f32_bf16 v{T(t)+2*q}, v{208+2*t+q}, s50, v{T(t)+2*q}\nv_dot2_f32_bf16 v{T(t)+2*q+1}, v{208+2*t+q}, s51, v{T(t)+2*q+1}")
    for tp in range(3):
        S = 244 + 4 * tp
        for e in range(2):
            b = T(2 * tp + e)
            a(f"v_cvt_pk_bf16_f32 v{S+2*e}, v{b}, v{b+1}\nv_cvt_pk_bf16_f32 v{S+2*e+1}, v{b+2}, v{b+3}")
        if tp == 2: a("s_add_u32 s48, s48, 4096")
        a(f"buffer_store_dwordx4 {vr(S,4)}, v15, s[20:23], s48 offen offset:{(tp%2)*2048} sc1", vtag="hs")
    a("s_mov_b32 s50, 0x3f803f80")
    for q in range(12):
        c0 = "0" if q < 2 else f"v{220+2*(q&1)}"; c1 = "0" if q < 2 else f"v{221+2*(q&1)}"
        a(f"v_dot2_f32_bf16 v{220+2*(q&1)}, v{244+q}, s50, {c0}\nv_dot2_f32_bf16 v{221+2*(q&1)}, v{244+q}, v{244+q}, {c1}")
    a(f"""v_add_f32 v220, v220, v222
    v_add_f32 v221, v221, v223
    v_permlane16_swap_b32 v220, v221
    v_add_f32 v220, v220, v221
    v_mov_b32 v221, v220
    v_permlane32_swap_b32 v220, v221
    v_add_f32 v220, v220, v221
    s_mov_b32 exec_hi, 0
    buffer_store_dword v220, v169, s[20:23], s39 offen sc1
    s_mov_b64 exec, -1""", vtag="hs")
    if mid:
        a("s_barrier"); mid()
    a.wait(v="hs"); a("s_barrier")
    st("hst")
    signal(a, "s53")
    if late: late()
```

```python
import sys, json
from common import *
from pk import divu
import ffn17
from p2c import p2c_wodma, p2c_xload, p2c_main, p2c_prepoll, WOB
from pk2 import touch3

LOG2E = 0x3fb8aa3b
SP = 147456; MOFF = SP; KVL = SP + 6144; ZERO = KVL + 3840; STX = SP + 10240
KVS = 2816; QS = 1280; KVB = 36 * QS; KVR = 9 * KVS; QR = 9 * QS
C1, C2, C3, C4, C0 = FLAGS, FLAGS + 4096, FLAGS + 8192, FLAGS + 12288, FLAGS + 61440
PB = 1024
OOB = 0x7fffff00

def softmax16(a, P, E, vmask):
    for b in range(2):
        p = P[b]
        a(f"v_max3_f32 v{16+b}, v{p}, v{p+1}, v{p+2}\nv_min3_f32 v{18+b}, v{p}, v{p+1}, v{p+2}")
    for i in (3, 5, 7):
        for b in range(2):
            p = P[b]
            a(f"v_max3_f32 v{16+b}, v{16+b}, v{p+i}, v{p+i+1}\nv_min3_f32 v{18+b}, v{18+b}, v{p+i}, v{p+i+1}")
    for b in range(2):
        p = P[b]
        a(f"v_max_f32 v{16+b}, v{16+b}, v{p+9}\nv_min_f32 v{18+b}, v{18+b}, v{p+9}")
    a("""v_permlane16_swap_b32 v16, v17
    v_permlane16_swap_b32 v18, v19
    v_max_f32 v16, v16, v17
    v_min_f32 v18, v18, v19
    v_mul_f32 v20, s48, v16
    v_mul_f32 v24, s48, v18
    v_mov_b32 v22, v20
    v_mov_b32 v26, v24
    v_permlane16_swap_b32 v20, v22
    v_permlane16_swap_b32 v24, v26""")
    for b in range(2):
        for i in range(0, 10, 2):
            p = P[b] + i; e = E[b] + i
            a(f"v_pk_fma_f32 v[{e}:{e+1}], v[{p}:{p+1}], s[48:49], v[{24+2*b}:{25+2*b}] op_sel_hi:[1,0,0] neg_lo:[1,0,0] neg_hi:[1,0,0]")
            a(f"v_pk_fma_f32 v[{p}:{p+1}], v[{p}:{p+1}], s[48:49], v[{20+2*b}:{21+2*b}] op_sel_hi:[1,0,0] neg_lo:[0,0,1] neg_hi:[0,0,1]")
    for b in range(2):
        for i in range(10): a(f"v_exp_f32 v{P[b]+i}, v{P[b]+i}\nv_exp_f32 v{E[b]+i}, v{E[b]+i}")
    sets = [P[0], P[1], E[0], E[1]]
    for s in sets: a(f"v_pk_mul_f32 v[{s+8}:{s+9}], v[{s+8}:{s+9}], v[{vmask}:{vmask+1}] op_sel_hi:[1,0]")
    for k, s in enumerate(sets): a(f"v_pk_add_f32 v[{16+2*k}:{17+2*k}], v[{s}:{s+1}], v[{s+2}:{s+3}]")
    for k, s in enumerate(sets): a(f"v_pk_add_f32 v[{24+2*k}:{25+2*k}], v[{s+4}:{s+5}], v[{s+6}:{s+7}]")
    for k, s in enumerate(sets): a(f"v_pk_add_f32 v[{16+2*k}:{17+2*k}], v[{16+2*k}:{17+2*k}], v[{s+8}:{s+9}]")
    for k in range(4): a(f"v_pk_add_f32 v[{16+2*k}:{17+2*k}], v[{16+2*k}:{17+2*k}], v[{24+2*k}:{25+2*k}]")
    for k in range(4): a(f"v_add_f32 v{16+2*k}, v{16+2*k}, v{17+2*k}")
    a("""v_permlane16_swap_b32 v16, v18
    v_permlane16_swap_b32 v20, v22
    v_add_f32 v16, v16, v18
    v_add_f32 v20, v20, v22
    v_rcp_f32 v16, v16
    v_rcp_f32 v20, v20
    s_nop 0
    v_mov_b32 v18, v16
    v_mov_b32 v22, v20
    v_permlane16_swap_b32 v16, v18
    v_permlane16_swap_b32 v20, v22""")
    for k, s in enumerate(sets):
        for i in range(0, 10, 2): a(f"v_pk_mul_f32 v[{s+i}:{s+i+1}], v[{s+i}:{s+i+1}], v[{16+2*k}:{17+2*k}] op_sel_hi:[1,0]")

def gen(diag, opts):
    a = A("K"); st = Stamps(a, diag, 0); tb = Table("K_tab")
    opt = lambda k, d: next((int(o[len(k):]) for o in reversed(opts) if re.fullmatch(k + r'\d+', o)), d)
    X = lambda k: 64 + 4 * k
    K0, K1, V0, V1, EE = 48, 56, 64, 72, 80
    B0, B1 = 32, 40
    P = (88, 100); E = (140, 152); Z = (176, 188); VP = 200
    a("s_cmp_ge_u32 s2, 256\ns_cbranch_scc1 K_end")
    a("""s_load_dwordx4 s[4:7], s[0:1], 0
    s_load_dwordx4 s[8:11], s[0:1], 16
    s_load_dwordx4 s[88:91], s[0:1], 72""")
    st("entry")
    code_prefetch(a, "K_start", "K_tab_end", 16, "a[0:2]", wide=True)
    a("K_start:")
    a("""v_lshrrev_b32 v16, 6, v0
    v_and_b32 v15, 63, v0
    v_mov_b32 v14, v0
    v_readfirstlane_b32 s30, v16
    s_and_b32 s31, s2, 3
    s_lshl_b32 s31, s31, 2
    s_bfe_u32 s33, s2, 0x20003
    s_add_u32 s32, s31, s33
    s_bfe_u32 s31, s2, 0x10002
    s_lshl_b32 s31, s31, 3
    s_lshr_b32 s33, s2, 5
    s_add_u32 s31, s31, s33
    s_lshr_b32 s28, s2, 3
    s_and_b32 s29, s2, 7""")
    a(f"""v_and_b32 v16, 7, v15
    v_lshrrev_b32 v17, 3, v15
    v_mul_u32_u24 v13, 1152, v16
    v_lshl_add_u32 v13, v17, 4, v13
    v_lshlrev_b32 v5, 4, v15
    s_lshl_b32 s36, s32, 4
    s_add_u32 s36, s36, s31
    s_mul_i32 s36, s36, {8*1152}
    s_lshl_b32 s37, s30, 7
    s_add_u32 s36, s36, s37
    s_cmp_eq_u32 s30, 0
    s_cselect_b32 s37, 0, {OOB}
    s_add_u32 s37, s37, s36
    s_mul_i32 s34, s30, {KVR}
    s_add_u32 s34, s34, {KVB}
    s_lshl_b32 s35, s32, 2
    s_add_u32 s35, s35, s30""")
    a("s_waitcnt lgkmcnt(0)")
    srd(a, 12, 4, 5, 2048 * 1152)
    srd(a, 20, 90, 91, WS_BYTES)
    sk = a.lab("noinit"); saved = list(a.vm)
    a(f"""s_lshl_b32 s33, s2, 2
    s_add_u32 s33, s33, s30
    s_cmp_lg_u32 s33, 515
    s_cbranch_scc1 {sk}
    v_lshlrev_b32 v16, 8, v15
    v_mov_b32 v17, 0
    s_mov_b32 s38, {FLAGS}""")
    for q in range(4):
        a("buffer_store_dword v17, v16, s[20:23], s38 offen sc1\ns_add_u32 s38, s38, 16384")
    a(f"{sk}:")
    a.vm = saved
    a("""buffer_load_dwordx4 v[160:163], v13, s[12:15], s36 offen
    buffer_load_dwordx4 v[164:167], v13, s[12:15], s36 offen offset:512
    buffer_load_dwordx4 v[168:171], v13, s[12:15], s37 offen offset:1024""", vtag="x8")
    srd(a, 24, 88, 89, 256)
    if "fine" not in opts: st("start")
    for i in range(3):
        a(f"v_add_u32 v16, {64*i}, v15")
        divu(a, 17, 16, 11)
        a(f"""v_mul_u32_u24 v18, 11, v17
        v_sub_u32 v18, v16, v18
        v_and_b32 v19, 8, v17
        v_and_b32 v20, 1, v17
        v_lshl_add_u32 v19, v20, 2, v19
        v_bfe_u32 v17, v17, 1, 2
        v_add_u32 v17, v17, v19
        v_mul_u32_u24 v17, 3456, v17
        v_lshl_add_u32 v17, v18, 4, v17
        v_mov_b32 v19, {1152 + 2048 - i*1024}
        v_mov_b32 v16, {2304 - 80 + 2048 - i*1024}
        v_cmp_lt_u32 vcc, 4, v18
        v_mov_b32 v20, {2304 + 36 - 128 + 2048 - i*1024}
        v_cmp_lt_u32 s[38:39], 7, v18
        v_cndmask_b32 v19, v19, v16, vcc
        v_cmp_eq_u32 vcc, 4, v18
        v_cndmask_b32_e64 v19, v19, v20, s[38:39]
        v_cmp_eq_u32 s[38:39], 7, v18
        v_cndmask_b32_e64 v16, 0, 8, vcc
        v_cmp_eq_u32 vcc, 10, v18
        v_cndmask_b32_e64 v16, v16, 12, s[38:39]
        v_add_u32 v{i}, v17, v19
        v_cndmask_b32_e64 v16, v16, 12, vcc
        v_sub_u32 v{i}, v{i}, v16""")
    a(f"""s_sub_u32 s16, s6, 2048
    s_subb_u32 s17, s7, 0
    s_mov_b32 s18, {576*3456+2048}
    s_mov_b32 s19, 0x20000""")
    if "twq" in opts:
        nseg = opt("tseg", 2)
        for q in range(1 if nseg == 2 else 2):
            a(f"""v_add_u32 v18, {256*q}, v14
            v_mul_u32_u24 v16, {65536//(5*nseg)+1}, v18
            v_lshrrev_b32 v16, 16, v16
            v_mul_u32_u24 v17, {5*nseg}, v16
            v_sub_u32 v17, v18, v17
            v_mul_u32_u24 v19, 13108, v17
            v_lshrrev_b32 v19, 16, v19
            v_lshl_add_u32 v17, v19, 2, v17
            v_mul_u32_u24 v16, 3456, v16
            v_lshl_add_u32 v16, v17, 7, v16
            v_mov_b32 v17, {OOB}
            v_cmp_gt_u32 vcc, {18*5*nseg}, v18
            s_mul_i32 s37, s28, {18*3456}
            s_lshr_b32 s38, s29, 2
            s_lshl_b32 s38, s38, 9
            s_add_u32 s37, s37, s38
            s_add_u32 s37, s37, {2048 + (1152 if nseg == 2 else 0)}
            v_cndmask_b32 v16, v17, v16, vcc""")
            a(f"buffer_load_dword a{4+q}, v16, s[16:19], s37 offen", vtag="touch")
    srd(a, 40, 8, 9, 32 * 648)
    if "mearly" in opts:
        a(f"""v_bfe_u32 v16, v15, 3, 2
        v_bfe_u32 v17, v15, 1, 1
        v_and_b32 v18, 1, v15
        v_mul_u32_u24 v19, 5, v17
        v_lshl_add_u32 v19, v16, 1, v19
        v_add_u32 v19, v19, v18
        v_lshlrev_b32 v20, 2, v17
        v_add_u32 v20, 4, v20
        v_cmp_eq_u32 vcc, 2, v16
        v_lshl_add_u32 v16, v16, 1, v18
        v_lshrrev_b32 v21, 5, v15
        v_cndmask_b32 v19, v19, v20, vcc
        v_mul_u32_u24 v21, 9, v21
        v_add_lshl_u32 v19, v19, v21, 2
        v_mov_b32 v22, {OOB}
        v_cmp_gt_u32 vcc, 5, v16
        v_bfe_u32 v17, v15, 2, 1
        s_mul_i32 s38, s30, 6
        v_cndmask_b32 v19, v22, v19, vcc
        v_cmp_eq_u32 vcc, 0, v17
        s_mul_i32 s39, s31, 1296
        s_nop 0
        v_cndmask_b32 v20, v22, v19, vcc
        v_cndmask_b32 v21, v19, v22, vcc""")
        for i in range(6):
            a(f"""s_add_u32 s37, s38, {i}
            s_lshl_b32 s96, s37, 8
            s_add_u32 m0, s96, {MOFF}
            s_cmp_lt_u32 s37, 9
            s_cselect_b64 vcc, -1, 0
            s_mul_i32 s96, s37, 72
            s_add_u32 s96, s96, s39
            v_cndmask_b32 v16, v21, v20, vcc
            s_cmp_ge_u32 s37, 18
            s_cselect_b32 s96, 0x100000, s96""")
            a("buffer_load_dword v16, s[40:43], s96 offen lds", vtag="wphi")
    a(f"""s_sub_u32 s44, s10, 2048
    s_subb_u32 s45, s11, 0
    s_mov_b32 s46, {576*1152+2048}
    s_mov_b32 s47, 0x20000""")
    a("s_load_dwordx8 s[4:11], s[0:1], 40")
    tb.srd(a, 88)
    a("""s_and_b32 s37, s32, 3
    s_lshl_b32 s37, s37, 1
    s_and_b32 s99, s31, 7
    s_add_u32 s99, s99, s37
    s_cmp_ge_u32 s99, 9
    s_cselect_b32 s37, 9, 0
    s_sub_u32 s99, s99, s37""")
    a(f"""s_mul_i32 s101, s30, {16*3456}
    s_mul_i32 s37, s31, 72
    s_add_u32 s101, s101, s37
    s_add_u32 s100, s101, {576*3456}
    s_mul_i32 s37, s99, {64*3456}
    s_add_u32 s101, s101, s37
    s_mov_b32 s51, s101""")
    def em(x):
        if isinstance(x, tuple) and x[1] == "qwait": a.wait(v="tab2")
        elif isinstance(x, tuple): a(x[0], vtag=x[1])
        else: a(x)
    def kvdma(j):
        r = [f"s_add_u32 m0, s34, {j*KVS}", f"s_add_u32 s101, s101, {64*3456}\ns_cmp_ge_u32 s101, s100\ns_cselect_b32 s37, {576*3456}, 0\ns_sub_u32 s101, s101, s37" if j else "s_nop 0"]
        r += [(f"buffer_load_dwordx4 v{i}, s[16:19], s101 offen offset:{i*1024} lds", ("w", j)) for i in range(2)]
        r += ["s_mov_b32 exec_hi, 0xffff", (f"buffer_load_dwordx4 v2, s[16:19], s101 offen offset:2048 lds\ns_mov_b32 exec_hi, -1", ("w", j))]
        return r
    NK0 = opt("nka", 2); NK2 = opt("nkc", 7)
    if NK0: a("s_barrier")
    for j in range(NK0): [em(x) for x in kvdma(j)]
    a(f"""s_mov_b32 s50, 0x3f803f80
    v_and_b32 v16, 7, v15
    v_lshrrev_b32 v17, 5, v15
    v_lshlrev_b32 v18, 4, v16
    v_lshl_add_u32 v19, v17, 7, v18
    v_lshl_add_u32 v6, v17, 11, v18
    v_bfe_u32 v17, v15, 3, 2
    v_lshl_add_u32 v6, v17, 8, v6
    s_lshl_b32 s37, s30, 2
    s_add_u32 s37, s37, {STX}
    v_add_u32 v19, s37, v19
    v_add_u32 v18, {STX}, v18""")
    a(f"""s_lshr_b32 s36, s31, 2
    s_lshl_b32 s37, s32, 2
    s_add_u32 s36, s36, s37
    s_mul_i32 s36, s36, 36864
    s_bfe_u32 s37, s31, 0x10001
    s_lshl_b32 s37, s37, 10
    s_add_u32 s36, s36, s37
    s_and_b32 s37, s31, 1
    s_lshl_b32 s37, s37, 7
    s_add_u32 s36, s36, s37
    s_lshl_b32 s37, s30, 12
    s_add_u32 s36, s36, s37
    s_add_u32 s36, s36, {XFRAG}
    s_add_u32 s38, s36, 16384
    s_cmp_eq_u32 s30, 0
    s_cselect_b32 s39, 0, {OOB}
    s_add_u32 s39, s39, s38
    s_add_u32 s39, s39, 16384
    s_lshl_b32 s53, s32, 8
    s_add_u32 s53, s53, {C0}""")
    a.wait(v="x8")
    sk = a.lab("noflag"); saved = list(a.vm)
    a(f"""s_cmp_lg_u32 s33, 515
    s_cbranch_scc1 {sk}
    v_mov_b32 v16, 1
    v_mov_b32 v17, 0
    s_mov_b64 exec, 1
    buffer_store_dword v16, v17, s[24:27], 0 offen sc1
    s_mov_b64 exec, -1
    {sk}:""")
    a.vm = saved
    if "fine" not in opts: st("x8")
    for j in range(12):
        c0 = "0" if j < 2 else f"v{24+(j&1)}"; c1 = "0" if j < 2 else f"v{26+(j&1)}"
        a(f"v_dot2_f32_bf16 v{24+(j&1)}, v{160+j}, s50, {c0}\nv_dot2_f32_bf16 v{26+(j&1)}, v{160+j}, v{160+j}, {c1}")
    a("""v_add_f32 v24, v24, v25
    v_add_f32 v26, v26, v27
    v_permlane32_swap_b32 v24, v26
    v_add_f32 v24, v24, v26
    v_mov_b32 v25, v24
    v_permlane16_swap_b32 v24, v25
    v_add_f32 v24, v24, v25
    v_add_f32_dpp v24, v24, v24 row_ror:8 row_mask:0xf bank_mask:0xf
    s_mov_b32 s50, 0xffff0000
    ds_write_b32 v19, v24""")
    for k in range(3):
        for j in range(4): a(f"v_lshlrev_b32_e32 v{176+8*k+2*j}, 16, v{160+4*k+j}\nv_and_b32_e32 v{177+8*k+2*j}, s50, v{160+4*k+j}")
    a("""s_waitcnt lgkmcnt(0)
    s_barrier
    ds_read_b128 v[24:27], v18
    ds_read_b128 v[28:31], v18 offset:128
    s_waitcnt lgkmcnt(0)
    v_pk_add_f32 v[24:25], v[24:25], v[26:27]
    v_pk_add_f32 v[28:29], v[28:29], v[30:31]
    v_add_f32 v24, v24, v25
    v_add_f32 v26, v28, v29
    v_mul_f32 v24, 0x3ae38e39, v24
    v_mul_f32 v26, 0x3ae38e39, v26
    v_fma_f32 v26, -v24, v24, v26
    v_max_f32 v26, 0, v26
    v_add_f32 v26, 0x3727c5ac, v26
    v_rsq_f32 v12, v26
    s_nop 0
    v_mul_f32_e64 v13, -v24, v12""")
    for k, so in ((0, "s36"), (1, "s38"), (2, "s39")):
        b_ = 160 + 4 * k; u = 176 + 8 * k
        for j in range(4): a(f"v_pk_fma_f32 v[{u+2*j}:{u+2*j+1}], v[{u+2*j}:{u+2*j+1}], v[12:13], v[12:13] op_sel:[0,0,1] op_sel_hi:[1,0,1]")
        for j in range(4): a(f"v_cvt_pk_bf16_f32 v{b_+j}, v{u+2*j}, v{u+2*j+1}")
        a(f"buffer_store_dwordx4 {vr(b_,4)}, v6, s[20:23], {so} offen sc1", vtag="xs")
    aINI = 31
    a(f"v_mov_b32 v16, 0\nbuffer_load_dword v{aINI}, v16, s[24:27], 0 offen sc1", vtag="xs")
    st("ln")
    g_ = lambda l: l >> 4
    r_ = lambda l: (l >> 2) & 3
    c_ = lambda l: l & 3
    n_ = lambda l: l & 15
    pos = lambda l: 8 * (g_(l) & 1) + 2 * r_(l)
    row_of = lambda p: 8 * (p >> 3) + 4 * (p & 1) + ((p >> 1) & 3)
    kvb = lambda l: KVB + (g_(l) >> 1) * KVR + pos(l) * 176
    def qsrc(i):
        def f(l):
            p = 64 * i + l; ps, pc = divmod(p, 5)
            return row_of(ps & 15) * 3456 + pc * 16 - (8 if pc == 4 else 0) + 2048 - 1024 * i
        return f
    def msrc(head):
        def f(l):
            u = l & 31; p = u >> 3; gp = (u >> 1) & 3; pair = u & 1; half = gp & 1
            if p > 2 or (p == 2 and pair) or gp >> 1 != head: return OOB
            fp = 5 * half + 2 * p + pair if p < 2 else (4 if half == 0 else 8)
            return ((l >> 5) * 9 + fp) * 4
        return f
    def nrd(p2):
        def f(l):
            i = n_(l); g2 = i >> 2; r = i & 3; gp = g_(l)
            if g2 >> 1 != gp >> 1 or (p2 and r == 3): return ZERO
            d = (16 + r) if p2 else 8 * (g2 & 1) + r
            return KVL + (gp >> 1) * 1920 + d * 96 + (gp & 1) * 48
        return f
    def kwr(tile):
        def f(l):
            gam = 32 * tile + 16 * (g_(l) >> 1) + n_(l); e = g_(l) & 1
            if gam < 40: hf, d = divmod(gam, 20); q = 2 * e + hf
            elif gam < 56: d = 2 * (gam - 40) + e; q = 4
            else: d = 99; q = 0
            if d >= 19: return 0x40000000
            return KVL + d * 96 + (q // 3) * 48 + (q % 3) * 8
        return f
    sel = lambda hi, j: (lambda l: (0x3f80 if n_(l) == 8 * hi + 2 * j else 0) | (0x3f800000 if n_(l) == 8 * hi + 2 * j + 1 else 0))
    def wosrc(i, extra):
        def f(l):
            p = 64 * i + l; row, pc = divmod(p, 12); pc ^= 2 * (row >> 3)
            srow = (row >> 1) * 18 + (row & 1) if extra else row
            return srow * 1152 + pc * 16 + 2048 - 1024 * i
        return f
    word = lambda l: WOB + (8 * g_(l) + r_(l)) * 192 + 8 * c_(l)
    def touch9(stride, n, w):
        return lambda l: ((64 * w + l) // 9) * stride + ((64 * w + l) % 9) * 128 if 64 * w + l < n else OOB
    aT, aTE, aQ, aQE, aM = 112, 114, 116, 117, 118
    aMS0 = 120; aZW, aZV, aZX = 122, 123, 124; aZA, aZB = 125, 127
    aP4, aP2, aPL, aPL3 = 129, 130, 131, 132; aN0, aN2, aKA, aKB = 133, 134, 135, 136; aMK, aOX = 138, 137
    zrd = lambda l: KVB + (8 * (l >> 5) + r_(l)) * 144 + (4 * ((l >> 4) & 1) + c_(l)) * 8
    T = "tab"
    tl = [tb.load(112, [lambda l: kvb(l) + 8 * c_(l), lambda l: kvb(l) + 8 * c_(l) + 2 * KVR,
                        lambda l: kvb(l) + (72, 120, 168, 72)[c_(l)], lambda l: kvb(l) + (72, 120, 168, 72)[c_(l)] + 2 * KVR], 5, 88),
          tb.load(116, [lambda l: (g_(l) >> 1) * QR + pos(l) * 80 + 8 * c_(l), lambda l: (g_(l) >> 1) * QR + pos(l) * 80 + 72,
                        lambda l: MOFF + (4 * g_(l) + r_(l)) * 128 + 8 * c_(l), lambda l: nrd(0)(l) + (0 if nrd(0)(l) == ZERO else 384)], 5, 88),
          tb.load(120, [msrc(0), msrc(1), lambda l: (g_(l) >> 1) * 4608 + n_(l) * 144 + (g_(l) & 1) * 24, lambda l: n_(l) * 144 + 96 + 8 * g_(l)], 5, 88),
          tb.load(124, [lambda l: (g_(l) - 1) * 4608 + n_(l) * 144 + 128 if g_(l) in (1, 2) else 0x40000000, zrd, lambda l: zrd(l) + 2 * KVR, lambda l: zrd(l) + 96], 5, 88),
          tb.load(128, [lambda l: zrd(l) + 96 + 2 * KVR, lambda l: (l - 12 * (l >> 5)) * 16, lambda l: 640 + (l & 31) * 8, lambda l: g_(l) * 4 * PB + n_(l) * 16], 5, 88),
          tb.load(132, [lambda l: g_(l) * 4 * PB + n_(l) * 16 if n_(l) < 8 else OOB, nrd(0), nrd(1), kwr(0)], 5, 88),
          tb.load(136, [kwr(1), lambda l: 16384 + (g_(l) >> 1) * 64 + n_(l) * 4 if g_(l) % 2 == 0 else OOB, lambda l: 0 if g_(l) & 1 else 0x3f800000, lambda l: 0], 5, 88),
          tb.load(164, [qsrc(0), qsrc(1), lambda l: 0, lambda l: 0], 5, 88),
          tb.load(8, [wosrc(1, 0), wosrc(2, 0), wosrc(0, 1), wosrc(1, 1)], 5, 88),
          tb.load(168, [wosrc(0, 0), wosrc(2, 1), lambda l: word(l) + 32 * (g_(l) & 1), lambda l: word(l) - 32 * (g_(l) & 1)], 5, 88),
          tb.load(172, [lambda l: word(l) + 32 * (g_(l) & 1) + 55296, lambda l: word(l) - 32 * (g_(l) & 1) + 55296, lambda l: n_(l) * 1152 + 8 * g_(l), lambda l: 256 * g_(l) + 4 * n_(l)], 5, 88),
          tb.load(224, [sel(0, j) for j in range(4)], 5, 88, "a"),
          tb.load(228, [sel(1, j) for j in range(4)], 5, 88, "a")]
    a(f"""v_mov_b32 v24, 0
    v_mov_b32 v25, 0
    v_mov_b32 v26, 0
    v_mov_b32 v27, 0
    v_lshlrev_b32 v16, 4, v14
    v_add_u32 v16, {KVL}, v16
    ds_write_b128 v16, v[24:27]
    s_mov_b32 s48, {LOG2E}
    s_mov_b32 s49, {LOG2E}
    s_mov_b32 s54, 0xfffff
    s_mov_b32 s55, 0xfffff
    s_lshl_b32 s38, s31, 6
    s_add_u32 s38, s38, s30
    s_mul_i32 s52, s38, {PB}
    s_add_u32 s52, s52, {KVP}""")
    for q in range(6): a(f"v_accvgpr_write_b32 a{246+4*(q//2)+(q%2)}, 0")
    for q in (5, 11): a(f"v_mov_b32 v{Z[0]+q}, 0\nv_mov_b32 v{Z[1]+q}, 0")
    for b_ in range(2): a(f"v_mov_b32 v{B1+4*b_+2}, 0\nv_mov_b32 v{B1+4*b_+3}, 0\nv_mov_b32 v{VP+9+2*b_}, 0x3f80")
    def touch_wo():
        a(f"""v_mul_u32_u24 v16, 7282, v14
        v_lshrrev_b32 v16, 16, v16
        v_mul_u32_u24 v17, 9, v16
        v_sub_u32 v17, v14, v17
        v_mul_u32_u24 v16, 1152, v16
        v_lshl_add_u32 v16, v17, 7, v16
        v_mov_b32 v17, {OOB}
        v_cmp_gt_u32 vcc, 162, v14
        s_mul_i32 s96, s28, {18*1152}
        s_add_u32 s96, s96, 2048
        v_cndmask_b32 v16, v17, v16, vcc""")
        a(f"buffer_load_dword a208, v16, s[44:47], s96 offen", vtag="touch")
    def touch_gu(rows):
        n = rows // 64
        a(f"""v_mul_u32_u24 v16, 7282, v15
        v_lshrrev_b32 v16, 16, v16
        v_mul_u32_u24 v17, 9, v16
        v_sub_u32 v17, v15, v17
        v_mul_u32_u24 v16, 9216, v16
        v_lshl_add_u32 v16, v17, 7, v16
        v_mov_b32 v17, {OOB}
        v_cmp_gt_u32 vcc, {9*n}, v15
        s_cmp_lt_u32 s30, 2
        s_cselect_b32 s92, s4, s6
        s_cselect_b32 s93, s5, s7
        s_mov_b32 s94, {576*9216}
        s_mov_b32 s95, 0x20000
        s_lshl_b32 s96, s28, 1
        s_and_b32 s97, s30, 1
        s_add_u32 s96, s96, s97
        s_mul_i32 s96, s96, {n*9216}
        s_mul_i32 s97, s29, 1152
        s_add_u32 s96, s96, s97
        v_cndmask_b32 v16, v17, v16, vcc""")
        a(f"buffer_load_dword a209, v16, s[92:95], s96 offen", vtag="touch")
    if "tabln" in opts:
        for x in tl: a(x.replace("v[164:167]", "v[212:215]").replace("v[168:171]", "v[216:219]"), vtag=T)
        tl = []
    if "tw0" in opts: touch_wo()
    if opt("gu", 0): touch_gu(opt("gu", 0))
    a.wait(v="xs"); a("s_barrier")
    signal(a, "s53", check_init=aINI)
    st("sig0")
    urgent = range(13) if 'taball' in opts else (0, 2)
    for q in urgent:
        if tl: a(tl[q], vtag=T)
    tl = [(x, "tab2") for q, x in enumerate(tl) if q not in urgent]
    a("""s_mul_i32 s27, s28, 43
    s_lshr_b32 s27, s27, 8
    s_mul_i32 s26, s27, 6
    s_sub_u32 s26, s28, s26
    s_lshl_b32 s37, s29, 2
    s_add_u32 s27, s27, s37""")
    PA = opt("pa", 2)
    for j in range(NK0, NK2):
        if j == NK2 - PA: poll_start(a, "s53")
        [em(x) for x in kvdma(j)]
    if PA == 0: poll_start(a, "s53")
    if "two" in opts: touch_wo()
    a(f"""s_mul_i32 s36, s35, 36864
    s_add_u32 s36, s36, {XFRAG}
    s_add_u32 s33, s36, 36864
    s_lshl_b32 s37, s99, 12
    s_add_u32 s36, s36, s37""")
    st("pre")
    poll_finish(a, "s53", 16)
    st("sync0")
    def xload(g):
        r = [] if g == 0 else ["s_add_u32 s36, s36, 4096\ns_cmp_ge_u32 s36, s33\ns_cselect_b32 s37, 36864, 0\ns_sub_u32 s36, s36, s37"]
        return r + [(f"buffer_load_dwordx4 {vr(X(4*g+q),4,'a')}, v5, s[20:23], s36 offen offset:{q*1024} sc1", ("X", 2 * g + q // 2)) for q in range(4)]
    NX0 = opt("nx", 2)
    for g in range(NX0): [em(x) for x in xload(g)]
    a.wait(v=T)
    if "tabln" in opts:
        for q in range(8): a(f"v_mov_b32 v{164+q}, v{212+q}")
    def fixups():
        a.wait(v="tab2")
        a(f"""v_mov_b32 v7, v168
        v_mov_b32 v12, v169
        v_add_u32 v{aZW}, s34, v{aZW}
        v_add_u32 v{aZV}, s34, v{aZV}
        v_add_u32 v{aZX}, s34, v{aZX}
        v_min_u32 v{aZX}, {STX}, v{aZX}
        s_lshr_b32 s92, s30, 1
        s_and_b32 s93, s30, 1
        s_mul_i32 s96, s92, 4608
        s_mul_i32 s97, s93, 48
        s_add_u32 s97, s97, s96
        v_add_u32 v{aZA}, s97, v{aZA}
        v_add_u32 v{aZA+1}, s97, v{aZA+1}
        v_add_u32 v{aZB}, s96, v{aZB}
        v_add_u32 v{aZB+1}, s96, v{aZB+1}
        s_mul_i32 s96, s92, 1920
        s_mul_i32 s97, s93, 24
        s_add_u32 s97, s97, s96
        v_add_u32 v{aKA}, s97, v{aKA}
        v_add_u32 v{aKB}, s97, v{aKB}
        v_min_u32 v{aKA}, {STX}, v{aKA}
        v_min_u32 v{aKB}, {STX}, v{aKB}""")
    mq = ["s_mul_i32 s38, s30, 6\ns_mul_i32 s39, s31, 1296"]
    for i in range(6):
        mq += [f"""s_add_u32 s37, s38, {i}
        s_lshl_b32 s96, s37, 8
        s_add_u32 m0, s96, {MOFF}
        s_cmp_lt_u32 s37, 9
        s_cselect_b64 vcc, -1, 0
        s_mul_i32 s96, s37, 72
        s_add_u32 s96, s96, s39
        v_cndmask_b32 v16, v{aMS0+1}, v{aMS0}, vcc
        s_cmp_ge_u32 s37, 18
        s_cselect_b32 s96, 0x100000, s96""", ("buffer_load_dword v16, s[40:43], s96 offen lds", "wphi")]
    WP = lambda stp, p: 232 + 12 * stp + 4 * p
    def mreads():
        a.wait(v="tab2")
        for p in range(3):
            f = WP(0, p); f1 = WP(1, p)
            a(f"ds_read_b64_tr_b16 a[{f}:{f+1}], v{aM} offset:{32*p}\nds_read_b64_tr_b16 a[{f+2}:{f+3}], v{aM} offset:{32*p+2048}\nds_read_b64_tr_b16 a[{f1}:{f1+1}], v{aM} offset:{32*p+4096}")
    AF = lambda i: 4 * (i % 8)
    def reads(i, lst):
        ks, T_, ad, off, sz = lst[i]
        j = ks // 2; f = AF(i)
        if sz == 176: o = j * KVS + off; ad += ks % 2
        else: o = 2 * (ks % 2) * QR + j * QS + off
        return [f"ds_read_b64_tr_b16 a[{f}:{f+1}], v{ad} offset:{o}", f"ds_read_b64_tr_b16 a[{f+2}:{f+3}], v{ad} offset:{o+sz}"]
    D = 6
    def gemm(lst, bars, memq, mper=1, hook=None, mstart=0):
        N = len(lst); per = N // 9
        def flush(pred):
            while any(isinstance(x, tuple) and pred(x[1]) for x in memq): em(memq.pop(0))
        def maybe_bar(i):
            if i < N and i % per == 0 and (i // per) in bars:
                lim = bars[i // per]
                pred = lambda t: (isinstance(t, tuple) and t[0] == "w" and t[1] <= lim) or (t in ("wphi", "tab2") and i // per == 8)
                flush(pred); a.wait(v=pred); a("s_barrier")
        lw = lambda lim: a.wait(l=lambda t: isinstance(t, tuple) and t[0] == "A" and t[1] <= lim)
        for i in range(D):
            maybe_bar(i)
            for r in reads(i, lst): a(r, ltag=("A", i))
        for i in range(N):
            ks, T_, ad, off, sz = lst[i]
            flush(lambda t: t == ("X", ks))
            a.wait(v=("X", ks)); lw(i)
            f = AF(i)
            rd = reads(i + D, lst) if i + D < N else []
            for b_ in range(2):
                a(f"v_mfma_f32_16x16x32_bf16 {vr(T_+4*b_,4)}, a[{f}:{f+3}], {vr(X(2*ks+b_),4,'a')}, {'0' if ks == 0 else vr(T_+4*b_,4)}")
                if b_ == 0 and i + D < N: maybe_bar(i + D)
                if b_ == 1: lw(i + 1)
                if rd: a(rd[b_], ltag=("A", i + D))
            if hook and i in hook: hook[i]()
            if memq and i % mper == 0 and i >= mstart:
                while memq and not isinstance(memq[0], tuple): em(memq.pop(0))
                if memq: em(memq.pop(0))
        for x in memq: em(x)
    memq = []
    kvleft = list(range(NK2, 9))
    for g in range(NX0, 9):
        memq += xload(g)
        if kvleft and g >= opt("kx", 2): memq += kvdma(kvleft.pop(0))
    for j in kvleft: memq += kvdma(j)
    MP = opt("mqp", 99)
    memq = memq[:MP] + ([] if "mearly" in opts else mq) + tl + memq[MP:]
    qq = []
    for j in range(9):
        qq.append([f"s_mul_i32 s37, s30, {QR}\ns_add_u32 m0, s37, {j*QS}", f"s_add_u32 s51, s51, {64*3456}\ns_cmp_ge_u32 s51, s100\ns_cselect_b32 s37, {576*3456}, 0\ns_sub_u32 s51, s51, s37" if j else "s_nop 0",
                 ("buffer_load_dwordx4 v164, s[16:19], s51 offen lds", "wq"), "s_mov_b64 exec, 0xffff",
                 ("buffer_load_dwordx4 v165, s[16:19], s51 offen offset:1024 lds\ns_mov_b64 exec, -1", "wq")])
    NQ = opt("nq", 3)
    QW = ("s_nop 0", "qwait")
    if NQ: memq.append(QW)
    for g in qq[:NQ]: memq += g
    qq = qq[NQ:]
    fr = [(ks, T_, ad, off, 176) for ks in range(18) for (T_, ad, off) in ((K0, aT, 0), (K1, aT, 32), (EE, aTE, 0), (V0, aT, 80), (V1, aT, 128))]
    bars = {j: j for j in range(NK2, 9)}; bars.update({0: min(2, NK2 - 1), 3: NK2 - 1} if NK2 > 3 else {0: NK2 - 1}); bars[8] = 8
    hk = {82: mreads}
    if "fine" in opts:
        st("setup")
        for q in (0, 10, 20, 30, 40, 50, 60, 70): hk[q] = (lambda q=q: st(f"g{q}"))
    if "xnoq" in opts: memq = [x for x in memq if not (isinstance(x, tuple) and x[1] == "wq") and x != "s_mov_b64 exec, 0xffff"]
    gemm(fr, bars, memq, mper=opt("mp", 2), hook=hk)
    fixups()
    if "twl" in opts: touch_wo()
    st("gemm")
    if "fine" in opts: st.dump("s[20:23]", "s30", 16, 17); st.kidx += 1; st.groups.append([])
    def packB():
        for b_ in range(2):
            a(f"""v_cvt_pk_bf16_f32 v{B0+4*b_}, v{K0+4*b_}, v{K0+4*b_+1}
            v_cvt_pk_bf16_f32 v{B0+4*b_+1}, v{K0+4*b_+2}, v{K0+4*b_+3}
            v_cvt_pk_bf16_f32 v{B0+4*b_+2}, v{K1+4*b_}, v{K1+4*b_+1}
            v_cvt_pk_bf16_f32 v{B0+4*b_+3}, v{K1+4*b_+2}, v{K1+4*b_+3}
            v_cvt_pk_bf16_f32 v{B1+4*b_}, v{EE+4*b_}, v{EE+4*b_+1}
            v_cvt_pk_bf16_f32 v{B1+4*b_+1}, v{EE+4*b_+2}, v{EE+4*b_+3}""")
    def feat():
        for stp in range(2):
            for b_ in range(2):
                for p in range(3):
                    f = WP(stp, p); d = P[b_] + 4 * p
                    a(f"v_mfma_f32_16x16x32_bf16 {vr(d,4)}, a[{f}:{f+3}], {vr((B0, B1)[stp]+4*b_,4)}, {'0' if stp == 0 else vr(d,4)}")
    def packZ(b_):
        for sg, S in ((0, P), (1, E)):
            for q in range(5): a(f"v_cvt_pk_bf16_f32 v{Z[b_]+6*sg+q}, v{S[b_]+2*q}, v{S[b_]+2*q+1}")
    packB()
    a("s_waitcnt lgkmcnt(0)")
    feat()
    for g in qq[:2]: [em(x) for x in g]
    qq = qq[2:]
    for b_ in range(2):
        for h, V in ((0, V0), (1, V1)):
            d = VP + 4 * b_ + 2 * h
            a(f"v_cvt_pk_bf16_f32 v{d}, v{V+4*b_}, v{V+4*b_+1}\nv_cvt_pk_bf16_f32 v{d+1}, v{V+4*b_+2}, v{V+4*b_+3}")
        a(f"v_mov_b32 v{VP+8+2*b_}, v{B1+4*b_+1}")
    a("s_barrier")
    for b_ in range(2):
        for h in range(2): a(f"ds_write_b64 v{aZV}, {vr(VP+4*b_+2*h,2)} offset:{h*4608 + b_*2304}")
        a(f"ds_write_b64 v{aZX}, {vr(VP+8+2*b_,2)} offset:{b_*2304}")
    sub = "sub" in opts
    def call_sm():
        pc = a.lab("cs")
        a(f"""s_getpc_b64 s[92:93]
        {pc}:
        s_add_u32 s92, s92, K_sm-{pc}
        s_addc_u32 s93, s93, 0
        s_nop 7
        s_swappc_b64 s[94:95], s[92:93]""")
    if sub:
        for g in qq: [em(x) for x in g]
        call_sm()
    else:
        b = A("S"); softmax16(b, P, E, aMK); sm = [x.text for x in b.l]
        per = len(sm) // (len(qq) + opt('qs', 1))
        for g in qq:
            [em(x) for x in g]
            for x in sm[:per]: a(x)
            sm = sm[per:]
        for x in sm: a(x)
    if "twm" in opts: touch_wo()
    if opt("gv", 0): touch_gu(opt("gv", 0))
    for b_ in range(2):
        if not sub: packZ(b_)
        for sg in range(2):
            for q in range(3): a(f"ds_write_b64 v{aZW}, {vr(Z[b_]+6*sg+2*q,2)} offset:{b_*2304 + 48*sg + 8*q}")
    a(f"""s_mul_i32 s37, s32, {4*PB}
    s_add_u32 s37, s37, s52
    s_lshl_b32 s53, s31, 8
    s_add_u32 s53, s53, {C1}""")
    a("s_waitcnt lgkmcnt(0)\ns_barrier")
    st("smk")
    for stp in range(8):
        w = stp // 2; o = (w % 2) * KVR + (stp % 2) * 16 * 144
        va, vb = aZA + w // 2, aZB + w // 2
        f = 8 * stp
        a(f"ds_read_b64_tr_b16 a[{f}:{f+1}], v{va} offset:{o}\nds_read_b64_tr_b16 a[{f+2}:{f+3}], v{va} offset:{o+576}", ltag=("Z", stp))
        a(f"ds_read_b64_tr_b16 a[{f+4}:{f+5}], v{vb} offset:{o}\nds_read_b64_tr_b16 a[{f+6}:{f+7}], v{vb} offset:{o+576}", ltag=("Z", stp))
        if stp >= 2:
            s2 = stp - 2; f = 8 * s2
            a.wait(l=("Z", s2))
            a(f"v_mfma_f32_32x32x16_bf16 v[64:79], a[{f}:{f+3}], a[{f+4}:{f+7}], {'0' if s2 == 0 else 'v[64:79]'}")
    for s2 in (6, 7):
        f = 8 * s2
        a.wait(l=("Z", s2))
        a(f"v_mfma_f32_32x32x16_bf16 v[64:79], a[{f}:{f+3}], a[{f+4}:{f+7}], v[64:79]")
    for q in range(6): a(f"v_cvt_pk_bf16_f32 v{16+q}, v{64+2*q}, v{65+2*q}")
    a(f"""s_mov_b64 exec, s[54:55]
    buffer_store_dwordx4 v[16:19], v{aP4}, s[20:23], s37 offen sc1
    s_mov_b32 exec_lo, -1
    s_mov_b32 exec_hi, 0
    buffer_store_dwordx2 v[20:21], v{aP2}, s[20:23], s37 offen sc1
    s_mov_b64 exec, -1""", vtag="kvs")
    st("kvmm")
    if "twk" in opts: touch_wo()
    if opt("gw", 0): touch_gu(opt("gw", 0))
    def sig1():
        a.wait(v="kvs"); a("s_barrier")
        signal(a, "s53")
        st("kvst")
    a.wait(v="wq"); a("s_barrier")
    a("s_cmp_ge_u32 s28, 24\ns_cselect_b32 s46, 0, s46")
    wq, wq0 = p2c_wodma(a, "rot2" in opts)
    gemm([(ks, T_, ad, off, 80) for ks in range(18) for (T_, ad, off) in ((K0, aQ, 0), (K1, aQ, 32), (EE, aQE, 0))], {}, wq, mper=opt("wp", 2), hook={opt("hk", 12): sig1, opt("p1", 44): lambda: poll_start(a, "s53")}, mstart=opt("wst", 0))
    packB()
    feat()
    st("qgemm")
    early = "smfirst" in opts
    def smq():
        if sub: call_sm()
        else: softmax16(a, P, E, aMK); packZ(0); packZ(1)
    if early: smq()
    poll_finish(a, "s53", 16)
    st("sync1")
    rot1 = "norot1" not in opts
    if rot1: a(f"s_add_u32 s36, s52, {64*PB}\ns_and_b32 s37, s32, 3\ns_mul_i32 s37, s37, {16*PB}\ns_add_u32 s52, s52, s37")
    for i in range(4):
        if i: a(f"s_add_u32 s52, s52, {16*PB}" + (f"\ns_cmp_ge_u32 s52, s36\ns_cselect_b32 s37, {64*PB}, 0\ns_sub_u32 s52, s52, s37" if rot1 else ""))
        for u in range(4):
            r = 64 + 16 * i + 4 * u
            a(f"buffer_load_dwordx4 a[{r}:{r+3}], v{aPL3 if u == 3 else aPL}, s[20:23], s52 offen offset:{256*u} sc1", vtag=("kv", i))
    for x in wq0: em(x)
    if not early: smq()
    for i in range(4):
        a.wait(v=("kv", i))
        for u in range(4):
            r = 64 + 16 * i + 4 * u; T_ = 48 + 4 * (u // 2); S = 224 + 4 * (u % 2)
            a(f"v_mfma_f32_16x16x32_bf16 v[{T_}:{T_+3}], a[{S}:{S+3}], a[{r}:{r+3}], {'0' if (i == 0 and u % 2 == 0) else f'v[{T_}:{T_+3}]'}")
    st("smq")
    a(f"""s_mul_i32 s36, s35, 36864
    s_add_u32 s36, s36, {OFRAG}
    s_lshl_b32 s37, s31, 7
    s_add_u32 s37, s37, s36
    s_add_u32 s39, s37, 18432
    s_lshl_b32 s38, s31, 10
    s_add_u32 s36, s36, s38
    s_add_u32 s38, s36, 18432
    s_lshl_b32 s53, s32, 8
    s_add_u32 s53, s53, {C2}
    v_cvt_pk_bf16_f32 v16, v48, v49
    v_cvt_pk_bf16_f32 v17, v50, v51
    v_cvt_pk_bf16_f32 v18, v52, v53
    v_cvt_pk_bf16_f32 v19, v54, v55
    ds_write_b64 v{aKA}, v[16:17]
    ds_write_b64 v{aKB}, v[18:19]
    s_waitcnt lgkmcnt(0)
    s_barrier""")
    st("kvred")
    for t in range(3):
        for p in (2, 0, 1):
            f = 12 * t + 4 * p
            a(f"ds_read_b128 a[{f}:{f+3}], v{(aN0, 119, aN2)[p]} offset:{16*t}", ltag=("K", t))
    for t in range(3):
        a.wait(l=("K", t))
        for p in (2, 0, 1):
            for b_ in range(2):
                f = 12 * t + 4 * p; d = P[b_] + 4 * p
                a(f"v_mfma_f32_16x16x32_bf16 {vr(d,4)}, a[{f}:{f+3}], {vr(Z[b_]+4*t,4)}, {'0' if t == 0 else vr(d,4)}")
    for b_ in range(2): a(f"v_add_f32 v{P[b_]+10}, 0x358637bd, v{P[b_]+10}")
    for b_ in range(2): a(f"v_rcp_f32 v{P[b_]+10}, v{P[b_]+10}")
    for b_ in range(2):
        p = P[b_]
        for q in range(0, 10, 2): a(f"v_pk_mul_f32 v[{p+q}:{p+q+1}], v[{p+q}:{p+q+1}], v[{p+10}:{p+11}] op_sel_hi:[1,0]")
        for q in range(5): a(f"v_cvt_pk_bf16_f32 v{16+8*b_+q}, v{p+2*q}, v{p+2*q+1}")
        a(f"buffer_store_dwordx4 {vr(16+8*b_,4)}, v5, s[20:23], {('s36', 's38')[b_]} offen sc1\nbuffer_store_dword v{20+8*b_}, v{aOX}, s[20:23], {('s37', 's39')[b_]} offen sc1")
    a("s_waitcnt vmcnt(0)\ns_barrier")
    signal(a, "s53")
    st("ost")
    st.dump("s[20:23]", "s30", 16, 17)
    def front(setup, dma0, zero):
        o2 = "ord2" in opts; ap2 = o2 or "ap2" in opts; z0 = o2 or "z0" in opts
        if ap2: p2c_prepoll(a, C2)
        p2c_xload(a)
        setup()
        a("s_cmp_ge_u32 s28, 24\ns_cbranch_scc1 K_idle")
        sv = list(a.vm)
        zl = "zl" in opts
        late = None if o2 else (lambda: (zero(0), dma0(0), dma0(1))) if zl else (lambda: (dma0(0), dma0(1)))
        p2c_main(a, st, C2, C3, early=(lambda: zero(0)) if z0 else None, late=late, pre=ap2, opts=opts)
        st.dump("s[20:23]", "s30", 21, 22)
        a("s_branch K_ffn\nK_idle:")
        a.vm = sv
        if "idma" in opts: dma0(0); dma0(1)
        if "tw3" in opts: touch3(a, opt("t3f", 64), opt("t3r", 24))
        if z0 or zl: zero(0)
        if o2: a.wait(v="ftab")
        elif "idma" not in opts: dma0(0); dma0(1)
        if ap2: a("s_waitcnt lgkmcnt(0)")
        a("K_ffn:")
        if not z0 and not zl: zero(0)
        a.vm = ["unknown"] * 8
    a.spins = []
    ffn17.ffn_body(a, st, opts, C3, C4, front, tb)
    st.dump("s[20:23]", "s30", 16, 17)
    a("s_endpgm")
    for x in a.spins: a(x)
    if sub:
        a(".p2align 3\nK_sm:"); softmax16(a, P, E, aMK); packZ(0); packZ(1); a("s_nop 1\ns_setpc_b64 s[94:95]")
    a("K_end:\ns_endpgm")
    return a, st, tb

if __name__ == "__main__":
    out = sys.argv[1]; opts = sys.argv[2:]
    amp = next((o[4:].split(",") for o in opts if o.startswith("amp=")), None)
    a, st, tb = gen((amp[0], amp[1], int(amp[2])) if amp else "cyc" if "cyc" in opts else "dbg" if "dbg" in opts else "lite" if "lite" in opts else "diag" in opts, opts)
    t = a.text() + tb.text()
    NAME = "sequential_preLN__linear_kernel_hedgehog__glu_gated_reglu__prompt_kernel"
    hdr = "".join(l for l in open("sequential_preLN__linear_kernel_hedgehog__glu_gated_reglu__prompt.s.ref") if l.startswith(";") and "@launch" not in l and "Override" not in l and "grid=" not in l)
    s = hdr + "; @launch grid=(256,1,1) block=(256,1,1) lds=163840\n" + '.amdgcn_target "amdgcn-amd-amdhsa--gfx950"\n.text\n' + kernel(NAME, t) + '.section .rodata,"a"\n' + descriptor(NAME, 512, 256)
    open(out, "w").write(s)
    json.dump(st.groups, open(out + ".json", "w"))
    print("nops", a.padded, "instrs", len(a.l), st.groups)
```

```python
from asmlib import *
from layout import *

class Stamps:
    def __init__(self, a, on, kidx=0):
        self.a = a; self.on = on; self.n = 0; self.kidx = kidx; self.names = []; self.groups = []
    def __call__(self, name):
        if not self.on: return
        if isinstance(self.on, tuple):
            if name == self.on[0]: self.a("s_memrealtime s[56:57]")
            if name == self.on[1]: self.a("s_memrealtime s[58:59]")
            self.names.append(name)
            return
        if name[0] == "g" and name[1:].isdigit() and int(name[1:]) >= 17 and self.on != "lite2": return
        if self.on == "lite2" and name not in ("entry", "g17", "s1", "g19", "g20", "g21", "g22", "g23", "g24", "g25", "g26", "s2", "epi", "drain", "sync4", "end"): return
        if self.on in ("dbg", "lite") and name not in ("entry", "x8", "sync0", "gemm", "kvst", "sync1", "ost", "sync2", "sync3", "bar0", "s1", "s2", "drain", "sync4", "end"): return
        saved = list(self.a.lg)
        self.a(f"{'s_memtime' if self.on == 'cyc' else 's_memrealtime'} s[{56+2*self.n}:{57+2*self.n}]")
        if self.on in ("lite", "lite2"): self.a.lg = saved
        self.names.append(name); self.n += 1
        assert self.n <= 16
    def dump(self, srd, wave, va=0, vd=1):
        if not self.on: return
        a = self.a
        if isinstance(self.on, tuple):
            if self.names[-1] != "end": return
            sk = a.lab("noamp"); lp = a.lab("amp")
            a(f"""s_waitcnt lgkmcnt(0)
            s_lshl_b32 s3, s2, 2
            s_add_u32 s3, s3, {wave}
            s_cmp_lg_u32 s3, {self.on[2] * 4}
            s_cbranch_scc1 {sk}
            s_sub_u32 s58, s58, s56
            s_mul_i32 s58, s58, 4
            s_min_u32 s58, s58, 100000
            s_memrealtime s[60:61]
            s_waitcnt lgkmcnt(0)
            {lp}:
            s_memrealtime s[62:63]
            s_waitcnt lgkmcnt(0)
            s_sub_u32 s62, s62, s60
            s_cmp_lt_u32 s62, s58
            s_cbranch_scc1 {lp}
            {sk}:""")
            return
        if self.on in ("lite", "lite2") and self.names[-1] != "end": return
        if self.on == "dbg":
            if self.names[-1] != "end": return
            sk = a.lab("nodbg")
            a(f"""s_load_dwordx2 s[4:5], s[0:1], 72
            s_waitcnt lgkmcnt(0)
            s_lshl_b32 s3, s2, 2
            s_add_u32 s3, s3, {wave}
            s_cmp_lg_u32 s3, 28
            s_cbranch_scc1 {sk}
            s_mov_b32 s6, 256
            s_mov_b32 s7, 0x20000
            v_mov_b32 v{vd}, 0""")
            for q in range(1, self.n): a(f"s_sub_u32 s3, s{56+2*q}, s56\nv_writelane_b32 v{vd}, s3, {q}")
            a(f"""v_mbcnt_lo_u32_b32 v{va}, -1, 0
            v_lshlrev_b32 v{va}, 2, v{va}
            s_mov_b64 exec, 0xfffe
            buffer_store_dword v{vd}, v{va}, s[4:7], 0 offen
            s_mov_b64 exec, -1
            {sk}:""")
            self.groups.append(self.names)
            return
        a(f"s_waitcnt lgkmcnt(0)\nv_mov_b32 v{vd}, 0")
        for q in range(self.n): a(f"v_writelane_b32 v{vd}, s{56+2*q}, {q}")
        a(f"""s_lshl_b32 s3, s2, 2
        s_add_u32 s3, s3, {wave}
        s_lshl_b32 s3, s3, 6
        s_add_u32 s3, s3, {TS + self.kidx * 0x10000}
        v_mbcnt_lo_u32_b32 v{va}, -1, 0
        v_lshlrev_b32 v{va}, 2, v{va}
        s_mov_b64 exec, 0xffff
        buffer_store_dword v{vd}, v{va}, {srd}, s3 offen
        s_mov_b64 exec, -1""")
        self.groups.append(self.names); self.names = []; self.n = 0; self.kidx += 1

def code_prefetch(a, lab_from, lab_to, vaddr, vdst, nwg_shift=3, reps=1, wide=False):
    pc = a.lab("pc")
    a(f"""s_getpc_b64 s[92:93]
    {pc}:
    s_add_u32 s92, s92, {lab_from}-{pc}
    s_addc_u32 s93, s93, 0
    s_mov_b32 s94, {lab_to}-{lab_from}
    s_mov_b32 s95, 0x20000
    s_lshr_b32 s96, s2, {nwg_shift}
    s_mul_i32 s96, s96, {3072 if wide else 2048}
    v_mul_u32_u24 v{vaddr}, {12 if wide else 8}, v0""")
    for r in range(reps):
        if r: a("s_add_u32 s96, s96, 0x10000")
        a(f"buffer_load_dwordx{3 if wide else 2} {vdst}, v{vaddr}, s[92:95], s96 offen", vtag="pf")

def srd(a, d, lo, hi, nbytes):
    a(f"s_mov_b32 s{d}, s{lo}\ns_mov_b32 s{d+1}, s{hi}\ns_mov_b32 s{d+2}, {nbytes}\ns_mov_b32 s{d+3}, 0x20000")

def signal(a, cnt_sreg, vt=None, check_init=False, cnt2=None):
    sk = a.lab("sig"); saved = list(a.lg)
    a(f"""s_cmp_lg_u32 s30, 0
    s_cbranch_scc1 {sk}""")
    if check_init:
        lp = a.lab("ini"); dn = a.lab("inid"); sv = list(a.vm)
        a(f"""s_mov_b32 s97, 0
        {lp}:
        v_readfirstlane_b32 s98, v{check_init}
        s_cmp_eq_u32 s98, 1
        s_cbranch_scc1 {dn}
        v_mov_b32 v16, 0
        buffer_load_dword v{check_init}, v16, s[24:27], 0 offen sc1
        s_add_u32 s97, s97, 1
        s_cmp_lt_u32 s97, 0x40000
        s_waitcnt vmcnt(0)
        s_cbranch_scc1 {lp}
        {dn}:""")
        a.vm = sv
    a(f"""s_mov_b32 s98, 1
    s_atomic_add s98, s[20:21], {cnt_sreg}""")
    if cnt2: a(f"s_atomic_add s98, s[20:21], {cnt2}")
    a(f"{sk}:")
    a.lg = saved

def poll(a, cnt_sreg, target, vt=None):
    sk = a.lab("pk"); lp = a.lab("poll"); dn = a.lab("done"); saved = list(a.lg)
    a(f"""s_cmp_lg_u32 s30, 0
    s_cbranch_scc1 {sk}
    s_mov_b32 s97, 0
    s_waitcnt lgkmcnt(0)
    {lp}:
    s_mov_b32 s98, 0
    s_atomic_add s98, s[20:21], {cnt_sreg} glc
    s_add_u32 s97, s97, 1
    s_waitcnt lgkmcnt(0)
    s_cmp_ge_u32 s98, {target}
    s_cbranch_scc1 {dn}
    s_cmp_lt_u32 s97, 0x40000
    s_cbranch_scc1 {lp}
    {dn}:
    {sk}:
    s_barrier""")
    a.lg = saved

def init_check(a, vreg):
    lp = a.lab("ini"); dn = a.lab("inid"); sv = list(a.vm)
    a(f"""s_cmp_lg_u32 s30, 0
    s_cbranch_scc1 {dn}
    s_mov_b32 s97, 0
    {lp}:
    v_readfirstlane_b32 s98, v{vreg}
    s_cmp_eq_u32 s98, 1
    s_cbranch_scc1 {dn}
    v_mov_b32 v16, 0
    buffer_load_dword v{vreg}, v16, s[24:27], 0 offen sc1
    s_add_u32 s97, s97, 1
    s_cmp_lt_u32 s97, 0x40000
    s_waitcnt vmcnt(0)
    s_cbranch_scc1 {lp}
    {dn}:""")
    a.vm = sv

def poll2(a, c0, t0, c1, t1):
    sk = a.lab("pk"); lp = a.lab("poll"); dn = a.lab("done"); saved = list(a.lg)
    a(f"""s_cmp_lg_u32 s30, 0
    s_cbranch_scc1 {sk}
    s_mov_b32 s97, 0
    s_waitcnt lgkmcnt(0)
    {lp}:
    s_mov_b32 s98, 0
    s_mov_b32 s96, 0
    s_atomic_add s98, s[20:21], {c0} glc
    s_atomic_add s96, s[20:21], {c1} glc
    s_add_u32 s97, s97, 1
    s_waitcnt lgkmcnt(0)
    s_cmp_ge_u32 s98, {t0}
    s_cselect_b32 s96, s96, 0
    s_cmp_ge_u32 s96, {t1}
    s_cbranch_scc1 {dn}
    s_cmp_lt_u32 s97, 0x40000
    s_cbranch_scc1 {lp}
    {dn}:
    {sk}:
    s_barrier""")
    a.lg = saved

class Table:
    def __init__(self, label):
        self.label = label; self.chunks = []
    def chunk(self, fns):
        fns = list(fns) + [lambda l: 0] * (4 - len(fns))
        self.chunks.append([[f(l) & 0xffffffff for f in fns] for l in range(64)])
        return len(self.chunks) - 1
    def srd(self, a, d):
        pc = a.lab("tpc")
        a(f"""s_getpc_b64 s[{d}:{d+1}]
        {pc}:
        s_add_u32 s{d}, s{d}, {self.label}-{pc}
        s_addc_u32 s{d+1}, s{d+1}, 0
        s_mov_b32 s{d+2}, {self.label}_end-{self.label}
        s_mov_b32 s{d+3}, 0x20000""")
    def load(self, dst, fns, vaddr, d, kind="v"):
        c = self.chunk(fns)
        so = "0" if c < 4 else None
        if c < 4: return f"buffer_load_dwordx4 {kind}[{dst}:{dst+3}], v{vaddr}, s[{d}:{d+3}], 0 offen offset:{c*1024}"
        return f"s_movk_i32 s3, {(c//4)*4096}\nbuffer_load_dwordx4 {kind}[{dst}:{dst+3}], v{vaddr}, s[{d}:{d+3}], s3 offen offset:{(c%4)*1024}"
    def text(self):
        s = f".p2align 7\n.type {self.label},@object\n{self.label}:\n"
        for ch in self.chunks:
            for l in range(64): s += ".long " + ", ".join(f"{v:#x}" for v in ch[l]) + "\n"
        return s + f"{self.label}_end:\n.size {self.label}, {self.label}_end-{self.label}\n"

def poll_start(a, cnt_sreg):
    sk = a.lab("ps"); saved = list(a.lg)
    a(f"""s_cmp_lg_u32 s30, 0
    s_cbranch_scc1 {sk}
    s_mov_b32 s96, 0
    s_atomic_add s96, s[20:21], {cnt_sreg} glc
    {sk}:""")
    a.lg = saved

def poll_finish(a, cnt_sreg, target):
    sk = a.lab("pf"); lp = a.lab("pfl"); saved = list(a.lg)
    a(f"""s_cmp_lg_u32 s30, 0
    s_cbranch_scc1 {sk}
    s_mov_b32 s97, 0
    {lp}:
    s_waitcnt lgkmcnt(0)
    s_cmp_ge_u32 s96, {target}
    s_cbranch_scc1 {sk}
    s_mov_b32 s96, 0
    s_atomic_add s96, s[20:21], {cnt_sreg} glc
    s_add_u32 s97, s97, 1
    s_cmp_lt_u32 s97, 0x40000
    s_cbranch_scc1 {lp}
    s_waitcnt lgkmcnt(0)
    {sk}:
    s_barrier""")
    a.lg = saved
```

```python
from common import *
from ffn16 import dma_offsets, store_setup
UNIT = 18432; SLOT = 2 * UNIT

def ffn_body(a, st, opts, C3, C4, front, tb=None):
    opt = lambda k, d: next((int(o[len(k):]) for o in reversed(opts) if re.fullmatch(k + r'\d+', o)), d)
    diag = st.on
    T0 = 21
    G = lambda t: 64 + 8 * t
    def U(t): return ("v", 208 + 8 * t) if t < 6 else ("a", 96 + 8 * (t - 6))
    XR = lambda k: 32 + 8 * (k % 4)
    NF = opt("nf", 8); D = NF - 2; NA = opt("na", 3)
    AF = lambda i: 192 + 4 * (i % NF)
    def emit(it):
        if len(it) > 2 and it[2][0] == "F":
            saved = list(a.lg); a(it[1]); a.lg = saved
        elif len(it) > 2: a(it[1], vtag=it[2])
        else: a(it[1])
    pol = " sc1" if "dsc1" in opts else " nt" if "dnt" in opts else " sc0" if "dsc0" in opts else ""
    def blocks(P):
        if P < 18 + NA: return [(J, cg) for J in range(9) for cg in range(NA)][9 * (P - 18):9 * (P - 17)]
        return [(J, P - 18) for J in range(9)]
    def dma_pair(P):
        r = []; slot = P % 4
        if P < 18:
            for i in range(9):
                if i % 4 == 0: r.append(("m", f"s_add_u32 m0, s37, {slot*SLOT + i*1024}"))
                r.append(("d", f"buffer_load_dwordx4 v{i}, s[12:15], s36 offen offset:{(i%4)*1024}{pol} lds", ("P", P)))
            return r + [("s", f"s_add_u32 s36, s36, {32*9216}")]
        for b, (J, cg) in enumerate(blocks(P)):
            r.append(("m", f"s_add_u32 m0, s40, {slot*SLOT + b*4096}"))
            r.append(("s", f"s_add_u32 s39, s38, {J*32*1152 + cg*128}"))
            r.append(("d", f"buffer_load_dwordx4 v0, s[16:19], s39 offen{pol} lds", ("P", P)))
        return r
    def dsrc(i):
        def f(l):
            p = i * 1024 + l * 16; row, col = divmod(p, 576)
            return row * 9216 + (col ^ (32 if row & 4 else 0)) + 3072 - (i % 4) * 1024
        return f
    rdb = lambda l, sg: (l >> 2) * 576 + 8 * (l & 3) + sg * 32 * ((l >> 4) & 1)
    OOBV = 0x7fffff00
    def setup():
        a(f"""v_mov_b32 v30, v15
        s_lshl_b32 s31, s29, 1
        s_and_b32 s33, s28, 1
        s_add_u32 s31, s31, s33
        s_lshr_b32 s32, s28, 1
        s_and_b32 s33, s30, 1
        s_lshr_b32 s34, s30, 1
        v_lshlrev_b32 v15, 4, v30""")
        for x in (tb.load(0, [dsrc(i) for i in range(4)], 15, 88), tb.load(4, [dsrc(i) for i in range(4, 8)], 15, 88),
                  tb.load(8, [dsrc(8)] + [(lambda l, q=q: rdb(l, 1) + 55296 * q) for q in range(3)], 15, 88),
                  tb.load(16, [(lambda l, q=q: rdb(l, -1) + 55296 * q) for q in range(3)], 15, 88),
                  tb.load(24, [lambda l: (l // 9) * 9216 + (l % 9) * 128 if l < 18 else OOBV, lambda l: l * 128 if l < 11 else OOBV,
                               lambda l: (l >> 5) * 768 + (l & 31) * 4], 15, 88),
                  tb.load(236, [lambda l: (l >> 3) * 1152 + (((l & 7) << 4) ^ ((l >> 4) << 5))] +
                               [(lambda l, t=t: 2 * SLOT + (l >> 2) * 128 + 8 * (l & 3) + 32 * (((l >> 3) & 3) ^ t)) for t in range(3)], 15, 88, "a"),
                  tb.load(240, [lambda l: 2 * SLOT + (l >> 2) * 128 + 8 * (l & 3) + 32 * (((l >> 3) & 3) ^ 3),
                                lambda l: (l & 7) * 1152 + 8 * ((l >> 3) & 1) + 128 * (l >> 5) + 32 * ((l >> 4) & 1),
                                lambda l: ((l >> 3) & 1) * 256 + (l & 7) * 16 if l < 16 else OOBV,
                                lambda l: (l >> 4) * 9216 + (l & 15) * 16], 15, 88, "a"),
                  tb.load(244, [lambda l: ((l >> 3) & 1) * 147456 + (l >> 4) * 128 + (l & 7) * 16,
                                lambda l: (l // 48) * 1152 + (l % 48) * 16, lambda l: 1152 + (l + 16) * 16 if l < 32 else OOBV,
                                lambda l: (l // 24) * 1152 + 768 + (l % 24) * 16 if l < 48 else OOBV], 15, 88, "a")):
            a(x, vtag="ftab")
        a(f"""s_cmp_eq_u32 s34, 0
        s_cselect_b32 s12, s4, s6
        s_cselect_b32 s13, s5, s7
        s_sub_u32 s12, s12, 3072
        s_subb_u32 s13, s13, 0
        s_mov_b32 s14, {576*9216+3072}
        s_mov_b32 s15, 0x20000""")
        srd(a, 16, 8, 9, 4608 * 1152)
        a(f"""s_mul_i32 s36, s31, 576
        s_mul_i32 s39, s33, {16*9216}
        s_add_u32 s36, s36, s39
        s_mul_i32 s37, s30, 9216""")
    def dma0(P):
        a.wait(v="ftab")
        [emit(x) for x in dma_pair(P)]
    loop = "noloop" not in opts
    def zero(part):
        if "mz" in opts:
            if part == 0:
                for q in range(4): a(f"v_mov_b32 v{60+q}, 0")
            blk = [("v", r) for r in range(64, 160, 16)] + [("a", r) for r in (144, 160, 176)] if part == 0 else [("v", r) for r in range(160, 256, 16)] + [("a", r) for r in (96, 112, 128)]
            for k, r in blk: a(f"v_mfma_f32_32x32x16_bf16 {vr(r,16,k)}, v[60:63], v[60:63], 0")
            return
        regs = []
        for t in range(18):
            for q in range(8):
                regs.append(("v", G(t) + q)); k, b = U(t); regs.append((k, b + q))
        for (k, r) in regs:
            late = (k == "v" and r >= 168) or (k == "a" and r < 136)
            if late == (part == 1): a(f"v_mov_b32 v{r}, 0" if k == "v" else f"v_accvgpr_write_b32 a{r}, 0")
    front(setup, dma0, zero)
    o2 = "ord2" in opts
    if o2:
        a(f"s_lshl_b32 s53, s32, 8\ns_add_u32 s53, s53, {C3}")
        poll_start(a, "s53")
        dma0(0)
    tl = "notl" not in opts
    if tl:
        a(f"""v_mov_b32 v31, v24
        v_mov_b32 v14, v25
        s_lshl_b32 s50, s28, 1
        s_add_u32 s50, s50, s33
        s_mul_i32 s50, s50, {2*9216}
        s_mul_i32 s51, s29, 1152
        s_add_u32 s50, s50, s51
        s_add_u32 s50, s50, {opt("tla", 256)*9216 + 3072}
        s_lshl_b32 s51, s28, 2
        s_add_u32 s51, s51, s30
        s_mul_i32 s51, s51, {11*128}
        s_mul_i32 s52, s29, {576*1152}
        s_add_u32 s51, s51, s52""")
    a(f"""s_lshl_b32 s35, s32, 2
    s_add_u32 s35, s35, s30
    s_mul_i32 s43, s35, 1536
    s_mul_i32 s35, s35, 36864
    s_add_u32 s43, s43, {STATS}
    s_mul_i32 s38, s31, {288*1152}
    s_mul_i32 s39, s30, {8*1152}
    s_add_u32 s38, s38, s39
    s_lshl_b32 s40, s30, 10
    s_mov_b32 s47, 0xffff0000
    s_lshl_b32 s53, s32, 8
    s_add_u32 s53, s53, {C3}
    v_mov_b32 v29, v26""")
    if HFRAG: a(f"s_add_u32 s35, s35, {HFRAG}")
    if o2: poll_finish(a, "s53", 12)
    else: poll(a, "s53", 12)
    st("sync3")
    def xload(k):
        r = []
        for h in range(2):
            r.append(("x", f"buffer_load_dwordx4 {vr(XR(k)+4*h,4)}, v15, s[20:23], s35 offen offset:{h*1024} sc1", ("X", k)))
        return r + [("s", "s_add_u32 s35, s35, 2048")]
    for q in range(6): a(f"buffer_load_dword v{(56,57,58,59,27,28)[q]}, v29, s[20:23], s43 offen offset:{128*q} sc1", vtag="st")
    XA = opt("xa", 2)
    for k in range(3 if XA == 3 else 2): [emit(x) for x in xload(k)]
    if o2: dma0(1)
    if loop: zero(1)
    a.wait(v="st")
    a("""v_add_f32 v56, v56, v57
    v_add_f32 v58, v58, v59
    v_add_f32 v27, v27, v28
    v_add_f32 v56, v56, v58
    v_add_f32 v56, v56, v27
    v_mul_f32 v56, 0x3ae38e39, v56
    v_mov_b32 v57, v56
    v_permlane16_swap_b32 v56, v57
    v_fma_f32 v57, -v56, v56, v57
    v_max_f32 v57, 0, v57
    v_add_f32 v57, 0x3727c5ac, v57
    v_rsq_f32 v12, v57
    s_nop 0
    v_mul_f32_e64 v19, -v56, v12
    v_mov_b32 v13, v12
    v_mov_b32 v20, v19
    v_permlane32_swap_b32 v12, v13
    v_permlane32_swap_b32 v19, v20""")
    def norm(k):
        r = []
        if "xnonorm" in opts: return r
        for h in range(2):
            b = XR(k) + 4 * h
            for j in range(4):
                r.append(("v", f"v_lshlrev_b32_e32 v{T0+2*j}, 16, v{b+j}"))
                r.append(("v", f"v_and_b32_e32 v{T0+1+2*j}, s47, v{b+j}"))
            for j in range(8):
                r.append(("v", f"v_fma_f32 v{T0+j}, v{T0+j}, v{12+h}, v{19+h}"))
            for j in range(4):
                r.append(("v", f"v_cvt_pk_bf16_f32 v{b+j}, v{T0+2*j}, v{T0+1+2*j}"))
        return r
    def conv(J):
        r = []
        for h in range(2):
            for e in range(2):
                t = 2 * J + e; g = G(t) + 4 * h; k, u = U(t); u += 4 * h
                for q in range(4):
                    if k == "a": r.append(("v", f"v_accvgpr_read_b32 v{T0+q}, a{u+q}"))
                    r.append(("v", f"v_max_f32_e32 v{g+q}, 0, v{g+q}"))
                for q in range(4):
                    src = f"v{T0+q}" if k == "a" else f"v{u+q}"
                    r.append(("v", f"v_mul_f32_e32 v{g+q}, v{g+q}, {src}"))
                d = G(2 * J) + 4 * h + 2 * e
                for q in range(2):
                    r.append(("v", f"v_cvt_pk_bf16_f32 v{d+q}, v{g+2*q}, v{g+2*q+1}"))
            if "emu" in opts:
                r.append(("st", f"buffer_store_dwordx4 {vr(G(2*J)+4*h,4)}, v29, s[20:23], s43 offen offset:{h*1024} sc1", ("HS", J)))
                if h: r.append(("s", "s_add_u32 s43, s43, 2048"))
        return r
    def acc2(c, t): return ("a", 8 * (4 * c + t)) if c < NA else ("v", G(2 * ((c % 2) * 4 + t) + 1))
    ecount = [0]
    def epi(c):
        r = []
        if "emu" in opts and c < 4: return r
        for tp in range(2):
            for h in range(2):
                S = 32 + 4 * (ecount[0] % 8); ecount[0] += 1
                for e in range(2):
                    k, b = acc2(c, 2 * tp + e); b += 4 * h
                    if k == "a":
                        for q in range(4): r.append(("v", f"v_accvgpr_read_b32 v{T0+4*e+q}, a{b+q}"))
                        b = T0 + 4 * e
                    for q in range(2): r.append(("v", f"v_cvt_pk_bf16_f32 v{S+2*e+q}, v{b+2*q}, v{b+2*q+1}"))
                o = (2 * c + tp) * 512
                r.append(("st", f"buffer_store_dwordx4 {vr(S,4)}, v15, s[20:23], s{44+3*h+o//4096} offen offset:{o%4096}{'' if 'xplain' in opts else ' sc1'}", ("ST", c)))
                if "xnost" in opts and c < 8: r.pop()
        return r
    a.wait(v=("X", 0))
    [emit(x) for x in norm(0)]
    fr = []
    for ks in range(18):
        for t in range(18):
            fr.append((ks, (0, t), "v", G(t), XR(ks), ks == 0 and not loop))
            k, b = U(t); fr.append((ks, (1, t), k, b, XR(ks), ks == 0 and not loop))
    for P in range(18, 27):
        for b_, (J, cg) in enumerate(blocks(P)):
            for t in range(4):
                k, b = acc2(cg, t)
                fr.append((P, (b_, t), k, b, G(2 * J), J == 0))
    N = len(fr)
    def reads(i):
        P, (x, t) = fr[i][0], fr[i][1]; f = AF(i)
        if P < 18:
            slot = (2 * P + x) % 8; base = (9 if t % 2 == 0 else 16) + slot // 3
            o = (slot % 3) * UNIT + t * 32; o2 = o + 9216
        else:
            base = 1 + t; o = x * 4096; o2 = o + 2048
        return [f"ds_read_b64_tr_b16 a[{f}:{f+1}], v{base} offset:{o}", f"ds_read_b64_tr_b16 a[{f+2}:{f+3}], v{base} offset:{o2}"]
    s2setup = ["v_accvgpr_read_b32 v0, a236"]
    s2read = [f"v_accvgpr_read_b32 v{1+t}, a{237+t}" for t in range(4)]
    redsetup = ["v_accvgpr_read_b32 v5, a241", "v_accvgpr_read_b32 v7, a242", "v_accvgpr_read_b32 v31, a243",
                "s_lshl_b32 s29, s32, 4", "s_add_u32 s29, s29, s31",
                "s_mul_i32 s88, s29, 147456", "s_lshl_b32 s89, s30, 8", "s_add_u32 s88, s88, s89", f"s_add_u32 s88, s88, {PART}",
                "s_add_u32 s89, s88, 36864", "s_add_u32 s90, s89, 36864", "s_add_u32 s91, s90, 36864",
                "s_lshr_b32 s92, s29, 2", "s_mul_i32 s92, s92, 36864", "s_bfe_u32 s93, s29, 0x10001", "s_lshl_b32 s93, s93, 10", "s_add_u32 s92, s92, s93",
                "s_and_b32 s93, s29, 1", "s_lshl_b32 s93, s93, 7", "s_add_u32 s92, s92, s93", "s_lshl_b32 s93, s34, 11", "s_add_u32 s92, s92, s93",
                "s_lshl_b32 s93, s33, 9", "s_add_u32 s92, s92, s93",
                f"s_mul_i32 s94, s29, {8*1152}", "s_lshl_b32 s93, s34, 6", "s_add_u32 s94, s94, s93", "s_lshl_b32 s93, s33, 4", "s_add_u32 s94, s94, s93",
                f"s_add_u32 s53, s53, {C4-C3}"]
    if "xown" in opts:
        redsetup += ["v_mov_b32 v14, 0x7fffff00", "v_cmp_gt_u32 vcc, 16, v30", "s_nop 0", "v_cndmask_b32 v14, v31, v14, vcc"]
    if HFRAG: redsetup.append(f"s_add_u32 s92, s92, {HFRAG}")
    PL = lambda c, i: (96 + 4 * (4 * c + i)) if c < 6 else 4 * (4 * (c - 6) + i)
    HL = lambda c: 48 + 4 * c
    def hload(c): return [("x", f"buffer_load_dwordx4 a[{HL(c)}:{HL(c)+3}], v7, s[20:23], s92 offen sc1", ("H", c)), ("s", "s_add_u32 s92, s92, 4096")]
    def pload(c):
        r = []
        if c and c % 4 == 0: r += [("s", f"s_add_u32 s{88+i}, s{88+i}, 4096") for i in range(4)]
        for i in range(4 if ("emu" not in opts or c >= 4) else 0):
            r.append(("x", f"buffer_load_dwordx4 a[{PL(c,i)}:{PL(c,i)+3}], v{14 if 'xown' in opts and i == 0 else 31}, s[20:23], s{88+i} offen offset:{(c%4)*1024} sc1", ("L", c)))
        return r
    sched = opt("sch", 1)
    if sched == 0: groups = [(range(9), None, None)]
    elif sched == 4: groups = [((0, 1, 2, 3, 4, 5), 26, None), ((6, 7, 8), None, None)]
    elif sched == 5: groups = [((0, 1, 2, 3, 4, 5), 26, None), ((6, 7), 27, None), ((8,), None, None)]
    elif sched == 6: groups = [((0, 1), 22, 23), ((2, 3, 4, 5), 26, None), ((6, 7, 8), None, None)]
    elif sched == 7: groups = [((0, 1, 2), 23, 24), ((3, 4, 5), 26, None), ((6, 7, 8), None, None)]
    elif sched == 8: groups = [((0,), 21, 22), ((1, 2), 23, 24), ((3, 4, 5), 26, None), ((6, 7, 8), None, None)]
    elif sched == 9: groups = [((0, 1), 22, 24), ((2, 3, 4, 5), 26, None), ((6, 7), 27, None), ((8,), None, None)]
    elif sched == 10: groups = [((0, 1), 24, 25), ((2, 3, 4, 5), 26, None), ((6, 7), 27, None), ((8,), None, None)]
    elif sched == 11: groups = [((0, 1, 2), 24, 25), ((3, 4, 5), 26, None), ((6, 7), 27, None), ((8,), None, None)]
    elif sched == 12: groups = [((0, 1, 2, 3), 24, 25), ((4, 5), 26, None), ((6, 7), 27, None), ((8,), None, None)]
    elif sched == 13: groups = [((0, 1, 2, 3, 4), 25, 26), ((5, 6, 7), 27, None), ((8,), None, None)]
    elif sched == 14: groups = [((0, 1), 22, 23), ((2, 3, 4, 5), 26, None), ((6, 7), 27, None), ((8,), None, None)]
    elif sched == 15: groups = [((0,), 21, 22), ((1, 2), 23, 24), ((3, 4, 5), 26, None), ((6, 7), 27, None), ((8,), None, None)]
    elif sched == 16: groups = [((0,), 21, 22), ((1,), 22, 23), ((2,), 23, 24), ((3,), 24, 25), ((4, 5), 26, None), ((6, 7), 27, None), ((8,), None, None)]
    elif sched == 17: groups = [((0,), 21, 22), ((1,), 22, 23), ((2,), 23, 24), ((3,), 24, 25), ((4,), 25, 26), ((5,), 26, None), ((6, 7), 27, None), ((8,), None, None)]
    elif sched == 18: groups = [((0,), 20, 21), ((1,), 21, 22), ((2,), 22, 23), ((3,), 23, 24), ((4,), 24, 25), ((5,), 25, 26), ((6, 7), 27, None), ((8,), None, None)]
    elif sched == 19: groups = [((0,), 21, 22), ((1, 2), 23, 24), ((3, 4), 25, 26), ((5, 6, 7), 27, None), ((8,), None, None)]
    elif sched == 20: groups = [((0,), 21, 22), ((1,), 22, 23), ((2,), 23, 24), ((3,), 24, 25), ((4, 5), 26, None), ((6, 7, 8), None, None)]
    elif sched == 21: groups = [((0, 1, 2, 3, 4), 25, 26), ((5,), 26, None), ((6, 7, 8), None, None)]
    elif sched == 22: groups = [((0, 1, 2, 3, 4, 5), 26, None), ((6, 7, 8), None, None)]
    elif sched == 23: groups = [((0, 1, 2, 3, 4), 25, 26), ((5, 6, 7), 27, None), ((8,), None, None)]
    slowq = []; lper = opt("lper", 18)
    spins = []
    def sig(g):
        sk = a.lab("sg"); saved = list(a.lg)
        a(f"""s_cmp_lg_u32 s30, 0
        s_cbranch_scc1 {sk}
        s_add_u32 s95, s53, {4096*g}
        s_mov_b32 s98, 1
        s_atomic_add s98, s[20:21], s95
        {sk}:""")
        a.lg = saved
    def poll_issue(g):
        sk = a.lab("pi")
        return [("x", f"s_cmp_lg_u32 s30, 0\ns_cbranch_scc1 {sk}\ns_add_u32 s96, s53, {4096*g}\ns_mov_b32 s97, 0\ns_atomic_add s97, s[20:21], s96 glc\n{sk}:", ("F", g))]
    def poll_check(g):
        ok = a.lab("ok"); sp = a.lab("spin"); saved = list(a.lg)
        a(f"s_cmp_eq_u32 s30, 0\ns_cbranch_scc1 {sp}\n{ok}:")
        spins.append(f"""{sp}:
        s_mov_b32 s99, 0
        {sp}_l:
        s_waitcnt lgkmcnt(0)
        s_cmp_ge_u32 s97, 16
        s_cbranch_scc1 {ok}
        s_mov_b32 s97, 0
        s_atomic_add s97, s[20:21], s96 glc
        s_add_u32 s99, s99, 1
        s_cmp_lt_u32 s99, 0x40000
        s_cbranch_scc1 {sp}_l
        s_waitcnt lgkmcnt(0)
        s_branch {ok}""")
    st("pro")
    if opt("prio", 0): a(f"s_setprio {opt('prio', 0)}")
    if o2 and "w1" in opts:
        a.wait(v=lambda t: t == ("P", 0) or (isinstance(t, tuple) and t[0] == "X")); a("s_barrier"); early_p1 = True
    else:
        a("s_waitcnt vmcnt(0)\ns_barrier")
    st("bar0")
    if diag and diag not in ("lite", "lite2"): a("s_waitcnt lgkmcnt(0)")
    for i in range(D):
        for r in reads(i): a(r, ltag=("A", i))
    memq = []; valq = []; pendbar = None
    budget = opt("bud", 2); mper = opt("mper", 4)
    def emitv(it):
        if it[0] == "w": return 1 if a.wait(v=it[1]) else 0
        emit(it); return 1
    marks = {}
    for i in range(N):
        P, xt, k, b, B, first = fr[i]
        s, pos = divmod(i, 36)
        if pos == 0 and s % 4 == 0 and s <= 16: marks[s] = len(a.l)
        if i == 648: st("s1")
        if pos == 0 and s >= 17 and s != 18: st(f"g{s}")
        if (i + D) % 36 == 0 and i + D < N:
            sn = (i + D) // 36
            while any(len(x) > 2 and x[2][0] == "P" and x[2][1] <= sn + 1 for x in memq) or (memq and memq[0][0] in "sv"): emit(memq.pop(0))
            pendbar = sn
            if sn > 18: valq = [(("v", f"v_add_u32 v{1+t}, {SLOT if sn % 4 else -3*SLOT}, v{1+t}"), i) for t in range(4)] + valq
        if pos == 0:
            Pn = s + 2; q = []
            if s <= 15 and "xnox" not in opts and XA == 2: q += xload(s + 2)
            if Pn == 18: q += [("v", x) for x in s2setup]
            A3 = opt("a3", 99)
            if s < A3:
                if Pn < 27 and not ("xnodma" in opts and Pn < 18): q += dma_pair(Pn)
            else:
                if s == A3: q += dma_pair(Pn)
                if Pn + 1 < 27: q += dma_pair(Pn + 1)
            if Pn == 18: q += [("v", x) for x in s2read]
            if s <= 15 and XA == 3: q += xload(s + 3)
            if s <= 15 and XA == 4: q += xload(s + 2)
            if "emu" in opts and s == 16:
                q += [("v", "v_lshlrev_b32 v29, 4, v30"), ("s", "s_lshl_b32 s43, s2, 2"), ("s", "s_add_u32 s43, s43, s30"), ("s", "s_mul_i32 s43, s43, 18432"), ("s", f"s_add_u32 s43, s43, {0x4000000}"), ("s", "s_xor_b32 s52, s2, 8"), ("s", "s_lshl_b32 s52, s52, 2"), ("s", "s_add_u32 s52, s52, s30"), ("s", "s_mul_i32 s52, s52, 18432"), ("s", f"s_add_u32 s52, s52, {0x4000000}")]
            if "emu" in opts and s in (21, 22):
                for J in (range(5) if s == 21 else range(5, 9)):
                    q += [("x", f"buffer_load_dwordx4 a[{96+8*J+4*h}:{99+8*J+4*h}], v29, s[20:23], s52 offen offset:{h*1024} sc1", ("HL", J)) for h in range(2)] + [("s", "s_add_u32 s52, s52, 2048")]
            if tl and s < 16 and s % 4 == 0: q += [("x", "buffer_load_dword a232, v31, s[12:15], s50 offen", ("T", s)), ("s", f"s_add_u32 s50, s50, {128*9216}")]
            if tl and s < 16 and s % 4 == 2: q += [("x", "buffer_load_dword a233, v14, s[16:19], s51 offen", ("T", s)), ("s", f"s_add_u32 s51, s51, {128*11*128}")]
            memq = ([x for x in memq] + q) if any(len(x) > 2 and x[2][0] == 'P' for x in memq) else q + memq
        if pos == 4 and s + 1 < 18:
            valq += [(("w", ("X", s + 1)), i + 31)] + [(x, i + 31) for x in norm(s + 1)]
        if i >= 612 and i < 648 and (i - 612) % 4 == 2 and (i - 612) // 4 >= 1:
            J = (i - 612) // 4 - 1
            valq += [(x, 648 + 4 * NA * J) for x in conv(J)]
        if i == 650: valq += [(x, 648 + 4 * NA * 8) for x in conv(8)]
        if i == 652: valq += [(("v", x), 648 + 36 * NA + 20) for x in ['v_accvgpr_read_b32 v15, a244'] + [y for y in store_setup() if y.startswith('s_')] + redsetup]
        EP = opt("ep", 2)
        if i == 648 + 36 * NA + EP:
            for c in range(NA): valq += [(x, None) for x in epi(c)]
        if i >= 648 + 36 * (NA + 1) + 2 and pos == (EP if s < 25 else 2):
            c = s - 19
            valq += [(x, 648 + 36 * (c + 2)) for x in epi(c)]
        if i == opt('hl', N - 1):
            for c in range(9): slowq += hload(c)
        chks = []
        if "t2" in opts and i == N - 20: memq = poll_issue(0) + memq
        for g, (chs, sst, chk) in enumerate(groups):
            if chk is not None and i == 36 * chk - D - 16: memq = poll_issue(g) + memq
            if chk is not None and pendbar == chk:
                while any(len(x) > 2 and x[2] == ("F", g) for x in memq): emit(memq.pop(0))
                chks.append(g)
        if slowq and i % lper == opt("loff", 0):
            while True:
                x = slowq.pop(0); memq.append(x)
                if x[0] == "x" or not slowq: break
        sigs = [g for g, (chs, sst, chk) in enumerate(groups) if pendbar is not None and sst == pendbar]
        for g in sigs:
            last = max(groups[g][0])
            while any(len(x) > 2 and x[2][0] == "ST" and x[2][1] <= last for (x, _) in valq): emitv(valq.pop(0)[0])
        while any(d is not None and d <= i for (_, d) in valq): emitv(valq.pop(0)[0])
        lw = lambda lim: a.wait(l=lambda t: t is not None and t != "SMEM" and t[1] <= lim)
        lw(i)
        f = AF(i)
        rd = reads(i + D) if i + D < N else []
        behind = len(valq) > opt("beh", 60)
        for h in range(2):
            C = "0" if first else vr(b + 4 * h, 4, k)
            a(f"v_mfma_f32_16x16x32_bf16 {vr(b+4*h,4,k)}, a[{f}:{f+3}], {vr(B+4*h,4)}, {C}")
            sc_used = False
            if pendbar is not None:
                lasts = [max(groups[g][0]) for g in sigs]
                a.wait(v=lambda t: t == ("P", pendbar) or (isinstance(t, tuple) and t[0] == "ST" and any(t[1] <= l for l in lasts)))
                for g in chks: poll_check(g)
                if "xnobar" not in opts or s >= 16: a("s_barrier")
                for g in sigs: sig(g)
                for g in chks:
                    for c in groups[g][0]: slowq += pload(c)
                pendbar = None; sc_used = True
            if h == 1 and not sc_used: sc_used = lw(i + 1)
            if not sc_used:
                if memq and memq[0][0] in ("s", "m"):
                    emit(memq.pop(0)); sc_used = True
                    if "sc2" in opts and memq and memq[0][0] in ("s", "m"): emit(memq.pop(0))
                elif valq and valq[0][0][0] == "w": sc_used = emitv(valq.pop(0)[0])
                elif valq and valq[0][0][1].startswith("s_"): emitv(valq.pop(0)[0]); sc_used = True
            n = 0
            if rd: a(rd[h], ltag=("A", i + D)); n += 1
            mp = mper if s < 16 else opt("mq", 4)
            if memq and memq[0][0] in ("x", "d") and (2 * i + h) % mp == 0:
                emit(memq.pop(0)); n += 1
            elif memq and memq[0][0] == "v":
                emit(memq.pop(0)); n += 1
            while valq and n < budget + (1 if behind else 0) and valq[0][0][0] != "w" and not valq[0][0][1].startswith("s_"):
                n += emitv(valq.pop(0)[0])
    for it in memq: emit(it)
    for it, d in valq: emitv(it)
    tailq = slowq
    if loop:
        body = [[x.text for x in a.l[marks[s]:marks[s + 4]]] for s in (0, 4, 8, 12)]
        assert body[1] == body[2] == body[3], "loop bodies differ"
        pre = []
        if body[0][0] != body[1][0]:
            assert body[0][0].startswith("s_waitcnt lgkmcnt"); pre = [Ins(body[0][0])]; body[0] = body[0][1:]
        assert body[0] == [x for x in body[1] if not (x.startswith("s_waitcnt vmcnt") and x not in body[0])] or \
               [x for x in body[0] if "vmcnt" not in x] == [x for x in body[1] if "vmcnt" not in x]
        lp = a.lab("loop")
        a.l = a.l[:marks[0]] + pre + [Ins("s_mov_b32 s41, 0"), Ins(f".p2align {opt('al', 3)}")] + [Ins("s_nop 0")] * opt("ao", 0) + [Ins(f"{lp}:")] + a.l[marks[4]:marks[8]] + \
              [Ins("s_add_u32 s41, s41, 1"), Ins("s_cmp_lt_u32 s41, 4"), Ins(f"s_cbranch_scc1 {lp}")] + a.l[marks[16]:]
    st("s2")
    rest = [g for g, (chs, sst, chk) in enumerate(groups) if sst is None or sst >= 27]
    late = [g for g, (chs, sst, chk) in enumerate(groups) if chk is None]
    srd(a, 12, 10, 11, 2048 * 1152)
    def red(c):
        T = 208 + 4 * (c // 2); S = 224 + 4 * (c % 2)
        a.wait(v=("H", c))
        a(f"v_mfma_f32_16x16x32_bf16 v[{T}:{T+3}], a[{S}:{S+3}], a[{HL(c)}:{HL(c)+3}], {'0' if c % 2 == 0 else f'v[{T}:{T+3}]'}")
        a.wait(v=("L", c))
        for i in range(4):
            a(f"v_mfma_f32_16x16x32_bf16 v[{T}:{T+3}], a[{S}:{S+3}], a[{PL(c,i)}:{PL(c,i)+3}], v[{T}:{T+3}]")
    lds_out = "lout" in opts
    osc = " sc1" if "osc1" in opts else " nt" if "ont" in opts else ""
    OST = 147456 + 1024
    def out(T):
        r = 208 + 4 * T
        a(f"v_cvt_pk_bf16_f32 v{r}, v{r}, v{r+1}\nv_cvt_pk_bf16_f32 v{r+1}, v{r+2}, v{r+3}")
        if T == 4: a("s_mov_b32 exec_hi, 0")
        if lds_out: a(f"ds_write_b64 v6, v[{r}:{r+1}] offset:{256*T}")
        elif "xnoout" not in opts: a(f"buffer_store_dwordx2 v[{r}:{r+1}], v5, s[12:15], s94 offen offset:{256*T}" + osc)
        if T == 4: a("s_mov_b64 exec, -1")
    def flush_out(part):
        a("s_waitcnt lgkmcnt(0)\ns_barrier")
        regs = (8, 9) if part == 0 else (10,)
        for q, r in enumerate(regs): a(f"ds_read_b128 v[{32+4*(r-8)}:{35+4*(r-8)}], v{r+3}")
        a("s_waitcnt lgkmcnt(0)")
        for q, r in enumerate(regs): a(f"buffer_store_dwordx4 v[{32+4*(r-8)}:{35+4*(r-8)}], v{r}, s[12:15], s43 offen" + osc)
    if lds_out:
        a(f"""v_accvgpr_read_b32 v8, a245
        v_accvgpr_read_b32 v9, a246
        v_accvgpr_read_b32 v10, a247
        s_lshl_b32 s93, s34, 6
        s_lshl_b32 s43, s33, 4
        s_add_u32 s93, s93, s43
        s_add_u32 s93, s93, {OST}
        v_add_u32 v6, s93, v5
        s_mul_i32 s93, s30, 2304
        s_mul_i32 s43, s29, {8*1152}
        s_add_u32 s43, s43, s93
        s_add_u32 s93, s93, {OST}
        v_min_u32 v11, 2288, v8
        v_min_u32 v12, 2288, v9
        v_min_u32 v13, 2288, v10
        v_add_u32 v11, s93, v11
        v_add_u32 v12, s93, v12
        v_add_u32 v13, s93, v13""")
    t2 = "t2" in opts
    for g in rest:
        if groups[g][1] == 27:
            last = max(groups[g][0])
            a.wait(v=lambda t: isinstance(t, tuple) and t[0] == "ST" and t[1] <= last)
            if t2: poll_check(0)
            a("s_barrier"); sig(g)
    for x in epi(8): emit(x)
    st("epi")
    done = 0
    pend = list(tailq)
    def issue(n):
        while pend and n > 0:
            x = pend.pop(0); emit(x)
            if x[0] == "x": n -= 1
    if t2:
        for c in groups[0][0]: pend += pload(c)
        issue(opt("pre", 6))
    a.wait(v=lambda t: isinstance(t, tuple) and t[0] == "ST"); a("s_barrier")
    for g in rest:
        if groups[g][1] is None: sig(g)
    rest = [g for g in late if groups[g][1] is not None and groups[g][1] < 27 and not (t2 and g == 0)] + rest
    st("drain")
    for g in rest:
        nx = sum(1 for x in pend if x[0] == "x")
        issue(nx - opt("keep", 6))
        [emit(x) for x in poll_issue(g)]
        issue(99)
        poll_check(g); a("s_barrier")
        if g == rest[-1]: st("sync4")
        for c in groups[g][0]: pend += pload(c)
    issue(99)
    for c in range(done, 9):
        red(c)
        if c >= 3 and c % 2 == 1 and not (lds_out and c == 7): out(c // 2 - 1)
        if lds_out and c == 5:
            out(2); flush_out(0)
    st("loaded")
    out(3); out(4)
    if lds_out: flush_out(1)
    st("end")
    a.spins = spins
```

```python
from common import *
from ffn16 import dma_offsets, store_setup
UNIT = 18432; SLOT = 2 * UNIT

def ffn_body(a, st, opts, C3, C4, front, tb, C5):
    opt = lambda k, d: next((int(o[len(k):]) for o in reversed(opts) if re.fullmatch(k + r'\d+', o)), d)
    diag = st.on
    T0 = 21
    G = lambda t: 64 + 8 * t
    def U(t): return ("v", 208 + 8 * t) if t < 6 else ("a", 96 + 8 * (t - 6))
    XR = lambda k: 32 + 8 * (k % 4)
    NF = opt("nf", 8); D = NF - 2; NA = 2; PK2 = 'pk2' in opts
    AF = lambda i: 192 + 4 * (i % NF)
    def emit(it):
        if len(it) > 2 and it[2][0] == "F":
            saved = list(a.lg); a(it[1]); a.lg = saved
        elif len(it) > 2: a(it[1], vtag=it[2])
        else: a(it[1])
    pol = " sc1" if "dsc1" in opts else " nt" if "dnt" in opts else " sc0" if "dsc0" in opts else ""
    def blocks(P):
        if P < 20: return [(J, lc) for J in range(9) for lc in range(2)][9 * (P - 18):9 * (P - 17)]
        if P < 23: return [(J, P - 18) for J in range(9)]
        if PK2 and P < 25: return [(9 + J, lc) for J in range(9) for lc in range(2)][9 * (P - 23):9 * (P - 22)]
        return [(9 + J, P - 23) for J in range(9)]
    def dma_pair(P):
        r = []; slot = P % 4
        if P < 18:
            for i in range(9):
                if i % 4 == 0: r.append(("m", f"s_add_u32 m0, s37, {slot*SLOT + i*1024}"))
                r.append(("d", f"buffer_load_dwordx4 v{i}, s[12:15], s36 offen offset:{(i%4)*1024}{pol} lds", ("P", P)))
            return r + [("s", f"s_add_u32 s36, s36, {32*9216}")]
        for b, (J, cg) in enumerate(blocks(P)):
            r.append(("m", f"s_add_u32 m0, s40, {slot*SLOT + b*4096}"))
            base = "s100" if J >= 9 else ("s101" if cg == 4 else "s38")
            r.append(("s", f"s_add_u32 s39, {base}, {(J%9)*32*1152 + (cg%4)*128}"))
            r.append(("d", f"buffer_load_dwordx4 v0, s[16:19], s39 offen{pol} lds", ("P", P)))
        return r
    def dsrc(i):
        def f(l):
            p = i * 1024 + l * 16; row, col = divmod(p, 576)
            return row * 9216 + (col ^ (32 if row & 4 else 0)) + 3072 - (i % 4) * 1024
        return f
    rdb = lambda l, sg: (l >> 2) * 576 + 8 * (l & 3) + sg * 32 * ((l >> 4) & 1)
    OOBV = 0x7fffff00
    def fl0(p):
        row, q = divmod(p, 56); ln, pc = divmod(q, 8)
        return row * 1152 + (0, 1, 2, 4, 5, 6, 7)[ln] * 128 + pc * 16
    def setup():
        a(f"""v_mov_b32 v30, v15
        s_lshl_b32 s31, s29, 1
        s_and_b32 s33, s28, 1
        s_add_u32 s31, s31, s33
        s_lshr_b32 s32, s28, 1
        s_and_b32 s33, s30, 1
        s_lshr_b32 s34, s30, 1
        v_lshlrev_b32 v15, 4, v30""")
        for x in (tb.load(0, [dsrc(i) for i in range(4)], 15, 88), tb.load(4, [dsrc(i) for i in range(4, 8)], 15, 88),
                  tb.load(8, [dsrc(8)] + [(lambda l, q=q: rdb(l, 1) + 55296 * q) for q in range(3)], 15, 88),
                  tb.load(16, [(lambda l, q=q: rdb(l, -1) + 55296 * q) for q in range(3)], 15, 88),
                  tb.load(24, [lambda l: (l // 9) * 9216 + (l % 9) * 128 if l < 18 else OOBV, lambda l: l * 128 if l < 11 else OOBV,
                               lambda l: (l >> 5) * 768 + (l & 31) * 4], 15, 88),
                  tb.load(236, [lambda l: (l >> 3) * 1152 + (((l & 7) << 4) ^ ((l >> 4) << 5))] +
                               [(lambda l, t=t: 2 * SLOT + (l >> 2) * 128 + 8 * (l & 3) + 32 * (((l >> 3) & 3) ^ t)) for t in range(3)], 15, 88, "a"),
                  tb.load(240, [lambda l: 2 * SLOT + (l >> 2) * 128 + 8 * (l & 3) + 32 * (((l >> 3) & 3) ^ 3),
                                lambda l: (l & 7) * 1152 + 8 * ((l >> 3) & 1) + 640 * (l >> 5) + 32 * ((l >> 4) & 1),
                                lambda l: ((l >> 3) & 1) * 256 + (l & 7) * 16 if l < 16 else OOBV,
                                lambda l: (l >> 4) * 9216 + (l & 15) * 16], 15, 88, "a"),
                  tb.load(244, [lambda l: ((l >> 3) & 1) * 147456 + (l >> 4) * 128 + (l & 7) * 16,
                                lambda l: fl0(l), lambda l: fl0(64 + l) if l < 48 else OOBV,
                                lambda l: (l >> 4) * 1152 + (384 if (l & 8) == 0 else 1024) + (l & 7) * 16 if l < 32 else OOBV], 15, 88, "a")):
            a(x, vtag="ftab")
        a(f"""s_cmp_eq_u32 s34, 0
        s_cselect_b32 s12, s4, s6
        s_cselect_b32 s13, s5, s7
        s_sub_u32 s12, s12, 3072
        s_subb_u32 s13, s13, 0
        s_mov_b32 s14, {576*9216+3072}
        s_mov_b32 s15, 0x20000""")
        srd(a, 16, 8, 9, 4608 * 1152)
        a(f"""s_mul_i32 s36, s31, 576
        s_mul_i32 s39, s33, {16*9216}
        s_add_u32 s36, s36, s39
        s_mul_i32 s37, s30, 9216""")
    def dma0(P):
        a.wait(v="ftab")
        [emit(x) for x in dma_pair(P)]
    loop = "noloop" not in opts
    def zero(part):
        if "mz" in opts:
            if part == 0:
                for q in range(4): a(f"v_mov_b32 v{60+q}, 0")
            blk = [("v", r) for r in range(64, 160, 16)] + [("a", r) for r in (144, 160, 176)] if part == 0 else [("v", r) for r in range(160, 256, 16)] + [("a", r) for r in (96, 112, 128)]
            for k, r in blk: a(f"v_mfma_f32_32x32x16_bf16 {vr(r,16,k)}, v[60:63], v[60:63], 0")
            return
        regs = []
        for t in range(18):
            for q in range(8):
                regs.append(("v", G(t) + q)); k, b = U(t); regs.append((k, b + q))
        for (k, r) in regs:
            late = (k == "v" and r >= 168) or (k == "a" and r < 136)
            if late == (part == 1): a(f"v_mov_b32 v{r}, 0" if k == "v" else f"v_accvgpr_write_b32 a{r}, 0")
    front(setup, dma0, zero)
    o2 = "ord2" in opts
    if o2:
        a(f"s_lshl_b32 s53, s32, 8\ns_add_u32 s53, s53, {C3}")
        poll_start(a, "s53")
        dma0(0)
    tl = "notl" not in opts
    if tl:
        a(f"""v_mov_b32 v31, v24
        v_mov_b32 v14, v25
        s_lshl_b32 s50, s28, 1
        s_add_u32 s50, s50, s33
        s_mul_i32 s50, s50, {2*9216}
        s_mul_i32 s51, s29, 1152
        s_add_u32 s50, s50, s51
        s_add_u32 s50, s50, {opt("tla", 256)*9216 + 3072}
        s_lshl_b32 s51, s28, 2
        s_add_u32 s51, s51, s30
        s_mul_i32 s51, s51, {11*128}
        s_mul_i32 s52, s29, {576*1152}
        s_add_u32 s51, s51, s52""")
    a(f"""s_lshl_b32 s35, s32, 2
    s_add_u32 s35, s35, s30
    s_mul_i32 s43, s35, 1536
    s_mul_i32 s35, s35, 36864
    s_add_u32 s43, s43, {STATS}
    s_mul_i32 s38, s31, {288*1152}
    s_mul_i32 s39, s30, {8*1152}
    s_add_u32 s38, s38, s39
    s_add_u32 s101, s38, 512
    s_and_b32 s39, s31, 1
    s_mul_i32 s100, s39, 640
    s_add_u32 s38, s38, s100
    s_mul_i32 s39, s39, {2*288*1152}
    s_add_u32 s100, s38, {288*1152}
    s_sub_u32 s100, s100, s39
    s_lshl_b32 s40, s30, 10
    s_mov_b32 s47, 0xffff0000
    s_lshl_b32 s53, s32, 8
    s_add_u32 s53, s53, {C3}
    v_mov_b32 v29, v26""")
    if HFRAG: a(f"s_add_u32 s35, s35, {HFRAG}")
    if o2: poll_finish(a, "s53", 12)
    else: poll(a, "s53", 12)
    st("sync3")
    def xload(k):
        r = []
        for h in range(2):
            r.append(("x", f"buffer_load_dwordx4 {vr(XR(k)+4*h,4)}, v15, s[20:23], s35 offen offset:{h*1024} sc1", ("X", k)))
        return r + [("s", "s_add_u32 s35, s35, 2048")]
    for q in range(6): a(f"buffer_load_dword v{(56,57,58,59,27,28)[q]}, v29, s[20:23], s43 offen offset:{128*q} sc1", vtag="st")
    XA = opt("xa", 2)
    for k in range(3 if XA == 3 else 2): [emit(x) for x in xload(k)]
    if o2: dma0(1)
    if loop: zero(1)
    a.wait(v="st")
    a("""v_add_f32 v56, v56, v57
    v_add_f32 v58, v58, v59
    v_add_f32 v27, v27, v28
    v_add_f32 v56, v56, v58
    v_add_f32 v56, v56, v27
    v_mul_f32 v56, 0x3ae38e39, v56
    v_mov_b32 v57, v56
    v_permlane16_swap_b32 v56, v57
    v_fma_f32 v57, -v56, v56, v57
    v_max_f32 v57, 0, v57
    v_add_f32 v57, 0x3727c5ac, v57
    v_rsq_f32 v12, v57
    s_nop 0
    v_mul_f32_e64 v19, -v56, v12
    v_mov_b32 v13, v12
    v_mov_b32 v20, v19
    v_permlane32_swap_b32 v12, v13
    v_permlane32_swap_b32 v19, v20""")
    def norm(k):
        r = []
        if "xnonorm" in opts: return r
        for h in range(2):
            b = XR(k) + 4 * h
            for j in range(4):
                r.append(("v", f"v_lshlrev_b32_e32 v{T0+2*j}, 16, v{b+j}"))
                r.append(("v", f"v_and_b32_e32 v{T0+1+2*j}, s47, v{b+j}"))
            for j in range(8):
                r.append(("v", f"v_fma_f32 v{T0+j}, v{T0+j}, v{12+h}, v{19+h}"))
            for j in range(4):
                r.append(("v", f"v_cvt_pk_bf16_f32 v{b+j}, v{T0+2*j}, v{T0+1+2*j}"))
        return r
    def conv(J):
        r = []
        for h in range(2):
            for e in range(2):
                t = 2 * J + e; g = G(t) + 4 * h; k, u = U(t); u += 4 * h
                for q in range(4):
                    if k == "a": r.append(("v", f"v_accvgpr_read_b32 v{T0+q}, a{u+q}"))
                    r.append(("v", f"v_max_f32_e32 v{g+q}, 0, v{g+q}"))
                for q in range(4):
                    src = f"v{T0+q}" if k == "a" else f"v{u+q}"
                    r.append(("v", f"v_mul_f32_e32 v{g+q}, v{g+q}, {src}"))
                d = G(2 * J) + 4 * h + 2 * e
                for q in range(2):
                    r.append(("v", f"v_cvt_pk_bf16_f32 v{d+q}, v{g+2*q}, v{g+2*q+1}"))
            r.append(("st", f"buffer_store_dwordx4 {vr(G(2*J)+4*h,4)}, v29, s[20:23], s43 offen offset:{h*1024} sc1", ("HS", J)))
            if h: r.append(("s", "s_add_u32 s43, s43, 2048"))
        return r
    def acc2(c, t):
        if c < 2: return ("a", 8 * (4 * c + t))
        if c < 4: return ("v", G(2 * ((c - 2) * 4 + t) + 1))
        return ("v", 208 + 8 * t)
    ecount = [0]
    ORD = {4: 0, 0: 1, 1: 2, 2: 3, 3: 4}
    def epi(c):
        r = []
        for tp in range(2):
            for h in range(2):
                S = 32 + 4 * (ecount[0] % 8); ecount[0] += 1
                for e in range(2):
                    k, b = acc2(c, 2 * tp + e); b += 4 * h
                    if k == "a":
                        for q in range(4): r.append(("v", f"v_accvgpr_read_b32 v{T0+4*e+q}, a{b+q}"))
                        b = T0 + 4 * e
                    for q in range(2): r.append(("v", f"v_cvt_pk_bf16_f32 v{S+2*e+q}, v{b+2*q}, v{b+2*q+1}"))
                r.append(("st", f"buffer_store_dwordx4 {vr(S,4)}, v15, s[20:23], s{(46 if c == 4 else 44)+h} offen offset:{(c%4)*1024 + tp*512} sc1", ("ST", ORD[c])))
        return r
    a.wait(v=("X", 0))
    [emit(x) for x in norm(0)]
    fr = []
    for ks in range(18):
        for t in range(18):
            fr.append((ks, (0, t), "v", G(t), XR(ks), ks == 0 and not loop))
            k, b = U(t); fr.append((ks, (1, t), k, b, XR(ks), ks == 0 and not loop))
    for P in range(18, 27):
        for b_, (J, cg) in enumerate(blocks(P)):
            for t in range(4):
                k, b = acc2(cg, t)
                fr.append((P, (b_, t), k, b, G(2 * J) if J < 9 else ("a", 96 + 8 * (J - 9), J - 9), J == 0))
    N = len(fr)
    def reads(i):
        P, (x, t) = fr[i][0], fr[i][1]; f = AF(i)
        if P < 18:
            slot = (2 * P + x) % 8; base = (9 if t % 2 == 0 else 16) + slot // 3
            o = (slot % 3) * UNIT + t * 32; o2 = o + 9216
        else:
            base = 1 + t; o = x * 4096; o2 = o + 2048
        return [f"ds_read_b64_tr_b16 a[{f}:{f+1}], v{base} offset:{o}", f"ds_read_b64_tr_b16 a[{f+2}:{f+3}], v{base} offset:{o2}"]
    s2setup = ["v_accvgpr_read_b32 v0, a236"]
    s2read = [f"v_accvgpr_read_b32 v{1+t}, a{237+t}" for t in range(4)]
    hhsetup = ["v_lshlrev_b32 v29, 4, v30", "s_lshl_b32 s43, s2, 2", "s_add_u32 s43, s43, s30", "s_mul_i32 s43, s43, 18432", f"s_add_u32 s43, s43, {HHX}",
               "s_xor_b32 s52, s2, 8", "s_lshl_b32 s52, s52, 2", "s_add_u32 s52, s52, s30", "s_mul_i32 s52, s52, 18432", f"s_add_u32 s52, s52, {HHX}",
               "s_lshr_b32 s50, s31, 1", "s_lshl_b32 s51, s32, 3", "s_add_u32 s50, s50, s51", "s_lshl_b32 s50, s50, 9", f"s_add_u32 s50, s50, {C5}"]
    redsetup = ["v_accvgpr_read_b32 v15, a244", "v_accvgpr_read_b32 v5, a241", "v_accvgpr_read_b32 v7, a242", "v_accvgpr_read_b32 v31, a243",
                "v_lshrrev_b32 v14, 4, v30", "v_mul_u32_u24 v14, 9216, v14", "v_add_u32 v14, v14, v31",
                "s_lshl_b32 s44, s32, 4", "s_lshl_b32 s45, s30, 2", "s_add_u32 s44, s44, s45", "s_lshl_b32 s44, s44, 4", "s_add_u32 s44, s44, s31",
                "s_mul_i32 s44, s44, 9216", f"s_add_u32 s44, s44, {PART}", "s_add_u32 s46, s44, 4096", f"s_add_u32 s47, s46, {2*147456}",
                "s_and_b32 s45, s31, 1", "s_mul_i32 s45, s45, 5120", "s_add_u32 s44, s44, s45", f"s_add_u32 s45, s44, {2*147456}",
                "s_lshl_b32 s29, s32, 4", "s_add_u32 s29, s29, s31",
                "s_mul_i32 s88, s29, 147456", "s_lshl_b32 s89, s30, 8", "s_add_u32 s88, s88, s89", f"s_add_u32 s88, s88, {PART}",
                "s_add_u32 s89, s88, 73728", "s_add_u32 s90, s88, 14336", "s_add_u32 s91, s89, 14336",
                "s_lshr_b32 s92, s29, 2", "s_mul_i32 s92, s92, 36864", "s_bfe_u32 s93, s29, 0x10001", "s_lshl_b32 s93, s93, 10", "s_add_u32 s92, s92, s93",
                "s_and_b32 s93, s29, 1", "s_lshl_b32 s93, s93, 7", "s_add_u32 s92, s92, s93", "s_lshl_b32 s93, s34, 11", "s_add_u32 s92, s92, s93",
                "s_lshl_b32 s93, s33, 9", "s_add_u32 s92, s92, s93",
                f"s_add_u32 s53, s53, {C4-C3}"]
    if HFRAG: redsetup.append(f"s_add_u32 s92, s92, {HFRAG}")
    PL = lambda c, i: (168 + 4 * i) if c == 4 else 16 * c + 4 * i
    HL = lambda pc: 64 + 4 * pc if pc < 8 else 248
    def hload(pc): return [("x", f"buffer_load_dwordx4 a[{HL(pc)}:{HL(pc)+3}], v7, s[20:23], s92 offen sc1", ("H", pc)), ("s", "s_add_u32 s92, s92, 4096")]
    def pload(c):
        r = []
        for i in range(4):
            if c == 4: r += [("s", f"s_add_u32 s94, s88, {i*36864 + 4096}"), ("x", f"buffer_load_dwordx4 a[{PL(c,i)}:{PL(c,i)+3}], v31, s[20:23], s94 offen sc1", ("L", c))]
            else: r.append(("x", f"buffer_load_dwordx4 a[{PL(c,i)}:{PL(c,i)+3}], v14, s[20:23], s{88+i} offen offset:{c*1024} sc1", ("L", c)))
        return r
    def hhload(J): return [("x", f"buffer_load_dwordx4 a[{96+8*J+4*h}:{99+8*J+4*h}], v29, s[20:23], s52 offen offset:{h*1024} sc1", ("HL", J)) for h in range(2)] + [("s", "s_add_u32 s52, s52, 2048")]
    sched = opt("sch", 1); HA = opt("ha", 20)
    HN = opt("hn", 5)
    ev = [("HS", HN - 1, ("s50", 0), 2, HA, HA + 1, [x for J in range(HN) for x in hhload(J)], True)]
    if HN < 9: ev.append(("HS", 8, ("s50", 256), 2, opt("hb", HA + 1), opt("hb", HA + 1) + 1, [x for J in range(HN, 9) for x in hhload(J)], True))
    if sched == 1: gs = [((4,), 25, 26), ((0,), 26, None), ((1, 2, 3), None, None)]
    elif sched == 2: gs = [((4, 0), 26, None), ((1, 2, 3), None, None)]
    elif sched == 3: gs = [((4,), 25, 26), ((0, 1, 2), 27, None), ((3,), None, None)]
    elif sched == 4: gs = [((4,), 24, 25), ((0,), 25, 26), ((1, 2), 27, None), ((3,), None, None)]
    elif sched == 5: gs = [((4, 0), 26, None), ((1, 2), 27, None), ((3,), None, None)]
    elif sched == 6: gs = [((4,), 25, 26), ((0, 1), 27, None), ((2, 3), None, None)]
    elif sched == 7: gs = [((4,), 25, None), ((0, 1, 2), 27, None), ((3,), None, None)]
    for g, (chs, sst, chk) in enumerate(gs):
        ev.append(("ST", max(ORD[c] for c in chs), ("s53", 4096 * g), 16, sst, chk, [x for c in chs for x in pload(c)], False))
    covers = lambda e: (lambda t: isinstance(t, tuple) and t[0] == e[0] and t[1] <= e[1])
    slowq = []; lper = opt("lper", 18)
    spins = []
    def sig(g):
        sk = a.lab("sg"); saved = list(a.lg)
        a(f"""s_cmp_lg_u32 s30, 0
        s_cbranch_scc1 {sk}
        s_add_u32 s95, {ev[g][2][0]}, {ev[g][2][1]}
        s_mov_b32 s98, 1
        s_atomic_add s98, s[20:21], s95
        {sk}:""")
        a.lg = saved
    def poll_issue(g):
        sk = a.lab("pi")
        return [("x", f"s_cmp_lg_u32 s30, 0\ns_cbranch_scc1 {sk}\ns_add_u32 s96, {ev[g][2][0]}, {ev[g][2][1]}\ns_mov_b32 s97, 0\ns_atomic_add s97, s[20:21], s96 glc\n{sk}:", ("F", g))]
    def poll_check(g):
        ok = a.lab("ok"); sp = a.lab("spin"); saved = list(a.lg)
        a(f"s_cmp_eq_u32 s30, 0\ns_cbranch_scc1 {sp}\n{ok}:")
        spins.append(f"""{sp}:
        s_mov_b32 s99, 0
        {sp}_l:
        s_waitcnt lgkmcnt(0)
        s_cmp_ge_u32 s97, {ev[g][3]}
        s_cbranch_scc1 {ok}
        s_mov_b32 s97, 0
        s_atomic_add s97, s[20:21], s96 glc
        s_add_u32 s99, s99, 1
        s_cmp_lt_u32 s99, 0x40000
        s_cbranch_scc1 {sp}_l
        s_waitcnt lgkmcnt(0)
        s_branch {ok}""")
    st("pro")
    if opt("prio", 0): a(f"s_setprio {opt('prio', 0)}")
    if o2 and "w1" in opts:
        a.wait(v=lambda t: t == ("P", 0) or (isinstance(t, tuple) and t[0] == "X")); a("s_barrier"); early_p1 = True
    else:
        a("s_waitcnt vmcnt(0)\ns_barrier")
    st("bar0")
    if diag and diag not in ("lite", "lite2"): a("s_waitcnt lgkmcnt(0)")
    for i in range(D):
        for r in reads(i): a(r, ltag=("A", i))
    memq = []; valq = []; pendbar = None; fastq = []
    budget = opt("bud", 2); mper = opt("mper", 4)
    def emitv(it):
        if it[0] == "w": return 1 if a.wait(v=it[1]) else 0
        emit(it); return 1
    marks = {}
    for i in range(N):
        P, xt, k, b, B, first = fr[i]
        s, pos = divmod(i, 36)
        if pos == 0 and s % 4 == 0 and s <= 16: marks[s] = len(a.l)
        if i == 648: st("s1")
        if pos == 0 and s >= 17 and s != 18: st(f"g{s}")
        if (i + D) % 36 == 0 and i + D < N:
            sn = (i + D) // 36
            while any(len(x) > 2 and x[2][0] == "P" and x[2][1] <= sn + 1 for x in memq) or (memq and memq[0][0] in "sv"): emit(memq.pop(0))
            pendbar = sn
            if sn > 18: valq = [(("v", f"v_add_u32 v{1+t}, {SLOT if sn % 4 else -3*SLOT}, v{1+t}"), i) for t in range(4)] + valq
        if pos == 0:
            Pn = s + 2; q = []
            if s <= 15 and "xnox" not in opts and XA == 2: q += xload(s + 2)
            if Pn == 18: q += [("v", x) for x in s2setup]
            A3 = opt("a3", 99)
            if s < A3:
                if Pn < 27 and not ("xnodma" in opts and Pn < 18): q += dma_pair(Pn)
            else:
                if s == A3: q += dma_pair(Pn)
                if Pn + 1 < 27: q += dma_pair(Pn + 1)
            if Pn == 18: q += [("v", x) for x in s2read]
            if s <= 15 and XA == 3: q += xload(s + 3)
            if s <= 15 and XA == 4: q += xload(s + 2)
            if s == 16: q += [("s" if x.startswith("s_") else "v", x) for x in hhsetup]
            if tl and s < 16 and s % 4 == 0: q += [("x", "buffer_load_dword a232, v31, s[12:15], s50 offen", ("T", s)), ("s", f"s_add_u32 s50, s50, {128*9216}")]
            if tl and s < 16 and s % 4 == 2: q += [("x", "buffer_load_dword a233, v14, s[16:19], s51 offen", ("T", s)), ("s", f"s_add_u32 s51, s51, {128*11*128}")]
            assert not any(len(x) > 2 and x[2][0] == 'P' for x in memq)
            memq = q + memq + fastq; fastq = []
        if pos == 4 and s + 1 < 18:
            valq += [(("w", ("X", s + 1)), i + 31)] + [(x, i + 31) for x in norm(s + 1)]
        if i >= 612 and i < 648 and (i - 612) % 4 == 2 and (i - 612) // 4 >= 1:
            J = (i - 612) // 4 - 1
            valq += [(x, 648 + 4 * NA * J) for x in conv(J)]
        if i == 650: valq += [(x, 648 + 4 * NA * 8) for x in conv(8)]
        if i == 652: valq += [(("v", x), 648 + 36 * 4) for x in redsetup]
        EP = opt("ep", 2)
        if s >= 23 and pos == (EP if s < 25 else 2):
            for c in (((4,), (), (0, 1), (2,)) if PK2 else ((4,), (0,), (1,), (2,)))[s - 23]: valq += [(x, None) for x in epi(c)]
        if i == opt('hl', N - 1):
            for c in range(9): slowq += hload(c)
        chks = []
        for g, e in enumerate(ev):
            if e[5] is not None and i == 36 * e[5] - D - opt("pl", 16): memq = poll_issue(g) + memq
            if e[5] is not None and pendbar == e[5]:
                while any(len(x) > 2 and x[2] == ("F", g) for x in memq): emit(memq.pop(0))
                chks.append(g)
        if slowq and i % lper == opt("loff", 0):
            while True:
                x = slowq.pop(0); memq.append(x)
                if x[0] == "x" or not slowq: break
        sigs = [g for g, e in enumerate(ev) if pendbar is not None and e[4] == pendbar]
        for g in sigs:
            while any(len(x) > 2 and covers(ev[g])(x[2]) for (x, _) in valq): emitv(valq.pop(0)[0])
        if isinstance(B, tuple):
            while any(len(x) > 2 and x[2] == ("HL", B[2]) for x in memq): emit(memq.pop(0))
            a.wait(v=("HL", B[2]))
        while any(d is not None and d <= i for (_, d) in valq): emitv(valq.pop(0)[0])
        lw = lambda lim: a.wait(l=lambda t: t is not None and t != "SMEM" and t[1] <= lim)
        lw(i)
        f = AF(i)
        rd = reads(i + D) if i + D < N else []
        behind = len(valq) > opt("beh", 60)
        for h in range(2):
            C = "0" if first else vr(b + 4 * h, 4, k)
            a(f"v_mfma_f32_16x16x32_bf16 {vr(b+4*h,4,k)}, a[{f}:{f+3}], {vr(B[1]+4*h,4,'a') if isinstance(B, tuple) else vr(B+4*h,4)}, {C}")
            sc_used = False
            if pendbar is not None:
                a.wait(v=lambda t: t == ("P", pendbar) or any(covers(ev[g])(t) for g in sigs))
                for g in chks: poll_check(g)
                a("s_barrier")
                for g in sigs: sig(g)
                for g in chks:
                    if ev[g][7]: fastq += ev[g][6]
                    else: slowq += ev[g][6]
                pendbar = None; sc_used = True
            if h == 1 and not sc_used: sc_used = lw(i + 1)
            if not sc_used:
                if memq and memq[0][0] in ("s", "m"):
                    emit(memq.pop(0)); sc_used = True
                    if "sc2" in opts and memq and memq[0][0] in ("s", "m"): emit(memq.pop(0))
                elif valq and valq[0][0][0] == "w": sc_used = emitv(valq.pop(0)[0])
                elif valq and valq[0][0][1].startswith("s_"): emitv(valq.pop(0)[0]); sc_used = True
            n = 0
            if rd: a(rd[h], ltag=("A", i + D)); n += 1
            mp = mper if s < 16 else opt("mq", 4)
            if memq and len(memq[0]) > 2 and memq[0][2][0] == "HL": mp = opt("mh", mp)
            if memq and memq[0][0] in ("x", "d") and (2 * i + h) % mp == 0:
                emit(memq.pop(0)); n += 1
            elif memq and memq[0][0] == "v":
                emit(memq.pop(0)); n += 1
            while valq and n < budget + (1 if behind else 0) and valq[0][0][0] != "w" and not valq[0][0][1].startswith("s_"):
                n += emitv(valq.pop(0)[0])
    for it in memq: emit(it)
    for it, d in valq: emitv(it)
    tailq = slowq
    if loop:
        body = [[x.text for x in a.l[marks[s]:marks[s + 4]]] for s in (0, 4, 8, 12)]
        assert body[1] == body[2] == body[3], "loop bodies differ"
        pre = []
        if body[0][0] != body[1][0]:
            assert body[0][0].startswith("s_waitcnt lgkmcnt"); pre = [Ins(body[0][0])]; body[0] = body[0][1:]
        assert body[0] == [x for x in body[1] if not (x.startswith("s_waitcnt vmcnt") and x not in body[0])] or \
               [x for x in body[0] if "vmcnt" not in x] == [x for x in body[1] if "vmcnt" not in x]
        lp = a.lab("loop")
        a.l = a.l[:marks[0]] + pre + [Ins("s_mov_b32 s41, 0"), Ins(f".p2align {opt('al', 3)}")] + [Ins("s_nop 0")] * opt("ao", 0) + [Ins(f"{lp}:")] + a.l[marks[4]:marks[8]] + \
              [Ins("s_add_u32 s41, s41, 1"), Ins("s_cmp_lt_u32 s41, 4"), Ins(f"s_cbranch_scc1 {lp}")] + a.l[marks[16]:]
    st("s2")
    srd(a, 12, 10, 11, 2048 * 1152)
    def red(c):
        T = 208 + 4 * c
        for hi in range(1 if c == 4 else 2):
            pc = c + 5 * hi; S = 224 + 4 * hi
            a.wait(v=("H", pc))
            a(f"v_mfma_f32_16x16x32_bf16 v[{T}:{T+3}], a[{S}:{S+3}], a[{HL(pc)}:{HL(pc)+3}], {'0' if hi == 0 else f'v[{T}:{T+3}]'}")
        a.wait(v=("L", c))
        for i in range(4):
            S = 224 + (4 if (c < 4 and i >= 2) else 0)
            a(f"v_mfma_f32_16x16x32_bf16 v[{T}:{T+3}], a[{S}:{S+3}], a[{PL(c,i)}:{PL(c,i)+3}], v[{T}:{T+3}]")
    lds_out = True
    osc = " sc1" if "osc1" in opts else " nt" if "ont" in opts else ""
    OST = 147456 + 1024
    def out(T):
        r = 208 + 4 * T
        a(f"v_cvt_pk_bf16_f32 v{r}, v{r}, v{r+1}\nv_cvt_pk_bf16_f32 v{r+1}, v{r+2}, v{r+3}")
        if T == 4: a("s_mov_b32 exec_hi, 0")
        if lds_out: a(f"ds_write_b64 v6, v[{r}:{r+1}] offset:{128*T}")
        elif "xnoout" not in opts: a(f"buffer_store_dwordx2 v[{r}:{r+1}], v5, s[12:15], s94 offen offset:{256*T}" + osc)
        if T == 4: a("s_mov_b64 exec, -1")
    def flush_out(part):
        a("s_waitcnt lgkmcnt(0)\ns_barrier")
        regs = (8, 9) if part == 0 else (10,)
        for q, r in enumerate(regs): a(f"ds_read_b128 v[{32+4*(r-8)}:{35+4*(r-8)}], v{r+3}")
        a("s_waitcnt lgkmcnt(0)")
        for q, r in enumerate(regs): a(f"buffer_store_dwordx4 v[{32+4*(r-8)}:{35+4*(r-8)}], v{r}, s[12:15], s43 offen" + osc)
    if lds_out:
        a(f"""v_accvgpr_read_b32 v8, a245
        v_accvgpr_read_b32 v9, a246
        v_accvgpr_read_b32 v10, a247
        s_lshl_b32 s93, s34, 6
        s_lshl_b32 s43, s33, 4
        s_add_u32 s93, s93, s43
        s_add_u32 s93, s93, {OST}
        v_add_u32 v6, s93, v5
        s_mul_i32 s93, s30, 2304
        s_mul_i32 s43, s29, {8*1152}
        s_add_u32 s43, s43, s93
        s_add_u32 s93, s93, {OST}
        v_min_u32 v11, 2288, v8
        v_min_u32 v12, 2288, v9
        v_min_u32 v13, 2288, v10
        v_add_u32 v11, s93, v11
        v_add_u32 v12, s93, v12
        v_add_u32 v13, s93, v13""")
    pend = list(tailq)
    def issue(n):
        while pend and n > 0:
            x = pend.pop(0); emit(x)
            if x[0] == "x": n -= 1
    for g, e in enumerate(ev):
        if e[4] == 27:
            a.wait(v=covers(e)); a("s_barrier"); sig(g)
    for x in epi(3): emit(x)
    st("epi")
    a.wait(v=lambda t: isinstance(t, tuple) and t[0] == "ST"); a("s_barrier")
    for g, e in enumerate(ev):
        if e[4] is None: sig(g)
    st("drain")
    rest = [g for g, e in enumerate(ev) if e[5] is None]
    for g in rest:
        nx = sum(1 for x in pend if x[0] == "x")
        issue(nx - opt("keep", 6))
        [emit(x) for x in poll_issue(g)]
        issue(99)
        poll_check(g); a("s_barrier")
        if g == rest[-1]: st("sync4")
        pend += ev[g][6]
    issue(99)
    prev = None
    for c in (4, 0, 1, 2):
        red(c)
        if prev is not None: out(prev)
        prev = c
    out(2); flush_out(0)
    red(3)
    st("loaded")
    out(3); flush_out(1)
    st("end")
    a.spins = spins
```

```python
import sys, json
from common import *
from pk import divu
import ffn17, ffn18
from p2c import p2c_wodma, p2c_xload, p2c_main, p2c_prepoll, WOB
from pk2 import touch3

LOG2E = 0x3fb8aa3b
SP = 147456; MOFF = SP; KVL = SP + 6144; ZERO = KVL + 3840; STX = SP + 10240
KVS = 2816; QS = 1280; KVB = 36 * QS; KVR = 9 * KVS; QR = 9 * QS
C1, C2, C3, C4, C0 = FLAGS, FLAGS + 4096, FLAGS + 8192, FLAGS + 12288, FLAGS + 61440
PB = 1024
OOB = 0x7fffff00

def softmax16(a, P, E, vmask):
    for b in range(2):
        p = P[b]
        a(f"v_max3_f32 v{16+b}, v{p}, v{p+1}, v{p+2}\nv_min3_f32 v{18+b}, v{p}, v{p+1}, v{p+2}")
    for i in (3, 5, 7):
        for b in range(2):
            p = P[b]
            a(f"v_max3_f32 v{16+b}, v{16+b}, v{p+i}, v{p+i+1}\nv_min3_f32 v{18+b}, v{18+b}, v{p+i}, v{p+i+1}")
    for b in range(2):
        p = P[b]
        a(f"v_max_f32 v{16+b}, v{16+b}, v{p+9}\nv_min_f32 v{18+b}, v{18+b}, v{p+9}")
    a("""v_permlane16_swap_b32 v16, v17
    v_permlane16_swap_b32 v18, v19
    v_max_f32 v16, v16, v17
    v_min_f32 v18, v18, v19
    v_mul_f32 v20, s48, v16
    v_mul_f32 v24, s48, v18
    v_mov_b32 v22, v20
    v_mov_b32 v26, v24
    v_permlane16_swap_b32 v20, v22
    v_permlane16_swap_b32 v24, v26""")
    for b in range(2):
        for i in range(0, 10, 2):
            p = P[b] + i; e = E[b] + i
            a(f"v_pk_fma_f32 v[{e}:{e+1}], v[{p}:{p+1}], s[48:49], v[{24+2*b}:{25+2*b}] op_sel_hi:[1,0,0] neg_lo:[1,0,0] neg_hi:[1,0,0]")
            a(f"v_pk_fma_f32 v[{p}:{p+1}], v[{p}:{p+1}], s[48:49], v[{20+2*b}:{21+2*b}] op_sel_hi:[1,0,0] neg_lo:[0,0,1] neg_hi:[0,0,1]")
    for b in range(2):
        for i in range(10): a(f"v_exp_f32 v{P[b]+i}, v{P[b]+i}\nv_exp_f32 v{E[b]+i}, v{E[b]+i}")
    sets = [P[0], P[1], E[0], E[1]]
    for s in sets: a(f"v_pk_mul_f32 v[{s+8}:{s+9}], v[{s+8}:{s+9}], v[{vmask}:{vmask+1}] op_sel_hi:[1,0]")
    for k, s in enumerate(sets): a(f"v_pk_add_f32 v[{16+2*k}:{17+2*k}], v[{s}:{s+1}], v[{s+2}:{s+3}]")
    for k, s in enumerate(sets): a(f"v_pk_add_f32 v[{24+2*k}:{25+2*k}], v[{s+4}:{s+5}], v[{s+6}:{s+7}]")
    for k, s in enumerate(sets): a(f"v_pk_add_f32 v[{16+2*k}:{17+2*k}], v[{16+2*k}:{17+2*k}], v[{s+8}:{s+9}]")
    for k in range(4): a(f"v_pk_add_f32 v[{16+2*k}:{17+2*k}], v[{16+2*k}:{17+2*k}], v[{24+2*k}:{25+2*k}]")
    for k in range(4): a(f"v_add_f32 v{16+2*k}, v{16+2*k}, v{17+2*k}")
    a("""v_permlane16_swap_b32 v16, v18
    v_permlane16_swap_b32 v20, v22
    v_add_f32 v16, v16, v18
    v_add_f32 v20, v20, v22
    v_rcp_f32 v16, v16
    v_rcp_f32 v20, v20
    s_nop 0
    v_mov_b32 v18, v16
    v_mov_b32 v22, v20
    v_permlane16_swap_b32 v16, v18
    v_permlane16_swap_b32 v20, v22""")
    for k, s in enumerate(sets):
        for i in range(0, 10, 2): a(f"v_pk_mul_f32 v[{s+i}:{s+i+1}], v[{s+i}:{s+i+1}], v[{16+2*k}:{17+2*k}] op_sel_hi:[1,0]")

def gen(diag, opts):
    a = A("K"); st = Stamps(a, diag, 0); tb = Table("K_tab")
    opt = lambda k, d: next((int(o[len(k):]) for o in reversed(opts) if re.fullmatch(k + r'\d+', o)), d)
    X = lambda k: 64 + 4 * k
    K0, K1, V0, V1, EE = 48, 56, 64, 72, 80
    B0, B1 = 32, 40
    P = (88, 100); E = (140, 152); Z = (176, 188); VP = 200
    a("s_cmp_ge_u32 s2, 256\ns_cbranch_scc1 K_end")
    a("""s_load_dwordx4 s[4:7], s[0:1], 0
    s_load_dwordx4 s[8:11], s[0:1], 16
    s_load_dwordx4 s[88:91], s[0:1], 72""")
    st("entry")
    code_prefetch(a, "K_start", "K_tab_end", 16, "a[0:2]", wide=True)
    a("K_start:")
    a("""v_lshrrev_b32 v16, 6, v0
    v_and_b32 v15, 63, v0
    v_mov_b32 v14, v0
    v_readfirstlane_b32 s30, v16
    s_and_b32 s31, s2, 3
    s_lshl_b32 s31, s31, 2
    s_bfe_u32 s33, s2, 0x20003
    s_add_u32 s32, s31, s33
    s_bfe_u32 s31, s2, 0x10002
    s_lshl_b32 s31, s31, 3
    s_lshr_b32 s33, s2, 5
    s_add_u32 s31, s31, s33
    s_lshr_b32 s28, s2, 3
    s_and_b32 s29, s2, 7""")
    a(f"""v_and_b32 v16, 7, v15
    v_lshrrev_b32 v17, 3, v15
    v_mul_u32_u24 v13, 1152, v16
    v_lshl_add_u32 v13, v17, 4, v13
    v_lshlrev_b32 v5, 4, v15
    s_lshl_b32 s36, s32, 4
    s_add_u32 s36, s36, s31
    s_mul_i32 s36, s36, {8*1152}
    s_lshl_b32 s37, s30, 7
    s_add_u32 s36, s36, s37
    s_cmp_eq_u32 s30, 0
    s_cselect_b32 s37, 0, {OOB}
    s_add_u32 s37, s37, s36
    s_mul_i32 s34, s30, {KVR}
    s_add_u32 s34, s34, {KVB}
    s_lshl_b32 s35, s32, 2
    s_add_u32 s35, s35, s30""")
    a("s_waitcnt lgkmcnt(0)")
    srd(a, 12, 4, 5, 2048 * 1152)
    srd(a, 20, 90, 91, WS_BYTES)
    sk = a.lab("noinit"); saved = list(a.vm)
    a(f"""s_lshl_b32 s33, s2, 2
    s_add_u32 s33, s33, s30
    s_cmp_lg_u32 s33, 515
    s_cbranch_scc1 {sk}
    v_lshlrev_b32 v16, 8, v15
    v_mov_b32 v17, 0
    s_mov_b32 s38, {FLAGS}""")
    for q in range(8 if "g2" in opts else 4):
        a("buffer_store_dword v17, v16, s[20:23], s38 offen sc1\ns_add_u32 s38, s38, 16384")
    a(f"{sk}:")
    a.vm = saved
    a("""buffer_load_dwordx4 v[160:163], v13, s[12:15], s36 offen
    buffer_load_dwordx4 v[164:167], v13, s[12:15], s36 offen offset:512
    buffer_load_dwordx4 v[168:171], v13, s[12:15], s37 offen offset:1024""", vtag="x8")
    srd(a, 24, 88, 89, 256)
    if "fine" not in opts: st("start")
    for i in range(3):
        a(f"v_add_u32 v16, {64*i}, v15")
        divu(a, 17, 16, 11)
        a(f"""v_mul_u32_u24 v18, 11, v17
        v_sub_u32 v18, v16, v18
        v_and_b32 v19, 8, v17
        v_and_b32 v20, 1, v17
        v_lshl_add_u32 v19, v20, 2, v19
        v_bfe_u32 v17, v17, 1, 2
        v_add_u32 v17, v17, v19
        v_mul_u32_u24 v17, 3456, v17
        v_lshl_add_u32 v17, v18, 4, v17
        v_mov_b32 v19, {1152 + 2048 - i*1024}
        v_mov_b32 v16, {2304 - 80 + 2048 - i*1024}
        v_cmp_lt_u32 vcc, 4, v18
        v_mov_b32 v20, {2304 + 36 - 128 + 2048 - i*1024}
        v_cmp_lt_u32 s[38:39], 7, v18
        v_cndmask_b32 v19, v19, v16, vcc
        v_cmp_eq_u32 vcc, 4, v18
        v_cndmask_b32_e64 v19, v19, v20, s[38:39]
        v_cmp_eq_u32 s[38:39], 7, v18
        v_cndmask_b32_e64 v16, 0, 8, vcc
        v_cmp_eq_u32 vcc, 10, v18
        v_cndmask_b32_e64 v16, v16, 12, s[38:39]
        v_add_u32 v{i}, v17, v19
        v_cndmask_b32_e64 v16, v16, 12, vcc
        v_sub_u32 v{i}, v{i}, v16""")
    a(f"""s_sub_u32 s16, s6, 2048
    s_subb_u32 s17, s7, 0
    s_mov_b32 s18, {576*3456+2048}
    s_mov_b32 s19, 0x20000""")
    if "twq" in opts:
        nseg = opt("tseg", 2)
        for q in range(1 if nseg == 2 else 2):
            a(f"""v_add_u32 v18, {256*q}, v14
            v_mul_u32_u24 v16, {65536//(5*nseg)+1}, v18
            v_lshrrev_b32 v16, 16, v16
            v_mul_u32_u24 v17, {5*nseg}, v16
            v_sub_u32 v17, v18, v17
            v_mul_u32_u24 v19, 13108, v17
            v_lshrrev_b32 v19, 16, v19
            v_lshl_add_u32 v17, v19, 2, v17
            v_mul_u32_u24 v16, 3456, v16
            v_lshl_add_u32 v16, v17, 7, v16
            v_mov_b32 v17, {OOB}
            v_cmp_gt_u32 vcc, {18*5*nseg}, v18
            s_mul_i32 s37, s28, {18*3456}
            s_lshr_b32 s38, s29, 2
            s_lshl_b32 s38, s38, 9
            s_add_u32 s37, s37, s38
            s_add_u32 s37, s37, {2048 + (1152 if nseg == 2 else 0)}
            v_cndmask_b32 v16, v17, v16, vcc""")
            a(f"buffer_load_dword a{4+q}, v16, s[16:19], s37 offen", vtag="touch")
    srd(a, 40, 8, 9, 32 * 648)
    if "mearly" in opts:
        a(f"""v_bfe_u32 v16, v15, 3, 2
        v_bfe_u32 v17, v15, 1, 1
        v_and_b32 v18, 1, v15
        v_mul_u32_u24 v19, 5, v17
        v_lshl_add_u32 v19, v16, 1, v19
        v_add_u32 v19, v19, v18
        v_lshlrev_b32 v20, 2, v17
        v_add_u32 v20, 4, v20
        v_cmp_eq_u32 vcc, 2, v16
        v_lshl_add_u32 v16, v16, 1, v18
        v_lshrrev_b32 v21, 5, v15
        v_cndmask_b32 v19, v19, v20, vcc
        v_mul_u32_u24 v21, 9, v21
        v_add_lshl_u32 v19, v19, v21, 2
        v_mov_b32 v22, {OOB}
        v_cmp_gt_u32 vcc, 5, v16
        v_bfe_u32 v17, v15, 2, 1
        s_mul_i32 s38, s30, 6
        v_cndmask_b32 v19, v22, v19, vcc
        v_cmp_eq_u32 vcc, 0, v17
        s_mul_i32 s39, s31, 1296
        s_nop 0
        v_cndmask_b32 v20, v22, v19, vcc
        v_cndmask_b32 v21, v19, v22, vcc""")
        for i in range(6):
            a(f"""s_add_u32 s37, s38, {i}
            s_lshl_b32 s96, s37, 8
            s_add_u32 m0, s96, {MOFF}
            s_cmp_lt_u32 s37, 9
            s_cselect_b64 vcc, -1, 0
            s_mul_i32 s96, s37, 72
            s_add_u32 s96, s96, s39
            v_cndmask_b32 v16, v21, v20, vcc
            s_cmp_ge_u32 s37, 18
            s_cselect_b32 s96, 0x100000, s96""")
            a("buffer_load_dword v16, s[40:43], s96 offen lds", vtag="wphi")
    a(f"""s_sub_u32 s44, s10, 2048
    s_subb_u32 s45, s11, 0
    s_mov_b32 s46, {576*1152+2048}
    s_mov_b32 s47, 0x20000""")
    a("s_load_dwordx8 s[4:11], s[0:1], 40")
    tb.srd(a, 88)
    a("""s_and_b32 s37, s32, 3
    s_lshl_b32 s37, s37, 1
    s_and_b32 s99, s31, 7
    s_add_u32 s99, s99, s37
    s_cmp_ge_u32 s99, 9
    s_cselect_b32 s37, 9, 0
    s_sub_u32 s99, s99, s37""")
    a(f"""s_mul_i32 s101, s30, {16*3456}
    s_mul_i32 s37, s31, 72
    s_add_u32 s101, s101, s37
    s_add_u32 s100, s101, {576*3456}
    s_mul_i32 s37, s99, {64*3456}
    s_add_u32 s101, s101, s37
    s_mov_b32 s51, s101""")
    def em(x):
        if isinstance(x, tuple) and x[1] == "qwait": a.wait(v="tab2")
        elif isinstance(x, tuple): a(x[0], vtag=x[1])
        else: a(x)
    def kvdma(j):
        r = [f"s_add_u32 m0, s34, {j*KVS}", f"s_add_u32 s101, s101, {64*3456}\ns_cmp_ge_u32 s101, s100\ns_cselect_b32 s37, {576*3456}, 0\ns_sub_u32 s101, s101, s37" if j else "s_nop 0"]
        r += [(f"buffer_load_dwordx4 v{i}, s[16:19], s101 offen offset:{i*1024} lds", ("w", j)) for i in range(2)]
        r += ["s_mov_b32 exec_hi, 0xffff", (f"buffer_load_dwordx4 v2, s[16:19], s101 offen offset:2048 lds\ns_mov_b32 exec_hi, -1", ("w", j))]
        return r
    NK0 = opt("nka", 2); NK2 = opt("nkc", 7)
    if NK0: a("s_barrier")
    for j in range(NK0): [em(x) for x in kvdma(j)]
    a(f"""s_mov_b32 s50, 0x3f803f80
    v_and_b32 v16, 7, v15
    v_lshrrev_b32 v17, 5, v15
    v_lshlrev_b32 v18, 4, v16
    v_lshl_add_u32 v19, v17, 7, v18
    v_lshl_add_u32 v6, v17, 11, v18
    v_bfe_u32 v17, v15, 3, 2
    v_lshl_add_u32 v6, v17, 8, v6
    s_lshl_b32 s37, s30, 2
    s_add_u32 s37, s37, {STX}
    v_add_u32 v19, s37, v19
    v_add_u32 v18, {STX}, v18""")
    a(f"""s_lshr_b32 s36, s31, 2
    s_lshl_b32 s37, s32, 2
    s_add_u32 s36, s36, s37
    s_mul_i32 s36, s36, 36864
    s_bfe_u32 s37, s31, 0x10001
    s_lshl_b32 s37, s37, 10
    s_add_u32 s36, s36, s37
    s_and_b32 s37, s31, 1
    s_lshl_b32 s37, s37, 7
    s_add_u32 s36, s36, s37
    s_lshl_b32 s37, s30, 12
    s_add_u32 s36, s36, s37
    s_add_u32 s36, s36, {XFRAG}
    s_add_u32 s38, s36, 16384
    s_cmp_eq_u32 s30, 0
    s_cselect_b32 s39, 0, {OOB}
    s_add_u32 s39, s39, s38
    s_add_u32 s39, s39, 16384
    s_lshl_b32 s53, s32, 8
    s_add_u32 s53, s53, {C0}""")
    a.wait(v="x8")
    sk = a.lab("noflag"); saved = list(a.vm)
    a(f"""s_cmp_lg_u32 s33, 515
    s_cbranch_scc1 {sk}
    v_mov_b32 v16, 1
    v_mov_b32 v17, 0
    s_mov_b64 exec, 1
    buffer_store_dword v16, v17, s[24:27], 0 offen sc1
    s_mov_b64 exec, -1
    {sk}:""")
    a.vm = saved
    if "fine" not in opts: st("x8")
    for j in range(12):
        c0 = "0" if j < 2 else f"v{24+(j&1)}"; c1 = "0" if j < 2 else f"v{26+(j&1)}"
        a(f"v_dot2_f32_bf16 v{24+(j&1)}, v{160+j}, s50, {c0}\nv_dot2_f32_bf16 v{26+(j&1)}, v{160+j}, v{160+j}, {c1}")
    a("""v_add_f32 v24, v24, v25
    v_add_f32 v26, v26, v27
    v_permlane32_swap_b32 v24, v26
    v_add_f32 v24, v24, v26
    v_mov_b32 v25, v24
    v_permlane16_swap_b32 v24, v25
    v_add_f32 v24, v24, v25
    v_add_f32_dpp v24, v24, v24 row_ror:8 row_mask:0xf bank_mask:0xf
    s_mov_b32 s50, 0xffff0000
    ds_write_b32 v19, v24""")
    for k in range(3):
        for j in range(4): a(f"v_lshlrev_b32_e32 v{176+8*k+2*j}, 16, v{160+4*k+j}\nv_and_b32_e32 v{177+8*k+2*j}, s50, v{160+4*k+j}")
    a("""s_waitcnt lgkmcnt(0)
    s_barrier
    ds_read_b128 v[24:27], v18
    ds_read_b128 v[28:31], v18 offset:128
    s_waitcnt lgkmcnt(0)
    v_pk_add_f32 v[24:25], v[24:25], v[26:27]
    v_pk_add_f32 v[28:29], v[28:29], v[30:31]
    v_add_f32 v24, v24, v25
    v_add_f32 v26, v28, v29
    v_mul_f32 v24, 0x3ae38e39, v24
    v_mul_f32 v26, 0x3ae38e39, v26
    v_fma_f32 v26, -v24, v24, v26
    v_max_f32 v26, 0, v26
    v_add_f32 v26, 0x3727c5ac, v26
    v_rsq_f32 v12, v26
    s_nop 0
    v_mul_f32_e64 v13, -v24, v12""")
    for k, so in ((0, "s36"), (1, "s38"), (2, "s39")):
        b_ = 160 + 4 * k; u = 176 + 8 * k
        for j in range(4): a(f"v_pk_fma_f32 v[{u+2*j}:{u+2*j+1}], v[{u+2*j}:{u+2*j+1}], v[12:13], v[12:13] op_sel:[0,0,1] op_sel_hi:[1,0,1]")
        for j in range(4): a(f"v_cvt_pk_bf16_f32 v{b_+j}, v{u+2*j}, v{u+2*j+1}")
        a(f"buffer_store_dwordx4 {vr(b_,4)}, v6, s[20:23], {so} offen sc1", vtag="xs")
    aINI = 31
    a(f"v_mov_b32 v16, 0\nbuffer_load_dword v{aINI}, v16, s[24:27], 0 offen sc1", vtag="xs")
    st("ln")
    g_ = lambda l: l >> 4
    r_ = lambda l: (l >> 2) & 3
    c_ = lambda l: l & 3
    n_ = lambda l: l & 15
    pos = lambda l: 8 * (g_(l) & 1) + 2 * r_(l)
    row_of = lambda p: 8 * (p >> 3) + 4 * (p & 1) + ((p >> 1) & 3)
    kvb = lambda l: KVB + (g_(l) >> 1) * KVR + pos(l) * 176
    def qsrc(i):
        def f(l):
            p = 64 * i + l; ps, pc = divmod(p, 5)
            return row_of(ps & 15) * 3456 + pc * 16 - (8 if pc == 4 else 0) + 2048 - 1024 * i
        return f
    def msrc(head):
        def f(l):
            u = l & 31; p = u >> 3; gp = (u >> 1) & 3; pair = u & 1; half = gp & 1
            if p > 2 or (p == 2 and pair) or gp >> 1 != head: return OOB
            fp = 5 * half + 2 * p + pair if p < 2 else (4 if half == 0 else 8)
            return ((l >> 5) * 9 + fp) * 4
        return f
    def nrd(p2):
        def f(l):
            i = n_(l); g2 = i >> 2; r = i & 3; gp = g_(l)
            if g2 >> 1 != gp >> 1 or (p2 and r == 3): return ZERO
            d = (16 + r) if p2 else 8 * (g2 & 1) + r
            return KVL + (gp >> 1) * 1920 + d * 96 + (gp & 1) * 48
        return f
    def kwr(tile):
        def f(l):
            gam = 32 * tile + 16 * (g_(l) >> 1) + n_(l); e = g_(l) & 1
            if gam < 40: hf, d = divmod(gam, 20); q = 2 * e + hf
            elif gam < 56: d = 2 * (gam - 40) + e; q = 4
            else: d = 99; q = 0
            if d >= 19: return 0x40000000
            return KVL + d * 96 + (q // 3) * 48 + (q % 3) * 8
        return f
    sel = lambda hi, j: (lambda l: (0x3f80 if n_(l) == 8 * hi + 2 * j else 0) | (0x3f800000 if n_(l) == 8 * hi + 2 * j + 1 else 0))
    def wosrc(i, extra):
        def f(l):
            p = 64 * i + l; row, pc = divmod(p, 12); pc ^= 2 * (row >> 3)
            srow = (row >> 1) * 18 + (row & 1) if extra else row
            return srow * 1152 + pc * 16 + 2048 - 1024 * i
        return f
    word = lambda l: WOB + (8 * g_(l) + r_(l)) * 192 + 8 * c_(l)
    def touch9(stride, n, w):
        return lambda l: ((64 * w + l) // 9) * stride + ((64 * w + l) % 9) * 128 if 64 * w + l < n else OOB
    aT, aTE, aQ, aQE, aM = 112, 114, 116, 117, 118
    aMS0 = 120; aZW, aZV, aZX = 122, 123, 124; aZA, aZB = 125, 127
    aP4, aP2, aPL, aPL3 = 129, 130, 131, 132; aN0, aN2, aKA, aKB = 133, 134, 135, 136; aMK, aOX = 138, 137
    zrd = lambda l: KVB + (8 * (l >> 5) + r_(l)) * 144 + (4 * ((l >> 4) & 1) + c_(l)) * 8
    T = "tab"
    tl = [tb.load(112, [lambda l: kvb(l) + 8 * c_(l), lambda l: kvb(l) + 8 * c_(l) + 2 * KVR,
                        lambda l: kvb(l) + (72, 120, 168, 72)[c_(l)], lambda l: kvb(l) + (72, 120, 168, 72)[c_(l)] + 2 * KVR], 5, 88),
          tb.load(116, [lambda l: (g_(l) >> 1) * QR + pos(l) * 80 + 8 * c_(l), lambda l: (g_(l) >> 1) * QR + pos(l) * 80 + 72,
                        lambda l: MOFF + (4 * g_(l) + r_(l)) * 128 + 8 * c_(l), lambda l: nrd(0)(l) + (0 if nrd(0)(l) == ZERO else 384)], 5, 88),
          tb.load(120, [msrc(0), msrc(1), lambda l: (g_(l) >> 1) * 4608 + n_(l) * 144 + (g_(l) & 1) * 24, lambda l: n_(l) * 144 + 96 + 8 * g_(l)], 5, 88),
          tb.load(124, [lambda l: (g_(l) - 1) * 4608 + n_(l) * 144 + 128 if g_(l) in (1, 2) else 0x40000000, zrd, lambda l: zrd(l) + 2 * KVR, lambda l: zrd(l) + 96], 5, 88),
          tb.load(128, [lambda l: zrd(l) + 96 + 2 * KVR, lambda l: (l - 12 * (l >> 5)) * 16, lambda l: 640 + (l & 31) * 8, lambda l: g_(l) * 4 * PB + n_(l) * 16], 5, 88),
          tb.load(132, [lambda l: g_(l) * 4 * PB + n_(l) * 16 if n_(l) < 8 else OOB, nrd(0), nrd(1), kwr(0)], 5, 88),
          tb.load(136, [kwr(1), lambda l: 16384 + (g_(l) >> 1) * 64 + n_(l) * 4 if g_(l) % 2 == 0 else OOB, lambda l: 0 if g_(l) & 1 else 0x3f800000, lambda l: 0], 5, 88),
          tb.load(164, [qsrc(0), qsrc(1), lambda l: 0, lambda l: 0], 5, 88),
          tb.load(8, [wosrc(1, 0), wosrc(2, 0), wosrc(0, 1), wosrc(1, 1)], 5, 88),
          tb.load(168, [wosrc(0, 0), wosrc(2, 1), lambda l: word(l) + 32 * (g_(l) & 1), lambda l: word(l) - 32 * (g_(l) & 1)], 5, 88),
          tb.load(172, [lambda l: word(l) + 32 * (g_(l) & 1) + 55296, lambda l: word(l) - 32 * (g_(l) & 1) + 55296, lambda l: n_(l) * 1152 + 8 * g_(l), lambda l: 256 * g_(l) + 4 * n_(l)], 5, 88),
          tb.load(224, [sel(0, j) for j in range(4)], 5, 88, "a"),
          tb.load(228, [sel(1, j) for j in range(4)], 5, 88, "a")]
    a(f"""v_mov_b32 v24, 0
    v_mov_b32 v25, 0
    v_mov_b32 v26, 0
    v_mov_b32 v27, 0
    v_lshlrev_b32 v16, 4, v14
    v_add_u32 v16, {KVL}, v16
    ds_write_b128 v16, v[24:27]
    s_mov_b32 s48, {LOG2E}
    s_mov_b32 s49, {LOG2E}
    s_mov_b32 s54, 0xfffff
    s_mov_b32 s55, 0xfffff
    s_lshl_b32 s38, s31, 6
    s_add_u32 s38, s38, s30
    s_mul_i32 s52, s38, {PB}
    s_add_u32 s52, s52, {KVP}""")
    for q in range(6): a(f"v_accvgpr_write_b32 a{246+4*(q//2)+(q%2)}, 0")
    for q in (5, 11): a(f"v_mov_b32 v{Z[0]+q}, 0\nv_mov_b32 v{Z[1]+q}, 0")
    for b_ in range(2): a(f"v_mov_b32 v{B1+4*b_+2}, 0\nv_mov_b32 v{B1+4*b_+3}, 0\nv_mov_b32 v{VP+9+2*b_}, 0x3f80")
    def touch_wo():
        a(f"""v_mul_u32_u24 v16, 7282, v14
        v_lshrrev_b32 v16, 16, v16
        v_mul_u32_u24 v17, 9, v16
        v_sub_u32 v17, v14, v17
        v_mul_u32_u24 v16, 1152, v16
        v_lshl_add_u32 v16, v17, 7, v16
        v_mov_b32 v17, {OOB}
        v_cmp_gt_u32 vcc, 162, v14
        s_mul_i32 s96, s28, {18*1152}
        s_add_u32 s96, s96, 2048
        v_cndmask_b32 v16, v17, v16, vcc""")
        a(f"buffer_load_dword a208, v16, s[44:47], s96 offen", vtag="touch")
    def touch_gu(rows):
        n = rows // 64
        a(f"""v_mul_u32_u24 v16, 7282, v15
        v_lshrrev_b32 v16, 16, v16
        v_mul_u32_u24 v17, 9, v16
        v_sub_u32 v17, v15, v17
        v_mul_u32_u24 v16, 9216, v16
        v_lshl_add_u32 v16, v17, 7, v16
        v_mov_b32 v17, {OOB}
        v_cmp_gt_u32 vcc, {9*n}, v15
        s_cmp_lt_u32 s30, 2
        s_cselect_b32 s92, s4, s6
        s_cselect_b32 s93, s5, s7
        s_mov_b32 s94, {576*9216}
        s_mov_b32 s95, 0x20000
        s_lshl_b32 s96, s28, 1
        s_and_b32 s97, s30, 1
        s_add_u32 s96, s96, s97
        s_mul_i32 s96, s96, {n*9216}
        s_mul_i32 s97, s29, 1152
        s_add_u32 s96, s96, s97
        v_cndmask_b32 v16, v17, v16, vcc""")
        a(f"buffer_load_dword a209, v16, s[92:95], s96 offen", vtag="touch")
    if "tabln" in opts:
        for x in tl: a(x.replace("v[164:167]", "v[212:215]").replace("v[168:171]", "v[216:219]"), vtag=T)
        tl = []
    if "tw0" in opts: touch_wo()
    if opt("gu", 0): touch_gu(opt("gu", 0))
    a.wait(v="xs"); a("s_barrier")
    signal(a, "s53", check_init=aINI)
    st("sig0")
    urgent = range(13) if 'taball' in opts else (0, 2)
    for q in urgent:
        if tl: a(tl[q], vtag=T)
    tl = [(x, "tab2") for q, x in enumerate(tl) if q not in urgent]
    a("""s_mul_i32 s27, s28, 43
    s_lshr_b32 s27, s27, 8
    s_mul_i32 s26, s27, 6
    s_sub_u32 s26, s28, s26
    s_lshl_b32 s37, s29, 2
    s_add_u32 s27, s27, s37""")
    PA = opt("pa", 2)
    for j in range(NK0, NK2):
        if j == NK2 - PA: poll_start(a, "s53")
        [em(x) for x in kvdma(j)]
    if PA == 0: poll_start(a, "s53")
    if "two" in opts: touch_wo()
    a(f"""s_mul_i32 s36, s35, 36864
    s_add_u32 s36, s36, {XFRAG}
    s_add_u32 s33, s36, 36864
    s_lshl_b32 s37, s99, 12
    s_add_u32 s36, s36, s37""")
    st("pre")
    poll_finish(a, "s53", 16)
    st("sync0")
    def xload(g):
        r = [] if g == 0 else ["s_add_u32 s36, s36, 4096\ns_cmp_ge_u32 s36, s33\ns_cselect_b32 s37, 36864, 0\ns_sub_u32 s36, s36, s37"]
        return r + [(f"buffer_load_dwordx4 {vr(X(4*g+q),4,'a')}, v5, s[20:23], s36 offen offset:{q*1024} sc1", ("X", 2 * g + q // 2)) for q in range(4)]
    NX0 = opt("nx", 2)
    for g in range(NX0): [em(x) for x in xload(g)]
    a.wait(v=T)
    if "tabln" in opts:
        for q in range(8): a(f"v_mov_b32 v{164+q}, v{212+q}")
    def fixups():
        a.wait(v="tab2")
        a(f"""v_mov_b32 v7, v168
        v_mov_b32 v12, v169
        v_add_u32 v{aZW}, s34, v{aZW}
        v_add_u32 v{aZV}, s34, v{aZV}
        v_add_u32 v{aZX}, s34, v{aZX}
        v_min_u32 v{aZX}, {STX}, v{aZX}
        s_lshr_b32 s92, s30, 1
        s_and_b32 s93, s30, 1
        s_mul_i32 s96, s92, 4608
        s_mul_i32 s97, s93, 48
        s_add_u32 s97, s97, s96
        v_add_u32 v{aZA}, s97, v{aZA}
        v_add_u32 v{aZA+1}, s97, v{aZA+1}
        v_add_u32 v{aZB}, s96, v{aZB}
        v_add_u32 v{aZB+1}, s96, v{aZB+1}
        s_mul_i32 s96, s92, 1920
        s_mul_i32 s97, s93, 24
        s_add_u32 s97, s97, s96
        v_add_u32 v{aKA}, s97, v{aKA}
        v_add_u32 v{aKB}, s97, v{aKB}
        v_min_u32 v{aKA}, {STX}, v{aKA}
        v_min_u32 v{aKB}, {STX}, v{aKB}""")
    mq = ["s_mul_i32 s38, s30, 6\ns_mul_i32 s39, s31, 1296"]
    for i in range(6):
        mq += [f"""s_add_u32 s37, s38, {i}
        s_lshl_b32 s96, s37, 8
        s_add_u32 m0, s96, {MOFF}
        s_cmp_lt_u32 s37, 9
        s_cselect_b64 vcc, -1, 0
        s_mul_i32 s96, s37, 72
        s_add_u32 s96, s96, s39
        v_cndmask_b32 v16, v{aMS0+1}, v{aMS0}, vcc
        s_cmp_ge_u32 s37, 18
        s_cselect_b32 s96, 0x100000, s96""", ("buffer_load_dword v16, s[40:43], s96 offen lds", "wphi")]
    WP = lambda stp, p: 232 + 12 * stp + 4 * p
    def mreads():
        a.wait(v="tab2")
        for p in range(3):
            f = WP(0, p); f1 = WP(1, p)
            a(f"ds_read_b64_tr_b16 a[{f}:{f+1}], v{aM} offset:{32*p}\nds_read_b64_tr_b16 a[{f+2}:{f+3}], v{aM} offset:{32*p+2048}\nds_read_b64_tr_b16 a[{f1}:{f1+1}], v{aM} offset:{32*p+4096}")
    AF = lambda i: 4 * (i % 8)
    def reads(i, lst):
        ks, T_, ad, off, sz = lst[i]
        j = ks // 2; f = AF(i)
        if sz == 176: o = j * KVS + off; ad += ks % 2
        else: o = 2 * (ks % 2) * QR + j * QS + off
        return [f"ds_read_b64_tr_b16 a[{f}:{f+1}], v{ad} offset:{o}", f"ds_read_b64_tr_b16 a[{f+2}:{f+3}], v{ad} offset:{o+sz}"]
    D = 6
    def gemm(lst, bars, memq, mper=1, hook=None, mstart=0):
        N = len(lst); per = N // 9
        def flush(pred):
            while any(isinstance(x, tuple) and pred(x[1]) for x in memq): em(memq.pop(0))
        def maybe_bar(i):
            if i < N and i % per == 0 and (i // per) in bars:
                lim = bars[i // per]
                pred = lambda t: (isinstance(t, tuple) and t[0] == "w" and t[1] <= lim) or (t in ("wphi", "tab2") and i // per == 8)
                flush(pred); a.wait(v=pred); a("s_barrier")
        lw = lambda lim: a.wait(l=lambda t: isinstance(t, tuple) and t[0] == "A" and t[1] <= lim)
        for i in range(D):
            maybe_bar(i)
            for r in reads(i, lst): a(r, ltag=("A", i))
        for i in range(N):
            ks, T_, ad, off, sz = lst[i]
            flush(lambda t: t == ("X", ks))
            a.wait(v=("X", ks)); lw(i)
            f = AF(i)
            rd = reads(i + D, lst) if i + D < N else []
            for b_ in range(2):
                a(f"v_mfma_f32_16x16x32_bf16 {vr(T_+4*b_,4)}, a[{f}:{f+3}], {vr(X(2*ks+b_),4,'a')}, {'0' if ks == 0 else vr(T_+4*b_,4)}")
                if b_ == 0 and i + D < N: maybe_bar(i + D)
                if b_ == 1: lw(i + 1)
                if rd: a(rd[b_], ltag=("A", i + D))
            if hook and i in hook: hook[i]()
            if memq and i % mper == 0 and i >= mstart:
                while memq and not isinstance(memq[0], tuple): em(memq.pop(0))
                if memq: em(memq.pop(0))
        for x in memq: em(x)
    memq = []
    kvleft = list(range(NK2, 9))
    for g in range(NX0, 9):
        memq += xload(g)
        if kvleft and g >= opt("kx", 2): memq += kvdma(kvleft.pop(0))
    for j in kvleft: memq += kvdma(j)
    MP = opt("mqp", 99)
    memq = memq[:MP] + ([] if "mearly" in opts else mq) + tl + memq[MP:]
    qq = []
    for j in range(9):
        qq.append([f"s_mul_i32 s37, s30, {QR}\ns_add_u32 m0, s37, {j*QS}", f"s_add_u32 s51, s51, {64*3456}\ns_cmp_ge_u32 s51, s100\ns_cselect_b32 s37, {576*3456}, 0\ns_sub_u32 s51, s51, s37" if j else "s_nop 0",
                 ("buffer_load_dwordx4 v164, s[16:19], s51 offen lds", "wq"), "s_mov_b64 exec, 0xffff",
                 ("buffer_load_dwordx4 v165, s[16:19], s51 offen offset:1024 lds\ns_mov_b64 exec, -1", "wq")])
    NQ = opt("nq", 3)
    QW = ("s_nop 0", "qwait")
    if NQ: memq.append(QW)
    for g in qq[:NQ]: memq += g
    qq = qq[NQ:]
    fr = [(ks, T_, ad, off, 176) for ks in range(18) for (T_, ad, off) in ((K0, aT, 0), (K1, aT, 32), (EE, aTE, 0), (V0, aT, 80), (V1, aT, 128))]
    bars = {j: j for j in range(NK2, 9)}; bars.update({0: min(2, NK2 - 1), 3: NK2 - 1} if NK2 > 3 else {0: NK2 - 1}); bars[8] = 8
    hk = {82: mreads}
    if "fine" in opts:
        st("setup")
        for q in (0, 10, 20, 30, 40, 50, 60, 70): hk[q] = (lambda q=q: st(f"g{q}"))
    if "xnoq" in opts: memq = [x for x in memq if not (isinstance(x, tuple) and x[1] == "wq") and x != "s_mov_b64 exec, 0xffff"]
    gemm(fr, bars, memq, mper=opt("mp", 2), hook=hk)
    fixups()
    if "twl" in opts: touch_wo()
    st("gemm")
    if "fine" in opts: st.dump("s[20:23]", "s30", 16, 17); st.kidx += 1; st.groups.append([])
    def packB():
        for b_ in range(2):
            a(f"""v_cvt_pk_bf16_f32 v{B0+4*b_}, v{K0+4*b_}, v{K0+4*b_+1}
            v_cvt_pk_bf16_f32 v{B0+4*b_+1}, v{K0+4*b_+2}, v{K0+4*b_+3}
            v_cvt_pk_bf16_f32 v{B0+4*b_+2}, v{K1+4*b_}, v{K1+4*b_+1}
            v_cvt_pk_bf16_f32 v{B0+4*b_+3}, v{K1+4*b_+2}, v{K1+4*b_+3}
            v_cvt_pk_bf16_f32 v{B1+4*b_}, v{EE+4*b_}, v{EE+4*b_+1}
            v_cvt_pk_bf16_f32 v{B1+4*b_+1}, v{EE+4*b_+2}, v{EE+4*b_+3}""")
    def feat():
        for stp in range(2):
            for b_ in range(2):
                for p in range(3):
                    f = WP(stp, p); d = P[b_] + 4 * p
                    a(f"v_mfma_f32_16x16x32_bf16 {vr(d,4)}, a[{f}:{f+3}], {vr((B0, B1)[stp]+4*b_,4)}, {'0' if stp == 0 else vr(d,4)}")
    def packZ(b_):
        for sg, S in ((0, P), (1, E)):
            for q in range(5): a(f"v_cvt_pk_bf16_f32 v{Z[b_]+6*sg+q}, v{S[b_]+2*q}, v{S[b_]+2*q+1}")
    packB()
    a("s_waitcnt lgkmcnt(0)")
    feat()
    for g in qq[:2]: [em(x) for x in g]
    qq = qq[2:]
    for b_ in range(2):
        for h, V in ((0, V0), (1, V1)):
            d = VP + 4 * b_ + 2 * h
            a(f"v_cvt_pk_bf16_f32 v{d}, v{V+4*b_}, v{V+4*b_+1}\nv_cvt_pk_bf16_f32 v{d+1}, v{V+4*b_+2}, v{V+4*b_+3}")
        a(f"v_mov_b32 v{VP+8+2*b_}, v{B1+4*b_+1}")
    a("s_barrier")
    for b_ in range(2):
        for h in range(2): a(f"ds_write_b64 v{aZV}, {vr(VP+4*b_+2*h,2)} offset:{h*4608 + b_*2304}")
        a(f"ds_write_b64 v{aZX}, {vr(VP+8+2*b_,2)} offset:{b_*2304}")
    sub = "sub" in opts
    def call_sm():
        pc = a.lab("cs")
        a(f"""s_getpc_b64 s[92:93]
        {pc}:
        s_add_u32 s92, s92, K_sm-{pc}
        s_addc_u32 s93, s93, 0
        s_nop 7
        s_swappc_b64 s[94:95], s[92:93]""")
    if sub:
        for g in qq: [em(x) for x in g]
        call_sm()
    else:
        b = A("S"); softmax16(b, P, E, aMK); sm = [x.text for x in b.l]
        per = len(sm) // (len(qq) + opt('qs', 1))
        for g in qq:
            [em(x) for x in g]
            for x in sm[:per]: a(x)
            sm = sm[per:]
        for x in sm: a(x)
    if "twm" in opts: touch_wo()
    if opt("gv", 0): touch_gu(opt("gv", 0))
    for b_ in range(2):
        if not sub: packZ(b_)
        for sg in range(2):
            for q in range(3): a(f"ds_write_b64 v{aZW}, {vr(Z[b_]+6*sg+2*q,2)} offset:{b_*2304 + 48*sg + 8*q}")
    a(f"""s_mul_i32 s37, s32, {4*PB}
    s_add_u32 s37, s37, s52
    s_lshl_b32 s53, s31, 8
    s_add_u32 s53, s53, {C1}""")
    a("s_waitcnt lgkmcnt(0)\ns_barrier")
    st("smk")
    for stp in range(8):
        w = stp // 2; o = (w % 2) * KVR + (stp % 2) * 16 * 144
        va, vb = aZA + w // 2, aZB + w // 2
        f = 8 * stp
        a(f"ds_read_b64_tr_b16 a[{f}:{f+1}], v{va} offset:{o}\nds_read_b64_tr_b16 a[{f+2}:{f+3}], v{va} offset:{o+576}", ltag=("Z", stp))
        a(f"ds_read_b64_tr_b16 a[{f+4}:{f+5}], v{vb} offset:{o}\nds_read_b64_tr_b16 a[{f+6}:{f+7}], v{vb} offset:{o+576}", ltag=("Z", stp))
        if stp >= 2:
            s2 = stp - 2; f = 8 * s2
            a.wait(l=("Z", s2))
            a(f"v_mfma_f32_32x32x16_bf16 v[64:79], a[{f}:{f+3}], a[{f+4}:{f+7}], {'0' if s2 == 0 else 'v[64:79]'}")
    for s2 in (6, 7):
        f = 8 * s2
        a.wait(l=("Z", s2))
        a(f"v_mfma_f32_32x32x16_bf16 v[64:79], a[{f}:{f+3}], a[{f+4}:{f+7}], v[64:79]")
    for q in range(6): a(f"v_cvt_pk_bf16_f32 v{16+q}, v{64+2*q}, v{65+2*q}")
    a(f"""s_mov_b64 exec, s[54:55]
    buffer_store_dwordx4 v[16:19], v{aP4}, s[20:23], s37 offen sc1
    s_mov_b32 exec_lo, -1
    s_mov_b32 exec_hi, 0
    buffer_store_dwordx2 v[20:21], v{aP2}, s[20:23], s37 offen sc1
    s_mov_b64 exec, -1""", vtag="kvs")
    st("kvmm")
    if "twk" in opts: touch_wo()
    if opt("gw", 0): touch_gu(opt("gw", 0))
    def sig1():
        a.wait(v="kvs"); a("s_barrier")
        signal(a, "s53")
        st("kvst")
    a.wait(v="wq"); a("s_barrier")
    a("s_cmp_ge_u32 s28, 24\ns_cselect_b32 s46, 0, s46")
    wq, wq0 = p2c_wodma(a, "rot2" in opts)
    gemm([(ks, T_, ad, off, 80) for ks in range(18) for (T_, ad, off) in ((K0, aQ, 0), (K1, aQ, 32), (EE, aQE, 0))], {}, wq, mper=opt("wp", 2), hook={opt("hk", 12): sig1, opt("p1", 44): lambda: poll_start(a, "s53")}, mstart=opt("wst", 0))
    packB()
    feat()
    st("qgemm")
    early = "smfirst" in opts
    def smq():
        if sub: call_sm()
        else: softmax16(a, P, E, aMK); packZ(0); packZ(1)
    if early: smq()
    poll_finish(a, "s53", 16)
    st("sync1")
    rot1 = "norot1" not in opts
    if rot1: a(f"s_add_u32 s36, s52, {64*PB}\ns_and_b32 s37, s32, 3\ns_mul_i32 s37, s37, {16*PB}\ns_add_u32 s52, s52, s37")
    for i in range(4):
        if i: a(f"s_add_u32 s52, s52, {16*PB}" + (f"\ns_cmp_ge_u32 s52, s36\ns_cselect_b32 s37, {64*PB}, 0\ns_sub_u32 s52, s52, s37" if rot1 else ""))
        for u in range(4):
            r = 64 + 16 * i + 4 * u
            a(f"buffer_load_dwordx4 a[{r}:{r+3}], v{aPL3 if u == 3 else aPL}, s[20:23], s52 offen offset:{256*u} sc1", vtag=("kv", i))
    for x in wq0: em(x)
    if not early: smq()
    for i in range(4):
        a.wait(v=("kv", i))
        for u in range(4):
            r = 64 + 16 * i + 4 * u; T_ = 48 + 4 * (u // 2); S = 224 + 4 * (u % 2)
            a(f"v_mfma_f32_16x16x32_bf16 v[{T_}:{T_+3}], a[{S}:{S+3}], a[{r}:{r+3}], {'0' if (i == 0 and u % 2 == 0) else f'v[{T_}:{T_+3}]'}")
    st("smq")
    a(f"""s_mul_i32 s36, s35, 36864
    s_add_u32 s36, s36, {OFRAG}
    s_lshl_b32 s37, s31, 7
    s_add_u32 s37, s37, s36
    s_add_u32 s39, s37, 18432
    s_lshl_b32 s38, s31, 10
    s_add_u32 s36, s36, s38
    s_add_u32 s38, s36, 18432
    s_lshl_b32 s53, s32, 8
    s_add_u32 s53, s53, {C2}
    v_cvt_pk_bf16_f32 v16, v48, v49
    v_cvt_pk_bf16_f32 v17, v50, v51
    v_cvt_pk_bf16_f32 v18, v52, v53
    v_cvt_pk_bf16_f32 v19, v54, v55
    ds_write_b64 v{aKA}, v[16:17]
    ds_write_b64 v{aKB}, v[18:19]
    s_waitcnt lgkmcnt(0)
    s_barrier""")
    st("kvred")
    for t in range(3):
        for p in (2, 0, 1):
            f = 12 * t + 4 * p
            a(f"ds_read_b128 a[{f}:{f+3}], v{(aN0, 119, aN2)[p]} offset:{16*t}", ltag=("K", t))
    for t in range(3):
        a.wait(l=("K", t))
        for p in (2, 0, 1):
            for b_ in range(2):
                f = 12 * t + 4 * p; d = P[b_] + 4 * p
                a(f"v_mfma_f32_16x16x32_bf16 {vr(d,4)}, a[{f}:{f+3}], {vr(Z[b_]+4*t,4)}, {'0' if t == 0 else vr(d,4)}")
    for b_ in range(2): a(f"v_add_f32 v{P[b_]+10}, 0x358637bd, v{P[b_]+10}")
    for b_ in range(2): a(f"v_rcp_f32 v{P[b_]+10}, v{P[b_]+10}")
    for b_ in range(2):
        p = P[b_]
        for q in range(0, 10, 2): a(f"v_pk_mul_f32 v[{p+q}:{p+q+1}], v[{p+q}:{p+q+1}], v[{p+10}:{p+11}] op_sel_hi:[1,0]")
        for q in range(5): a(f"v_cvt_pk_bf16_f32 v{16+8*b_+q}, v{p+2*q}, v{p+2*q+1}")
        a(f"buffer_store_dwordx4 {vr(16+8*b_,4)}, v5, s[20:23], {('s36', 's38')[b_]} offen sc1\nbuffer_store_dword v{20+8*b_}, v{aOX}, s[20:23], {('s37', 's39')[b_]} offen sc1")
    a("s_waitcnt vmcnt(0)\ns_barrier")
    signal(a, "s53")
    st("ost")
    st.dump("s[20:23]", "s30", 16, 17)
    def front(setup, dma0, zero):
        o2 = "ord2" in opts; ap2 = o2 or "ap2" in opts; z0 = o2 or "z0" in opts
        if ap2: p2c_prepoll(a, C2)
        p2c_xload(a)
        setup()
        a("s_cmp_ge_u32 s28, 24\ns_cbranch_scc1 K_idle")
        sv = list(a.vm)
        zl = "zl" in opts
        late = None if o2 else (lambda: (zero(0), dma0(0), dma0(1))) if zl else (lambda: (dma0(0), dma0(1)))
        p2c_main(a, st, C2, C3, early=(lambda: zero(0)) if z0 else None, late=late, pre=ap2, opts=opts)
        st.dump("s[20:23]", "s30", 21, 22)
        a("s_branch K_ffn\nK_idle:")
        a.vm = sv
        if "idma" in opts: dma0(0); dma0(1)
        if "tw3" in opts: touch3(a, opt("t3f", 64), opt("t3r", 24))
        if z0 or zl: zero(0)
        if o2: a.wait(v="ftab")
        elif "idma" not in opts: dma0(0); dma0(1)
        if ap2: a("s_waitcnt lgkmcnt(0)")
        a("K_ffn:")
        if not z0 and not zl: zero(0)
        a.vm = ["unknown"] * 8
    a.spins = []
    if 'g2' in opts: ffn18.ffn_body(a, st, opts, C3, C4, front, tb, FLAGS + 65536)
    else: ffn17.ffn_body(a, st, opts, C3, C4, front, tb)
    st.dump("s[20:23]", "s30", 16, 17)
    a("s_endpgm")
    for x in a.spins: a(x)
    if sub:
        a(".p2align 3\nK_sm:"); softmax16(a, P, E, aMK); packZ(0); packZ(1); a("s_nop 1\ns_setpc_b64 s[94:95]")
    a("K_end:\ns_endpgm")
    return a, st, tb

if __name__ == "__main__":
    out = sys.argv[1]; opts = sys.argv[2:]
    amp = next((o[4:].split(",") for o in opts if o.startswith("amp=")), None)
    a, st, tb = gen((amp[0], amp[1], int(amp[2])) if amp else "cyc" if "cyc" in opts else "dbg" if "dbg" in opts else "lite" if "lite" in opts else "lite2" if "lite2" in opts else "diag" in opts, opts)
    t = a.text() + tb.text()
    NAME = "sequential_preLN__linear_kernel_hedgehog__glu_gated_reglu__prompt_kernel"
    hdr = "".join(l for l in open("sequential_preLN__linear_kernel_hedgehog__glu_gated_reglu__prompt.s.ref") if l.startswith(";") and "@launch" not in l and "Override" not in l and "grid=" not in l)
    s = hdr + "; @launch grid=(256,1,1) block=(256,1,1) lds=163840\n" + '.amdgcn_target "amdgcn-amd-amdhsa--gfx950"\n.text\n' + kernel(NAME, t) + '.section .rodata,"a"\n' + descriptor(NAME, 512, 256)
    open(out, "w").write(s)
    json.dump(st.groups, open(out + ".json", "w"))
    print("nops", a.padded, "instrs", len(a.l), st.groups)
```

```python
from common import *
from ffn16 import dma_offsets, store_setup
UNIT = 18432; SLOT = 2 * UNIT

def ffn_body(a, st, opts, C3, C4, front, tb=None):
    opt = lambda k, d: next((int(o[len(k):]) for o in reversed(opts) if re.fullmatch(k + r'\d+', o)), d)
    diag = st.on
    T0 = 21
    G = lambda t: 64 + 8 * t
    def U(t): return ("v", 208 + 8 * t) if t < 6 else ("a", 96 + 8 * (t - 6))
    XR = lambda k: 32 + 8 * (k % 4)
    NF = opt("nf", 8); D = NF - 2; NA = opt("na", 3)
    AF = lambda i: 192 + 4 * (i % NF)
    def emit(it):
        if len(it) > 2 and it[2][0] == "F":
            saved = list(a.lg); a(it[1]); a.lg = saved
        elif len(it) > 2: a(it[1], vtag=it[2])
        else: a(it[1])
    def blocks(P):
        if P < 18 + NA: return [(J, cg) for J in range(9) for cg in range(NA)][9 * (P - 18):9 * (P - 17)]
        return [(J, P - 18) for J in range(9)]
    def dma_pair(P):
        r = []; slot = P % 4
        if P < 18:
            for i in range(9):
                if i % 4 == 0: r.append(("m", f"s_add_u32 m0, s37, {slot*SLOT + i*1024}"))
                r.append(("d", f"buffer_load_dwordx4 v{i}, s[12:15], s36 offen offset:{(i%4)*1024} lds", ("P", P)))
            return r + [("s", f"s_add_u32 s36, s36, {32*9216}")]
        for b, (J, cg) in enumerate(blocks(P)):
            r.append(("m", f"s_add_u32 m0, s40, {slot*SLOT + b*4096}"))
            r.append(("s", f"s_add_u32 s39, s38, {J*32*1152 + cg*128}"))
            r.append(("d", f"buffer_load_dwordx4 v0, s[16:19], s39 offen lds", ("P", P)))
        return r
    def dsrc(i):
        def f(l):
            p = i * 1024 + l * 16; row, col = divmod(p, 576)
            return row * 9216 + (col ^ (32 if row & 4 else 0)) + 3072 - (i % 4) * 1024
        return f
    rdb = lambda l, sg: (l >> 2) * 576 + 8 * (l & 3) + sg * 32 * ((l >> 4) & 1)
    OOBV = 0x7fffff00
    def setup():
        a(f"""v_mov_b32 v30, v15
        s_lshl_b32 s31, s29, 1
        s_and_b32 s33, s28, 1
        s_add_u32 s31, s31, s33
        s_lshr_b32 s32, s28, 1
        s_and_b32 s33, s30, 1
        s_lshr_b32 s34, s30, 1
        v_lshlrev_b32 v15, 4, v30""")
        for x in (tb.load(0, [dsrc(i) for i in range(4)], 15, 88), tb.load(4, [dsrc(i) for i in range(4, 8)], 15, 88),
                  tb.load(8, [dsrc(8)] + [(lambda l, q=q: rdb(l, 1) + 55296 * q) for q in range(3)], 15, 88),
                  tb.load(16, [(lambda l, q=q: rdb(l, -1) + 55296 * q) for q in range(3)], 15, 88),
                  tb.load(24, [lambda l: (l // 9) * 9216 + (l % 9) * 128 if l < 18 else OOBV, lambda l: l * 128 if l < 11 else OOBV,
                               lambda l: (l >> 5) * 768 + (l & 31) * 4], 15, 88),
                  tb.load(236, [lambda l: (l >> 3) * 1152 + (((l & 7) << 4) ^ ((l >> 4) << 5))] +
                               [(lambda l, t=t: 2 * SLOT + (l >> 2) * 128 + 8 * (l & 3) + 32 * (((l >> 3) & 3) ^ t)) for t in range(3)], 15, 88, "a"),
                  tb.load(240, [lambda l: 2 * SLOT + (l >> 2) * 128 + 8 * (l & 3) + 32 * (((l >> 3) & 3) ^ 3),
                                lambda l: (l & 7) * 1152 + 8 * ((l >> 3) & 1) + 128 * (l >> 5) + 32 * ((l >> 4) & 1),
                                lambda l: ((l >> 3) & 1) * 256 + (l & 7) * 16 if l < 16 else OOBV,
                                lambda l: (l >> 4) * 9216 + (l & 15) * 16], 15, 88, "a"),
                  tb.load(244, [lambda l: ((l >> 3) & 1) * 147456 + (l >> 4) * 128 + (l & 7) * 16], 15, 88, "a")):
            a(x, vtag="ftab")
        a(f"""s_cmp_eq_u32 s34, 0
        s_cselect_b32 s12, s4, s6
        s_cselect_b32 s13, s5, s7
        s_sub_u32 s12, s12, 3072
        s_subb_u32 s13, s13, 0
        s_mov_b32 s14, {576*9216+3072}
        s_mov_b32 s15, 0x20000""")
        srd(a, 16, 8, 9, 4608 * 1152)
        a(f"""s_mul_i32 s36, s31, 576
        s_mul_i32 s39, s33, {16*9216}
        s_add_u32 s36, s36, s39
        s_mul_i32 s37, s30, 9216""")
    def dma0(P):
        a.wait(v="ftab")
        [emit(x) for x in dma_pair(P)]
    loop = "noloop" not in opts
    def zero(part):
        regs = []
        for t in range(18):
            for q in range(8):
                regs.append(("v", G(t) + q)); k, b = U(t); regs.append((k, b + q))
        for (k, r) in regs:
            late = (k == "v" and r >= 168) or (k == "a" and r < 136)
            if late == (part == 1): a(f"v_mov_b32 v{r}, 0" if k == "v" else f"v_accvgpr_write_b32 a{r}, 0")
    front(setup, dma0, zero)
    tl = "notl" not in opts
    if tl:
        a(f"""v_mov_b32 v31, v24
        v_mov_b32 v14, v25
        s_lshl_b32 s50, s28, 1
        s_add_u32 s50, s50, s33
        s_mul_i32 s50, s50, {2*9216}
        s_mul_i32 s51, s29, 1152
        s_add_u32 s50, s50, s51
        s_add_u32 s50, s50, {opt("tla", 256)*9216 + 3072}
        s_lshl_b32 s51, s28, 2
        s_add_u32 s51, s51, s30
        s_mul_i32 s51, s51, {11*128}
        s_mul_i32 s52, s29, {576*1152}
        s_add_u32 s51, s51, s52""")
    a(f"""s_lshl_b32 s35, s32, 2
    s_add_u32 s35, s35, s30
    s_mul_i32 s43, s35, 1536
    s_mul_i32 s35, s35, 36864
    s_add_u32 s43, s43, {STATS}
    s_mul_i32 s38, s31, {288*1152}
    s_mul_i32 s39, s30, {8*1152}
    s_add_u32 s38, s38, s39
    s_lshl_b32 s40, s30, 10
    s_mov_b32 s47, 0xffff0000
    s_lshl_b32 s53, s32, 8
    s_add_u32 s53, s53, {C3}
    v_mov_b32 v29, v26""")
    if HFRAG: a(f"s_add_u32 s35, s35, {HFRAG}")
    poll(a, "s53", 12)
    st("sync3")
    def xload(k):
        r = []
        for h in range(2):
            r.append(("x", f"buffer_load_dwordx4 {vr(XR(k)+4*h,4)}, v15, s[20:23], s35 offen offset:{h*1024} sc1", ("X", k)))
        return r + [("s", "s_add_u32 s35, s35, 2048")]
    for q in range(6): a(f"buffer_load_dword v{56+q}, v29, s[20:23], s43 offen offset:{128*q} sc1", vtag="st")
    XA = opt("xa", 2)
    for k in range(3 if XA == 3 else 2): [emit(x) for x in xload(k)]
    if loop: zero(1)
    a.wait(v="st")
    a("""v_add_f32 v56, v56, v57
    v_add_f32 v58, v58, v59
    v_add_f32 v60, v60, v61
    v_add_f32 v56, v56, v58
    v_add_f32 v56, v56, v60
    v_mul_f32 v56, 0x3ae38e39, v56
    v_mov_b32 v57, v56
    v_permlane16_swap_b32 v56, v57
    v_fma_f32 v57, -v56, v56, v57
    v_max_f32 v57, 0, v57
    v_add_f32 v57, 0x3727c5ac, v57
    v_rsq_f32 v12, v57
    s_nop 0
    v_mul_f32_e64 v19, -v56, v12
    v_mov_b32 v13, v12
    v_mov_b32 v20, v19
    v_permlane32_swap_b32 v12, v13
    v_permlane32_swap_b32 v19, v20""")
    def norm(k):
        r = []
        if "xnonorm" in opts: return r
        for h in range(2):
            b = XR(k) + 4 * h
            for j in range(4):
                r.append(("v", f"v_lshlrev_b32_e32 v{T0+2*j}, 16, v{b+j}"))
                r.append(("v", f"v_and_b32_e32 v{T0+1+2*j}, s47, v{b+j}"))
            for j in range(8):
                r.append(("v", f"v_fma_f32 v{T0+j}, v{T0+j}, v{12+h}, v{19+h}"))
            for j in range(4):
                r.append(("v", f"v_cvt_pk_bf16_f32 v{b+j}, v{T0+2*j}, v{T0+1+2*j}"))
        return r
    def conv(J):
        r = []
        for h in range(2):
            for e in range(2):
                t = 2 * J + e; g = G(t) + 4 * h; k, u = U(t); u += 4 * h
                for q in range(4):
                    if k == "a": r.append(("v", f"v_accvgpr_read_b32 v{T0+q}, a{u+q}"))
                    r.append(("v", f"v_max_f32_e32 v{g+q}, 0, v{g+q}"))
                for q in range(4):
                    src = f"v{T0+q}" if k == "a" else f"v{u+q}"
                    r.append(("v", f"v_mul_f32_e32 v{g+q}, v{g+q}, {src}"))
                d = G(2 * J) + 4 * h + 2 * e
                for q in range(2):
                    r.append(("v", f"v_cvt_pk_bf16_f32 v{d+q}, v{g+2*q}, v{g+2*q+1}"))
            if "emu" in opts:
                r.append(("st", f"buffer_store_dwordx4 {vr(G(2*J)+4*h,4)}, v29, s[20:23], s43 offen offset:{h*1024} sc1", ("HS", J)))
                if h: r.append(("s", "s_add_u32 s43, s43, 2048"))
        return r
    def acc2(c, t): return ("a", 8 * (4 * c + t)) if c < NA else ("v", G(2 * ((c % 2) * 4 + t) + 1))
    ecount = [0]
    def epi(c):
        r = []
        if "emu" in opts and c < 4: return r
        for tp in range(2):
            for h in range(2):
                S = 32 + 4 * (ecount[0] % 8); ecount[0] += 1
                for e in range(2):
                    k, b = acc2(c, 2 * tp + e); b += 4 * h
                    if k == "a":
                        for q in range(4): r.append(("v", f"v_accvgpr_read_b32 v{T0+4*e+q}, a{b+q}"))
                        b = T0 + 4 * e
                    for q in range(2): r.append(("v", f"v_cvt_pk_bf16_f32 v{S+2*e+q}, v{b+2*q}, v{b+2*q+1}"))
                o = (2 * c + tp) * 512
                r.append(("st", f"buffer_store_dwordx4 {vr(S,4)}, v15, s[20:23], s{44+3*h+o//4096} offen offset:{o%4096}{'' if 'xplain' in opts else ' sc1'}", ("ST", c)))
                if "xnost" in opts and c < 8: r.pop()
        return r
    a.wait(v=("X", 0))
    [emit(x) for x in norm(0)]
    fr = []
    for ks in range(18):
        for t in range(18):
            fr.append((ks, (0, t), "v", G(t), XR(ks), ks == 0 and not loop))
            k, b = U(t); fr.append((ks, (1, t), k, b, XR(ks), ks == 0 and not loop))
    for P in range(18, 27):
        for b_, (J, cg) in enumerate(blocks(P)):
            for t in range(4):
                k, b = acc2(cg, t)
                fr.append((P, (b_, t), k, b, G(2 * J), J == 0))
    N = len(fr)
    def reads(i):
        P, (x, t) = fr[i][0], fr[i][1]; f = AF(i)
        if P < 18:
            slot = (2 * P + x) % 8; base = (9 if t % 2 == 0 else 16) + slot // 3
            o = (slot % 3) * UNIT + t * 32; o2 = o + 9216
        else:
            base = 1 + t; o = x * 4096; o2 = o + 2048
        return [f"ds_read_b64_tr_b16 a[{f}:{f+1}], v{base} offset:{o}", f"ds_read_b64_tr_b16 a[{f+2}:{f+3}], v{base} offset:{o2}"]
    s2setup = ["v_accvgpr_read_b32 v0, a236"]
    s2read = [f"v_accvgpr_read_b32 v{1+t}, a{237+t}" for t in range(4)]
    redsetup = ["v_accvgpr_read_b32 v5, a241", "v_accvgpr_read_b32 v7, a242", "v_accvgpr_read_b32 v31, a243",
                "s_lshl_b32 s29, s32, 4", "s_add_u32 s29, s29, s31",
                "s_mul_i32 s88, s29, 147456", "s_lshl_b32 s89, s30, 8", "s_add_u32 s88, s88, s89", f"s_add_u32 s88, s88, {PART}",
                "s_add_u32 s89, s88, 36864", "s_add_u32 s90, s89, 36864", "s_add_u32 s91, s90, 36864",
                "s_lshr_b32 s92, s29, 2", "s_mul_i32 s92, s92, 36864", "s_bfe_u32 s93, s29, 0x10001", "s_lshl_b32 s93, s93, 10", "s_add_u32 s92, s92, s93",
                "s_and_b32 s93, s29, 1", "s_lshl_b32 s93, s93, 7", "s_add_u32 s92, s92, s93", "s_lshl_b32 s93, s34, 11", "s_add_u32 s92, s92, s93",
                "s_lshl_b32 s93, s33, 9", "s_add_u32 s92, s92, s93",
                f"s_mul_i32 s94, s29, {8*1152}", "s_lshl_b32 s93, s34, 6", "s_add_u32 s94, s94, s93", "s_lshl_b32 s93, s33, 4", "s_add_u32 s94, s94, s93",
                f"s_add_u32 s53, s53, {C4-C3}"]
    if HFRAG: redsetup.append(f"s_add_u32 s92, s92, {HFRAG}")
    PL = lambda c, i: (96 + 4 * (4 * c + i)) if c < 6 else 4 * (4 * (c - 6) + i)
    HL = lambda c: 48 + 4 * c
    def hload(c): return [("x", f"buffer_load_dwordx4 a[{HL(c)}:{HL(c)+3}], v7, s[20:23], s92 offen sc1", ("H", c)), ("s", "s_add_u32 s92, s92, 4096")]
    def pload(c):
        r = []
        if c and c % 4 == 0: r += [("s", f"s_add_u32 s{88+i}, s{88+i}, 4096") for i in range(4)]
        for i in range(4 if ("emu" not in opts or c == 4) else 2):
            r.append(("x", f"buffer_load_dwordx4 a[{PL(c,i)}:{PL(c,i)+3}], v31, s[20:23], s{88+i} offen offset:{(c%4)*1024} sc1", ("L", c)))
        return r
    sched = opt("sch", 1)
    if sched == 0: groups = [(range(9), None, None)]
    elif sched == 4: groups = [((0, 1, 2, 3, 4, 5), 26, None), ((6, 7, 8), None, None)]
    elif sched == 5: groups = [((0, 1, 2, 3, 4, 5), 26, None), ((6, 7), 27, None), ((8,), None, None)]
    elif sched == 6: groups = [((0, 1), 22, 23), ((2, 3, 4, 5), 26, None), ((6, 7, 8), None, None)]
    elif sched == 7: groups = [((0, 1, 2), 23, 24), ((3, 4, 5), 26, None), ((6, 7, 8), None, None)]
    elif sched == 8: groups = [((0,), 21, 22), ((1, 2), 23, 24), ((3, 4, 5), 26, None), ((6, 7, 8), None, None)]
    elif sched == 9: groups = [((0, 1), 22, 24), ((2, 3, 4, 5), 26, None), ((6, 7), 27, None), ((8,), None, None)]
    elif sched == 10: groups = [((0, 1), 24, 25), ((2, 3, 4, 5), 26, None), ((6, 7), 27, None), ((8,), None, None)]
    elif sched == 11: groups = [((0, 1, 2), 24, 25), ((3, 4, 5), 26, None), ((6, 7), 27, None), ((8,), None, None)]
    elif sched == 12: groups = [((0, 1, 2, 3), 24, 25), ((4, 5), 26, None), ((6, 7), 27, None), ((8,), None, None)]
    elif sched == 13: groups = [((0, 1, 2, 3, 4), 25, 26), ((5, 6, 7), 27, None), ((8,), None, None)]
    elif sched == 14: groups = [((0, 1), 22, 23), ((2, 3, 4, 5), 26, None), ((6, 7), 27, None), ((8,), None, None)]
    elif sched == 15: groups = [((0,), 21, 22), ((1, 2), 23, 24), ((3, 4, 5), 26, None), ((6, 7), 27, None), ((8,), None, None)]
    elif sched == 16: groups = [((0,), 21, 22), ((1,), 22, 23), ((2,), 23, 24), ((3,), 24, 25), ((4, 5), 26, None), ((6, 7), 27, None), ((8,), None, None)]
    slowq = []; lper = opt("lper", 18)
    spins = []
    def sig(g):
        sk = a.lab("sg"); saved = list(a.lg)
        a(f"""s_cmp_lg_u32 s30, 0
        s_cbranch_scc1 {sk}
        s_add_u32 s95, s53, {4096*g}
        s_mov_b32 s98, 1
        s_atomic_add s98, s[20:21], s95
        {sk}:""")
        a.lg = saved
    def poll_issue(g):
        sk = a.lab("pi")
        return [("x", f"s_cmp_lg_u32 s30, 0\ns_cbranch_scc1 {sk}\ns_add_u32 s96, s53, {4096*g}\ns_mov_b32 s97, 0\ns_atomic_add s97, s[20:21], s96 glc\n{sk}:", ("F", g))]
    def poll_check(g):
        ok = a.lab("ok"); sp = a.lab("spin"); saved = list(a.lg)
        a(f"s_cmp_eq_u32 s30, 0\ns_cbranch_scc1 {sp}\n{ok}:")
        spins.append(f"""{sp}:
        s_mov_b32 s99, 0
        {sp}_l:
        s_waitcnt lgkmcnt(0)
        s_cmp_ge_u32 s97, 16
        s_cbranch_scc1 {ok}
        s_mov_b32 s97, 0
        s_atomic_add s97, s[20:21], s96 glc
        s_add_u32 s99, s99, 1
        s_cmp_lt_u32 s99, 0x40000
        s_cbranch_scc1 {sp}_l
        s_waitcnt lgkmcnt(0)
        s_branch {ok}""")
    st("pro")
    a("s_waitcnt vmcnt(0)\ns_barrier")
    st("bar0")
    if diag: a("s_waitcnt lgkmcnt(0)")
    for i in range(D):
        for r in reads(i): a(r, ltag=("A", i))
    memq = []; valq = []; pendbar = None
    budget = opt("bud", 2); mper = opt("mper", 4)
    def emitv(it):
        if it[0] == "w": return 1 if a.wait(v=it[1]) else 0
        emit(it); return 1
    marks = {}
    for i in range(N):
        P, xt, k, b, B, first = fr[i]
        s, pos = divmod(i, 36)
        if pos == 0 and s % 4 == 0 and s <= 16: marks[s] = len(a.l)
        if i == 648: st("s1")
        if (i + D) % 36 == 0 and i + D < N:
            sn = (i + D) // 36
            while any(len(x) > 2 and x[2][0] == "P" and x[2][1] <= sn + 1 for x in memq) or (memq and memq[0][0] in "sv"): emit(memq.pop(0))
            pendbar = sn
            if sn > 18: valq = [(("v", f"v_add_u32 v{1+t}, {SLOT if sn % 4 else -3*SLOT}, v{1+t}"), i) for t in range(4)] + valq
        if pos == 0:
            Pn = s + 2; q = []
            if s <= 15 and "xnox" not in opts and XA == 2: q += xload(s + 2)
            if Pn == 18: q += [("v", x) for x in s2setup]
            A3 = opt("a3", 99)
            if s < A3:
                if Pn < 27 and not ("xnodma" in opts and Pn < 18): q += dma_pair(Pn)
            else:
                if s == A3: q += dma_pair(Pn)
                if Pn + 1 < 27: q += dma_pair(Pn + 1)
            if Pn == 18: q += [("v", x) for x in s2read]
            if s <= 15 and XA == 3: q += xload(s + 3)
            if s <= 15 and XA == 4: q += xload(s + 2)
            if "emu" in opts and s == 16:
                q += [("v", "v_lshlrev_b32 v29, 4, v30"), ("s", "s_lshl_b32 s43, s2, 2"), ("s", "s_add_u32 s43, s43, s30"), ("s", "s_mul_i32 s43, s43, 18432"), ("s", f"s_add_u32 s43, s43, {0x4000000}"), ("s", "s_xor_b32 s52, s2, 8"), ("s", "s_lshl_b32 s52, s52, 2"), ("s", "s_add_u32 s52, s52, s30"), ("s", "s_mul_i32 s52, s52, 18432"), ("s", f"s_add_u32 s52, s52, {0x4000000}")]
            if "emu" in opts and s in (21, 22):
                for J in (range(5) if s == 21 else range(5, 9)):
                    q += [("x", f"buffer_load_dwordx4 a[{96+8*J+4*h}:{99+8*J+4*h}], v29, s[20:23], s52 offen offset:{h*1024} sc1", ("HL", J)) for h in range(2)] + [("s", "s_add_u32 s52, s52, 2048")]
            if tl and s < 16 and s % 4 == 0: q += [("x", "buffer_load_dword a232, v31, s[12:15], s50 offen", ("T", s)), ("s", f"s_add_u32 s50, s50, {128*9216}")]
            if tl and s < 16 and s % 4 == 2: q += [("x", "buffer_load_dword a233, v14, s[16:19], s51 offen", ("T", s)), ("s", f"s_add_u32 s51, s51, {128*11*128}")]
            memq = ([x for x in memq] + q) if any(len(x) > 2 and x[2][0] == 'P' for x in memq) else q + memq
        if pos == 4 and s + 1 < 18:
            valq += [(("w", ("X", s + 1)), i + 31)] + [(x, i + 31) for x in norm(s + 1)]
        if i >= 612 and i < 648 and (i - 612) % 4 == 2 and (i - 612) // 4 >= 1:
            J = (i - 612) // 4 - 1
            valq += [(x, 648 + 4 * NA * J) for x in conv(J)]
        if i == 650: valq += [(x, 648 + 4 * NA * 8) for x in conv(8)]
        if i == 652: valq += [(("v", x), 648 + 36 * NA + 20) for x in ['v_accvgpr_read_b32 v15, a244'] + [y for y in store_setup() if y.startswith('s_')] + redsetup]
        EP = opt("ep", 2)
        if i == 648 + 36 * NA + EP:
            for c in range(NA): valq += [(x, None) for x in epi(c)]
        if i >= 648 + 36 * (NA + 1) + 2 and pos == (EP if s < 25 else 2):
            c = s - 19
            valq += [(x, 648 + 36 * (c + 2)) for x in epi(c)]
        if i == opt('hl', N - 1):
            for c in range(9): slowq += hload(c)
        chks = []
        if "t2" in opts and i == N - 20: memq = poll_issue(0) + memq
        for g, (chs, sst, chk) in enumerate(groups):
            if chk is not None and i == 36 * chk - D - 16: memq = poll_issue(g) + memq
            if chk is not None and pendbar == chk:
                while any(len(x) > 2 and x[2] == ("F", g) for x in memq): emit(memq.pop(0))
                chks.append(g)
        if slowq and i % lper == opt("loff", 0):
            while True:
                x = slowq.pop(0); memq.append(x)
                if x[0] == "x" or not slowq: break
        sigs = [g for g, (chs, sst, chk) in enumerate(groups) if pendbar is not None and sst == pendbar]
        for g in sigs:
            last = max(groups[g][0])
            while any(len(x) > 2 and x[2][0] == "ST" and x[2][1] <= last for (x, _) in valq): emitv(valq.pop(0)[0])
        while any(d is not None and d <= i for (_, d) in valq): emitv(valq.pop(0)[0])
        lw = lambda lim: a.wait(l=lambda t: t is not None and t != "SMEM" and t[1] <= lim)
        lw(i)
        f = AF(i)
        rd = reads(i + D) if i + D < N else []
        behind = len(valq) > opt("beh", 60)
        for h in range(2):
            C = "0" if first else vr(b + 4 * h, 4, k)
            a(f"v_mfma_f32_16x16x32_bf16 {vr(b+4*h,4,k)}, a[{f}:{f+3}], {vr(B+4*h,4)}, {C}")
            sc_used = False
            if pendbar is not None:
                lasts = [max(groups[g][0]) for g in sigs]
                a.wait(v=lambda t: t == ("P", pendbar) or (isinstance(t, tuple) and t[0] == "ST" and any(t[1] <= l for l in lasts)))
                for g in chks: poll_check(g)
                if "xnobar" not in opts or s >= 16: a("s_barrier")
                for g in sigs: sig(g)
                for g in chks:
                    for c in groups[g][0]: slowq += pload(c)
                pendbar = None; sc_used = True
            if h == 1 and not sc_used: sc_used = lw(i + 1)
            if not sc_used:
                if memq and memq[0][0] in ("s", "m"):
                    emit(memq.pop(0)); sc_used = True
                    if "sc2" in opts and memq and memq[0][0] in ("s", "m"): emit(memq.pop(0))
                elif valq and valq[0][0][0] == "w": sc_used = emitv(valq.pop(0)[0])
                elif valq and valq[0][0][1].startswith("s_"): emitv(valq.pop(0)[0]); sc_used = True
            n = 0
            if rd: a(rd[h], ltag=("A", i + D)); n += 1
            mp = mper if s < 16 else opt("mq", 4)
            if memq and memq[0][0] in ("x", "d") and (2 * i + h) % mp == 0:
                emit(memq.pop(0)); n += 1
            elif memq and memq[0][0] == "v":
                emit(memq.pop(0)); n += 1
            while valq and n < budget + (1 if behind else 0) and valq[0][0][0] != "w" and not valq[0][0][1].startswith("s_"):
                n += emitv(valq.pop(0)[0])
    for it in memq: emit(it)
    for it, d in valq: emitv(it)
    tailq = slowq
    if loop:
        body = [[x.text for x in a.l[marks[s]:marks[s + 4]]] for s in (0, 4, 8, 12)]
        assert body[1] == body[2] == body[3], "loop bodies differ"
        pre = []
        if body[0][0] != body[1][0]:
            assert body[0][0].startswith("s_waitcnt lgkmcnt"); pre = [Ins(body[0][0])]; body[0] = body[0][1:]
        assert body[0] == [x for x in body[1] if not (x.startswith("s_waitcnt vmcnt") and x not in body[0])] or \
               [x for x in body[0] if "vmcnt" not in x] == [x for x in body[1] if "vmcnt" not in x]
        lp = a.lab("loop")
        a.l = a.l[:marks[0]] + pre + [Ins("s_mov_b32 s41, 0"), Ins(".p2align 3"), Ins(f"{lp}:")] + a.l[marks[4]:marks[8]] + \
              [Ins("s_add_u32 s41, s41, 1"), Ins("s_cmp_lt_u32 s41, 4"), Ins(f"s_cbranch_scc1 {lp}")] + a.l[marks[16]:]
    st("s2")
    rest = [g for g, (chs, sst, chk) in enumerate(groups) if sst is None or sst >= 27]
    late = [g for g, (chs, sst, chk) in enumerate(groups) if chk is None]
    srd(a, 12, 10, 11, 2048 * 1152)
    def red(c):
        T = 208 + 4 * (c // 2); S = 224 + 4 * (c % 2)
        a.wait(v=("H", c))
        a(f"v_mfma_f32_16x16x32_bf16 v[{T}:{T+3}], a[{S}:{S+3}], a[{HL(c)}:{HL(c)+3}], {'0' if c % 2 == 0 else f'v[{T}:{T+3}]'}")
        a.wait(v=("L", c))
        for i in range(4):
            a(f"v_mfma_f32_16x16x32_bf16 v[{T}:{T+3}], a[{S}:{S+3}], a[{PL(c,i)}:{PL(c,i)+3}], v[{T}:{T+3}]")
    def out(T):
        r = 208 + 4 * T
        a(f"v_cvt_pk_bf16_f32 v{r}, v{r}, v{r+1}\nv_cvt_pk_bf16_f32 v{r+1}, v{r+2}, v{r+3}")
        if T == 4: a("s_mov_b32 exec_hi, 0")
        a(f"buffer_store_dwordx2 v[{r}:{r+1}], v5, s[12:15], s94 offen offset:{256*T}" + (" sc1" if "osc1" in opts else " nt" if "ont" in opts else " sc0 sc1" if "osc01" in opts else ""))
        if T == 4: a("s_mov_b64 exec, -1")
    t2 = "t2" in opts
    for g in rest:
        if groups[g][1] == 27:
            last = max(groups[g][0])
            a.wait(v=lambda t: isinstance(t, tuple) and t[0] == "ST" and t[1] <= last)
            if t2: poll_check(0)
            a("s_barrier"); sig(g)
    for x in epi(8): emit(x)
    st("epi")
    done = 0
    pend = list(tailq)
    def issue(n):
        while pend and n > 0:
            x = pend.pop(0); emit(x)
            if x[0] == "x": n -= 1
    if t2:
        for c in groups[0][0]: pend += pload(c)
        issue(opt("pre", 6))
    a.wait(v=lambda t: isinstance(t, tuple) and t[0] == "ST"); a("s_barrier")
    for g in rest:
        if groups[g][1] is None: sig(g)
    rest = [g for g in late if groups[g][1] is not None and groups[g][1] < 27 and not (t2 and g == 0)] + rest
    st("drain")
    for g in rest:
        nx = sum(1 for x in pend if x[0] == "x")
        issue(nx - opt("keep", 6))
        [emit(x) for x in poll_issue(g)]
        issue(99)
        poll_check(g); a("s_barrier")
        if g == rest[-1]: st("sync4")
        for c in groups[g][0]: pend += pload(c)
    issue(99)
    for c in range(done, 9):
        red(c)
        if c >= 3 and c % 2 == 1: out(c // 2 - 1)
    st("loaded")
    out(3); out(4)
    st("end")
    a.spins = spins
```

```python
from asmlib import *
from layout import *

class Stamps:
    def __init__(self, a, on, kidx=0):
        self.a = a; self.on = on; self.n = 0; self.kidx = kidx; self.names = []; self.groups = []
    def __call__(self, name):
        if not self.on: return
        if isinstance(self.on, tuple):
            if name == self.on[0]: self.a("s_memrealtime s[56:57]")
            if name == self.on[1]: self.a("s_memrealtime s[58:59]")
            self.names.append(name)
            return
        if name[0] == "g" and name[1:].isdigit() and int(name[1:]) >= 17 and self.on != "lite2": return
        if self.on == "lite2" and name not in ("entry", "g17", "s1", "g19", "g20", "g21", "g22", "g23", "g24", "g25", "g26", "s2", "epi", "drain", "sync4", "end"): return
        if self.on in ("dbg", "lite") and name not in ("entry", "x8", "sync0", "gemm", "kvst", "sync1", "ost", "sync2", "sync3", "bar0", "s1", "s2", "drain", "sync4", "end"): return
        saved = list(self.a.lg)
        self.a(f"{'s_memtime' if self.on == 'cyc' else 's_memrealtime'} s[{56+2*self.n}:{57+2*self.n}]")
        if self.on in ("lite", "lite2"): self.a.lg = saved
        self.names.append(name); self.n += 1
        assert self.n <= 16
    def dump(self, srd, wave, va=0, vd=1):
        if not self.on: return
        a = self.a
        if isinstance(self.on, tuple):
            if self.names[-1] != "end": return
            sk = a.lab("noamp"); lp = a.lab("amp")
            a(f"""s_waitcnt lgkmcnt(0)
            s_lshl_b32 s3, s2, 2
            s_add_u32 s3, s3, {wave}
            s_cmp_lg_u32 s3, {self.on[2] * 4}
            s_cbranch_scc1 {sk}
            s_sub_u32 s58, s58, s56
            s_mul_i32 s58, s58, 4
            s_min_u32 s58, s58, 100000
            s_memrealtime s[60:61]
            s_waitcnt lgkmcnt(0)
            {lp}:
            s_memrealtime s[62:63]
            s_waitcnt lgkmcnt(0)
            s_sub_u32 s62, s62, s60
            s_cmp_lt_u32 s62, s58
            s_cbranch_scc1 {lp}
            {sk}:""")
            return
        if self.on in ("lite", "lite2") and self.names[-1] != "end": return
        if self.on == "dbg":
            if self.names[-1] != "end": return
            sk = a.lab("nodbg")
            a(f"""s_load_dwordx2 s[4:5], s[0:1], 72
            s_waitcnt lgkmcnt(0)
            s_lshl_b32 s3, s2, 2
            s_add_u32 s3, s3, {wave}
            s_cmp_lg_u32 s3, 28
            s_cbranch_scc1 {sk}
            s_mov_b32 s6, 256
            s_mov_b32 s7, 0x20000
            v_mov_b32 v{vd}, 0""")
            for q in range(1, self.n): a(f"s_sub_u32 s3, s{56+2*q}, s56\nv_writelane_b32 v{vd}, s3, {q}")
            a(f"""v_mbcnt_lo_u32_b32 v{va}, -1, 0
            v_lshlrev_b32 v{va}, 2, v{va}
            s_mov_b64 exec, 0xfffe
            buffer_store_dword v{vd}, v{va}, s[4:7], 0 offen
            s_mov_b64 exec, -1
            {sk}:""")
            self.groups.append(self.names)
            return
        a(f"s_waitcnt lgkmcnt(0)\nv_mov_b32 v{vd}, 0")
        for q in range(self.n): a(f"v_writelane_b32 v{vd}, s{56+2*q}, {q}")
        a(f"""s_lshl_b32 s3, s2, 2
        s_add_u32 s3, s3, {wave}
        s_lshl_b32 s3, s3, 6
        s_add_u32 s3, s3, {TS + self.kidx * 0x10000}
        v_mbcnt_lo_u32_b32 v{va}, -1, 0
        v_lshlrev_b32 v{va}, 2, v{va}
        s_mov_b64 exec, 0xffff
        buffer_store_dword v{vd}, v{va}, {srd}, s3 offen
        s_mov_b64 exec, -1""")
        self.groups.append(self.names); self.names = []; self.n = 0; self.kidx += 1

def code_prefetch(a, lab_from, lab_to, vaddr, vdst, nwg_shift=3, reps=1, wide=False):
    pc = a.lab("pc")
    a(f"""s_getpc_b64 s[92:93]
    {pc}:
    s_add_u32 s92, s92, {lab_from}-{pc}
    s_addc_u32 s93, s93, 0
    s_mov_b32 s94, {lab_to}-{lab_from}
    s_mov_b32 s95, 0x20000
    s_lshr_b32 s96, s2, {nwg_shift}
    s_mul_i32 s96, s96, {3072 if wide else 2048}
    v_mul_u32_u24 v{vaddr}, {12 if wide else 8}, v0""")
    for r in range(reps):
        if r: a("s_add_u32 s96, s96, 0x10000")
        a(f"buffer_load_dwordx{3 if wide else 2} {vdst}, v{vaddr}, s[92:95], s96 offen", vtag="pf")

def srd(a, d, lo, hi, nbytes):
    a(f"s_mov_b32 s{d}, s{lo}\ns_mov_b32 s{d+1}, s{hi}\ns_mov_b32 s{d+2}, {nbytes}\ns_mov_b32 s{d+3}, 0x20000")

def signal(a, cnt_sreg, vt=None, check_init=False, cnt2=None):
    sk = a.lab("sig"); saved = list(a.lg)
    a(f"""s_cmp_lg_u32 s30, 0
    s_cbranch_scc1 {sk}""")
    if check_init:
        lp = a.lab("ini"); dn = a.lab("inid"); sv = list(a.vm)
        a(f"""s_mov_b32 s97, 0
        {lp}:
        v_readfirstlane_b32 s98, v{check_init}
        s_cmp_eq_u32 s98, 1
        s_cbranch_scc1 {dn}
        v_mov_b32 v16, 0
        buffer_load_dword v{check_init}, v16, s[24:27], 0 offen sc1
        s_add_u32 s97, s97, 1
        s_cmp_lt_u32 s97, 0x100000
        s_waitcnt vmcnt(0)
        s_cbranch_scc1 {lp}
        {dn}:""")
        a.vm = sv
    a(f"""s_mov_b32 s98, 1
    s_atomic_add s98, s[20:21], {cnt_sreg}""")
    if cnt2: a(f"s_atomic_add s98, s[20:21], {cnt2}")
    a(f"{sk}:")
    a.lg = saved

def poll(a, cnt_sreg, target, vt=None):
    sk = a.lab("pk"); lp = a.lab("poll"); dn = a.lab("done"); saved = list(a.lg)
    a(f"""s_cmp_lg_u32 s30, 0
    s_cbranch_scc1 {sk}
    s_mov_b32 s97, 0
    s_waitcnt lgkmcnt(0)
    {lp}:
    s_mov_b32 s98, 0
    s_atomic_add s98, s[20:21], {cnt_sreg} glc
    s_add_u32 s97, s97, 1
    s_waitcnt lgkmcnt(0)
    s_cmp_ge_u32 s98, {target}
    s_cbranch_scc1 {dn}
    s_cmp_lt_u32 s97, 0x100000
    s_cbranch_scc1 {lp}
    {dn}:
    {sk}:
    s_barrier""")
    a.lg = saved

def init_check(a, vreg):
    lp = a.lab("ini"); dn = a.lab("inid"); sv = list(a.vm)
    a(f"""s_cmp_lg_u32 s30, 0
    s_cbranch_scc1 {dn}
    s_mov_b32 s97, 0
    {lp}:
    v_readfirstlane_b32 s98, v{vreg}
    s_cmp_eq_u32 s98, 1
    s_cbranch_scc1 {dn}
    v_mov_b32 v16, 0
    buffer_load_dword v{vreg}, v16, s[24:27], 0 offen sc1
    s_add_u32 s97, s97, 1
    s_cmp_lt_u32 s97, 0x100000
    s_waitcnt vmcnt(0)
    s_cbranch_scc1 {lp}
    {dn}:""")
    a.vm = sv

def poll2(a, c0, t0, c1, t1):
    sk = a.lab("pk"); lp = a.lab("poll"); dn = a.lab("done"); saved = list(a.lg)
    a(f"""s_cmp_lg_u32 s30, 0
    s_cbranch_scc1 {sk}
    s_mov_b32 s97, 0
    s_waitcnt lgkmcnt(0)
    {lp}:
    s_mov_b32 s98, 0
    s_mov_b32 s96, 0
    s_atomic_add s98, s[20:21], {c0} glc
    s_atomic_add s96, s[20:21], {c1} glc
    s_add_u32 s97, s97, 1
    s_waitcnt lgkmcnt(0)
    s_cmp_ge_u32 s98, {t0}
    s_cselect_b32 s96, s96, 0
    s_cmp_ge_u32 s96, {t1}
    s_cbranch_scc1 {dn}
    s_cmp_lt_u32 s97, 0x100000
    s_cbranch_scc1 {lp}
    {dn}:
    {sk}:
    s_barrier""")
    a.lg = saved

class Table:
    def __init__(self, label):
        self.label = label; self.chunks = []
    def chunk(self, fns):
        fns = list(fns) + [lambda l: 0] * (4 - len(fns))
        self.chunks.append([[f(l) & 0xffffffff for f in fns] for l in range(64)])
        return len(self.chunks) - 1
    def srd(self, a, d):
        pc = a.lab("tpc")
        a(f"""s_getpc_b64 s[{d}:{d+1}]
        {pc}:
        s_add_u32 s{d}, s{d}, {self.label}-{pc}
        s_addc_u32 s{d+1}, s{d+1}, 0
        s_mov_b32 s{d+2}, {self.label}_end-{self.label}
        s_mov_b32 s{d+3}, 0x20000""")
    def load(self, dst, fns, vaddr, d, kind="v"):
        c = self.chunk(fns)
        so = "0" if c < 4 else None
        if c < 4: return f"buffer_load_dwordx4 {kind}[{dst}:{dst+3}], v{vaddr}, s[{d}:{d+3}], 0 offen offset:{c*1024}"
        return f"s_movk_i32 s3, {(c//4)*4096}\nbuffer_load_dwordx4 {kind}[{dst}:{dst+3}], v{vaddr}, s[{d}:{d+3}], s3 offen offset:{(c%4)*1024}"
    def text(self):
        s = f".p2align 7\n.type {self.label},@object\n{self.label}:\n"
        for ch in self.chunks:
            for l in range(64): s += ".long " + ", ".join(f"{v:#x}" for v in ch[l]) + "\n"
        return s + f"{self.label}_end:\n.size {self.label}, {self.label}_end-{self.label}\n"

def poll_start(a, cnt_sreg):
    sk = a.lab("ps"); saved = list(a.lg)
    a(f"""s_cmp_lg_u32 s30, 0
    s_cbranch_scc1 {sk}
    s_mov_b32 s96, 0
    s_atomic_add s96, s[20:21], {cnt_sreg} glc
    {sk}:""")
    a.lg = saved

def poll_finish(a, cnt_sreg, target):
    sk = a.lab("pf"); lp = a.lab("pfl"); saved = list(a.lg)
    a(f"""s_cmp_lg_u32 s30, 0
    s_cbranch_scc1 {sk}
    s_mov_b32 s97, 0
    {lp}:
    s_waitcnt lgkmcnt(0)
    s_cmp_ge_u32 s96, {target}
    s_cbranch_scc1 {sk}
    s_mov_b32 s96, 0
    s_atomic_add s96, s[20:21], {cnt_sreg} glc
    s_add_u32 s97, s97, 1
    s_cmp_lt_u32 s97, 0x100000
    s_cbranch_scc1 {lp}
    s_waitcnt lgkmcnt(0)
    {sk}:
    s_barrier""")
    a.lg = saved
```

```python
from common import *
from ffn16 import dma_offsets, store_setup
UNIT = 18432; SLOT = 2 * UNIT

def ffn_body(a, st, opts, C3, C4, front, tb=None):
    opt = lambda k, d: next((int(o[len(k):]) for o in reversed(opts) if re.fullmatch(k + r'\d+', o)), d)
    diag = st.on
    T0 = 21
    G = lambda t: 64 + 8 * t
    def U(t): return ("v", 208 + 8 * t) if t < 6 else ("a", 96 + 8 * (t - 6))
    XR = lambda k: 32 + 8 * (k % 4)
    NF = opt("nf", 8); D = NF - 2; NA = opt("na", 3)
    AF = lambda i: 192 + 4 * (i % NF)
    def emit(it):
        if len(it) > 2 and it[2][0] == "F":
            saved = list(a.lg); a(it[1]); a.lg = saved
        elif len(it) > 2: a(it[1], vtag=it[2])
        else: a(it[1])
    pol = " sc1" if "dsc1" in opts else " nt" if "dnt" in opts else " sc0" if "dsc0" in opts else ""
    def blocks(P):
        if P < 18 + NA: return [(J, cg) for J in range(9) for cg in range(NA)][9 * (P - 18):9 * (P - 17)]
        return [(J, P - 18) for J in range(9)]
    def dma_pair(P):
        r = []; slot = P % 4
        if P < 18:
            for i in range(9):
                if i % 4 == 0: r.append(("m", f"s_add_u32 m0, s37, {slot*SLOT + i*1024}"))
                r.append(("d", f"buffer_load_dwordx4 v{i}, s[12:15], s36 offen offset:{(i%4)*1024}{pol} lds", ("P", P)))
            return r + [("s", f"s_add_u32 s36, s36, {32*9216}")]
        for b, (J, cg) in enumerate(blocks(P)):
            r.append(("m", f"s_add_u32 m0, s40, {slot*SLOT + b*4096}"))
            r.append(("s", f"s_add_u32 s39, s38, {J*32*1152 + cg*128}"))
            r.append(("d", f"buffer_load_dwordx4 v0, s[16:19], s39 offen{pol} lds", ("P", P)))
        return r
    def dsrc(i):
        def f(l):
            p = i * 1024 + l * 16; row, col = divmod(p, 576)
            return row * 9216 + (col ^ (32 if row & 4 else 0)) + 3072 - (i % 4) * 1024
        return f
    rdb = lambda l, sg: (l >> 2) * 576 + 8 * (l & 3) + sg * 32 * ((l >> 4) & 1)
    OOBV = 0x7fffff00
    def setup():
        a(f"""v_mov_b32 v30, v15
        s_lshl_b32 s31, s29, 1
        s_and_b32 s33, s28, 1
        s_add_u32 s31, s31, s33
        s_lshr_b32 s32, s28, 1
        s_and_b32 s33, s30, 1
        s_lshr_b32 s34, s30, 1
        v_lshlrev_b32 v15, 4, v30""")
        for x in (tb.load(0, [dsrc(i) for i in range(4)], 15, 88), tb.load(4, [dsrc(i) for i in range(4, 8)], 15, 88),
                  tb.load(8, [dsrc(8)] + [(lambda l, q=q: rdb(l, 1) + 55296 * q) for q in range(3)], 15, 88),
                  tb.load(16, [(lambda l, q=q: rdb(l, -1) + 55296 * q) for q in range(3)], 15, 88),
                  tb.load(24, [lambda l: (l // 9) * 9216 + (l % 9) * 128 if l < 18 else OOBV, lambda l: l * 128 if l < 11 else OOBV,
                               lambda l: (l >> 5) * 768 + (l & 31) * 4], 15, 88),
                  tb.load(236, [lambda l: (l >> 3) * 1152 + (((l & 7) << 4) ^ ((l >> 4) << 5))] +
                               [(lambda l, t=t: 2 * SLOT + (l >> 2) * 128 + 8 * (l & 3) + 32 * (((l >> 3) & 3) ^ t)) for t in range(3)], 15, 88, "a"),
                  tb.load(240, [lambda l: 2 * SLOT + (l >> 2) * 128 + 8 * (l & 3) + 32 * (((l >> 3) & 3) ^ 3),
                                lambda l: (l & 7) * 1152 + 8 * ((l >> 3) & 1) + 128 * (l >> 5) + 32 * ((l >> 4) & 1),
                                lambda l: ((l >> 3) & 1) * 256 + (l & 7) * 16 if l < 16 else OOBV,
                                lambda l: (l >> 4) * 9216 + (l & 15) * 16], 15, 88, "a"),
                  tb.load(244, [lambda l: ((l >> 3) & 1) * 147456 + (l >> 4) * 128 + (l & 7) * 16,
                                lambda l: (l // 48) * 1152 + (l % 48) * 16, lambda l: 1152 + (l + 16) * 16 if l < 32 else OOBV,
                                lambda l: (l // 24) * 1152 + 768 + (l % 24) * 16 if l < 48 else OOBV], 15, 88, "a")):
            a(x, vtag="ftab")
        a(f"""s_cmp_eq_u32 s34, 0
        s_cselect_b32 s12, s4, s6
        s_cselect_b32 s13, s5, s7
        s_sub_u32 s12, s12, 3072
        s_subb_u32 s13, s13, 0
        s_mov_b32 s14, {576*9216+3072}
        s_mov_b32 s15, 0x20000""")
        srd(a, 16, 8, 9, 4608 * 1152)
        a(f"""s_mul_i32 s36, s31, 576
        s_mul_i32 s39, s33, {16*9216}
        s_add_u32 s36, s36, s39
        s_mul_i32 s37, s30, 9216""")
    def dma0(P):
        a.wait(v="ftab")
        [emit(x) for x in dma_pair(P)]
    loop = "noloop" not in opts
    def zero(part):
        if "mz" in opts:
            if part == 0:
                for q in range(4): a(f"v_mov_b32 v{60+q}, 0")
            blk = [("v", r) for r in range(64, 160, 16)] + [("a", r) for r in (144, 160, 176)] if part == 0 else [("v", r) for r in range(160, 256, 16)] + [("a", r) for r in (96, 112, 128)]
            for k, r in blk: a(f"v_mfma_f32_32x32x16_bf16 {vr(r,16,k)}, v[60:63], v[60:63], 0")
            return
        regs = []
        for t in range(18):
            for q in range(8):
                regs.append(("v", G(t) + q)); k, b = U(t); regs.append((k, b + q))
        for (k, r) in regs:
            late = (k == "v" and r >= 168) or (k == "a" and r < 136)
            if late == (part == 1): a(f"v_mov_b32 v{r}, 0" if k == "v" else f"v_accvgpr_write_b32 a{r}, 0")
    front(setup, dma0, zero)
    o2 = "ord2" in opts
    if o2:
        a(f"s_lshl_b32 s53, s32, 8\ns_add_u32 s53, s53, {C3}")
        poll_start(a, "s53")
        dma0(0)
    tl = "notl" not in opts
    if tl:
        a(f"""v_mov_b32 v31, v24
        v_mov_b32 v14, v25
        s_lshl_b32 s50, s28, 1
        s_add_u32 s50, s50, s33
        s_mul_i32 s50, s50, {2*9216}
        s_mul_i32 s51, s29, 1152
        s_add_u32 s50, s50, s51
        s_add_u32 s50, s50, {opt("tla", 256)*9216 + 3072}
        s_lshl_b32 s51, s28, 2
        s_add_u32 s51, s51, s30
        s_mul_i32 s51, s51, {11*128}
        s_mul_i32 s52, s29, {576*1152}
        s_add_u32 s51, s51, s52""")
    a(f"""s_lshl_b32 s35, s32, 2
    s_add_u32 s35, s35, s30
    s_mul_i32 s43, s35, 1536
    s_mul_i32 s35, s35, 36864
    s_add_u32 s43, s43, {STATS}
    s_mul_i32 s38, s31, {288*1152}
    s_mul_i32 s39, s30, {8*1152}
    s_add_u32 s38, s38, s39
    s_lshl_b32 s40, s30, 10
    s_mov_b32 s47, 0xffff0000
    s_lshl_b32 s53, s32, 8
    s_add_u32 s53, s53, {C3}
    v_mov_b32 v29, v26""")
    if HFRAG: a(f"s_add_u32 s35, s35, {HFRAG}")
    if o2: poll_finish(a, "s53", 12)
    else: poll(a, "s53", 12)
    st("sync3")
    def xload(k):
        r = []
        for h in range(2):
            r.append(("x", f"buffer_load_dwordx4 {vr(XR(k)+4*h,4)}, v15, s[20:23], s35 offen offset:{h*1024} sc1", ("X", k)))
        return r + [("s", "s_add_u32 s35, s35, 2048")]
    for q in range(6): a(f"buffer_load_dword v{(56,57,58,59,27,28)[q]}, v29, s[20:23], s43 offen offset:{128*q} sc1", vtag="st")
    XA = opt("xa", 2)
    for k in range(3 if XA == 3 else 2): [emit(x) for x in xload(k)]
    if o2: dma0(1)
    if loop: zero(1)
    a.wait(v="st")
    a("""v_add_f32 v56, v56, v57
    v_add_f32 v58, v58, v59
    v_add_f32 v27, v27, v28
    v_add_f32 v56, v56, v58
    v_add_f32 v56, v56, v27
    v_mul_f32 v56, 0x3ae38e39, v56
    v_mov_b32 v57, v56
    v_permlane16_swap_b32 v56, v57
    v_fma_f32 v57, -v56, v56, v57
    v_max_f32 v57, 0, v57
    v_add_f32 v57, 0x3727c5ac, v57
    v_rsq_f32 v12, v57
    s_nop 0
    v_mul_f32_e64 v19, -v56, v12
    v_mov_b32 v13, v12
    v_mov_b32 v20, v19
    v_permlane32_swap_b32 v12, v13
    v_permlane32_swap_b32 v19, v20""")
    def norm(k):
        r = []
        if "xnonorm" in opts: return r
        for h in range(2):
            b = XR(k) + 4 * h
            for j in range(4):
                r.append(("v", f"v_lshlrev_b32_e32 v{T0+2*j}, 16, v{b+j}"))
                r.append(("v", f"v_and_b32_e32 v{T0+1+2*j}, s47, v{b+j}"))
            for j in range(8):
                r.append(("v", f"v_fma_f32 v{T0+j}, v{T0+j}, v{12+h}, v{19+h}"))
            for j in range(4):
                r.append(("v", f"v_cvt_pk_bf16_f32 v{b+j}, v{T0+2*j}, v{T0+1+2*j}"))
        return r
    def conv(J):
        r = []
        for h in range(2):
            for e in range(2):
                t = 2 * J + e; g = G(t) + 4 * h; k, u = U(t); u += 4 * h
                for q in range(4):
                    if k == "a": r.append(("v", f"v_accvgpr_read_b32 v{T0+q}, a{u+q}"))
                    r.append(("v", f"v_max_f32_e32 v{g+q}, 0, v{g+q}"))
                for q in range(4):
                    src = f"v{T0+q}" if k == "a" else f"v{u+q}"
                    r.append(("v", f"v_mul_f32_e32 v{g+q}, v{g+q}, {src}"))
                d = G(2 * J) + 4 * h + 2 * e
                for q in range(2):
                    r.append(("v", f"v_cvt_pk_bf16_f32 v{d+q}, v{g+2*q}, v{g+2*q+1}"))
            if "emu" in opts:
                r.append(("st", f"buffer_store_dwordx4 {vr(G(2*J)+4*h,4)}, v29, s[20:23], s43 offen offset:{h*1024} sc1", ("HS", J)))
                if h: r.append(("s", "s_add_u32 s43, s43, 2048"))
        return r
    def acc2(c, t): return ("a", 8 * (4 * c + t)) if c < NA else ("v", G(2 * ((c % 2) * 4 + t) + 1))
    ecount = [0]
    def epi(c):
        r = []
        if "emu" in opts and c < 4: return r
        for tp in range(2):
            for h in range(2):
                S = 32 + 4 * (ecount[0] % 8); ecount[0] += 1
                for e in range(2):
                    k, b = acc2(c, 2 * tp + e); b += 4 * h
                    if k == "a":
                        for q in range(4): r.append(("v", f"v_accvgpr_read_b32 v{T0+4*e+q}, a{b+q}"))
                        b = T0 + 4 * e
                    for q in range(2): r.append(("v", f"v_cvt_pk_bf16_f32 v{S+2*e+q}, v{b+2*q}, v{b+2*q+1}"))
                o = (2 * c + tp) * 512
                r.append(("st", f"buffer_store_dwordx4 {vr(S,4)}, v15, s[20:23], s{44+3*h+o//4096} offen offset:{o%4096}{'' if 'xplain' in opts else ' sc1'}", ("ST", c)))
                if "xnost" in opts and c < 8: r.pop()
        return r
    a.wait(v=("X", 0))
    [emit(x) for x in norm(0)]
    fr = []
    for ks in range(18):
        for t in range(18):
            fr.append((ks, (0, t), "v", G(t), XR(ks), ks == 0 and not loop))
            k, b = U(t); fr.append((ks, (1, t), k, b, XR(ks), ks == 0 and not loop))
    for P in range(18, 27):
        for b_, (J, cg) in enumerate(blocks(P)):
            for t in range(4):
                k, b = acc2(cg, t)
                fr.append((P, (b_, t), k, b, G(2 * J), J == 0))
    N = len(fr)
    def reads(i):
        P, (x, t) = fr[i][0], fr[i][1]; f = AF(i)
        if P < 18:
            slot = (2 * P + x) % 8; base = (9 if t % 2 == 0 else 16) + slot // 3
            o = (slot % 3) * UNIT + t * 32; o2 = o + 9216
        else:
            base = 1 + t; o = x * 4096; o2 = o + 2048
        return [f"ds_read_b64_tr_b16 a[{f}:{f+1}], v{base} offset:{o}", f"ds_read_b64_tr_b16 a[{f+2}:{f+3}], v{base} offset:{o2}"]
    s2setup = ["v_accvgpr_read_b32 v0, a236"]
    s2read = [f"v_accvgpr_read_b32 v{1+t}, a{237+t}" for t in range(4)]
    redsetup = ["v_accvgpr_read_b32 v5, a241", "v_accvgpr_read_b32 v7, a242", "v_accvgpr_read_b32 v31, a243",
                "s_lshl_b32 s29, s32, 4", "s_add_u32 s29, s29, s31",
                "s_mul_i32 s88, s29, 147456", "s_lshl_b32 s89, s30, 8", "s_add_u32 s88, s88, s89", f"s_add_u32 s88, s88, {PART}",
                "s_add_u32 s89, s88, 36864", "s_add_u32 s90, s89, 36864", "s_add_u32 s91, s90, 36864",
                "s_lshr_b32 s92, s29, 2", "s_mul_i32 s92, s92, 36864", "s_bfe_u32 s93, s29, 0x10001", "s_lshl_b32 s93, s93, 10", "s_add_u32 s92, s92, s93",
                "s_and_b32 s93, s29, 1", "s_lshl_b32 s93, s93, 7", "s_add_u32 s92, s92, s93", "s_lshl_b32 s93, s34, 11", "s_add_u32 s92, s92, s93",
                "s_lshl_b32 s93, s33, 9", "s_add_u32 s92, s92, s93",
                f"s_mul_i32 s94, s29, {8*1152}", "s_lshl_b32 s93, s34, 6", "s_add_u32 s94, s94, s93", "s_lshl_b32 s93, s33, 4", "s_add_u32 s94, s94, s93",
                f"s_add_u32 s53, s53, {C4-C3}"]
    if "xown" in opts:
        redsetup += ["v_mov_b32 v14, 0x7fffff00", "v_cmp_gt_u32 vcc, 16, v30", "s_nop 0", "v_cndmask_b32 v14, v31, v14, vcc"]
    if HFRAG: redsetup.append(f"s_add_u32 s92, s92, {HFRAG}")
    PL = lambda c, i: (96 + 4 * (4 * c + i)) if c < 6 else 4 * (4 * (c - 6) + i)
    HL = lambda c: 48 + 4 * c
    def hload(c): return [("x", f"buffer_load_dwordx4 a[{HL(c)}:{HL(c)+3}], v7, s[20:23], s92 offen sc1", ("H", c)), ("s", "s_add_u32 s92, s92, 4096")]
    def pload(c):
        r = []
        if c and c % 4 == 0: r += [("s", f"s_add_u32 s{88+i}, s{88+i}, 4096") for i in range(4)]
        for i in range(4 if ("emu" not in opts or c >= 4) else 0):
            r.append(("x", f"buffer_load_dwordx4 a[{PL(c,i)}:{PL(c,i)+3}], v{14 if 'xown' in opts and i == 0 else 31}, s[20:23], s{88+i} offen offset:{(c%4)*1024} sc1", ("L", c)))
        return r
    sched = opt("sch", 1)
    if sched == 0: groups = [(range(9), None, None)]
    elif sched == 4: groups = [((0, 1, 2, 3, 4, 5), 26, None), ((6, 7, 8), None, None)]
    elif sched == 5: groups = [((0, 1, 2, 3, 4, 5), 26, None), ((6, 7), 27, None), ((8,), None, None)]
    elif sched == 6: groups = [((0, 1), 22, 23), ((2, 3, 4, 5), 26, None), ((6, 7, 8), None, None)]
    elif sched == 7: groups = [((0, 1, 2), 23, 24), ((3, 4, 5), 26, None), ((6, 7, 8), None, None)]
    elif sched == 8: groups = [((0,), 21, 22), ((1, 2), 23, 24), ((3, 4, 5), 26, None), ((6, 7, 8), None, None)]
    elif sched == 9: groups = [((0, 1), 22, 24), ((2, 3, 4, 5), 26, None), ((6, 7), 27, None), ((8,), None, None)]
    elif sched == 10: groups = [((0, 1), 24, 25), ((2, 3, 4, 5), 26, None), ((6, 7), 27, None), ((8,), None, None)]
    elif sched == 11: groups = [((0, 1, 2), 24, 25), ((3, 4, 5), 26, None), ((6, 7), 27, None), ((8,), None, None)]
    elif sched == 12: groups = [((0, 1, 2, 3), 24, 25), ((4, 5), 26, None), ((6, 7), 27, None), ((8,), None, None)]
    elif sched == 13: groups = [((0, 1, 2, 3, 4), 25, 26), ((5, 6, 7), 27, None), ((8,), None, None)]
    elif sched == 14: groups = [((0, 1), 22, 23), ((2, 3, 4, 5), 26, None), ((6, 7), 27, None), ((8,), None, None)]
    elif sched == 15: groups = [((0,), 21, 22), ((1, 2), 23, 24), ((3, 4, 5), 26, None), ((6, 7), 27, None), ((8,), None, None)]
    elif sched == 16: groups = [((0,), 21, 22), ((1,), 22, 23), ((2,), 23, 24), ((3,), 24, 25), ((4, 5), 26, None), ((6, 7), 27, None), ((8,), None, None)]
    elif sched == 17: groups = [((0,), 21, 22), ((1,), 22, 23), ((2,), 23, 24), ((3,), 24, 25), ((4,), 25, 26), ((5,), 26, None), ((6, 7), 27, None), ((8,), None, None)]
    elif sched == 18: groups = [((0,), 20, 21), ((1,), 21, 22), ((2,), 22, 23), ((3,), 23, 24), ((4,), 24, 25), ((5,), 25, 26), ((6, 7), 27, None), ((8,), None, None)]
    elif sched == 19: groups = [((0,), 21, 22), ((1, 2), 23, 24), ((3, 4), 25, 26), ((5, 6, 7), 27, None), ((8,), None, None)]
    elif sched == 20: groups = [((0,), 21, 22), ((1,), 22, 23), ((2,), 23, 24), ((3,), 24, 25), ((4, 5), 26, None), ((6, 7, 8), None, None)]
    elif sched == 21: groups = [((0, 1, 2, 3, 4), 25, 26), ((5,), 26, None), ((6, 7, 8), None, None)]
    elif sched == 22: groups = [((0, 1, 2, 3, 4, 5), 26, None), ((6, 7, 8), None, None)]
    elif sched == 23: groups = [((0, 1, 2, 3, 4), 25, 26), ((5, 6, 7), 27, None), ((8,), None, None)]
    slowq = []; lper = opt("lper", 18)
    spins = []
    def sig(g):
        sk = a.lab("sg"); saved = list(a.lg)
        a(f"""s_cmp_lg_u32 s30, 0
        s_cbranch_scc1 {sk}
        s_add_u32 s95, s53, {4096*g}
        s_mov_b32 s98, 1
        s_atomic_add s98, s[20:21], s95
        {sk}:""")
        a.lg = saved
    def poll_issue(g):
        sk = a.lab("pi")
        return [("x", f"s_cmp_lg_u32 s30, 0\ns_cbranch_scc1 {sk}\ns_add_u32 s96, s53, {4096*g}\ns_mov_b32 s97, 0\ns_atomic_add s97, s[20:21], s96 glc\n{sk}:", ("F", g))]
    def poll_check(g):
        ok = a.lab("ok"); sp = a.lab("spin"); saved = list(a.lg)
        a(f"s_cmp_eq_u32 s30, 0\ns_cbranch_scc1 {sp}\n{ok}:")
        spins.append(f"""{sp}:
        s_mov_b32 s99, 0
        {sp}_l:
        s_waitcnt lgkmcnt(0)
        s_cmp_ge_u32 s97, 16
        s_cbranch_scc1 {ok}
        s_mov_b32 s97, 0
        s_atomic_add s97, s[20:21], s96 glc
        s_add_u32 s99, s99, 1
        s_cmp_lt_u32 s99, 0x100000
        s_cbranch_scc1 {sp}_l
        s_waitcnt lgkmcnt(0)
        s_branch {ok}""")
    st("pro")
    if opt("prio", 0): a(f"s_setprio {opt('prio', 0)}")
    if o2 and "w1" in opts:
        a.wait(v=lambda t: t == ("P", 0) or (isinstance(t, tuple) and t[0] == "X")); a("s_barrier"); early_p1 = True
    else:
        a("s_waitcnt vmcnt(0)\ns_barrier")
    st("bar0")
    if diag and diag not in ("lite", "lite2"): a("s_waitcnt lgkmcnt(0)")
    for i in range(D):
        for r in reads(i): a(r, ltag=("A", i))
    memq = []; valq = []; pendbar = None
    budget = opt("bud", 2); mper = opt("mper", 4)
    def emitv(it):
        if it[0] == "w": return 1 if a.wait(v=it[1]) else 0
        emit(it); return 1
    marks = {}
    for i in range(N):
        P, xt, k, b, B, first = fr[i]
        s, pos = divmod(i, 36)
        if pos == 0 and s % 4 == 0 and s <= 16: marks[s] = len(a.l)
        if i == 648: st("s1")
        if pos == 0 and s >= 17 and s != 18: st(f"g{s}")
        if (i + D) % 36 == 0 and i + D < N:
            sn = (i + D) // 36
            while any(len(x) > 2 and x[2][0] == "P" and x[2][1] <= sn + 1 for x in memq) or (memq and memq[0][0] in "sv"): emit(memq.pop(0))
            pendbar = sn
            if sn > 18: valq = [(("v", f"v_add_u32 v{1+t}, {SLOT if sn % 4 else -3*SLOT}, v{1+t}"), i) for t in range(4)] + valq
        if pos == 0:
            Pn = s + 2; q = []
            if s <= 15 and "xnox" not in opts and XA == 2: q += xload(s + 2)
            if Pn == 18: q += [("v", x) for x in s2setup]
            A3 = opt("a3", 99)
            if s < A3:
                if Pn < 27 and not ("xnodma" in opts and Pn < 18): q += dma_pair(Pn)
            else:
                if s == A3: q += dma_pair(Pn)
                if Pn + 1 < 27: q += dma_pair(Pn + 1)
            if Pn == 18: q += [("v", x) for x in s2read]
            if s <= 15 and XA == 3: q += xload(s + 3)
            if s <= 15 and XA == 4: q += xload(s + 2)
            if "emu" in opts and s == 16:
                q += [("v", "v_lshlrev_b32 v29, 4, v30"), ("s", "s_lshl_b32 s43, s2, 2"), ("s", "s_add_u32 s43, s43, s30"), ("s", "s_mul_i32 s43, s43, 18432"), ("s", f"s_add_u32 s43, s43, {0x10000000}"), ("s", "s_xor_b32 s52, s2, 8"), ("s", "s_lshl_b32 s52, s52, 2"), ("s", "s_add_u32 s52, s52, s30"), ("s", "s_mul_i32 s52, s52, 18432"), ("s", f"s_add_u32 s52, s52, {0x10000000}")]
            if "emu" in opts and s in (21, 22):
                for J in (range(5) if s == 21 else range(5, 9)):
                    q += [("x", f"buffer_load_dwordx4 a[{96+8*J+4*h}:{99+8*J+4*h}], v29, s[20:23], s52 offen offset:{h*1024} sc1", ("HL", J)) for h in range(2)] + [("s", "s_add_u32 s52, s52, 2048")]
            if tl and s < 16 and s % 4 == 0: q += [("x", "buffer_load_dword a232, v31, s[12:15], s50 offen", ("T", s)), ("s", f"s_add_u32 s50, s50, {128*9216}")]
            if tl and s < 16 and s % 4 == 2: q += [("x", "buffer_load_dword a233, v14, s[16:19], s51 offen", ("T", s)), ("s", f"s_add_u32 s51, s51, {128*11*128}")]
            memq = ([x for x in memq] + q) if any(len(x) > 2 and x[2][0] == 'P' for x in memq) else q + memq
        if pos == 4 and s + 1 < 18:
            valq += [(("w", ("X", s + 1)), i + 31)] + [(x, i + 31) for x in norm(s + 1)]
        if i >= 612 and i < 648 and (i - 612) % 4 == 2 and (i - 612) // 4 >= 1:
            J = (i - 612) // 4 - 1
            valq += [(x, 648 + 4 * NA * J) for x in conv(J)]
        if i == 650: valq += [(x, 648 + 4 * NA * 8) for x in conv(8)]
        if i == 652: valq += [(("v", x), 648 + 36 * NA + 20) for x in ['v_accvgpr_read_b32 v15, a244'] + [y for y in store_setup() if y.startswith('s_')] + redsetup]
        EP = opt("ep", 2)
        if i == 648 + 36 * NA + EP:
            for c in range(NA): valq += [(x, None) for x in epi(c)]
        if i >= 648 + 36 * (NA + 1) + 2 and pos == (EP if s < 25 else 2):
            c = s - 19
            valq += [(x, 648 + 36 * (c + 2)) for x in epi(c)]
        if i == opt('hl', N - 1):
            for c in range(9): slowq += hload(c)
        chks = []
        if "t2" in opts and i == N - 20: memq = poll_issue(0) + memq
        for g, (chs, sst, chk) in enumerate(groups):
            if chk is not None and i == 36 * chk - D - 16: memq = poll_issue(g) + memq
            if chk is not None and pendbar == chk:
                while any(len(x) > 2 and x[2] == ("F", g) for x in memq): emit(memq.pop(0))
                chks.append(g)
        if slowq and i % lper == opt("loff", 0):
            while True:
                x = slowq.pop(0); memq.append(x)
                if x[0] == "x" or not slowq: break
        sigs = [g for g, (chs, sst, chk) in enumerate(groups) if pendbar is not None and sst == pendbar]
        for g in sigs:
            last = max(groups[g][0])
            while any(len(x) > 2 and x[2][0] == "ST" and x[2][1] <= last for (x, _) in valq): emitv(valq.pop(0)[0])
        while any(d is not None and d <= i for (_, d) in valq): emitv(valq.pop(0)[0])
        lw = lambda lim: a.wait(l=lambda t: t is not None and t != "SMEM" and t[1] <= lim)
        lw(i)
        f = AF(i)
        rd = reads(i + D) if i + D < N else []
        behind = len(valq) > opt("beh", 60)
        for h in range(2):
            C = "0" if first else vr(b + 4 * h, 4, k)
            a(f"v_mfma_f32_16x16x32_bf16 {vr(b+4*h,4,k)}, a[{f}:{f+3}], {vr(B+4*h,4)}, {C}")
            sc_used = False
            if pendbar is not None:
                lasts = [max(groups[g][0]) for g in sigs]
                a.wait(v=lambda t: t == ("P", pendbar) or (isinstance(t, tuple) and t[0] == "ST" and any(t[1] <= l for l in lasts)))
                for g in chks: poll_check(g)
                if "xnobar" not in opts or s >= 16: a("s_barrier")
                for g in sigs: sig(g)
                for g in chks:
                    for c in groups[g][0]: slowq += pload(c)
                pendbar = None; sc_used = True
            if h == 1 and not sc_used: sc_used = lw(i + 1)
            if not sc_used:
                if memq and memq[0][0] in ("s", "m"):
                    emit(memq.pop(0)); sc_used = True
                    if "sc2" in opts and memq and memq[0][0] in ("s", "m"): emit(memq.pop(0))
                elif valq and valq[0][0][0] == "w": sc_used = emitv(valq.pop(0)[0])
                elif valq and valq[0][0][1].startswith("s_"): emitv(valq.pop(0)[0]); sc_used = True
            n = 0
            if rd: a(rd[h], ltag=("A", i + D)); n += 1
            mp = mper if s < 16 else opt("mq", 4)
            if memq and memq[0][0] in ("x", "d") and (2 * i + h) % mp == 0:
                emit(memq.pop(0)); n += 1
            elif memq and memq[0][0] == "v":
                emit(memq.pop(0)); n += 1
            while valq and n < budget + (1 if behind else 0) and valq[0][0][0] != "w" and not valq[0][0][1].startswith("s_"):
                n += emitv(valq.pop(0)[0])
    for it in memq: emit(it)
    for it, d in valq: emitv(it)
    tailq = slowq
    if loop:
        body = [[x.text for x in a.l[marks[s]:marks[s + 4]]] for s in (0, 4, 8, 12)]
        assert body[1] == body[2] == body[3], "loop bodies differ"
        pre = []
        if body[0][0] != body[1][0]:
            assert body[0][0].startswith("s_waitcnt lgkmcnt"); pre = [Ins(body[0][0])]; body[0] = body[0][1:]
        assert body[0] == [x for x in body[1] if not (x.startswith("s_waitcnt vmcnt") and x not in body[0])] or \
               [x for x in body[0] if "vmcnt" not in x] == [x for x in body[1] if "vmcnt" not in x]
        lp = a.lab("loop")
        a.l = a.l[:marks[0]] + pre + [Ins("s_mov_b32 s41, 0"), Ins(f".p2align {opt('al', 3)}")] + [Ins("s_nop 0")] * opt("ao", 0) + [Ins(f"{lp}:")] + a.l[marks[4]:marks[8]] + \
              [Ins("s_add_u32 s41, s41, 1"), Ins("s_cmp_lt_u32 s41, 4"), Ins(f"s_cbranch_scc1 {lp}")] + a.l[marks[16]:]
    st("s2")
    rest = [g for g, (chs, sst, chk) in enumerate(groups) if sst is None or sst >= 27]
    late = [g for g, (chs, sst, chk) in enumerate(groups) if chk is None]
    srd(a, 12, 10, 11, 2048 * 1152)
    def red(c):
        T = 208 + 4 * (c // 2); S = 224 + 4 * (c % 2)
        a.wait(v=("H", c))
        a(f"v_mfma_f32_16x16x32_bf16 v[{T}:{T+3}], a[{S}:{S+3}], a[{HL(c)}:{HL(c)+3}], {'0' if c % 2 == 0 else f'v[{T}:{T+3}]'}")
        a.wait(v=("L", c))
        for i in range(4):
            a(f"v_mfma_f32_16x16x32_bf16 v[{T}:{T+3}], a[{S}:{S+3}], a[{PL(c,i)}:{PL(c,i)+3}], v[{T}:{T+3}]")
    lds_out = "lout" in opts
    osc = " sc1" if "osc1" in opts else " nt" if "ont" in opts else ""
    OST = 147456 + 1024
    def out(T):
        r = 208 + 4 * T
        a(f"v_cvt_pk_bf16_f32 v{r}, v{r}, v{r+1}\nv_cvt_pk_bf16_f32 v{r+1}, v{r+2}, v{r+3}")
        if T == 4: a("s_mov_b32 exec_hi, 0")
        if lds_out: a(f"ds_write_b64 v6, v[{r}:{r+1}] offset:{256*T}")
        elif "xnoout" not in opts: a(f"buffer_store_dwordx2 v[{r}:{r+1}], v5, s[12:15], s94 offen offset:{256*T}" + osc)
        if T == 4: a("s_mov_b64 exec, -1")
    def flush_out(part):
        a("s_waitcnt lgkmcnt(0)\ns_barrier")
        regs = (8, 9) if part == 0 else (10,)
        for q, r in enumerate(regs): a(f"ds_read_b128 v[{32+4*(r-8)}:{35+4*(r-8)}], v{r+3}")
        a("s_waitcnt lgkmcnt(0)")
        for q, r in enumerate(regs): a(f"buffer_store_dwordx4 v[{32+4*(r-8)}:{35+4*(r-8)}], v{r}, s[12:15], s43 offen" + osc)
    if lds_out:
        a(f"""v_accvgpr_read_b32 v8, a245
        v_accvgpr_read_b32 v9, a246
        v_accvgpr_read_b32 v10, a247
        s_lshl_b32 s93, s34, 6
        s_lshl_b32 s43, s33, 4
        s_add_u32 s93, s93, s43
        s_add_u32 s93, s93, {OST}
        v_add_u32 v6, s93, v5
        s_mul_i32 s93, s30, 2304
        s_mul_i32 s43, s29, {8*1152}
        s_add_u32 s43, s43, s93
        s_add_u32 s93, s93, {OST}
        v_min_u32 v11, 2288, v8
        v_min_u32 v12, 2288, v9
        v_min_u32 v13, 2288, v10
        v_add_u32 v11, s93, v11
        v_add_u32 v12, s93, v12
        v_add_u32 v13, s93, v13""")
    t2 = "t2" in opts
    for g in rest:
        if groups[g][1] == 27:
            last = max(groups[g][0])
            a.wait(v=lambda t: isinstance(t, tuple) and t[0] == "ST" and t[1] <= last)
            if t2: poll_check(0)
            a("s_barrier"); sig(g)
    for x in epi(8): emit(x)
    st("epi")
    done = 0
    pend = list(tailq)
    def issue(n):
        while pend and n > 0:
            x = pend.pop(0); emit(x)
            if x[0] == "x": n -= 1
    if t2:
        for c in groups[0][0]: pend += pload(c)
        issue(opt("pre", 6))
    a.wait(v=lambda t: isinstance(t, tuple) and t[0] == "ST"); a("s_barrier")
    for g in rest:
        if groups[g][1] is None: sig(g)
    rest = [g for g in late if groups[g][1] is not None and groups[g][1] < 27 and not (t2 and g == 0)] + rest
    st("drain")
    for g in rest:
        nx = sum(1 for x in pend if x[0] == "x")
        issue(nx - opt("keep", 6))
        [emit(x) for x in poll_issue(g)]
        issue(99)
        poll_check(g); a("s_barrier")
        if g == rest[-1]: st("sync4")
        for c in groups[g][0]: pend += pload(c)
    issue(99)
    for c in range(done, 9):
        red(c)
        if c >= 3 and c % 2 == 1 and not (lds_out and c == 7): out(c // 2 - 1)
        if lds_out and c == 5:
            out(2); flush_out(0)
    st("loaded")
    out(3); out(4)
    if lds_out: flush_out(1)
    st("end")
    a.spins = spins
```

```python
from common import *
from ffn16 import dma_offsets, store_setup
UNIT = 18432; SLOT = 2 * UNIT

def ffn_body(a, st, opts, C3, C4, front, tb, C5):
    opt = lambda k, d: next((int(o[len(k):]) for o in reversed(opts) if re.fullmatch(k + r'\d+', o)), d)
    diag = st.on
    T0 = 21
    G = lambda t: 64 + 8 * t
    pn = "pn" in opts
    def U(t):
        if t < 6: return ("v", 208 + 8 * t)
        if pn: return ("v", 32 + 8 * (t - 6)) if t < 10 else ("a", 96 + 8 * (t - 10))
        return ("a", 96 + 8 * (t - 6))
    XR = (lambda k: 8 * (k % 4)) if pn else (lambda k: 32 + 8 * (k % 4))
    XK = "a" if pn else "v"
    NF = opt("nf", 8); D = NF - 2; NA = 2; PK = opt('pk', 1)
    AF = lambda i: 192 + 4 * (i % NF)
    def emit(it):
        if len(it) > 2 and it[2][0] == "F":
            saved = list(a.lg); a(it[1]); a.lg = saved
        elif len(it) > 2: a(it[1], vtag=it[2])
        else: a(it[1])
    pol = " sc1" if "dsc1" in opts else " nt" if "dnt" in opts else " sc0" if "dsc0" in opts else ""
    def blocks(P):
        if P < 20: return [(J, lc) for J in range(9) for lc in range(2)][9 * (P - 18):9 * (P - 17)]
        if P < 23: return [(J, P - 18) for J in range(9)]
        if P < 23 + PK: return [(9 + J, lc) for J in range(9) for lc in range(PK)][9 * (P - 23):9 * (P - 22)]
        return [(9 + J, P - 23) for J in range(9)]
    def dma_pair(P):
        r = []; slot = P % 4
        if P < 18:
            for i in range(9):
                if i % 4 == 0: r.append(("m", f"s_add_u32 m0, s37, {slot*SLOT + i*1024}"))
                r.append(("d", f"buffer_load_dwordx4 v{i}, s[12:15], s36 offen offset:{(i%4)*1024}{pol} lds", ("P", P)))
            return r + [("s", f"s_add_u32 s36, s36, {32*9216}")]
        for b, (J, cg) in enumerate(blocks(P)):
            r.append(("m", f"s_add_u32 m0, s40, {slot*SLOT + b*4096}"))
            base = "s100" if J >= 9 else ("s101" if cg == 4 else "s38")
            r.append(("s", f"s_add_u32 s39, {base}, {(J%9)*32*1152 + (cg%4)*128}"))
            r.append(("d", f"buffer_load_dwordx4 v0, s[16:19], s39 offen{pol} lds", ("P", P)))
        return r
    def dsrc(i):
        def f(l):
            p = i * 1024 + l * 16; row, col = divmod(p, 576)
            return row * 9216 + (col ^ (32 if row & 4 else 0)) + 3072 - (i % 4) * 1024
        return f
    rdb = lambda l, sg: (l >> 2) * 576 + 8 * (l & 3) + sg * 32 * ((l >> 4) & 1)
    OOBV = 0x7fffff00
    def fl0(p):
        row, q = divmod(p, 56); ln, pc = divmod(q, 8)
        return row * 1152 + (0, 1, 2, 4, 5, 6, 7)[ln] * 128 + pc * 16
    def setup():
        a(f"""v_mov_b32 v30, v15
        s_lshl_b32 s31, s29, 1
        s_and_b32 s33, s28, 1
        s_add_u32 s31, s31, s33
        s_lshr_b32 s32, s28, 1
        s_and_b32 s33, s30, 1
        s_lshr_b32 s34, s30, 1
        v_lshlrev_b32 v15, 4, v30""")
        for x in (tb.load(0, [dsrc(i) for i in range(4)], 15, 88), tb.load(4, [dsrc(i) for i in range(4, 8)], 15, 88),
                  tb.load(8, [dsrc(8)] + [(lambda l, q=q: rdb(l, 1) + 55296 * q) for q in range(3)], 15, 88),
                  tb.load(16, [(lambda l, q=q: rdb(l, -1) + 55296 * q) for q in range(3)], 15, 88),
                  tb.load(24, [lambda l: (l // 9) * 9216 + (l % 9) * 128 if l < 18 else OOBV, lambda l: l * 128 if l < 11 else OOBV,
                               lambda l: (l >> 5) * 768 + (l & 31) * 4], 15, 88),
                  tb.load(236, [lambda l: (l >> 3) * 1152 + (((l & 7) << 4) ^ ((l >> 4) << 5))] +
                               [(lambda l, t=t: 2 * SLOT + (l >> 2) * 128 + 8 * (l & 3) + 32 * (((l >> 3) & 3) ^ t)) for t in range(3)], 15, 88, "a"),
                  tb.load(240, [lambda l: 2 * SLOT + (l >> 2) * 128 + 8 * (l & 3) + 32 * (((l >> 3) & 3) ^ 3),
                                lambda l: (l & 7) * 1152 + 8 * ((l >> 3) & 1) + 640 * (l >> 5) + 32 * ((l >> 4) & 1),
                                lambda l: ((l >> 3) & 1) * 256 + (l & 7) * 16 if l < 16 else OOBV,
                                lambda l: (l >> 4) * 9216 + (l & 15) * 16], 15, 88, "a"),
                  tb.load(244, [lambda l: ((l >> 3) & 1) * 147456 + (l >> 4) * 128 + (l & 7) * 16,
                                lambda l: fl0(l), lambda l: fl0(64 + l) if l < 48 else OOBV,
                                lambda l: (l >> 4) * 1152 + (384 if (l & 8) == 0 else 1024) + (l & 7) * 16 if l < 32 else OOBV], 15, 88, "a")):
            a(x, vtag="ftab")
        a(f"""s_cmp_eq_u32 s34, 0
        s_cselect_b32 s12, s4, s6
        s_cselect_b32 s13, s5, s7
        s_sub_u32 s12, s12, 3072
        s_subb_u32 s13, s13, 0
        s_mov_b32 s14, {576*9216+3072}
        s_mov_b32 s15, 0x20000""")
        srd(a, 16, 8, 9, 4608 * 1152)
        a(f"""s_mul_i32 s36, s31, 576
        s_mul_i32 s39, s33, {16*9216}
        s_add_u32 s36, s36, s39
        s_mul_i32 s37, s30, 9216""")
    def dma0(P):
        a.wait(v="ftab")
        [emit(x) for x in dma_pair(P)]
    loop = "noloop" not in opts
    def zero(part):
        if "mz" in opts:
            if part == 0:
                for q in range(4): a(f"v_mov_b32 v{60+q}, 0")
            blk = [("v", r) for r in range(64, 160, 16)] + [("a", r) for r in (144, 160, 176)] if part == 0 else [("v", r) for r in range(160, 256, 16)] + [("a", r) for r in (96, 112, 128)]
            for k, r in blk: a(f"v_mfma_f32_32x32x16_bf16 {vr(r,16,k)}, v[60:63], v[60:63], 0")
            return
        regs = []
        for t in range(18):
            for q in range(8):
                regs.append(("v", G(t) + q)); k, b = U(t); regs.append((k, b + q))
        for (k, r) in regs:
            late = (k == "v" and r >= 168) or (k == "a" and r < 136)
            if late == (part == 1): a(f"v_mov_b32 v{r}, 0" if k == "v" else f"v_accvgpr_write_b32 a{r}, 0")
    front(setup, dma0, zero)
    o2 = "ord2" in opts
    if o2:
        a(f"s_lshl_b32 s53, s32, 13\ns_add_u32 s53, s53, {C3}")
        poll_start(a, "s53")
        dma0(0)
    tl = "notl" not in opts
    if tl:
        a(f"""v_mov_b32 v31, v24
        v_mov_b32 v14, v25
        s_lshl_b32 s50, s28, 1
        s_add_u32 s50, s50, s33
        s_mul_i32 s50, s50, {2*9216}
        s_mul_i32 s51, s29, 1152
        s_add_u32 s50, s50, s51
        s_add_u32 s50, s50, {opt("tla", 256)*9216 + 3072}
        s_lshl_b32 s51, s28, 2
        s_add_u32 s51, s51, s30
        s_mul_i32 s51, s51, {11*128}
        s_mul_i32 s52, s29, {576*1152}
        s_add_u32 s51, s51, s52""")
    a(f"""s_lshl_b32 s35, s32, 2
    s_add_u32 s35, s35, s30
    s_mul_i32 s43, s35, 1536
    s_mul_i32 s35, s35, 36864
    s_add_u32 s43, s43, {STATS}
    s_mul_i32 s38, s31, {288*1152}
    s_mul_i32 s39, s30, {8*1152}
    s_add_u32 s38, s38, s39
    s_add_u32 s101, s38, 512
    s_and_b32 s39, s31, 1
    s_mul_i32 s100, s39, 640
    s_add_u32 s38, s38, s100
    s_mul_i32 s39, s39, {2*288*1152}
    s_add_u32 s100, s38, {288*1152}
    s_sub_u32 s100, s100, s39
    s_lshl_b32 s40, s30, 10
    s_mov_b32 s47, 0xffff0000
    s_lshl_b32 s53, s32, 13
    s_add_u32 s53, s53, {C3}
    v_mov_b32 v29, v26""")
    if HFRAG: a(f"s_add_u32 s35, s35, {HFRAG}")
    if o2: poll_finish(a, "s53", 12)
    else: poll(a, "s53", 12)
    st("sync3")
    def xload(k):
        r = []
        for h in range(2):
            r.append(("x", f"buffer_load_dwordx4 {vr(XR(k)+4*h,4,XK)}, v15, s[20:23], s35 offen offset:{h*1024} sc1", ("X", k)))
        if "xtwo" in opts: r = r + r
        return r + [("s", "s_add_u32 s35, s35, 2048")]
    for q in range(0 if pn else 6): a(f"buffer_load_dword v{(56,57,58,59,27,28)[q]}, v29, s[20:23], s43 offen offset:{128*q} sc1", vtag="st")
    XA = opt("xa", 2)
    for k in range(3 if XA == 3 else 2): [emit(x) for x in xload(k)]
    if o2: dma0(1)
    if loop: zero(1)
    a.wait(v="st")
    if not pn: a("""v_add_f32 v56, v56, v57
    v_add_f32 v58, v58, v59
    v_add_f32 v27, v27, v28
    v_add_f32 v56, v56, v58
    v_add_f32 v56, v56, v27
    v_mul_f32 v56, 0x3ae38e39, v56
    v_mov_b32 v57, v56
    v_permlane16_swap_b32 v56, v57
    v_fma_f32 v57, -v56, v56, v57
    v_max_f32 v57, 0, v57
    v_add_f32 v57, 0x3727c5ac, v57
    v_rsq_f32 v12, v57
    s_nop 0
    v_mul_f32_e64 v19, -v56, v12
    v_mov_b32 v13, v12
    v_mov_b32 v20, v19
    v_permlane32_swap_b32 v12, v13
    v_permlane32_swap_b32 v19, v20""")
    def norm(k):
        r = []
        if "xtwo" in opts and k < 17: return [("v", f"v_max_f32_e32 v{T0+q%8}, 0, v{T0+q%8}") for q in range(16)]
        if "xnonorm" in opts or pn: return r
        for h in range(2):
            b = XR(k) + 4 * h
            for j in range(4):
                r.append(("v", f"v_lshlrev_b32_e32 v{T0+2*j}, 16, v{b+j}"))
                r.append(("v", f"v_and_b32_e32 v{T0+1+2*j}, s47, v{b+j}"))
            for j in range(8):
                r.append(("v", f"v_fma_f32 v{T0+j}, v{T0+j}, v{12+h}, v{19+h}"))
            for j in range(4):
                r.append(("v", f"v_cvt_pk_bf16_f32 v{b+j}, v{T0+2*j}, v{T0+1+2*j}"))
        return r
    def conv(J):
        r = []
        for h in range(2):
            for e in range(2):
                t = 2 * J + e; g = G(t) + 4 * h; k, u = U(t); u += 4 * h
                for q in range(4):
                    if k == "a": r.append(("v", f"v_accvgpr_read_b32 v{T0+q}, a{u+q}"))
                    r.append(("v", f"v_max_f32_e32 v{g+q}, 0, v{g+q}"))
                for q in range(4):
                    src = f"v{T0+q}" if k == "a" else f"v{u+q}"
                    r.append(("v", f"v_mul_f32_e32 v{g+q}, v{g+q}, {src}"))
                d = G(2 * J) + 4 * h + 2 * e
                for q in range(2):
                    r.append(("v", f"v_cvt_pk_bf16_f32 v{d+q}, v{g+2*q}, v{g+2*q+1}"))
            r.append(("st", f"buffer_store_dwordx4 {vr(G(2*J)+4*h,4)}, v29, s[20:23], s43 offen offset:{h*1024} sc1", ("HS", J)))
            if h: r.append(("s", "s_add_u32 s43, s43, 2048"))
        if "xtwo" in opts:
            if J < 5: r = [x for x in r if x[0] != "v"]
            else: r = [x for x in r if "accvgpr" not in x[1]]
        return r
    def acc2(c, t):
        if c < 2: return ("a", 8 * (4 * c + t))
        if c < 4: return ("v", G(2 * ((c - 2) * 4 + t) + 1))
        return ("v", 208 + 8 * t)
    ecount = [0]
    ORD = {4: 0, 0: 1, 1: 2, 2: 3, 3: 4}
    def epi(c):
        r = []
        for tp in range(2):
            for h in range(2):
                S = 32 + 4 * (ecount[0] % 8); ecount[0] += 1
                for e in range(2):
                    k, b = acc2(c, 2 * tp + e); b += 4 * h
                    if k == "a":
                        for q in range(4): r.append(("v", f"v_accvgpr_read_b32 v{T0+4*e+q}, a{b+q}"))
                        b = T0 + 4 * e
                    for q in range(2): r.append(("v", f"v_cvt_pk_bf16_f32 v{S+2*e+q}, v{b+2*q}, v{b+2*q+1}"))
                r.append(("st", f"buffer_store_dwordx4 {vr(S,4)}, v15, s[20:23], s{(46 if c == 4 else 44)+h} offen offset:{(c%4)*1024 + tp*512} sc1", ("ST", ORD[c])))
        return r
    a.wait(v=("X", 0))
    [emit(x) for x in norm(0)]
    fr = []
    for ks in range(18):
        for t in range(18):
            fr.append((ks, (0, t), "v", G(t), ("a", XR(ks), None) if pn else XR(ks), ks == 0 and not loop))
            k, b = U(t); fr.append((ks, (1, t), k, b, ("a", XR(ks), None) if pn else XR(ks), ks == 0 and not loop))
    for P in range(18, 27):
        for b_, (J, cg) in enumerate(blocks(P)):
            for t in range(4):
                k, b = acc2(cg, t)
                fr.append((P, (b_, t), k, b, G(2 * J) if J < 9 else ("a", 96 + 8 * (J - 9), J - 9), J == 0))
    N = len(fr)
    def reads(i):
        P, (x, t) = fr[i][0], fr[i][1]; f = AF(i)
        if P < 18:
            slot = (2 * P + x) % 8; base = (9 if t % 2 == 0 else 16) + slot // 3
            o = (slot % 3) * UNIT + t * 32; o2 = o + 9216
        else:
            base = 1 + t; o = x * 4096; o2 = o + 2048
        return [f"ds_read_b64_tr_b16 a[{f}:{f+1}], v{base} offset:{o}", f"ds_read_b64_tr_b16 a[{f+2}:{f+3}], v{base} offset:{o2}"]
    s2setup = ["v_accvgpr_read_b32 v0, a236"]
    s2read = [f"v_accvgpr_read_b32 v{1+t}, a{237+t}" for t in range(4)]
    hhsetup = ["v_lshlrev_b32 v29, 4, v30", "s_lshl_b32 s43, s2, 2", "s_add_u32 s43, s43, s30", "s_mul_i32 s43, s43, 18432", f"s_add_u32 s43, s43, {HHX}",
               "s_xor_b32 s52, s2, 8", "s_lshl_b32 s52, s52, 2", "s_add_u32 s52, s52, s30", "s_mul_i32 s52, s52, 18432", f"s_add_u32 s52, s52, {HHX}",
               "s_lshr_b32 s50, s31, 1", "s_lshl_b32 s51, s32, 4", "s_add_u32 s50, s50, s51", "s_lshl_b32 s50, s50, 9", f"s_add_u32 s50, s50, {C5}"]
    redsetup = ["v_accvgpr_read_b32 v15, a244", "v_accvgpr_read_b32 v5, a241", "v_accvgpr_read_b32 v7, a242", "v_accvgpr_read_b32 v31, a243",
                "v_lshrrev_b32 v14, 4, v30", "v_mul_u32_u24 v14, 9216, v14", "v_add_u32 v14, v14, v31",
                "s_lshl_b32 s44, s32, 4", "s_lshl_b32 s45, s30, 2", "s_add_u32 s44, s44, s45", "s_lshl_b32 s44, s44, 4", "s_add_u32 s44, s44, s31",
                "s_mul_i32 s44, s44, 9216", f"s_add_u32 s44, s44, {PART}", "s_add_u32 s46, s44, 4096", f"s_add_u32 s47, s46, {2*147456}",
                "s_and_b32 s45, s31, 1", "s_mul_i32 s45, s45, 5120", "s_add_u32 s44, s44, s45", f"s_add_u32 s45, s44, {2*147456}",
                "s_lshl_b32 s29, s32, 4", "s_add_u32 s29, s29, s31",
                "s_mul_i32 s88, s29, 147456", "s_lshl_b32 s89, s30, 8", "s_add_u32 s88, s88, s89", f"s_add_u32 s88, s88, {PART}",
                "s_add_u32 s89, s88, 73728", "s_add_u32 s90, s88, 14336", "s_add_u32 s91, s89, 14336",
                "s_lshr_b32 s92, s29, 2", "s_mul_i32 s92, s92, 36864", "s_bfe_u32 s93, s29, 0x10001", "s_lshl_b32 s93, s93, 10", "s_add_u32 s92, s92, s93",
                "s_and_b32 s93, s29, 1", "s_lshl_b32 s93, s93, 7", "s_add_u32 s92, s92, s93", "s_lshl_b32 s93, s34, 11", "s_add_u32 s92, s92, s93",
                "s_lshl_b32 s93, s33, 9", "s_add_u32 s92, s92, s93",
                f"s_add_u32 s53, s53, {C4-C3}"]
    if pn:
        redsetup += ["s_lshr_b32 s93, s29, 1", "s_mul_i32 s93, s93, 768", "s_and_b32 s94, s29, 1", "s_lshl_b32 s94, s94, 5", "s_add_u32 s93, s93, s94", f"s_add_u32 s51, s93, {STATS}",
                     "v_and_b32 v12, 7, v30", "v_lshlrev_b32 v12, 2, v12"]
    if HFRAG: redsetup.append(f"s_add_u32 s92, s92, {HFRAG}")
    PL = lambda c, i: (168 + 4 * i) if c == 4 else 16 * c + 4 * i
    HL = lambda pc: 64 + 4 * pc if pc < 8 else 248
    def hload(pc): return [("x", f"buffer_load_dwordx4 a[{HL(pc)}:{HL(pc)+3}], v7, s[20:23], s92 offen sc1", ("H", pc)), ("s", "s_add_u32 s92, s92, 4096")]
    def pload(c):
        r = []
        for i in range(4):
            if c == 4: r += [("s", f"s_add_u32 s94, s88, {i*36864 + 4096}"), ("x", f"buffer_load_dwordx4 a[{PL(c,i)}:{PL(c,i)+3}], v31, s[20:23], s94 offen sc1", ("L", c))]
            else: r.append(("x", f"buffer_load_dwordx4 a[{PL(c,i)}:{PL(c,i)+3}], v14, s[20:23], s{88+i} offen offset:{c*1024} sc1", ("L", c)))
        return r
    def hhload(J): return [("x", f"buffer_load_dwordx4 a[{96+8*J+4*h}:{99+8*J+4*h}], v29, s[20:23], s52 offen offset:{h*1024} sc1", ("HL", J)) for h in range(2)] + [("s", "s_add_u32 s52, s52, 2048")]
    sched = opt("sch", 1); HA = opt("ha", 20)
    HN = opt("hn", 5)
    ev = [("HS", HN - 1, ("s50", 0), 2, HA, HA + 1, [x for J in range(HN) for x in hhload(J)], True)]
    if HN < 9: ev.append(("HS", 8, ("s50", 256), 2, opt("hb", HA + 1), opt("hb", HA + 1) + 1, [x for J in range(HN, 9) for x in hhload(J)], True))
    if sched == 1: gs = [((4,), 25, 26), ((0,), 26, None), ((1, 2, 3), None, None)]
    elif sched == 2: gs = [((4, 0), 26, None), ((1, 2, 3), None, None)]
    elif sched == 3: gs = [((4,), 25, 26), ((0, 1, 2), 27, None), ((3,), None, None)]
    elif sched == 4: gs = [((4,), 24, 25), ((0,), 25, 26), ((1, 2), 27, None), ((3,), None, None)]
    elif sched == 5: gs = [((4, 0), 26, None), ((1, 2), 27, None), ((3,), None, None)]
    elif sched == 6: gs = [((4,), 25, 26), ((0, 1), 27, None), ((2, 3), None, None)]
    elif sched == 7: gs = [((4,), 25, None), ((0, 1, 2), 27, None), ((3,), None, None)]
    elif sched == 8: gs = [((4,), 25, 26), ((0, 1, 2, 3), None, None)]
    elif sched == 9: gs = [((4,), 24, 25), ((0, 1), 27, None), ((2, 3), None, None)]
    for g, (chs, sst, chk) in enumerate(gs):
        ev.append(("ST", max(ORD[c] for c in chs), ("s53", 256 * g), 16, sst, chk, [x for c in chs for x in pload(c)], False))
    covers = lambda e: (lambda t: isinstance(t, tuple) and t[0] == e[0] and t[1] <= e[1])
    slowq = []; lper = opt("lper", 18)
    spins = []
    def sig(g):
        sk = a.lab("sg"); saved = list(a.lg)
        a(f"""s_cmp_lg_u32 s30, 0
        s_cbranch_scc1 {sk}
        s_add_u32 s95, {ev[g][2][0]}, {ev[g][2][1]}
        s_mov_b32 s98, 1
        s_atomic_add s98, s[20:21], s95
        {sk}:""")
        a.lg = saved
    def poll_issue(g):
        sk = a.lab("pi")
        return [("x", f"s_cmp_lg_u32 s30, 0\ns_cbranch_scc1 {sk}\ns_add_u32 s96, {ev[g][2][0]}, {ev[g][2][1]}\ns_mov_b32 s97, 0\ns_atomic_add s97, s[20:21], s96 glc\n{sk}:", ("F", g))]
    def poll_check(g):
        ok = a.lab("ok"); sp = a.lab("spin"); saved = list(a.lg)
        a(f"s_cmp_eq_u32 s30, 0\ns_cbranch_scc1 {sp}\n{ok}:")
        spins.append(f"""{sp}:
        s_mov_b32 s99, 0
        {sp}_l:
        s_waitcnt lgkmcnt(0)
        s_cmp_ge_u32 s97, {ev[g][3]}
        s_cbranch_scc1 {ok}
        s_mov_b32 s97, 0
        s_atomic_add s97, s[20:21], s96 glc
        s_add_u32 s99, s99, 1
        s_cmp_lt_u32 s99, 0x100000
        s_cbranch_scc1 {sp}_l
        s_waitcnt lgkmcnt(0)
        s_branch {ok}""")
    st("pro")
    if opt("prio", 0): a(f"s_setprio {opt('prio', 0)}")
    if o2 and "w1" in opts:
        a.wait(v=lambda t: t == ("P", 0) or (isinstance(t, tuple) and t[0] == "X")); a("s_barrier"); early_p1 = True
    else:
        a("s_waitcnt vmcnt(0)\ns_barrier")
    st("bar0")
    if diag and diag not in ("lite", "lite2"): a("s_waitcnt lgkmcnt(0)")
    for i in range(D):
        for r in reads(i): a(r, ltag=("A", i))
    memq = []; valq = []; pendbar = None; fastq = []
    budget = opt("bud", 2); mper = opt("mper", 4)
    def emitv(it):
        if it[0] == "w": return 1 if a.wait(v=it[1]) else 0
        emit(it); return 1
    marks = {}
    for i in range(N):
        P, xt, k, b, B, first = fr[i]
        s, pos = divmod(i, 36)
        if pos == 0 and s % 4 == 0 and s <= 16: marks[s] = len(a.l)
        if i == 648: st("s1")
        if pos == 0 and s >= 17 and s != 18: st(f"g{s}")
        KS = opt("ks", 0); early_w = None
        if KS:
            for w_ in range(1, 4):
                off = (w_ * KS) if "kh" not in opts else (KS if w_ == 2 else None)
                if off is not None and (i + D + off) % 36 == 0 and i + D + off < N and i + D + off > 0: early_w = (w_, (i + D + off) // 36)
        if early_w:
            sn_ = early_w[1]
            while any(len(x) > 2 and x[2][0] == "P" and x[2][1] <= sn_ for x in memq): emit(memq.pop(0))
            for g, e in enumerate(ev):
                if e[4] == sn_:
                    while any(len(x) > 2 and covers(e)(x[2]) for (x, _) in valq): emitv(valq.pop(0)[0])
        if (i + D) % 36 == 0 and i + D < N:
            sn = (i + D) // 36
            while any(len(x) > 2 and x[2][0] == "P" and x[2][1] <= sn + 1 for x in memq) or (memq and memq[0][0] in "sv"): emit(memq.pop(0))
            pendbar = sn
            if sn > 18: valq = [(("v", f"v_add_u32 v{1+t}, {SLOT if sn % 4 else -3*SLOT}, v{1+t}"), i) for t in range(4)] + valq
        if pos == 0:
            Pn = s + 2; q = []
            if s <= 15 and "xnox" not in opts and XA == 2: q += xload(s + 2)
            if Pn == 18: q += [("v", x) for x in s2setup]
            A3 = opt("a3", 99)
            if s < A3:
                if Pn < 27 and not ("xnodma" in opts and Pn < 18): q += dma_pair(Pn)
            else:
                if s == A3: q += dma_pair(Pn)
                if Pn + 1 < 27: q += dma_pair(Pn + 1)
            if Pn == 18: q += [("v", x) for x in s2read]
            if s <= 15 and XA == 3: q += xload(s + 3)
            if s <= 15 and XA == 4: q += xload(s + 2)
            if s == 16: q += [("s" if x.startswith("s_") else "v", x) for x in hhsetup]
            if tl and s < 16 and s % 4 == 0: q += [("x", "buffer_load_dword a232, v31, s[12:15], s50 offen", ("T", s)), ("s", f"s_add_u32 s50, s50, {128*9216}")]
            if tl and s < 16 and s % 4 == 2: q += [("x", "buffer_load_dword a233, v14, s[16:19], s51 offen", ("T", s)), ("s", f"s_add_u32 s51, s51, {128*11*128}")]
            assert not any(len(x) > 2 and x[2][0] == 'P' for x in memq)
            memq = q + memq + fastq; fastq = []
        if pos == (30 if (pn and "xtwo" not in opts) else 14 if pn else 4) and s + 1 < 18:
            valq += [(("w", ("X", s + 1)), 36 * s + 35)] + [(x, 36 * s + 35) for x in norm(s + 1)]
        if i >= 612 and i < 648 and (i - 612) % 4 == 2 and (i - 612) // 4 >= 1:
            J = (i - 612) // 4 - 1
            valq += [(x, 648 + 4 * NA * J) for x in conv(J)]
        if i == 650: valq += [(x, 648 + 4 * NA * 8) for x in conv(8)]
        if i == 652: valq += [(("v", x), 648 + 36 * 4) for x in redsetup]
        EP = opt("ep", 2)
        if s >= 23 and pos == (EP if s < 25 else 2):
            for c in {1: ((4,), (0,), (1,), (2,)), 2: ((4,), (), (0, 1), (2,)), 3: ((4,), (), (), (0, 1, 2))}[PK][s - 23]: valq += [(x, None) for x in epi(c)]
        if i == opt('hl', N - 1):
            for c in range(9): slowq += hload(c)
            if pn: slowq += [("x", f"buffer_load_dword v{(16,17,18,19,20,13,10)[q]}, v12, s[20:23], s51 offen offset:{128*q+64 if q < 6 else 0} sc1", ("R", q)) for q in range(7)]
        chks = []
        for g, e in enumerate(ev):
            if e[5] is not None and i == 36 * e[5] - D - opt("pl", 16): memq = poll_issue(g) + memq
            if e[5] is not None and pendbar == e[5]:
                while any(len(x) > 2 and x[2] == ("F", g) for x in memq): emit(memq.pop(0))
                chks.append(g)
        if slowq and i % lper == opt("loff", 0):
            while True:
                x = slowq.pop(0); memq.append(x)
                if x[0] == "x" or not slowq: break
        sigs = [g for g, e in enumerate(ev) if pendbar is not None and e[4] == pendbar]
        for g in sigs:
            while any(len(x) > 2 and covers(ev[g])(x[2]) for (x, _) in valq): emitv(valq.pop(0)[0])
        if isinstance(B, tuple) and B[2] is not None:
            while any(len(x) > 2 and x[2] == ("HL", B[2]) for x in memq): emit(memq.pop(0))
            a.wait(v=("HL", B[2]))
        while any(d is not None and d <= i for (_, d) in valq): emitv(valq.pop(0)[0])
        lw = lambda lim: a.wait(l=lambda t: t is not None and t != "SMEM" and t[1] <= lim)
        lw(i)
        f = AF(i)
        rd = reads(i + D) if i + D < N else []
        behind = len(valq) > opt("beh", 60)
        for h in range(2):
            hh = h
            if "xchain" in opts and s < 16 and i % 2 == 1:
                hh = 1 - h; k, b = fr[i - 1][2], fr[i - 1][3]; B = XR(s + 2)
            if "snake" in opts and i % 2 == 1: hh = 1 - h
            C = "0" if first else vr(b + 4 * hh, 4, k)
            a(f"v_mfma_f32_16x16x32_bf16 {vr(b+4*hh,4,k)}, a[{f}:{f+3}], {vr(B[1]+4*hh,4,'a') if isinstance(B, tuple) else vr(B+4*hh,4)}, {C}")
            sc_used = False
            if early_w and h == 0:
                w_, sn_ = early_w; sk = a.lab("eb"); sv = list(a.vm)
                sg_ = [g for g, e in enumerate(ev) if e[4] == sn_]
                a(f"s_cmp_eq_u32 s30, {w_}\ns_cbranch_scc0 {sk}" if "kh" not in opts else f"s_cmp_ge_u32 s30, 2\ns_cbranch_scc0 {sk}")
                a.wait(v=lambda t: t == ("P", sn_) or any(covers(ev[g])(t) for g in sg_))
                a(f"s_barrier\n{sk}:"); a.vm = sv; sc_used = True
            if pendbar is not None:
                sk = None
                if KS:
                    sk = a.lab("mb"); a(f"s_cmp_eq_u32 s30, 0\ns_cbranch_scc0 {sk}" if "kh" not in opts else f"s_cmp_lt_u32 s30, 2\ns_cbranch_scc0 {sk}")
                a.wait(v=lambda t: t == ("P", pendbar) or any(covers(ev[g])(t) for g in sigs))
                for g in chks: poll_check(g)
                a("s_barrier")
                if sk: a(f"{sk}:")
                for g in sigs: sig(g)
                for g in chks:
                    if ev[g][7]: fastq += ev[g][6]
                    else: slowq += ev[g][6]
                pendbar = None; sc_used = True
            if h == 1 and not sc_used: sc_used = lw(i + 1)
            if not sc_used:
                if memq and memq[0][0] in ("s", "m"):
                    emit(memq.pop(0)); sc_used = True
                    if "sc2" in opts and memq and memq[0][0] in ("s", "m"): emit(memq.pop(0))
                elif valq and valq[0][0][0] == "w": sc_used = emitv(valq.pop(0)[0])
                elif valq and valq[0][0][1].startswith("s_"): emitv(valq.pop(0)[0]); sc_used = True
            n = 0
            if rd: a(rd[h], ltag=("A", i + D)); n += 1
            mp = mper if s < 16 else opt("mq", 4)
            if memq and len(memq[0]) > 2 and memq[0][2][0] == "HL": mp = opt("mh", mp)
            if memq and memq[0][0] in ("x", "d") and (2 * i + h) % mp == (opt("mo", 0) if s < 16 else opt("mqo", 0)) % mp:
                emit(memq.pop(0)); n += 1
            elif memq and memq[0][0] == "v":
                emit(memq.pop(0)); n += 1
            while valq and n < budget + (1 if behind else 0) and valq[0][0][0] != "w" and not valq[0][0][1].startswith("s_"):
                n += emitv(valq.pop(0)[0])
    for it in memq: emit(it)
    for it, d in valq: emitv(it)
    tailq = slowq
    if loop:
        body = [[re.sub(r"K(eb|mb)_\d+", r"K\1", x.text) for x in a.l[marks[s]:marks[s + 4]]] for s in (0, 4, 8, 12)]
        assert body[1] == body[2] == body[3], "loop bodies differ"
        pre = []
        if body[0][0] != body[1][0]:
            assert body[0][0].startswith("s_waitcnt lgkmcnt"); pre = [Ins(body[0][0])]; body[0] = body[0][1:]
        assert body[0] == [x for x in body[1] if not (x.startswith("s_waitcnt vmcnt") and x not in body[0])] or \
               [x for x in body[0] if "vmcnt" not in x] == [x for x in body[1] if "vmcnt" not in x]
        lp = a.lab("loop")
        a.l = a.l[:marks[0]] + pre + [Ins("s_mov_b32 s41, 0"), Ins(f".p2align {opt('al', 3)}")] + [Ins("s_nop 0")] * opt("ao", 0) + [Ins(f"{lp}:")] + a.l[marks[4]:marks[8]] + \
              [Ins("s_add_u32 s41, s41, 1"), Ins("s_cmp_lt_u32 s41, 4"), Ins(f"s_cbranch_scc1 {lp}")] + a.l[marks[16]:]
    st("s2")
    srd(a, 12, 10, 11, 2048 * 1152)
    def red(c):
        T = 208 + 4 * c; TH = 228 + 4 * c if pn else T
        for hi in range(1 if c == 4 else 2):
            pc = c + 5 * hi; S = 224 + 4 * hi
            a.wait(v=("H", pc))
            a(f"v_mfma_f32_16x16x32_bf16 v[{TH}:{TH+3}], a[{S}:{S+3}], a[{HL(pc)}:{HL(pc)+3}], {'0' if hi == 0 else f'v[{TH}:{TH+3}]'}")
        a.wait(v=("L", c))
        for i in range(4):
            S = 224 + (4 if (c < 4 and i >= 2) else 0)
            a(f"v_mfma_f32_16x16x32_bf16 v[{T}:{T+3}], a[{S}:{S+3}], a[{PL(c,i)}:{PL(c,i)+3}], {'0' if (pn and i == 0) else f'v[{T}:{T+3}]'}")
    def rowscale():
        a.wait(v=("R", 6))
        a("""v_add_f32 v16, v16, v17
        v_add_f32 v18, v18, v19
        v_add_f32 v20, v20, v13
        v_add_f32 v16, v16, v18
        v_add_f32 v16, v16, v20
        v_mov_b32 v18, v10
        v_mul_f32 v16, 0x3ae38e39, v16
        v_add_f32 v16, 0x3727c5ac, v16
        v_rcp_f32 v16, v16""")
    lds_out = True
    osc = " sc1" if "osc1" in opts else " nt" if "ont" in opts else ""
    OST = 147456 + 1024
    def out(T):
        r = 208 + 4 * T
        if pn:
            for q in (0, 2):
                a(f"v_pk_add_f32 v[{r+20+q}:{r+21+q}], v[{r+20+q}:{r+21+q}], v[18:19] op_sel_hi:[1,0]")
                a(f"v_pk_fma_f32 v[{r+q}:{r+q+1}], v[{r+q}:{r+q+1}], v[16:17], v[{r+20+q}:{r+21+q}] op_sel_hi:[1,0,1]")
        a(f"v_cvt_pk_bf16_f32 v{r}, v{r}, v{r+1}\nv_cvt_pk_bf16_f32 v{r+1}, v{r+2}, v{r+3}")
        if T == 4: a("s_mov_b32 exec_hi, 0")
        if lds_out: a(f"ds_write_b64 v6, v[{r}:{r+1}] offset:{128*T}")
        elif "xnoout" not in opts: a(f"buffer_store_dwordx2 v[{r}:{r+1}], v5, s[12:15], s94 offen offset:{256*T}" + osc)
        if T == 4: a("s_mov_b64 exec, -1")
    def flush_out(part):
        a("s_waitcnt lgkmcnt(0)\ns_barrier")
        regs = (8, 9) if part == 0 else (10,)
        for q, r in enumerate(regs): a(f"ds_read_b128 v[{32+4*(r-8)}:{35+4*(r-8)}], v{r+3}")
        a("s_waitcnt lgkmcnt(0)")
        for q, r in enumerate(regs): a(f"buffer_store_dwordx4 v[{32+4*(r-8)}:{35+4*(r-8)}], v{r}, s[12:15], s43 offen" + osc)
    if pn:
        while any(len(x) > 2 and x[2][0] == "R" for x in tailq): emit(tailq.pop(0))
        rowscale()
    if lds_out:
        a(f"""v_accvgpr_read_b32 v8, a245
        v_accvgpr_read_b32 v9, a246
        v_accvgpr_read_b32 v10, a247
        s_lshl_b32 s93, s34, 6
        s_lshl_b32 s43, s33, 4
        s_add_u32 s93, s93, s43
        s_add_u32 s93, s93, {OST}
        v_add_u32 v6, s93, v5
        s_mul_i32 s93, s30, 2304
        s_mul_i32 s43, s29, {8*1152}
        s_add_u32 s43, s43, s93
        s_add_u32 s93, s93, {OST}
        v_min_u32 v11, 2288, v8
        v_min_u32 v12, 2288, v9
        v_min_u32 v13, 2288, v10
        v_add_u32 v11, s93, v11
        v_add_u32 v12, s93, v12
        v_add_u32 v13, s93, v13""")
    pend = list(tailq)
    def issue(n):
        while pend and n > 0:
            x = pend.pop(0); emit(x)
            if x[0] == "x": n -= 1
    for g, e in enumerate(ev):
        if e[4] == 27:
            a.wait(v=covers(e)); a("s_barrier"); sig(g)
    for x in epi(3): emit(x)
    st("epi")
    a.wait(v=lambda t: isinstance(t, tuple) and t[0] == "ST"); a("s_barrier")
    for g, e in enumerate(ev):
        if e[4] is None: sig(g)
    st("drain")
    rest = [g for g, e in enumerate(ev) if e[5] is None]
    order = [4, 0, 1, 2]; prev = None
    for g in rest:
        nx = sum(1 for x in pend if x[0] == "x")
        issue(nx - opt("keep", 6))
        [emit(x) for x in poll_issue(g)]
        issue(99)
        if g == rest[-1]:
            for _ in range(opt("er", 0)):
                c = order.pop(0); red(c)
                if prev is not None: out(prev)
                prev = c
        poll_check(g); a("s_barrier")
        if g == rest[-1]: st("sync4")
        pend += ev[g][6]
    issue(99)
    for c in order:
        red(c)
        if prev is not None: out(prev)
        prev = c
    out(2); flush_out(0)
    red(3)
    st("loaded")
    out(3); flush_out(1)
    st("end")
    a.spins = spins
```

```python
from common import *
from pk import divu
WOB = 36864
OOB = 0x7fffff00

def p2c_setup(a):
    a("""s_mul_i32 s27, s28, 43
    s_lshr_b32 s27, s27, 8
    s_mul_i32 s26, s27, 6
    s_sub_u32 s26, s28, s26
    s_lshl_b32 s91, s29, 2
    s_add_u32 s27, s27, s91""")
    for i in range(3):
        a(f"v_add_u32 v16, {64*i}, v15")
        divu(a, 17, 16, 12)
        a(f"""v_mul_u32_u24 v18, 12, v17
        v_sub_u32 v18, v16, v18
        v_lshrrev_b32 v19, 3, v17
        v_lshlrev_b32 v19, 1, v19
        v_xor_b32 v18, v18, v19
        v_lshlrev_b32 v18, 4, v18
        v_add_u32 v18, {2048 - 1024*i}, v18
        v_mul_u32_u24 v19, 1152, v17
        v_add_u32 v{7+i}, v19, v18
        v_lshrrev_b32 v19, 1, v17
        v_mul_u32_u24 v19, 18, v19
        v_and_b32 v17, 1, v17
        v_add_u32 v19, v19, v17
        v_mul_u32_u24 v19, 1152, v19
        v_add_u32 v{10+i}, v19, v18""")
    a(f"""v_lshrrev_b32 v16, 4, v15
    v_bfe_u32 v17, v15, 2, 2
    v_lshl_add_u32 v17, v16, 3, v17
    v_mul_u32_u24 v17, 192, v17
    v_and_b32 v18, 3, v15
    v_lshl_add_u32 v17, v18, 3, v17
    v_add_u32 v17, {WOB}, v17
    v_and_b32 v16, 1, v16
    v_lshlrev_b32 v16, 5, v16
    v_add_u32 v170, v17, v16
    v_sub_u32 v171, v17, v16
    v_add_u32 v172, 55296, v170
    v_add_u32 v173, 55296, v171
    v_and_b32 v16, 15, v15
    v_mul_u32_u24 v17, 1152, v16
    v_lshrrev_b32 v18, 4, v15
    v_lshl_add_u32 v174, v18, 3, v17
    v_lshlrev_b32 v17, 8, v18
    v_lshl_add_u32 v175, v16, 2, v17""")
    a(f"s_sub_u32 s44, s44, 2048\ns_subb_u32 s45, s45, 0\ns_add_u32 s46, s46, 2048")

def p2c_wodma(a, rot=True):
    r = []
    r.append(f"""s_mul_i32 s38, s26, 192
    s_mul_i32 s37, s30, {18*1152}
    s_add_u32 s39, s38, s37
    s_mul_i32 s37, s30, {8*18*1152}
    s_add_u32 s38, s38, s37
    s_add_u32 s38, s38, {16*1152}
    s_mul_i32 s40, s30, 3072
    s_add_u32 s40, s40, {WOB}""")
    r0 = []
    step = 4 * 18 * 1152
    if rot:
        r.append(f"s_add_u32 s43, s39, {8*step}\ns_mul_i32 s37, s26, {step}\ns_add_u32 s39, s39, s37\ns_mov_b32 s42, s39")
    for j in range(9):
        q = r0 if j == 0 else r
        q.append(f"s_add_u32 m0, s40, {j*4*3072}")
        if j < 8:
            if rot: q.append(f"s_add_u32 s39, s39, {step}\ns_cmp_ge_u32 s39, s43\ns_cselect_b32 s37, {8*step}, 0\ns_sub_u32 s39, s39, s37" if j else "s_mov_b32 s39, s42")
            else: q.append(f"s_add_u32 s39, s39, {step}" if j else f"s_sub_u32 s39, s39, {7*step}")
            q += [(f"buffer_load_dwordx4 v{7+i}, s[44:47], s39 offen offset:{i*1024} lds", "wo") for i in range(3)]
        else:
            q.append("s_nop 0")
            q += [(f"buffer_load_dwordx4 v{10+i}, s[44:47], s38 offen offset:{i*1024} lds", "wo") for i in range(3)]
    return r, r0

def p2c_xload(a):
    a(f"""s_lshl_b32 s35, s27, 2
    s_add_u32 s35, s35, s30
    s_mul_i32 s36, s35, {16*1152}
    s_mul_i32 s37, s26, 192
    s_add_u32 s36, s36, s37""")
    for t in range(6):
        a(f"buffer_load_dwordx2 v[{208+2*t}:{209+2*t}], v174, s[12:15], s36 offen offset:{32*t}", vtag="xr")

def p2c_prepoll(a, C2):
    a(f"""s_lshr_b32 s53, s27, 1
    s_and_b32 s53, s53, 15
    s_lshl_b32 s53, s53, 13
    s_add_u32 s53, s53, {C2}""")
    poll_start(a, "s53")

def p2c_main(a, st, C2, C3, mid=None, early=None, late=None, pre=False, opts=()):
    O = lambda k: 64 + 4 * k
    if not pre: p2c_prepoll(a, C2)
    a(f"""s_mul_i32 s48, s35, 18432
    s_add_u32 s48, s48, {OFRAG}
    s_add_u32 s38, s48, 16384""")
    a("v_lshlrev_b32 v169, 2, v30")
    a.wait(v="wo")
    st("wo")
    poll_finish(a, "s53", 16)
    st("sync2")
    rot = "rot2" in opts
    if rot: a("s_lshl_b32 s49, s26, 11\ns_add_u32 s48, s48, s49")
    for k in range(16):
        if rot:
            if k % 2 == 0 and k: a("s_add_u32 s48, s48, 2048\ns_cmp_ge_u32 s48, s38\ns_cselect_b32 s49, 16384, 0\ns_sub_u32 s48, s48, s49")
            o = (k % 2) * 1024
        else:
            if k % 4 == 0 and k: a("s_add_u32 s48, s48, 4096")
            o = (k % 4) * 1024
        a(f"buffer_load_dwordx4 {vr(O(k),4,'a')}, v15, s[20:23], s48 offen offset:{o} sc1", vtag=("o", k))
    for e in range(8):
        a(f"buffer_load_dword a{O(16)+e}, v175, s[20:23], s38 offen offset:{(e//4)*1024 + (e%4)*64} sc1", vtag=("o", 16 + e // 4))
    pn = "pn" in opts
    if early: early()
    T = lambda t: 220 + 4 * t
    fr = [(ks, t) for ks in range(18) for t in range(6)]
    NF = 12; D = 10
    AF = lambda i: 4 * (i % NF)
    def reads(i):
        ks, t = fr[i]; f = AF(i); o = (ks % 9) * 6144 + t * 32; ad = 170 + (t % 2) + 2 * (ks // 9)
        return [f"ds_read_b64_tr_b16 a[{f}:{f+1}], v{ad} offset:{o}", f"ds_read_b64_tr_b16 a[{f+2}:{f+3}], v{ad} offset:{o+768}"]
    N = len(fr)
    for i in range(7):
        for r in reads(i): a(r, ltag=("A", i))
    if pn:
        a(f"""s_lshr_b32 s49, s35, 1
        s_lshl_b32 s49, s49, 11
        s_and_b32 s50, s35, 1
        s_lshl_b32 s50, s50, 6
        s_add_u32 s49, s49, s50
        s_add_u32 s49, s49, {PM}
        s_lshl_b32 s50, s35, 6
        s_add_u32 s50, s50, {MX}
        v_lshrrev_b32 v176, 4, v30
        v_and_b32 v177, 15, v30
        v_lshlrev_b32 v177, 2, v177
        v_lshl_add_u32 v176, v176, 7, v177""")
        for j in range(4): a(f"buffer_load_dword v{178+j}, v176, s[20:23], s49 offen offset:{512*j} sc1", vtag="pm")
        a("buffer_load_dword v182, v177, s[20:23], s50 offen sc1", vtag="pm")
    D = 7
    a(f"""s_lshr_b32 s49, s35, 1
    s_mul_i32 s48, s49, 36864
    s_and_b32 s38, s35, 1
    s_lshl_b32 s38, s38, 10
    s_add_u32 s48, s48, s38
    s_mul_i32 s38, s26, 6144
    s_add_u32 s48, s48, s38
    s_mul_i32 s39, s35, 768
    s_lshl_b32 s38, s26, 7
    s_add_u32 s39, s39, s38
    s_add_u32 s39, s39, {STATS}
    s_add_u32 s53, s53, {C3-C2}
    s_mov_b32 s50, 0x3f80
    s_mov_b32 s51, 0x3f800000""")
    if HFRAG: a(f"s_add_u32 s48, s48, {HFRAG}")
    for i in range(N):
        ks, t = fr[i]
        a.wait(v=("o", ks), l=lambda tg: isinstance(tg, tuple) and tg[0] == "A" and tg[1] <= i)
        f = AF(i)
        a(f"v_mfma_f32_16x16x32_bf16 {vr(T(t),4)}, a[{f}:{f+3}], {vr(O(ks),4,'a')}, {'0' if ks == 0 else vr(T(t),4)}")
        if i % 2 == 0: a.wait(l=lambda tg: isinstance(tg, tuple) and tg[0] == "A" and tg[1] <= i + 2)
        if i + D < N and not ("xhalf2" in opts and i % 2):
            for r in reads(i + D): a(r, ltag=("A", i + D))
    st("gemm2")
    a.wait(v="xr")
    for t in range(6):
        for q in range(2):
            a(f"v_dot2_f32_bf16 v{T(t)+2*q}, v{208+2*t+q}, s50, v{T(t)+2*q}\nv_dot2_f32_bf16 v{T(t)+2*q+1}, v{208+2*t+q}, s51, v{T(t)+2*q+1}")
    if pn:
        a.wait(v="pm")
        a("""v_add_f32 v178, v178, v179
        v_add_f32 v180, v180, v181
        v_add_f32 v178, v178, v180
        v_mov_b32 v179, v178
        v_permlane16_swap_b32 v178, v179
        v_add_f32 v178, v178, v179
        v_mov_b32 v179, v178
        v_permlane32_swap_b32 v178, v179
        v_add_f32 v178, v178, v179
        v_add_f32 v178, v178, v182""")
        for q in range(0, 24, 2): a(f"v_pk_add_f32 v[{220+q}:{221+q}], v[{220+q}:{221+q}], v[178:179] op_sel_hi:[1,0] neg_lo:[0,1] neg_hi:[0,1]")
    for tp in range(3):
        S = 244 + 4 * tp
        for e in range(2):
            b = T(2 * tp + e)
            a(f"v_cvt_pk_bf16_f32 v{S+2*e}, v{b}, v{b+1}\nv_cvt_pk_bf16_f32 v{S+2*e+1}, v{b+2}, v{b+3}")
        if tp == 2: a("s_add_u32 s48, s48, 4096")
        a(f"buffer_store_dwordx4 {vr(S,4)}, v15, s[20:23], s48 offen offset:{(tp%2)*2048} sc1", vtag="hs")
    a("s_mov_b32 s50, 0x3f803f80")
    for q in range(12):
        c0 = "0" if q < 2 else f"v{220+2*(q&1)}"; c1 = "0" if q < 2 else f"v{221+2*(q&1)}"
        if not pn: a(f"v_dot2_f32_bf16 v{220+2*(q&1)}, v{244+q}, s50, {c0}")
        a(f"v_dot2_f32_bf16 v{221+2*(q&1)}, v{244+q}, v{244+q}, {c1}")
    if pn: a("v_mul_f32 v220, 0.5, v178\nv_mul_f32 v220, 0.5, v220\nv_mov_b32 v222, 0")
    a(f"""v_add_f32 v220, v220, v222
    v_add_f32 v221, v221, v223
    v_permlane16_swap_b32 v220, v221
    v_add_f32 v220, v220, v221
    v_mov_b32 v221, v220
    v_permlane32_swap_b32 v220, v221
    v_add_f32 v220, v220, v221
    s_mov_b32 exec_hi, 0
    buffer_store_dword v220, v169, s[20:23], s39 offen sc1
    s_mov_b64 exec, -1""", vtag="hs")
    if mid:
        a("s_barrier"); mid()
    a.wait(v="hs"); a("s_barrier")
    st("hst")
    signal(a, "s53")
    if late: late()
```

```python
import sys, json
from common import *
from pk import divu
import ffn17, ffn18
from p2c import p2c_wodma, p2c_xload, p2c_main, p2c_prepoll, WOB
from pk2 import touch3

LOG2E = 0x3fb8aa3b
SP = 147456; MOFF = SP; KVL = SP + 6144; ZERO = KVL + 3840; STX = SP + 10240
KVS = 2816; QS = 1280; KVB = 36 * QS; KVR = 9 * KVS; QR = 9 * QS
C1, C0 = FLAGS, FLAGS + 4096
FL2 = FLAGS + 8192
C2, C3, C4, C5 = FL2, FL2 + 256, FL2 + 512, FL2 + 4096
PB = 1024
OOB = 0x7fffff00

def softmax16(a, P, E, vmask):
    for b in range(2):
        p = P[b]
        a(f"v_max3_f32 v{16+b}, v{p}, v{p+1}, v{p+2}\nv_min3_f32 v{18+b}, v{p}, v{p+1}, v{p+2}")
    for i in (3, 5, 7):
        for b in range(2):
            p = P[b]
            a(f"v_max3_f32 v{16+b}, v{16+b}, v{p+i}, v{p+i+1}\nv_min3_f32 v{18+b}, v{18+b}, v{p+i}, v{p+i+1}")
    for b in range(2):
        p = P[b]
        a(f"v_max_f32 v{16+b}, v{16+b}, v{p+9}\nv_min_f32 v{18+b}, v{18+b}, v{p+9}")
    a("""v_permlane16_swap_b32 v16, v17
    v_permlane16_swap_b32 v18, v19
    v_max_f32 v16, v16, v17
    v_min_f32 v18, v18, v19
    v_mul_f32 v20, s48, v16
    v_mul_f32 v24, s48, v18
    v_mov_b32 v22, v20
    v_mov_b32 v26, v24
    v_permlane16_swap_b32 v20, v22
    v_permlane16_swap_b32 v24, v26""")
    for b in range(2):
        for i in range(0, 10, 2):
            p = P[b] + i; e = E[b] + i
            a(f"v_pk_fma_f32 v[{e}:{e+1}], v[{p}:{p+1}], s[48:49], v[{24+2*b}:{25+2*b}] op_sel_hi:[1,0,0] neg_lo:[1,0,0] neg_hi:[1,0,0]")
            a(f"v_pk_fma_f32 v[{p}:{p+1}], v[{p}:{p+1}], s[48:49], v[{20+2*b}:{21+2*b}] op_sel_hi:[1,0,0] neg_lo:[0,0,1] neg_hi:[0,0,1]")
    for b in range(2):
        for i in range(10): a(f"v_exp_f32 v{P[b]+i}, v{P[b]+i}\nv_exp_f32 v{E[b]+i}, v{E[b]+i}")
    sets = [P[0], P[1], E[0], E[1]]
    for s in sets: a(f"v_pk_mul_f32 v[{s+8}:{s+9}], v[{s+8}:{s+9}], v[{vmask}:{vmask+1}] op_sel_hi:[1,0]")
    for k, s in enumerate(sets): a(f"v_pk_add_f32 v[{16+2*k}:{17+2*k}], v[{s}:{s+1}], v[{s+2}:{s+3}]")
    for k, s in enumerate(sets): a(f"v_pk_add_f32 v[{24+2*k}:{25+2*k}], v[{s+4}:{s+5}], v[{s+6}:{s+7}]")
    for k, s in enumerate(sets): a(f"v_pk_add_f32 v[{16+2*k}:{17+2*k}], v[{16+2*k}:{17+2*k}], v[{s+8}:{s+9}]")
    for k in range(4): a(f"v_pk_add_f32 v[{16+2*k}:{17+2*k}], v[{16+2*k}:{17+2*k}], v[{24+2*k}:{25+2*k}]")
    for k in range(4): a(f"v_add_f32 v{16+2*k}, v{16+2*k}, v{17+2*k}")
    a("""v_permlane16_swap_b32 v16, v18
    v_permlane16_swap_b32 v20, v22
    v_add_f32 v16, v16, v18
    v_add_f32 v20, v20, v22
    v_rcp_f32 v16, v16
    v_rcp_f32 v20, v20
    s_nop 0
    v_mov_b32 v18, v16
    v_mov_b32 v22, v20
    v_permlane16_swap_b32 v16, v18
    v_permlane16_swap_b32 v20, v22""")
    for k, s in enumerate(sets):
        for i in range(0, 10, 2): a(f"v_pk_mul_f32 v[{s+i}:{s+i+1}], v[{s+i}:{s+i+1}], v[{16+2*k}:{17+2*k}] op_sel_hi:[1,0]")

def gen(diag, opts):
    a = A("K"); st = Stamps(a, diag, 0); tb = Table("K_tab")
    pn = "pn" in opts
    opt = lambda k, d: next((int(o[len(k):]) for o in reversed(opts) if re.fullmatch(k + r'\d+', o)), d)
    X = lambda k: 64 + 4 * k
    K0, K1, V0, V1, EE = 48, 56, 64, 72, 80
    B0, B1 = 32, 40
    P = (88, 100); E = (140, 152); Z = (176, 188); VP = 200
    a("s_cmp_ge_u32 s2, 256\ns_cbranch_scc1 K_end")
    a("""s_load_dwordx4 s[4:7], s[0:1], 0
    s_load_dwordx4 s[8:11], s[0:1], 16
    s_load_dwordx4 s[88:91], s[0:1], 72""")
    st("entry")
    code_prefetch(a, "K_start", "K_tab_end", 16, "a[0:2]", wide=True)
    a("K_start:")
    a("""v_lshrrev_b32 v16, 6, v0
    v_and_b32 v15, 63, v0
    v_mov_b32 v14, v0
    v_readfirstlane_b32 s30, v16
    s_and_b32 s31, s2, 3
    s_lshl_b32 s31, s31, 2
    s_bfe_u32 s33, s2, 0x20003
    s_add_u32 s32, s31, s33
    s_bfe_u32 s31, s2, 0x10002
    s_lshl_b32 s31, s31, 3
    s_lshr_b32 s33, s2, 5
    s_add_u32 s31, s31, s33
    s_lshr_b32 s28, s2, 3
    s_and_b32 s29, s2, 7""")
    a(f"""v_and_b32 v16, 7, v15
    v_lshrrev_b32 v17, 3, v15
    v_mul_u32_u24 v13, 1152, v16
    v_lshl_add_u32 v13, v17, 4, v13
    v_lshlrev_b32 v5, 4, v15
    s_lshl_b32 s36, s32, 4
    s_add_u32 s36, s36, s31
    s_mul_i32 s36, s36, {8*1152}
    s_lshl_b32 s37, s30, 7
    s_add_u32 s36, s36, s37
    s_cmp_eq_u32 s30, 0
    s_cselect_b32 s37, 0, {OOB}
    s_add_u32 s37, s37, s36
    s_mul_i32 s34, s30, {KVR}
    s_add_u32 s34, s34, {KVB}
    s_lshl_b32 s35, s32, 2
    s_add_u32 s35, s35, s30""")
    a("s_waitcnt lgkmcnt(0)")
    srd(a, 12, 4, 5, 2048 * 1152)
    srd(a, 20, 90, 91, WS_BYTES)
    sk = a.lab("noinit"); saved = list(a.vm)
    a(f"""s_lshl_b32 s33, s2, 2
    s_add_u32 s33, s33, s30
    s_cmp_lg_u32 s33, 515
    s_cbranch_scc1 {sk}
    v_lshlrev_b32 v16, 8, v15
    v_mov_b32 v17, 0
    s_mov_b32 s38, {FLAGS}
    s_mov_b32 exec_hi, 0
    buffer_store_dword v17, v16, s[20:23], s38 offen sc1
    s_mov_b32 exec_hi, -1""")
    a(f"{sk}:")
    a.vm = saved
    a("""buffer_load_dwordx4 v[160:163], v13, s[12:15], s36 offen
    buffer_load_dwordx4 v[164:167], v13, s[12:15], s36 offen offset:512
    buffer_load_dwordx4 v[168:171], v13, s[12:15], s37 offen offset:1024""", vtag="x8")
    srd(a, 24, 88, 89, 256)
    if "fine" not in opts: st("start")
    for i in range(3):
        a(f"v_add_u32 v16, {64*i}, v15")
        divu(a, 17, 16, 11)
        a(f"""v_mul_u32_u24 v18, 11, v17
        v_sub_u32 v18, v16, v18
        v_and_b32 v19, 8, v17
        v_and_b32 v20, 1, v17
        v_lshl_add_u32 v19, v20, 2, v19
        v_bfe_u32 v17, v17, 1, 2
        v_add_u32 v17, v17, v19
        v_mul_u32_u24 v17, 3456, v17
        v_lshl_add_u32 v17, v18, 4, v17
        v_mov_b32 v19, {1152 + 2048 - i*1024}
        v_mov_b32 v16, {2304 - 80 + 2048 - i*1024}
        v_cmp_lt_u32 vcc, 4, v18
        v_mov_b32 v20, {2304 + 36 - 128 + 2048 - i*1024}
        v_cmp_lt_u32 s[38:39], 7, v18
        v_cndmask_b32 v19, v19, v16, vcc
        v_cmp_eq_u32 vcc, 4, v18
        v_cndmask_b32_e64 v19, v19, v20, s[38:39]
        v_cmp_eq_u32 s[38:39], 7, v18
        v_cndmask_b32_e64 v16, 0, 8, vcc
        v_cmp_eq_u32 vcc, 10, v18
        v_cndmask_b32_e64 v16, v16, 12, s[38:39]
        v_add_u32 v{i}, v17, v19
        v_cndmask_b32_e64 v16, v16, 12, vcc
        v_sub_u32 v{i}, v{i}, v16""")
    a(f"""s_sub_u32 s16, s6, 2048
    s_subb_u32 s17, s7, 0
    s_mov_b32 s18, {576*3456+2048}
    s_mov_b32 s19, 0x20000""")
    if "twq" in opts:
        nseg = opt("tseg", 2)
        for q in range(1 if nseg == 2 else 2):
            a(f"""v_add_u32 v18, {256*q}, v14
            v_mul_u32_u24 v16, {65536//(5*nseg)+1}, v18
            v_lshrrev_b32 v16, 16, v16
            v_mul_u32_u24 v17, {5*nseg}, v16
            v_sub_u32 v17, v18, v17
            v_mul_u32_u24 v19, 13108, v17
            v_lshrrev_b32 v19, 16, v19
            v_lshl_add_u32 v17, v19, 2, v17
            v_mul_u32_u24 v16, 3456, v16
            v_lshl_add_u32 v16, v17, 7, v16
            v_mov_b32 v17, {OOB}
            v_cmp_gt_u32 vcc, {18*5*nseg}, v18
            s_mul_i32 s37, s28, {18*3456}
            s_lshr_b32 s38, s29, 2
            s_lshl_b32 s38, s38, 9
            s_add_u32 s37, s37, s38
            s_add_u32 s37, s37, {2048 + (1152 if nseg == 2 else 0)}
            v_cndmask_b32 v16, v17, v16, vcc""")
            a(f"buffer_load_dword a{4+q}, v16, s[16:19], s37 offen", vtag="touch")
    srd(a, 40, 8, 9, 32 * 648)
    if "mearly" in opts:
        a(f"""v_bfe_u32 v16, v15, 3, 2
        v_bfe_u32 v17, v15, 1, 1
        v_and_b32 v18, 1, v15
        v_mul_u32_u24 v19, 5, v17
        v_lshl_add_u32 v19, v16, 1, v19
        v_add_u32 v19, v19, v18
        v_lshlrev_b32 v20, 2, v17
        v_add_u32 v20, 4, v20
        v_cmp_eq_u32 vcc, 2, v16
        v_lshl_add_u32 v16, v16, 1, v18
        v_lshrrev_b32 v21, 5, v15
        v_cndmask_b32 v19, v19, v20, vcc
        v_mul_u32_u24 v21, 9, v21
        v_add_lshl_u32 v19, v19, v21, 2
        v_mov_b32 v22, {OOB}
        v_cmp_gt_u32 vcc, 5, v16
        v_bfe_u32 v17, v15, 2, 1
        s_mul_i32 s38, s30, 6
        v_cndmask_b32 v19, v22, v19, vcc
        v_cmp_eq_u32 vcc, 0, v17
        s_mul_i32 s39, s31, 1296
        s_nop 0
        v_cndmask_b32 v20, v22, v19, vcc
        v_cndmask_b32 v21, v19, v22, vcc""")
        for i in range(6):
            a(f"""s_add_u32 s37, s38, {i}
            s_lshl_b32 s96, s37, 8
            s_add_u32 m0, s96, {MOFF}
            s_cmp_lt_u32 s37, 9
            s_cselect_b64 vcc, -1, 0
            s_mul_i32 s96, s37, 72
            s_add_u32 s96, s96, s39
            v_cndmask_b32 v16, v21, v20, vcc
            s_cmp_ge_u32 s37, 18
            s_cselect_b32 s96, 0x100000, s96""")
            a("buffer_load_dword v16, s[40:43], s96 offen lds", vtag="wphi")
    a(f"""s_sub_u32 s44, s10, 2048
    s_subb_u32 s45, s11, 0
    s_mov_b32 s46, {576*1152+2048}
    s_mov_b32 s47, 0x20000""")
    if pn:
        a(f"""s_mul_i32 s38, s31, 36
        s_add_u32 s38, s38, s35
        s_lshl_b32 s54, s38, 2
        s_add_u32 s54, s54, {WM}
        s_mul_i32 s38, s38, 1152
        s_add_u32 s38, s38, 2048
        s_cmp_lt_u32 s32, 9
        s_cselect_b32 s39, 0, {OOB}
        s_add_u32 s38, s38, s39
        s_add_u32 s54, s54, s39""")
        a("s_mov_b32 s55, s38")
        if "wrl" not in opts:
            a("""buffer_load_dwordx4 v[220:223], v5, s[44:47], s38 offen
            v_mov_b32 v224, 0
            v_mov_b32 v225, 0
            v_mov_b32 v226, 0
            v_mov_b32 v227, 0
            s_mov_b64 exec, 0xff
            buffer_load_dwordx4 v[224:227], v5, s[44:47], s38 offen offset:1024
            s_mov_b64 exec, -1""", vtag="wrow")
    a("s_load_dwordx8 s[4:11], s[0:1], 40")
    tb.srd(a, 88)
    a("""s_and_b32 s37, s32, 3
    s_lshl_b32 s37, s37, 1
    s_and_b32 s99, s31, 7
    s_add_u32 s99, s99, s37
    s_cmp_ge_u32 s99, 9
    s_cselect_b32 s37, 9, 0
    s_sub_u32 s99, s99, s37""")
    a(f"""s_mul_i32 s101, s30, {16*3456}
    s_mul_i32 s37, s31, 72
    s_add_u32 s101, s101, s37
    s_add_u32 s100, s101, {576*3456}
    s_mul_i32 s37, s99, {64*3456}
    s_add_u32 s101, s101, s37
    s_mov_b32 s51, s101""")
    def em(x):
        if isinstance(x, tuple) and x[1] == "qwait": a.wait(v="tab2")
        elif isinstance(x, tuple): a(x[0], vtag=x[1])
        else: a(x)
    def kvdma(j):
        r = [f"s_add_u32 m0, s34, {j*KVS}", f"s_add_u32 s101, s101, {64*3456}\ns_cmp_ge_u32 s101, s100\ns_cselect_b32 s37, {576*3456}, 0\ns_sub_u32 s101, s101, s37" if j else "s_nop 0"]
        r += [(f"buffer_load_dwordx4 v{i}, s[16:19], s101 offen offset:{i*1024} lds", ("w", j)) for i in range(2)]
        r += ["s_mov_b32 exec_hi, 0xffff", (f"buffer_load_dwordx4 v2, s[16:19], s101 offen offset:2048 lds\ns_mov_b32 exec_hi, -1", ("w", j))]
        return r
    NK0 = opt("nka", 2); NK2 = opt("nkc", 7)
    if NK0: a("s_barrier")
    for j in range(NK0): [em(x) for x in kvdma(j)]
    a(f"""s_mov_b32 s50, 0x3f803f80
    v_and_b32 v16, 7, v15
    v_lshrrev_b32 v17, 5, v15
    v_lshlrev_b32 v18, 4, v16
    v_lshl_add_u32 v19, v17, 7, v18
    v_lshl_add_u32 v6, v17, 11, v18
    v_bfe_u32 v17, v15, 3, 2
    v_lshl_add_u32 v6, v17, 8, v6
    s_lshl_b32 s37, s30, 2
    s_add_u32 s37, s37, {STX}
    v_add_u32 v19, s37, v19
    v_add_u32 v18, {STX}, v18""")
    a(f"""s_lshr_b32 s36, s31, 2
    s_lshl_b32 s37, s32, 2
    s_add_u32 s36, s36, s37
    s_mul_i32 s36, s36, 36864
    s_bfe_u32 s37, s31, 0x10001
    s_lshl_b32 s37, s37, 10
    s_add_u32 s36, s36, s37
    s_and_b32 s37, s31, 1
    s_lshl_b32 s37, s37, 7
    s_add_u32 s36, s36, s37
    s_lshl_b32 s37, s30, 12
    s_add_u32 s36, s36, s37
    s_add_u32 s36, s36, {XFRAG}
    s_add_u32 s38, s36, 16384
    s_cmp_eq_u32 s30, 0
    s_cselect_b32 s39, 0, {OOB}
    s_add_u32 s39, s39, s38
    s_add_u32 s39, s39, 16384
    s_lshl_b32 s53, s32, 8
    s_add_u32 s53, s53, {C0}""")
    a.wait(v="x8")
    sk = a.lab("noflag"); saved = list(a.vm)
    a(f"""s_cmp_lg_u32 s33, 515
    s_cbranch_scc1 {sk}
    v_mov_b32 v16, 1
    v_mov_b32 v17, 0
    s_mov_b64 exec, 1
    buffer_store_dword v16, v17, s[24:27], 0 offen sc1
    s_mov_b64 exec, -1
    {sk}:""")
    a.vm = saved
    if "fine" not in opts: st("x8")
    for j in range(12):
        c0 = "0" if j < 2 else f"v{24+(j&1)}"; c1 = "0" if j < 2 else f"v{26+(j&1)}"
        a(f"v_dot2_f32_bf16 v{24+(j&1)}, v{160+j}, s50, {c0}\nv_dot2_f32_bf16 v{26+(j&1)}, v{160+j}, v{160+j}, {c1}")
    a("""v_add_f32 v24, v24, v25
    v_add_f32 v26, v26, v27
    v_permlane32_swap_b32 v24, v26
    v_add_f32 v24, v24, v26
    v_mov_b32 v25, v24
    v_permlane16_swap_b32 v24, v25
    v_add_f32 v24, v24, v25
    v_add_f32_dpp v24, v24, v24 row_ror:8 row_mask:0xf bank_mask:0xf
    s_mov_b32 s50, 0xffff0000
    ds_write_b32 v19, v24""")
    for k in range(3):
        for j in range(4): a(f"v_lshlrev_b32_e32 v{176+8*k+2*j}, 16, v{160+4*k+j}\nv_and_b32_e32 v{177+8*k+2*j}, s50, v{160+4*k+j}")
    a("""s_waitcnt lgkmcnt(0)
    s_barrier
    ds_read_b128 v[24:27], v18
    ds_read_b128 v[28:31], v18 offset:128
    s_waitcnt lgkmcnt(0)
    v_pk_add_f32 v[24:25], v[24:25], v[26:27]
    v_pk_add_f32 v[28:29], v[28:29], v[30:31]
    v_add_f32 v24, v24, v25
    v_add_f32 v26, v28, v29
    v_mul_f32 v24, 0x3ae38e39, v24
    v_mul_f32 v26, 0x3ae38e39, v26
    v_fma_f32 v26, -v24, v24, v26
    v_max_f32 v26, 0, v26
    v_add_f32 v26, 0x3727c5ac, v26
    v_rsq_f32 v12, v26
    s_nop 0
    v_mul_f32_e64 v13, -v24, v12""")
    if pn: a("v_mov_b32 v228, v24")
    for k, so in ((0, "s36"), (1, "s38"), (2, "s39")):
        b_ = 160 + 4 * k; u = 176 + 8 * k
        for j in range(4): a(f"v_pk_fma_f32 v[{u+2*j}:{u+2*j+1}], v[{u+2*j}:{u+2*j+1}], v[12:13], v[12:13] op_sel:[0,0,1] op_sel_hi:[1,0,1]")
        for j in range(4): a(f"v_cvt_pk_bf16_f32 v{b_+j}, v{u+2*j}, v{u+2*j+1}")
        a(f"buffer_store_dwordx4 {vr(b_,4)}, v6, s[20:23], {so} offen sc1", vtag="xs")
    aINI = 31
    a(f"""v_lshrrev_b32 v16, 3, v15
    v_lshlrev_b32 v16, 8, v16
    v_and_b32 v17, 7, v15
    v_lshl_add_u32 v16, v17, 4, v16
    v_mov_b32 v20, 0
    v_mov_b32 v21, 0
    v_mov_b32 v22, 0
    v_mov_b32 v23, 0
    s_lshl_b32 s37, s32, 4
    s_add_u32 s37, s37, s31
    s_lshl_b32 s37, s37, 9
    s_add_u32 s37, s37, {FL2}
    s_cmp_eq_u32 s30, 1
    s_cselect_b32 exec_lo, 0xffff, 0
    s_cbranch_scc0 K_nozero
    s_mov_b32 exec_hi, 0""")
    saved = list(a.vm)
    a("buffer_store_dwordx4 v[20:23], v16, s[20:23], s37 offen sc1\nK_nozero:\ns_mov_b64 exec, -1")
    a.vm = saved
    a(f"v_mov_b32 v16, 0\nbuffer_load_dword v{aINI}, v16, s[24:27], 0 offen sc1", vtag="xs")
    st("ln")
    g_ = lambda l: l >> 4
    r_ = lambda l: (l >> 2) & 3
    c_ = lambda l: l & 3
    n_ = lambda l: l & 15
    pos = lambda l: 8 * (g_(l) & 1) + 2 * r_(l)
    row_of = lambda p: 8 * (p >> 3) + 4 * (p & 1) + ((p >> 1) & 3)
    kvb = lambda l: KVB + (g_(l) >> 1) * KVR + pos(l) * 176
    def qsrc(i):
        def f(l):
            p = 64 * i + l; ps, pc = divmod(p, 5)
            return row_of(ps & 15) * 3456 + pc * 16 - (8 if pc == 4 else 0) + 2048 - 1024 * i
        return f
    def msrc(head):
        def f(l):
            u = l & 31; p = u >> 3; gp = (u >> 1) & 3; pair = u & 1; half = gp & 1
            if p > 2 or (p == 2 and pair) or gp >> 1 != head: return OOB
            fp = 5 * half + 2 * p + pair if p < 2 else (4 if half == 0 else 8)
            return ((l >> 5) * 9 + fp) * 4
        return f
    def nrd(p2):
        def f(l):
            i = n_(l); g2 = i >> 2; r = i & 3; gp = g_(l)
            if g2 >> 1 != gp >> 1 or (p2 and r == 3): return ZERO
            d = (16 + r) if p2 else 8 * (g2 & 1) + r
            return KVL + (gp >> 1) * 1920 + d * 96 + (gp & 1) * 48
        return f
    def kwr(tile):
        def f(l):
            gam = 32 * tile + 16 * (g_(l) >> 1) + n_(l); e = g_(l) & 1
            if gam < 40: hf, d = divmod(gam, 20); q = 2 * e + hf
            elif gam < 56: d = 2 * (gam - 40) + e; q = 4
            else: d = 99; q = 0
            if d >= 19: return 0x40000000
            return KVL + d * 96 + (q // 3) * 48 + (q % 3) * 8
        return f
    sel = lambda hi, j: (lambda l: (0x3f80 if n_(l) == 8 * hi + 2 * j else 0) | (0x3f800000 if n_(l) == 8 * hi + 2 * j + 1 else 0))
    def wosrc(i, extra):
        def f(l):
            p = 64 * i + l; row, pc = divmod(p, 12); pc ^= 2 * (row >> 3)
            srow = (row >> 1) * 18 + (row & 1) if extra else row
            return srow * 1152 + pc * 16 + 2048 - 1024 * i
        return f
    word = lambda l: WOB + (8 * g_(l) + r_(l)) * 192 + 8 * c_(l)
    def touch9(stride, n, w):
        return lambda l: ((64 * w + l) // 9) * stride + ((64 * w + l) % 9) * 128 if 64 * w + l < n else OOB
    aT, aTE, aQ, aQE, aM = 112, 114, 116, 117, 118
    aMS0 = 120; aZW, aZV, aZX = 122, 123, 124; aZA, aZB = 125, 127
    aP4, aP2, aPL, aPL3 = 129, 130, 131, 132; aN0, aN2, aKA, aKB = 133, 134, 135, 136; aMK, aOX = 138, 137
    zrd = lambda l: KVB + (8 * (l >> 5) + r_(l)) * 144 + (4 * ((l >> 4) & 1) + c_(l)) * 8
    T = "tab"
    tl = [tb.load(112, [lambda l: kvb(l) + 8 * c_(l), lambda l: kvb(l) + 8 * c_(l) + 2 * KVR,
                        lambda l: kvb(l) + (72, 120, 168, 72)[c_(l)], lambda l: kvb(l) + (72, 120, 168, 72)[c_(l)] + 2 * KVR], 5, 88),
          tb.load(116, [lambda l: (g_(l) >> 1) * QR + pos(l) * 80 + 8 * c_(l), lambda l: (g_(l) >> 1) * QR + pos(l) * 80 + 72,
                        lambda l: MOFF + (4 * g_(l) + r_(l)) * 128 + 8 * c_(l), lambda l: nrd(0)(l) + (0 if nrd(0)(l) == ZERO else 384)], 5, 88),
          tb.load(120, [msrc(0), msrc(1), lambda l: (g_(l) >> 1) * 4608 + n_(l) * 144 + (g_(l) & 1) * 24, lambda l: n_(l) * 144 + 96 + 8 * g_(l)], 5, 88),
          tb.load(124, [lambda l: (g_(l) - 1) * 4608 + n_(l) * 144 + 128 if g_(l) in (1, 2) else 0x40000000, zrd, lambda l: zrd(l) + 2 * KVR, lambda l: zrd(l) + 96], 5, 88),
          tb.load(128, [lambda l: zrd(l) + 96 + 2 * KVR, lambda l: (l - 12 * (l >> 5)) * 16, lambda l: 640 + (l & 31) * 8, lambda l: g_(l) * 4 * PB + n_(l) * 16], 5, 88),
          tb.load(132, [lambda l: g_(l) * 4 * PB + n_(l) * 16 if n_(l) < 8 else OOB, nrd(0), nrd(1), kwr(0)], 5, 88),
          tb.load(136, [kwr(1), lambda l: 16384 + (g_(l) >> 1) * 64 + n_(l) * 4 if g_(l) % 2 == 0 else OOB, lambda l: 0 if g_(l) & 1 else 0x3f800000, lambda l: 0], 5, 88),
          tb.load(164, [qsrc(0), qsrc(1), lambda l: ((g_(l) >> 1) * 18 + (g_(l) & 1) * 8) * 4, lambda l: ((g_(l) >> 1) * 18 + 16) * 4 if g_(l) % 2 == 0 else OOB], 5, 88),
          tb.load(8, [wosrc(1, 0), wosrc(2, 0), wosrc(0, 1), wosrc(1, 1)], 5, 88),
          tb.load(168, [wosrc(0, 0), wosrc(2, 1), lambda l: word(l) + 32 * (g_(l) & 1), lambda l: word(l) - 32 * (g_(l) & 1)], 5, 88),
          tb.load(172, [lambda l: word(l) + 32 * (g_(l) & 1) + 55296, lambda l: word(l) - 32 * (g_(l) & 1) + 55296, lambda l: n_(l) * 1152 + 8 * g_(l), lambda l: 256 * g_(l) + 4 * n_(l)], 5, 88),
          tb.load(232, [lambda l: l * 128, lambda l: l * 128 if l < 9 else OOB, lambda l: (l // 9) * 9216 + (l % 9) * 128 if l < 18 else OOB], 5, 88),
          tb.load(224, [sel(0, j) for j in range(4)], 5, 88, "a"),
          tb.load(228, [sel(1, j) for j in range(4)], 5, 88, "a")]
    a(f"""v_mov_b32 v24, 0
    v_mov_b32 v25, 0
    v_mov_b32 v26, 0
    v_mov_b32 v27, 0
    v_lshlrev_b32 v16, 4, v14
    v_add_u32 v16, {KVL}, v16
    ds_write_b128 v16, v[24:27]
    s_mov_b32 s48, {LOG2E}
    s_mov_b32 s49, {LOG2E}
    s_lshl_b32 s38, s31, 6
    s_add_u32 s38, s38, s30
    s_mul_i32 s52, s38, {PB}
    s_add_u32 s52, s52, {KVP}""")
    if not pn: a("s_mov_b32 s54, 0xfffff\ns_mov_b32 s55, 0xfffff")
    for q in range(6): a(f"v_accvgpr_write_b32 a{246+4*(q//2)+(q%2)}, 0")
    for q in (5, 11): a(f"v_mov_b32 v{Z[0]+q}, 0\nv_mov_b32 v{Z[1]+q}, 0")
    for b_ in range(2): a(f"v_mov_b32 v{B1+4*b_+2}, 0\nv_mov_b32 v{B1+4*b_+3}, 0\nv_mov_b32 v{VP+9+2*b_}, 0x3f80")
    def touch_wo():
        if "ttab" in opts:
            a(f"""s_lshl_b32 s96, s28, 2
            s_add_u32 s96, s96, s30
            s_mul_i32 s96, s96, {41*128}
            s_add_u32 s96, s96, 2048
            s_mov_b32 exec_hi, 0x1ff""")
            a("buffer_load_dword a208, v232, s[44:47], s96 offen\ns_mov_b32 exec_hi, -1", vtag="touch")
            return
        a(f"""v_mul_u32_u24 v16, 7282, v14
        v_lshrrev_b32 v16, 16, v16
        v_mul_u32_u24 v17, 9, v16
        v_sub_u32 v17, v14, v17
        v_mul_u32_u24 v16, 1152, v16
        v_lshl_add_u32 v16, v17, 7, v16
        v_mov_b32 v17, {OOB}
        v_cmp_gt_u32 vcc, 162, v14
        s_mul_i32 s96, s28, {18*1152}
        s_add_u32 s96, s96, 2048
        v_cndmask_b32 v16, v17, v16, vcc""")
        a(f"buffer_load_dword a208, v16, s[44:47], s96 offen", vtag="touch")
    def touch_gu(rows):
        n = rows // 64
        if "ttab" in opts and n == 1:
            a(f"""s_cmp_lt_u32 s30, 2
            s_cselect_b32 s92, s4, s6
            s_cselect_b32 s93, s5, s7
            s_mov_b32 s94, {576*9216}
            s_mov_b32 s95, 0x20000
            s_lshl_b32 s96, s28, 1
            s_and_b32 s97, s30, 1
            s_add_u32 s96, s96, s97
            s_mul_i32 s96, s96, 9216
            s_mul_i32 s97, s29, 1152
            s_add_u32 s96, s96, s97""")
            a(f"buffer_load_dword a209, v233, s[92:95], s96 offen", vtag="touch")
            return
        a(f"""v_mul_u32_u24 v16, 7282, v15
        v_lshrrev_b32 v16, 16, v16
        v_mul_u32_u24 v17, 9, v16
        v_sub_u32 v17, v15, v17
        v_mul_u32_u24 v16, 9216, v16
        v_lshl_add_u32 v16, v17, 7, v16
        v_mov_b32 v17, {OOB}
        v_cmp_gt_u32 vcc, {9*n}, v15
        s_cmp_lt_u32 s30, 2
        s_cselect_b32 s92, s4, s6
        s_cselect_b32 s93, s5, s7
        s_mov_b32 s94, {576*9216}
        s_mov_b32 s95, 0x20000
        s_lshl_b32 s96, s28, 1
        s_and_b32 s97, s30, 1
        s_add_u32 s96, s96, s97
        s_mul_i32 s96, s96, {n*9216}
        s_mul_i32 s97, s29, 1152
        s_add_u32 s96, s96, s97
        v_cndmask_b32 v16, v17, v16, vcc""")
        a(f"buffer_load_dword a209, v16, s[92:95], s96 offen", vtag="touch")
    if "tabln" in opts:
        for x in tl: a(x.replace("v[164:167]", "v[212:215]").replace("v[168:171]", "v[216:219]"), vtag=T)
        tl = []
    if pn and "wrl" in opts:
        a("""buffer_load_dwordx4 v[220:223], v5, s[44:47], s55 offen
        v_mov_b32 v224, 0
        v_mov_b32 v225, 0
        v_mov_b32 v226, 0
        v_mov_b32 v227, 0
        s_mov_b64 exec, 0xff
        buffer_load_dwordx4 v[224:227], v5, s[44:47], s55 offen offset:1024
        s_mov_b64 exec, -1""", vtag="wrow")
    if "tw0" in opts: touch_wo()
    if opt("gu", 0): touch_gu(opt("gu", 0))
    a.wait(v="xs"); a("s_barrier")
    signal(a, "s53", check_init=aINI)
    st("sig0")
    urgent = range(14) if 'taball' in opts else (0, 2)
    for q in urgent:
        if tl: a(tl[q], vtag=T)
    tl = [(x, "tab2") for q, x in enumerate(tl) if q not in urgent]
    a("""s_mul_i32 s27, s28, 43
    s_lshr_b32 s27, s27, 8
    s_mul_i32 s26, s27, 6
    s_sub_u32 s26, s28, s26
    s_lshl_b32 s37, s29, 2
    s_add_u32 s27, s27, s37""")
    PA = opt("pa", 2)
    for j in range(NK0, NK2):
        if j == NK2 - PA: poll_start(a, "s53")
        [em(x) for x in kvdma(j)]
    if PA == 0: poll_start(a, "s53")
    if "two" in opts: touch_wo()
    a(f"""s_mul_i32 s36, s35, 36864
    s_add_u32 s36, s36, {XFRAG}
    s_add_u32 s33, s36, 36864
    s_lshl_b32 s37, s99, 12
    s_add_u32 s36, s36, s37""")
    st("pre")
    poll_finish(a, "s53", 16)
    st("sync0")
    def xload(g):
        r = [] if g == 0 else ["s_add_u32 s36, s36, 4096\ns_cmp_ge_u32 s36, s33\ns_cselect_b32 s37, 36864, 0\ns_sub_u32 s36, s36, s37"]
        return r + [(f"buffer_load_dwordx4 {vr(X(4*g+q),4,'a')}, v5, s[20:23], s36 offen offset:{q*1024} sc1", ("X", 2 * g + q // 2)) for q in range(4)]
    NX0 = opt("nx", 2)
    for g in range(NX0): [em(x) for x in xload(g)]
    a.wait(v=T)
    if "tabln" in opts:
        for q in range(8): a(f"v_mov_b32 v{164+q}, v{212+q}")
    def fixups():
        a.wait(v="tab2")
        a(f"""v_mov_b32 v7, v168
        v_mov_b32 v12, v169
        v_add_u32 v{aZW}, s34, v{aZW}
        v_add_u32 v{aZV}, s34, v{aZV}
        v_add_u32 v{aZX}, s34, v{aZX}
        v_min_u32 v{aZX}, {STX}, v{aZX}
        s_lshr_b32 s92, s30, 1
        s_and_b32 s93, s30, 1
        s_mul_i32 s96, s92, 4608
        s_mul_i32 s97, s93, 48
        s_add_u32 s97, s97, s96
        v_add_u32 v{aZA}, s97, v{aZA}
        v_add_u32 v{aZA+1}, s97, v{aZA+1}
        v_add_u32 v{aZB}, s96, v{aZB}
        v_add_u32 v{aZB+1}, s96, v{aZB+1}
        s_mul_i32 s96, s92, 1920
        s_mul_i32 s97, s93, 24
        s_add_u32 s97, s97, s96
        v_add_u32 v{aKA}, s97, v{aKA}
        v_add_u32 v{aKB}, s97, v{aKB}
        v_min_u32 v{aKA}, {STX}, v{aKA}
        v_min_u32 v{aKB}, {STX}, v{aKB}""")
    mq = ["s_mul_i32 s38, s30, 6\ns_mul_i32 s39, s31, 1296"]
    for i in range(6):
        mq += [f"""s_add_u32 s37, s38, {i}
        s_lshl_b32 s96, s37, 8
        s_add_u32 m0, s96, {MOFF}
        s_cmp_lt_u32 s37, 9
        s_cselect_b64 vcc, -1, 0
        s_mul_i32 s96, s37, 72
        s_add_u32 s96, s96, s39
        v_cndmask_b32 v16, v{aMS0+1}, v{aMS0}, vcc
        s_cmp_ge_u32 s37, 18
        s_cselect_b32 s96, 0x100000, s96""", ("buffer_load_dword v16, s[40:43], s96 offen lds", "wphi")]
    WP = lambda stp, p: 232 + 12 * stp + 4 * p
    def mreads():
        a.wait(v="tab2")
        for p in range(3):
            f = WP(0, p); f1 = WP(1, p)
            a(f"ds_read_b64_tr_b16 a[{f}:{f+1}], v{aM} offset:{32*p}\nds_read_b64_tr_b16 a[{f+2}:{f+3}], v{aM} offset:{32*p+2048}\nds_read_b64_tr_b16 a[{f1}:{f1+1}], v{aM} offset:{32*p+4096}")
    AF = lambda i: 4 * (i % 8)
    def reads(i, lst):
        ks, T_, ad, off, sz = lst[i]
        j = ks // 2; f = AF(i)
        if sz == 176: o = j * KVS + off; ad += ks % 2
        else: o = 2 * (ks % 2) * QR + j * QS + off
        return [f"ds_read_b64_tr_b16 a[{f}:{f+1}], v{ad} offset:{o}", f"ds_read_b64_tr_b16 a[{f+2}:{f+3}], v{ad} offset:{o+sz}"]
    D = 6
    def gemm(lst, bars, memq, mper=1, hook=None, mstart=0):
        N = len(lst); per = N // 9
        def flush(pred):
            while any(isinstance(x, tuple) and pred(x[1]) for x in memq): em(memq.pop(0))
        def maybe_bar(i):
            if i < N and i % per == 0 and (i // per) in bars:
                lim = bars[i // per]
                pred = lambda t: (isinstance(t, tuple) and t[0] == "w" and t[1] <= lim) or (t in ("wphi", "tab2") and i // per == 8)
                flush(pred); a.wait(v=pred); a("s_barrier")
        lw = lambda lim: a.wait(l=lambda t: isinstance(t, tuple) and t[0] == "A" and t[1] <= lim)
        for i in range(D):
            maybe_bar(i)
            for r in reads(i, lst): a(r, ltag=("A", i))
        for i in range(N):
            ks, T_, ad, off, sz = lst[i]
            flush(lambda t: t == ("X", ks))
            a.wait(v=("X", ks)); lw(i)
            f = AF(i)
            rd = reads(i + D, lst) if i + D < N else []
            for b_ in range(2):
                a(f"v_mfma_f32_16x16x32_bf16 {vr(T_+4*b_,4)}, a[{f}:{f+3}], {vr(X(2*ks+b_),4,'a')}, {'0' if ks == 0 else vr(T_+4*b_,4)}")
                if b_ == 0 and i + D < N: maybe_bar(i + D)
                if b_ == 1: lw(i + 1)
                if rd: a(rd[b_], ltag=("A", i + D))
            if hook and i in hook: hook[i]()
            if memq and i % mper == 0 and i >= mstart:
                while memq and not isinstance(memq[0], tuple): em(memq.pop(0))
                if memq: em(memq.pop(0))
        for x in memq: em(x)
    memq = []
    kvleft = list(range(NK2, 9))
    for g in range(NX0, 9):
        memq += xload(g)
        if kvleft and g >= opt("kx", 2): memq += kvdma(kvleft.pop(0))
    for j in kvleft: memq += kvdma(j)
    MP = opt("mqp", 99)
    memq = memq[:MP] + ([] if "mearly" in opts else mq) + tl + memq[MP:]
    qq = []
    for j in range(9):
        qq.append([f"s_mul_i32 s37, s30, {QR}\ns_add_u32 m0, s37, {j*QS}", f"s_add_u32 s51, s51, {64*3456}\ns_cmp_ge_u32 s51, s100\ns_cselect_b32 s37, {576*3456}, 0\ns_sub_u32 s51, s51, s37" if j else "s_nop 0",
                 ("buffer_load_dwordx4 v164, s[16:19], s51 offen lds", "wq"), "s_mov_b64 exec, 0xffff",
                 ("buffer_load_dwordx4 v165, s[16:19], s51 offen offset:1024 lds\ns_mov_b64 exec, -1", "wq")])
    NQ = opt("nq", 3)
    QW = ("s_nop 0", "qwait")
    if NQ: memq.append(QW)
    for g in qq[:NQ]: memq += g
    qq = qq[NQ:]
    fr = [(ks, T_, ad, off, 176) for ks in range(18) for (T_, ad, off) in ((K0, aT, 0), (K1, aT, 32), (EE, aTE, 0), (V0, aT, 80), (V1, aT, 128))]
    bars = {j: j for j in range(NK2, 9)}; bars.update({0: min(2, NK2 - 1), 3: NK2 - 1} if NK2 > 3 else {0: NK2 - 1}); bars[8] = 8
    def wmean():
        if pn:
            a.wait(v="wrow")
            a("s_mov_b32 s50, 0x3f803f80")
            for j in range(8): a(f"v_dot2_f32_bf16 v{230+(j&1)}, v{220+j}, s50, {'0' if j < 2 else f'v{230+(j&1)}'}")
            a(f"""v_add_f32 v230, v230, v231
            v_mov_b32 v231, v230
            v_permlane32_swap_b32 v230, v231
            v_add_f32 v230, v230, v231
            v_mov_b32 v231, v230
            v_permlane16_swap_b32 v230, v231
            v_add_f32 v230, v230, v231
            v_add_f32_dpp v230, v230, v230 row_ror:8 row_mask:0xf bank_mask:0xf
            v_add_f32_dpp v230, v230, v230 row_ror:4 row_mask:0xf bank_mask:0xf
            v_add_f32_dpp v230, v230, v230 row_ror:2 row_mask:0xf bank_mask:0xf
            v_add_f32_dpp v230, v230, v230 row_ror:1 row_mask:0xf bank_mask:0xf
            v_mul_f32 v230, 0x3ae38e39, v230
            v_lshlrev_b32 v229, 2, v15
            s_lshl_b32 s55, s32, 4
            s_add_u32 s55, s55, s31
            s_lshl_b32 s55, s55, 5
            s_add_u32 s55, s55, {MX}
            s_cmp_eq_u32 s30, 0
            s_cselect_b32 s3, 0, {OOB}
            s_add_u32 s55, s55, s3""")
        if pn:
            a("""s_mov_b64 exec, 1
            buffer_store_dword v230, v229, s[20:23], s54 offen sc1
            s_mov_b64 exec, 0xff
            buffer_store_dword v228, v229, s[20:23], s55 offen sc1
            s_mov_b64 exec, -1""", vtag="wms")
        a("s_mov_b32 s54, 0xfffff\ns_mov_b32 s55, 0xfffff")
    hk = {82: mreads}
    if pn: hk[opt('wmh', 60)] = wmean
    if "fine" in opts:
        st("setup")
        for q in (0, 10, 20, 30, 40, 50, 60, 70): hk[q] = (lambda q=q: st(f"g{q}"))
    if "xnoq" in opts: memq = [x for x in memq if not (isinstance(x, tuple) and x[1] == "wq") and x != "s_mov_b64 exec, 0xffff"]
    gemm(fr, bars, memq, mper=opt("mp", 2), hook=hk)
    fixups()
    if "twl" in opts: touch_wo()
    st("gemm")
    if "fine" in opts: st.dump("s[20:23]", "s30", 16, 17); st.kidx += 1; st.groups.append([])
    def packB():
        for b_ in range(2):
            a(f"""v_cvt_pk_bf16_f32 v{B0+4*b_}, v{K0+4*b_}, v{K0+4*b_+1}
            v_cvt_pk_bf16_f32 v{B0+4*b_+1}, v{K0+4*b_+2}, v{K0+4*b_+3}
            v_cvt_pk_bf16_f32 v{B0+4*b_+2}, v{K1+4*b_}, v{K1+4*b_+1}
            v_cvt_pk_bf16_f32 v{B0+4*b_+3}, v{K1+4*b_+2}, v{K1+4*b_+3}
            v_cvt_pk_bf16_f32 v{B1+4*b_}, v{EE+4*b_}, v{EE+4*b_+1}
            v_cvt_pk_bf16_f32 v{B1+4*b_+1}, v{EE+4*b_+2}, v{EE+4*b_+3}""")
    def feat():
        for stp in range(2):
            for b_ in range(2):
                for p in range(3):
                    f = WP(stp, p); d = P[b_] + 4 * p
                    a(f"v_mfma_f32_16x16x32_bf16 {vr(d,4)}, a[{f}:{f+3}], {vr((B0, B1)[stp]+4*b_,4)}, {'0' if stp == 0 else vr(d,4)}")
    def packZ(b_):
        for sg, S in ((0, P), (1, E)):
            for q in range(5): a(f"v_cvt_pk_bf16_f32 v{Z[b_]+6*sg+q}, v{S[b_]+2*q}, v{S[b_]+2*q+1}")
    packB()
    a("s_waitcnt lgkmcnt(0)")
    feat()
    for g in qq[:2]: [em(x) for x in g]
    qq = qq[2:]
    for b_ in range(2):
        for h, V in ((0, V0), (1, V1)):
            d = VP + 4 * b_ + 2 * h
            a(f"v_cvt_pk_bf16_f32 v{d}, v{V+4*b_}, v{V+4*b_+1}\nv_cvt_pk_bf16_f32 v{d+1}, v{V+4*b_+2}, v{V+4*b_+3}")
        a(f"v_mov_b32 v{VP+8+2*b_}, v{B1+4*b_+1}")
    a("s_barrier")
    for b_ in range(2):
        for h in range(2): a(f"ds_write_b64 v{aZV}, {vr(VP+4*b_+2*h,2)} offset:{h*4608 + b_*2304}")
        a(f"ds_write_b64 v{aZX}, {vr(VP+8+2*b_,2)} offset:{b_*2304}")
    sub = "sub" in opts
    def call_sm():
        pc = a.lab("cs")
        a(f"""s_getpc_b64 s[92:93]
        {pc}:
        s_add_u32 s92, s92, K_sm-{pc}
        s_addc_u32 s93, s93, 0
        s_nop 7
        s_swappc_b64 s[94:95], s[92:93]""")
    if sub:
        for g in qq: [em(x) for x in g]
        call_sm()
    else:
        b = A("S"); softmax16(b, P, E, aMK); sm = [x.text for x in b.l]
        per = len(sm) // (len(qq) + opt('qs', 1))
        for g in qq:
            [em(x) for x in g]
            for x in sm[:per]: a(x)
            sm = sm[per:]
        for x in sm: a(x)
    if "twm" in opts: touch_wo()
    if opt("gv", 0): touch_gu(opt("gv", 0))
    if "tnc" in opts:
        saved = list(a.vm)
        a(f"""s_lshr_b32 s96, 0xaa55, s31
        s_and_b32 s96, s96, 1
        s_cbranch_scc0 K_notouch
        s_and_b32 s96, s28, 3
        s_lshr_b32 s97, s28, 3
        s_lshl_b32 s97, s97, 2
        s_add_u32 s3, s96, s97
        s_lshl_b32 s96, s3, 2
        s_add_u32 s96, s96, s30
        s_mul_i32 s96, s96, {81*128}
        s_add_u32 s96, s96, 2048
        s_add_u32 s97, s96, 8192
        buffer_load_dword a208, v232, s[44:47], s96 offen
        s_mov_b64 exec, 0x1ffff
        buffer_load_dword a209, v232, s[44:47], s97 offen
        s_mov_b64 exec, -1
        s_cmp_lt_u32 s30, 2
        s_cselect_b32 s92, s4, s6
        s_cselect_b32 s93, s5, s7
        s_mov_b32 s94, {576*9216}
        s_mov_b32 s95, 0x20000
        s_lshl_b32 s96, s3, 1
        s_and_b32 s97, s30, 1
        s_add_u32 s96, s96, s97
        s_mul_i32 s96, s96, {2*9216}
        s_mul_i32 s97, s29, 1152
        s_add_u32 s96, s96, s97
        buffer_load_dword a210, v234, s[92:95], s96 offen
        K_notouch:""")
        a.vm = saved
    for b_ in range(2):
        if not sub: packZ(b_)
        for sg in range(2):
            for q in range(3): a(f"ds_write_b64 v{aZW}, {vr(Z[b_]+6*sg+2*q,2)} offset:{b_*2304 + 48*sg + 8*q}")
    a(f"""s_mul_i32 s37, s32, {4*PB}
    s_add_u32 s37, s37, s52
    s_lshl_b32 s53, s31, 8
    s_add_u32 s53, s53, {C1}""")
    a("s_waitcnt lgkmcnt(0)\ns_barrier")
    st("smk")
    for stp in range(8):
        w = stp // 2; o = (w % 2) * KVR + (stp % 2) * 16 * 144
        va, vb = aZA + w // 2, aZB + w // 2
        f = 8 * stp
        a(f"ds_read_b64_tr_b16 a[{f}:{f+1}], v{va} offset:{o}\nds_read_b64_tr_b16 a[{f+2}:{f+3}], v{va} offset:{o+576}", ltag=("Z", stp))
        a(f"ds_read_b64_tr_b16 a[{f+4}:{f+5}], v{vb} offset:{o}\nds_read_b64_tr_b16 a[{f+6}:{f+7}], v{vb} offset:{o+576}", ltag=("Z", stp))
        if stp >= 2:
            s2 = stp - 2; f = 8 * s2
            a.wait(l=("Z", s2))
            a(f"v_mfma_f32_32x32x16_bf16 v[64:79], a[{f}:{f+3}], a[{f+4}:{f+7}], {'0' if s2 == 0 else 'v[64:79]'}")
    for s2 in (6, 7):
        f = 8 * s2
        a.wait(l=("Z", s2))
        a(f"v_mfma_f32_32x32x16_bf16 v[64:79], a[{f}:{f+3}], a[{f+4}:{f+7}], v[64:79]")
    for q in range(6): a(f"v_cvt_pk_bf16_f32 v{16+q}, v{64+2*q}, v{65+2*q}")
    a(f"""s_mov_b64 exec, s[54:55]
    buffer_store_dwordx4 v[16:19], v{aP4}, s[20:23], s37 offen sc1
    s_mov_b32 exec_lo, -1
    s_mov_b32 exec_hi, 0
    buffer_store_dwordx2 v[20:21], v{aP2}, s[20:23], s37 offen sc1
    s_mov_b64 exec, -1""", vtag="kvs")
    st("kvmm")
    if "twk" in opts: touch_wo()
    if opt("gw", 0): touch_gu(opt("gw", 0))
    def sig1():
        a.wait(v="kvs"); a("s_barrier")
        signal(a, "s53")
        st("kvst")
    a.wait(v="wq"); a("s_barrier")
    a("s_cmp_ge_u32 s28, 24\ns_cselect_b32 s46, 0, s46")
    wq, wq0 = p2c_wodma(a, "rot2" in opts)
    gemm([(ks, T_, ad, off, 80) for ks in range(18) for (T_, ad, off) in ((K0, aQ, 0), (K1, aQ, 32), (EE, aQE, 0))], {}, wq, mper=opt("wp", 2), hook={opt("hk", 12): sig1, opt("p1", 44): lambda: poll_start(a, "s53")}, mstart=opt("wst", 0))
    packB()
    feat()
    st("qgemm")
    early = "smfirst" in opts
    def smq():
        if sub: call_sm()
        else: softmax16(a, P, E, aMK); packZ(0); packZ(1)
    if early: smq()
    poll_finish(a, "s53", 16)
    st("sync1")
    rot1 = "norot1" not in opts
    if rot1: a(f"s_add_u32 s36, s52, {64*PB}\ns_and_b32 s37, s32, 3\ns_mul_i32 s37, s37, {16*PB}\ns_add_u32 s52, s52, s37")
    for i in range(4):
        if i: a(f"s_add_u32 s52, s52, {16*PB}" + (f"\ns_cmp_ge_u32 s52, s36\ns_cselect_b32 s37, {64*PB}, 0\ns_sub_u32 s52, s52, s37" if rot1 else ""))
        for u in range(4):
            r = 64 + 16 * i + 4 * u
            a(f"buffer_load_dwordx4 a[{r}:{r+3}], v{aPL3 if u == 3 else aPL}, s[20:23], s52 offen offset:{256*u} sc1", vtag=("kv", i))
    if pn:
        a(f"s_mul_i32 s92, s31, 144\ns_add_u32 s92, s92, {WM}")
        a("""buffer_load_dwordx4 v[220:223], v166, s[20:23], s92 offen sc1
        buffer_load_dwordx4 v[224:227], v166, s[20:23], s92 offen offset:16 sc1
        buffer_load_dwordx2 v[228:229], v167, s[20:23], s92 offen sc1""", vtag="wml")
    for x in wq0: em(x)
    if not early: smq()
    for i in range(4):
        a.wait(v=("kv", i))
        for u in range(4):
            r = 64 + 16 * i + 4 * u; T_ = 48 + 4 * (u // 2); S = 224 + 4 * (u % 2)
            a(f"v_mfma_f32_16x16x32_bf16 v[{T_}:{T_+3}], a[{S}:{S+3}], a[{r}:{r+3}], {'0' if (i == 0 and u % 2 == 0) else f'v[{T_}:{T_+3}]'}")
    st("smq")
    a(f"""s_mul_i32 s36, s35, 36864
    s_add_u32 s36, s36, {OFRAG}
    s_lshl_b32 s37, s31, 7
    s_add_u32 s37, s37, s36
    s_add_u32 s39, s37, 18432
    s_lshl_b32 s38, s31, 10
    s_add_u32 s36, s36, s38
    s_add_u32 s38, s36, 18432
    s_lshl_b32 s53, s32, 13
    s_add_u32 s53, s53, {C2}
    v_cvt_pk_bf16_f32 v16, v48, v49
    v_cvt_pk_bf16_f32 v17, v50, v51
    v_cvt_pk_bf16_f32 v18, v52, v53
    v_cvt_pk_bf16_f32 v19, v54, v55
    ds_write_b64 v{aKA}, v[16:17]
    ds_write_b64 v{aKB}, v[18:19]
    s_waitcnt lgkmcnt(0)
    s_barrier""")
    st("kvred")
    for t in range(3):
        for p in (2, 0, 1):
            f = 12 * t + 4 * p
            a(f"ds_read_b128 a[{f}:{f+3}], v{(aN0, 119, aN2)[p]} offset:{16*t}", ltag=("K", t))
    for t in range(3):
        a.wait(l=("K", t))
        for p in (2, 0, 1):
            for b_ in range(2):
                f = 12 * t + 4 * p; d = P[b_] + 4 * p
                a(f"v_mfma_f32_16x16x32_bf16 {vr(d,4)}, a[{f}:{f+3}], {vr(Z[b_]+4*t,4)}, {'0' if t == 0 else vr(d,4)}")
    for b_ in range(2): a(f"v_add_f32 v{P[b_]+10}, 0x358637bd, v{P[b_]+10}")
    for b_ in range(2): a(f"v_rcp_f32 v{P[b_]+10}, v{P[b_]+10}")
    for b_ in range(2):
        p = P[b_]
        for q in range(0, 10, 2): a(f"v_pk_mul_f32 v[{p+q}:{p+q+1}], v[{p+q}:{p+q+1}], v[{p+10}:{p+11}] op_sel_hi:[1,0]")
        for q in range(5): a(f"v_cvt_pk_bf16_f32 v{16+8*b_+q}, v{p+2*q}, v{p+2*q+1}")
        a(f"buffer_store_dwordx4 {vr(16+8*b_,4)}, v5, s[20:23], {('s36', 's38')[b_]} offen sc1\nbuffer_store_dword v{20+8*b_}, v{aOX}, s[20:23], {('s37', 's39')[b_]} offen sc1")
    if pn:
        a.wait(v="wml")
        for b_ in range(2):
            p = P[b_]
            a(f"v_pk_mul_f32 v[{230+2*b_}:{231+2*b_}], v[{p}:{p+1}], v[220:221]")
        for q in range(2, 10, 2):
            for b_ in range(2):
                p = P[b_]
                a(f"v_pk_fma_f32 v[{230+2*b_}:{231+2*b_}], v[{p+q}:{p+q+1}], v[{220+q}:{221+q}], v[{230+2*b_}:{231+2*b_}]")
        a(f"""v_add_f32 v230, v230, v231
        v_add_f32 v232, v232, v233
        s_lshl_b32 s92, s35, 4
        s_add_u32 s92, s92, s31
        s_lshl_b32 s92, s92, 7
        s_add_u32 s92, s92, {PM}
        v_permlane16_swap_b32 v230, v232
        v_add_f32 v230, v230, v232
        v_mov_b32 v231, v230
        v_lshlrev_b32 v229, 2, v15
        v_permlane32_swap_b32 v230, v231
        v_add_f32 v230, v230, v231
        s_mov_b32 exec_hi, 0
        buffer_store_dword v230, v229, s[20:23], s92 offen sc1
        s_mov_b64 exec, -1""")
    a("s_waitcnt vmcnt(0)\ns_barrier")
    signal(a, "s53")
    st("ost")
    st.dump("s[20:23]", "s30", 16, 17)
    def front(setup, dma0, zero):
        o2 = "ord2" in opts; ap2 = o2 or "ap2" in opts; z0 = o2 or "z0" in opts
        if ap2: p2c_prepoll(a, C2)
        p2c_xload(a)
        setup()
        a("s_cmp_ge_u32 s28, 24\ns_cbranch_scc1 K_idle")
        sv = list(a.vm)
        zl = "zl" in opts
        late = None if o2 else (lambda: (zero(0), dma0(0), dma0(1))) if zl else (lambda: (dma0(0), dma0(1)))
        p2c_main(a, st, C2, C3, early=(lambda: zero(0)) if z0 else None, late=late, pre=ap2, opts=opts)
        st.dump("s[20:23]", "s30", 21, 22)
        a("s_branch K_ffn\nK_idle:")
        a.vm = sv
        if "idma" in opts: dma0(0); dma0(1)
        if "tw3" in opts: touch3(a, opt("t3f", 64), opt("t3r", 24))
        if z0 or zl: zero(0)
        if o2: a.wait(v="ftab")
        elif "idma" not in opts: dma0(0); dma0(1)
        if ap2: a("s_waitcnt lgkmcnt(0)")
        a("K_ffn:")
        if not z0 and not zl: zero(0)
        a.vm = ["unknown"] * 8
    a.spins = []
    if 'g2' in opts: ffn18.ffn_body(a, st, opts, C3, C4, front, tb, C5)
    else: ffn17.ffn_body(a, st, opts, C3, C4, front, tb)
    st.dump("s[20:23]", "s30", 16, 17)
    a("s_endpgm")
    for x in a.spins: a(x)
    if sub:
        a(".p2align 3\nK_sm:"); softmax16(a, P, E, aMK); packZ(0); packZ(1); a("s_nop 1\ns_setpc_b64 s[94:95]")
    a("K_end:\ns_endpgm")
    return a, st, tb

if __name__ == "__main__":
    out = sys.argv[1]; opts = sys.argv[2:]
    amp = next((o[4:].split(",") for o in opts if o.startswith("amp=")), None)
    a, st, tb = gen((amp[0], amp[1], int(amp[2])) if amp else "cyc" if "cyc" in opts else "dbg" if "dbg" in opts else "lite" if "lite" in opts else "lite2" if "lite2" in opts else "diag" in opts, opts)
    t = a.text() + tb.text()
    NAME = "sequential_preLN__linear_kernel_hedgehog__glu_gated_reglu__prompt_kernel"
    hdr = "".join(l for l in open("sequential_preLN__linear_kernel_hedgehog__glu_gated_reglu__prompt.s.ref") if l.startswith(";") and "@launch" not in l and "Override" not in l and "grid=" not in l)
    s = hdr + "; @launch grid=(256,1,1) block=(256,1,1) lds=163840\n" + '.amdgcn_target "amdgcn-amd-amdhsa--gfx950"\n.text\n' + kernel(NAME, t) + '.section .rodata,"a"\n' + descriptor(NAME, 512, 256)
    open(out, "w").write(s)
    json.dump(st.groups, open(out + ".json", "w"))
    print("nops", a.padded, "instrs", len(a.l), st.groups)
```

```python
from common import *
from ffn16 import dma_offsets, store_setup
UNIT = 18432; SLOT = 2 * UNIT

def ffn_body(a, st, opts, C3, C4, front, tb, C5):
    opt = lambda k, d: next((int(o[len(k):]) for o in reversed(opts) if re.fullmatch(k + r'\d+', o)), d)
    diag = st.on
    T0 = 21
    G = lambda t: 64 + 8 * t
    pn = "pn" in opts
    def U(t):
        if t < 6: return ("v", 208 + 8 * t)
        if pn: return ("v", 32 + 8 * (t - 6)) if t < 10 else ("a", 96 + 8 * (t - 10))
        return ("a", 96 + 8 * (t - 6))
    XR = (lambda k: 8 * (k % 4)) if pn else (lambda k: 32 + 8 * (k % 4))
    XK = "a" if pn else "v"
    NF = opt("nf", 8); D = NF - 2; NA = 2; PK = opt('pk', 1)
    AF = lambda i: 192 + 4 * (i % NF)
    def emit(it):
        if len(it) > 2 and it[2][0] == "F":
            saved = list(a.lg); a(it[1]); a.lg = saved
        elif len(it) > 2: a(it[1], vtag=it[2])
        else: a(it[1])
    pol = " sc1" if "dsc1" in opts else " nt" if "dnt" in opts else " sc0" if "dsc0" in opts else ""
    def blocks(P):
        if P < 20: return [(J, lc) for J in range(9) for lc in range(2)][9 * (P - 18):9 * (P - 17)]
        if P < 23: return [(J, P - 18) for J in range(9)]
        if P < 23 + PK: return [(9 + J, lc) for J in range(9) for lc in range(PK)][9 * (P - 23):9 * (P - 22)]
        return [(9 + J, P - 23) for J in range(9)]
    def dma_pair(P):
        r = []; slot = P % 4
        if P < 18:
            for i in range(9):
                if i % 4 == 0: r.append(("m", f"s_add_u32 m0, s37, {slot*SLOT + i*1024}"))
                r.append(("d", f"buffer_load_dwordx4 v{i}, s[12:15], s36 offen offset:{(i%4)*1024}{pol} lds", ("P", P)))
            return r + [("s", f"s_add_u32 s36, s36, {32*9216}")]
        for b, (J, cg) in enumerate(blocks(P)):
            r.append(("m", f"s_add_u32 m0, s40, {slot*SLOT + b*4096}"))
            base = "s100" if J >= 9 else ("s101" if cg == 4 else "s38")
            r.append(("s", f"s_add_u32 s39, {base}, {(J%9)*32*1152 + (cg%4)*128}"))
            r.append(("d", f"buffer_load_dwordx4 v0, s[16:19], s39 offen{pol} lds", ("P", P)))
        return r
    def dsrc(i):
        def f(l):
            p = i * 1024 + l * 16; row, col = divmod(p, 576)
            return row * 9216 + (col ^ (32 if row & 4 else 0)) + 3072 - (i % 4) * 1024
        return f
    rdb = lambda l, sg: (l >> 2) * 576 + 8 * (l & 3) + sg * 32 * ((l >> 4) & 1)
    OOBV = 0x7fffff00
    fl2 = "fl2" in opts
    L0 = (0, 1, 4, 5, 6) if fl2 else (0, 1, 2, 4, 5, 6, 7)
    L1 = (2, 3, 7, 8) if fl2 else (3, 8)
    def flx(L, p):
        if p >= 16 * len(L): return OOBV
        row, q = divmod(p, 8 * len(L)); ln, pc = divmod(q, 8)
        return row * 1152 + L[ln] * 128 + pc * 16
    def setup():
        a(f"""v_mov_b32 v30, v15
        s_lshl_b32 s31, s29, 1
        s_and_b32 s33, s28, 1
        s_add_u32 s31, s31, s33
        s_lshr_b32 s32, s28, 1
        s_and_b32 s33, s30, 1
        s_lshr_b32 s34, s30, 1
        v_lshlrev_b32 v15, 4, v30""")
        for x in (tb.load(0, [dsrc(i) for i in range(4)], 15, 88), tb.load(4, [dsrc(i) for i in range(4, 8)], 15, 88),
                  tb.load(8, [dsrc(8)] + [(lambda l, q=q: rdb(l, 1) + 55296 * q) for q in range(3)], 15, 88),
                  tb.load(16, [(lambda l, q=q: rdb(l, -1) + 55296 * q) for q in range(3)], 15, 88),
                  tb.load(24, [lambda l: (l // 9) * 9216 + (l % 9) * 128 if l < 18 else OOBV, lambda l: l * 128 if l < 11 else OOBV,
                               lambda l: (l >> 5) * 768 + (l & 31) * 4], 15, 88),
                  tb.load(236, [lambda l: (l >> 3) * 1152 + (((l & 7) << 4) ^ ((l >> 4) << 5))] +
                               [(lambda l, t=t: 2 * SLOT + (l >> 2) * 128 + 8 * (l & 3) + 32 * (((l >> 3) & 3) ^ t)) for t in range(3)], 15, 88, "a"),
                  tb.load(240, [lambda l: 2 * SLOT + (l >> 2) * 128 + 8 * (l & 3) + 32 * (((l >> 3) & 3) ^ 3),
                                lambda l: (l & 7) * 1152 + 8 * ((l >> 3) & 1) + 640 * (l >> 5) + 32 * ((l >> 4) & 1),
                                lambda l: ((l >> 3) & 1) * 256 + (l & 7) * 16 if l < 16 else OOBV,
                                lambda l: (l >> 4) * 9216 + (l & 15) * 16], 15, 88, "a"),
                  tb.load(244, [lambda l: ((l >> 3) & 1) * 147456 + (l >> 4) * 128 + (l & 7) * 16,
                                lambda l: flx(L0, l), lambda l: flx(L0, 64 + l), lambda l: flx(L1, l)], 15, 88, "a")):
            a(x, vtag="ftab")
        a(f"""s_cmp_eq_u32 s34, 0
        s_cselect_b32 s12, s4, s6
        s_cselect_b32 s13, s5, s7
        s_sub_u32 s12, s12, 3072
        s_subb_u32 s13, s13, 0
        s_mov_b32 s14, {576*9216+3072}
        s_mov_b32 s15, 0x20000""")
        srd(a, 16, 8, 9, 4608 * 1152)
        a(f"""s_mul_i32 s36, s31, 576
        s_mul_i32 s39, s33, {16*9216}
        s_add_u32 s36, s36, s39
        s_mul_i32 s37, s30, 9216""")
    def dma0(P):
        a.wait(v="ftab")
        [emit(x) for x in dma_pair(P)]
    loop = "noloop" not in opts
    def zero(part):
        if "mz" in opts:
            if part == 0:
                for q in range(4): a(f"v_mov_b32 v{60+q}, 0")
            blk = [("v", r) for r in range(64, 160, 16)] + [("a", r) for r in (144, 160, 176)] if part == 0 else [("v", r) for r in range(160, 256, 16)] + [("a", r) for r in (96, 112, 128)]
            for k, r in blk: a(f"v_mfma_f32_32x32x16_bf16 {vr(r,16,k)}, v[60:63], v[60:63], 0")
            return
        regs = []
        for t in range(18):
            for q in range(8):
                regs.append(("v", G(t) + q)); k, b = U(t); regs.append((k, b + q))
        for (k, r) in regs:
            late = (k == "v" and r >= 168) or (k == "a" and r < 136)
            if late == (part == 1): a(f"v_mov_b32 v{r}, 0" if k == "v" else f"v_accvgpr_write_b32 a{r}, 0")
    front(setup, dma0, zero)
    o2 = "ord2" in opts
    if o2:
        a(f"s_lshl_b32 s53, s32, 13\ns_add_u32 s53, s53, {C3}")
        poll_start(a, "s53")
        dma0(0)
    tl = "notl" not in opts
    if tl:
        a(f"""v_mov_b32 v31, v24
        v_mov_b32 v14, v25
        s_lshl_b32 s50, s28, 1
        s_add_u32 s50, s50, s33
        s_mul_i32 s50, s50, {2*9216}
        s_mul_i32 s51, s29, 1152
        s_add_u32 s50, s50, s51
        s_add_u32 s50, s50, {opt("tla", 256)*9216 + 3072}
        s_lshl_b32 s51, s28, 2
        s_add_u32 s51, s51, s30
        s_mul_i32 s51, s51, {11*128}
        s_mul_i32 s52, s29, {576*1152}
        s_add_u32 s51, s51, s52""")
    a(f"""s_lshl_b32 s35, s32, 2
    s_add_u32 s35, s35, s30
    s_mul_i32 s43, s35, 1536
    s_mul_i32 s35, s35, 36864
    s_add_u32 s43, s43, {STATS}
    s_mul_i32 s38, s31, {288*1152}
    s_mul_i32 s39, s30, {8*1152}
    s_add_u32 s38, s38, s39
    s_add_u32 s101, s38, 512
    s_and_b32 s39, s31, 1
    s_mul_i32 s100, s39, 640
    s_add_u32 s38, s38, s100
    s_mul_i32 s39, s39, {2*288*1152}
    s_add_u32 s100, s38, {288*1152}
    s_sub_u32 s100, s100, s39
    s_lshl_b32 s40, s30, 10
    s_mov_b32 s47, 0xffff0000
    s_lshl_b32 s53, s32, {8 if 'c3g' in opts else 13}
    s_add_u32 s53, s53, {C3}
    v_mov_b32 v29, v26""")
    if HFRAG: a(f"s_add_u32 s35, s35, {HFRAG}")
    if o2: poll_finish(a, "s53", 12)
    else: poll(a, "s53", 12)
    st("sync3")
    def xload(k):
        r = []
        for h in range(2):
            r.append(("x", f"buffer_load_dwordx4 {vr(XR(k)+4*h,4,XK)}, v15, s[20:23], s35 offen offset:{h*1024} sc1", ("X", k)))
        if "xtwo" in opts: r = r + r
        return r + [("s", "s_add_u32 s35, s35, 2048")]
    for q in range(0 if pn else 6): a(f"buffer_load_dword v{(56,57,58,59,27,28)[q]}, v29, s[20:23], s43 offen offset:{128*q} sc1", vtag="st")
    XA = opt("xa", 2)
    for k in range(3 if XA == 3 else 2): [emit(x) for x in xload(k)]
    if o2: dma0(1)
    if loop: zero(1)
    a.wait(v="st")
    if not pn: a("""v_add_f32 v56, v56, v57
    v_add_f32 v58, v58, v59
    v_add_f32 v27, v27, v28
    v_add_f32 v56, v56, v58
    v_add_f32 v56, v56, v27
    v_mul_f32 v56, 0x3ae38e39, v56
    v_mov_b32 v57, v56
    v_permlane16_swap_b32 v56, v57
    v_fma_f32 v57, -v56, v56, v57
    v_max_f32 v57, 0, v57
    v_add_f32 v57, 0x3727c5ac, v57
    v_rsq_f32 v12, v57
    s_nop 0
    v_mul_f32_e64 v19, -v56, v12
    v_mov_b32 v13, v12
    v_mov_b32 v20, v19
    v_permlane32_swap_b32 v12, v13
    v_permlane32_swap_b32 v19, v20""")
    def norm(k):
        r = []
        if "xtwo" in opts and k < 17: return [("v", f"v_max_f32_e32 v{T0+q%8}, 0, v{T0+q%8}") for q in range(16)]
        if "xnonorm" in opts or pn: return r
        for h in range(2):
            b = XR(k) + 4 * h
            for j in range(4):
                r.append(("v", f"v_lshlrev_b32_e32 v{T0+2*j}, 16, v{b+j}"))
                r.append(("v", f"v_and_b32_e32 v{T0+1+2*j}, s47, v{b+j}"))
            for j in range(8):
                r.append(("v", f"v_fma_f32 v{T0+j}, v{T0+j}, v{12+h}, v{19+h}"))
            for j in range(4):
                r.append(("v", f"v_cvt_pk_bf16_f32 v{b+j}, v{T0+2*j}, v{T0+1+2*j}"))
        return r
    def conv(J):
        r = []
        for h in range(2):
            for e in range(2):
                t = 2 * J + e; g = G(t) + 4 * h; k, u = U(t); u += 4 * h
                for q in range(4):
                    if k == "a": r.append(("v", f"v_accvgpr_read_b32 v{T0+q}, a{u+q}"))
                    r.append(("v", f"v_max_f32_e32 v{g+q}, 0, v{g+q}"))
                for q in range(4):
                    src = f"v{T0+q}" if k == "a" else f"v{u+q}"
                    r.append(("v", f"v_mul_f32_e32 v{g+q}, v{g+q}, {src}"))
                d = G(2 * J) + 4 * h + 2 * e
                for q in range(2):
                    r.append(("v", f"v_cvt_pk_bf16_f32 v{d+q}, v{g+2*q}, v{g+2*q+1}"))
            r.append(("st", f"buffer_store_dwordx4 {vr(G(2*J)+4*h,4)}, v29, s[20:23], s43 offen offset:{h*1024} sc1", ("HS", J)))
            if h: r.append(("s", "s_add_u32 s43, s43, 2048"))
        if "xtwo" in opts:
            if J < 5: r = [x for x in r if x[0] != "v"]
            else: r = [x for x in r if "accvgpr" not in x[1]]
        return r
    def acc2(c, t):
        if c < 2: return ("a", 8 * (4 * c + t))
        if c < 4: return ("v", G(2 * ((c - 2) * 4 + t) + 1))
        return ("v", 208 + 8 * t)
    ecount = [0]
    ORD = {4: 0, 0: 1, 1: 2, 2: 3, 3: 4}
    def epi(c):
        r = []
        for tp in range(2):
            for h in range(2):
                S = 32 + 4 * (ecount[0] % 8); ecount[0] += 1
                for e in range(2):
                    k, b = acc2(c, 2 * tp + e); b += 4 * h
                    if k == "a":
                        for q in range(4): r.append(("v", f"v_accvgpr_read_b32 v{T0+4*e+q}, a{b+q}"))
                        b = T0 + 4 * e
                    for q in range(2): r.append(("v", f"v_cvt_pk_bf16_f32 v{S+2*e+q}, v{b+2*q}, v{b+2*q+1}"))
                r.append(("st", f"buffer_store_dwordx4 {vr(S,4)}, v15, s[20:23], s{(46 if c == 4 else 44)+h} offen offset:{(c%4)*1024 + tp*512} sc1", ("ST", ORD[c])))
        return r
    a.wait(v=("X", 0))
    [emit(x) for x in norm(0)]
    fr = []
    for ks in range(18):
        for t in range(18):
            fr.append((ks, (0, t), "v", G(t), ("a", XR(ks), None) if pn else XR(ks), ks == 0 and not loop))
            k, b = U(t); fr.append((ks, (1, t), k, b, ("a", XR(ks), None) if pn else XR(ks), ks == 0 and not loop))
    for P in range(18, 27):
        for b_, (J, cg) in enumerate(blocks(P)):
            for t in range(4):
                k, b = acc2(cg, t)
                fr.append((P, (b_, t), k, b, G(2 * J) if J < 9 else ("a", 96 + 8 * (J - 9), J - 9), J == 0))
    N = len(fr)
    def reads(i):
        P, (x, t) = fr[i][0], fr[i][1]; f = AF(i)
        if P < 18:
            slot = (2 * P + x) % 8; base = (9 if t % 2 == 0 else 16) + slot // 3
            o = (slot % 3) * UNIT + t * 32; o2 = o + 9216
        else:
            base = 1 + t; o = x * 4096; o2 = o + 2048
        return [f"ds_read_b64_tr_b16 a[{f}:{f+1}], v{base} offset:{o}", f"ds_read_b64_tr_b16 a[{f+2}:{f+3}], v{base} offset:{o2}"]
    s2setup = ["v_accvgpr_read_b32 v0, a236"]
    s2read = [f"v_accvgpr_read_b32 v{1+t}, a{237+t}" for t in range(4)]
    hhsetup = ["v_lshlrev_b32 v29, 4, v30", "s_lshl_b32 s43, s2, 2", "s_add_u32 s43, s43, s30", "s_mul_i32 s43, s43, 18432", f"s_add_u32 s43, s43, {HHX}",
               "s_xor_b32 s52, s2, 8", "s_lshl_b32 s52, s52, 2", "s_add_u32 s52, s52, s30", "s_mul_i32 s52, s52, 18432", f"s_add_u32 s52, s52, {HHX}",
               "s_lshr_b32 s50, s31, 1", "s_lshl_b32 s51, s32, 4", "s_add_u32 s50, s50, s51", "s_lshl_b32 s50, s50, 9", f"s_add_u32 s50, s50, {C5}"]
    redsetup = ["v_accvgpr_read_b32 v15, a244", "v_accvgpr_read_b32 v5, a241", "v_accvgpr_read_b32 v7, a242", "v_accvgpr_read_b32 v31, a243",
                "v_lshrrev_b32 v14, 4, v30", "v_mul_u32_u24 v14, 9216, v14", "v_add_u32 v14, v14, v31",
                "s_lshl_b32 s44, s32, 4", "s_lshl_b32 s45, s30, 2", "s_add_u32 s44, s44, s45", "s_lshl_b32 s44, s44, 4", "s_add_u32 s44, s44, s31",
                "s_mul_i32 s44, s44, 9216", f"s_add_u32 s44, s44, {PART}", "s_add_u32 s46, s44, 4096", f"s_add_u32 s47, s46, {2*147456}",
                "s_and_b32 s45, s31, 1", "s_mul_i32 s45, s45, 5120", "s_add_u32 s44, s44, s45", f"s_add_u32 s45, s44, {2*147456}",
                "s_lshl_b32 s29, s32, 4", "s_add_u32 s29, s29, s31",
                "s_mul_i32 s88, s29, 147456", "s_lshl_b32 s89, s30, 8", "s_add_u32 s88, s88, s89", f"s_add_u32 s88, s88, {PART}",
                "s_add_u32 s89, s88, 73728", "s_add_u32 s90, s88, 14336", "s_add_u32 s91, s89, 14336",
                "s_lshr_b32 s92, s29, 2", "s_mul_i32 s92, s92, 36864", "s_bfe_u32 s93, s29, 0x10001", "s_lshl_b32 s93, s93, 10", "s_add_u32 s92, s92, s93",
                "s_and_b32 s93, s29, 1", "s_lshl_b32 s93, s93, 7", "s_add_u32 s92, s92, s93", "s_lshl_b32 s93, s34, 11", "s_add_u32 s92, s92, s93",
                "s_lshl_b32 s93, s33, 9", "s_add_u32 s92, s92, s93",
                "s_lshl_b32 s53, s32, 13", f"s_add_u32 s53, s53, {C4}"]
    if pn:
        redsetup += ["s_lshr_b32 s93, s29, 1", "s_mul_i32 s93, s93, 768", "s_and_b32 s94, s29, 1", "s_lshl_b32 s94, s94, 5", "s_add_u32 s93, s93, s94", f"s_add_u32 s51, s93, {STATS}",
                     "v_and_b32 v12, 7, v30", "v_lshlrev_b32 v12, 2, v12"]
    if HFRAG: redsetup.append(f"s_add_u32 s92, s92, {HFRAG}")
    PL = lambda c, i: (168 + 4 * i) if c == 4 else 16 * c + 4 * i
    HL = lambda pc: 64 + 4 * pc if pc < 8 else 248
    def hload(pc): return [("x", f"buffer_load_dwordx4 a[{HL(pc)}:{HL(pc)+3}], v7, s[20:23], s92 offen sc1", ("H", pc)), ("s", "s_add_u32 s92, s92, 4096")]
    def pload(c):
        r = []
        for i in range(4):
            if c == 4: r += [("s", f"s_add_u32 s94, s88, {i*36864 + 4096}"), ("x", f"buffer_load_dwordx4 a[{PL(c,i)}:{PL(c,i)+3}], v31, s[20:23], s94 offen sc1", ("L", c))]
            else: r.append(("x", f"buffer_load_dwordx4 a[{PL(c,i)}:{PL(c,i)+3}], v14, s[20:23], s{88+i} offen offset:{c*1024} sc1", ("L", c)))
        return r
    def hhload(J): return [("x", f"buffer_load_dwordx4 a[{96+8*J+4*h}:{99+8*J+4*h}], v29, s[20:23], s52 offen offset:{h*1024} sc1", ("HL", J)) for h in range(2)] + [("s", "s_add_u32 s52, s52, 2048")]
    sched = opt("sch", 1); HA = opt("ha", 20)
    HN = opt("hn", 5)
    ev = [("HS", HN - 1, ("s50", 0), 2, HA, HA + 1, [x for J in range(HN) for x in hhload(J)], True)]
    if HN < 9: ev.append(("HS", 8, ("s50", 256), 2, opt("hb", HA + 1), opt("hb", HA + 1) + 1, [x for J in range(HN, 9) for x in hhload(J)], True))
    if sched == 1: gs = [((4,), 25, 26), ((0,), 26, None), ((1, 2, 3), None, None)]
    elif sched == 2: gs = [((4, 0), 26, None), ((1, 2, 3), None, None)]
    elif sched == 3: gs = [((4,), 25, 26), ((0, 1, 2), 27, None), ((3,), None, None)]
    elif sched == 4: gs = [((4,), 24, 25), ((0,), 25, 26), ((1, 2), 27, None), ((3,), None, None)]
    elif sched == 5: gs = [((4, 0), 26, None), ((1, 2), 27, None), ((3,), None, None)]
    elif sched == 6: gs = [((4,), 25, 26), ((0, 1), 27, None), ((2, 3), None, None)]
    elif sched == 7: gs = [((4,), 25, None), ((0, 1, 2), 27, None), ((3,), None, None)]
    elif sched == 8: gs = [((4,), 25, 26), ((0, 1, 2, 3), None, None)]
    elif sched == 9: gs = [((4,), 24, 25), ((0, 1), 27, None), ((2, 3), None, None)]
    for g, (chs, sst, chk) in enumerate(gs):
        ev.append(("ST", max(ORD[c] for c in chs), ("s53", 256 * g), 16, sst, chk, [x for c in chs for x in pload(c)], False))
    covers = lambda e: (lambda t: isinstance(t, tuple) and t[0] == e[0] and t[1] <= e[1])
    slowq = []; lper = opt("lper", 18)
    spins = []
    def sig(g):
        sk = a.lab("sg"); saved = list(a.lg)
        a(f"""s_cmp_lg_u32 s30, 0
        s_cbranch_scc1 {sk}
        s_add_u32 s95, {ev[g][2][0]}, {ev[g][2][1]}
        s_mov_b32 s98, 1
        s_atomic_add s98, s[20:21], s95
        {sk}:""")
        a.lg = saved
    def poll_issue(g):
        sk = a.lab("pi")
        return [("x", f"s_cmp_lg_u32 s30, 0\ns_cbranch_scc1 {sk}\ns_add_u32 s96, {ev[g][2][0]}, {ev[g][2][1]}\ns_mov_b32 s97, 0\ns_atomic_add s97, s[20:21], s96 glc\n{sk}:", ("F", g))]
    def poll_check(g):
        ok = a.lab("ok"); sp = a.lab("spin"); saved = list(a.lg)
        a(f"s_cmp_eq_u32 s30, 0\ns_cbranch_scc1 {sp}\n{ok}:")
        spins.append(f"""{sp}:
        s_mov_b32 s99, 0
        {sp}_l:
        s_waitcnt lgkmcnt(0)
        s_cmp_ge_u32 s97, {ev[g][3]}
        s_cbranch_scc1 {ok}
        s_mov_b32 s97, 0
        s_atomic_add s97, s[20:21], s96 glc
        s_add_u32 s99, s99, 1
        s_cmp_lt_u32 s99, 0x100000
        s_cbranch_scc1 {sp}_l
        s_waitcnt lgkmcnt(0)
        s_branch {ok}""")
    st("pro")
    if opt("prio", 0): a(f"s_setprio {opt('prio', 0)}")
    if o2 and "w1" in opts:
        a.wait(v=lambda t: t == ("P", 0) or (isinstance(t, tuple) and t[0] == "X")); a("s_barrier"); early_p1 = True
    else:
        a("s_waitcnt vmcnt(0)\ns_barrier")
    st("bar0")
    if diag and diag not in ("lite", "lite2"): a("s_waitcnt lgkmcnt(0)")
    for i in range(D):
        for r in reads(i): a(r, ltag=("A", i))
    memq = []; valq = []; pendbar = None; fastq = []
    budget = opt("bud", 2); mper = opt("mper", 4)
    def emitv(it):
        if it[0] == "w": return 1 if a.wait(v=it[1]) else 0
        emit(it); return 1
    marks = {}
    for i in range(N):
        P, xt, k, b, B, first = fr[i]
        s, pos = divmod(i, 36)
        if pos == 0 and s % 4 == 0 and s <= 16: marks[s] = len(a.l)
        if i == 648: st("s1")
        if pos == 0 and s >= 17 and s != 18: st(f"g{s}")
        KS = opt("ks", 0); early_w = None
        if KS:
            for w_ in range(1, 4):
                off = (w_ * KS) if "kh" not in opts else (KS if w_ == 2 else None)
                if off is not None and (i + D + off) % 36 == 0 and i + D + off < N and i + D + off > 0: early_w = (w_, (i + D + off) // 36)
        if early_w:
            sn_ = early_w[1]
            while any(len(x) > 2 and x[2][0] == "P" and x[2][1] <= sn_ for x in memq): emit(memq.pop(0))
            for g, e in enumerate(ev):
                if e[4] == sn_:
                    while any(len(x) > 2 and covers(e)(x[2]) for (x, _) in valq): emitv(valq.pop(0)[0])
        if (i + D) % 36 == 0 and i + D < N:
            sn = (i + D) // 36
            while any(len(x) > 2 and x[2][0] == "P" and x[2][1] <= sn + 1 for x in memq) or (memq and memq[0][0] in "sv"): emit(memq.pop(0))
            pendbar = sn
            if sn > 18: valq = [(("v", f"v_add_u32 v{1+t}, {SLOT if sn % 4 else -3*SLOT}, v{1+t}"), i) for t in range(4)] + valq
        if pos == 0:
            Pn = s + 2; q = []
            if s <= 15 and "xnox" not in opts and XA == 2: q += xload(s + 2)
            if Pn == 18: q += [("v", x) for x in s2setup]
            A3 = opt("a3", 99)
            if s < A3:
                if Pn < 27 and not ("xnodma" in opts and Pn < 18): q += dma_pair(Pn)
            else:
                if s == A3: q += dma_pair(Pn)
                if Pn + 1 < 27: q += dma_pair(Pn + 1)
            if Pn == 18: q += [("v", x) for x in s2read]
            if s <= 15 and XA == 3: q += xload(s + 3)
            if s <= 15 and XA == 4: q += xload(s + 2)
            if s == 16: q += [("s" if x.startswith("s_") else "v", x) for x in hhsetup]
            if tl and s < 16 and s % 4 == 0: q += [("x", "buffer_load_dword a232, v31, s[12:15], s50 offen", ("T", s)), ("s", f"s_add_u32 s50, s50, {128*9216}")]
            if tl and s < 16 and s % 4 == 2: q += [("x", "buffer_load_dword a233, v14, s[16:19], s51 offen", ("T", s)), ("s", f"s_add_u32 s51, s51, {128*11*128}")]
            assert not any(len(x) > 2 and x[2][0] == 'P' for x in memq)
            memq = q + memq + fastq; fastq = []
        if pos == (30 if (pn and "xtwo" not in opts) else 14 if pn else 4) and s + 1 < 18:
            valq += [(("w", ("X", s + 1)), 36 * s + 35)] + [(x, 36 * s + 35) for x in norm(s + 1)]
        if i >= 612 and i < 648 and (i - 612) % 4 == 2 and (i - 612) // 4 >= 1:
            J = (i - 612) // 4 - 1
            valq += [(x, 648 + 4 * NA * J) for x in conv(J)]
        if i == 650: valq += [(x, 648 + 4 * NA * 8) for x in conv(8)]
        if i == 652: valq += [(("v", x), 648 + 36 * 4) for x in redsetup]
        EP = opt("ep", 2)
        if s >= 23 and pos == (EP if s < 25 else 2):
            for c in {1: ((4,), (0,), (1,), (2,)), 2: ((4,), (), (0, 1), (2,)), 3: ((4,), (), (), (0, 1, 2))}[PK][s - 23]: valq += [(x, None) for x in epi(c)]
        if i == opt('hl', N - 1):
            for c in range(9): slowq += hload(c)
            if pn: slowq += [("x", f"buffer_load_dword v{(16,17,18,19,20,13,10)[q]}, v12, s[20:23], s51 offen offset:{128*q+64 if q < 6 else 0} sc1", ("R", q)) for q in range(7)]
        chks = []
        for g, e in enumerate(ev):
            if e[5] is not None and i == 36 * e[5] - D - opt("pl", 16): memq = poll_issue(g) + memq
            if e[5] is not None and pendbar == e[5]:
                while any(len(x) > 2 and x[2] == ("F", g) for x in memq): emit(memq.pop(0))
                chks.append(g)
        if slowq and i % lper == opt("loff", 0):
            while True:
                x = slowq.pop(0); memq.append(x)
                if x[0] == "x" or not slowq: break
        sigs = [g for g, e in enumerate(ev) if pendbar is not None and e[4] == pendbar]
        for g in sigs:
            while any(len(x) > 2 and covers(ev[g])(x[2]) for (x, _) in valq): emitv(valq.pop(0)[0])
        if isinstance(B, tuple) and B[2] is not None:
            while any(len(x) > 2 and x[2] == ("HL", B[2]) for x in memq): emit(memq.pop(0))
            a.wait(v=("HL", B[2]))
        while any(d is not None and d <= i for (_, d) in valq): emitv(valq.pop(0)[0])
        lw = lambda lim: a.wait(l=lambda t: t is not None and t != "SMEM" and t[1] <= lim)
        lw(i)
        f = AF(i)
        rd = reads(i + D) if i + D < N else []
        behind = len(valq) > opt("beh", 60)
        for h in range(2):
            hh = h
            if "xchain" in opts and s < 16 and i % 2 == 1:
                hh = 1 - h; k, b = fr[i - 1][2], fr[i - 1][3]; B = XR(s + 2)
            if "snake" in opts and i % 2 == 1: hh = 1 - h
            C = "0" if first else vr(b + 4 * hh, 4, k)
            a(f"v_mfma_f32_16x16x32_bf16 {vr(b+4*hh,4,k)}, a[{f}:{f+3}], {vr(B[1]+4*hh,4,'a') if isinstance(B, tuple) else vr(B+4*hh,4)}, {C}")
            sc_used = False
            if early_w and h == 0:
                w_, sn_ = early_w; sk = a.lab("eb"); sv = list(a.vm)
                sg_ = [g for g, e in enumerate(ev) if e[4] == sn_]
                a(f"s_cmp_eq_u32 s30, {w_}\ns_cbranch_scc0 {sk}" if "kh" not in opts else f"s_cmp_ge_u32 s30, 2\ns_cbranch_scc0 {sk}")
                a.wait(v=lambda t: t == ("P", sn_) or any(covers(ev[g])(t) for g in sg_))
                a(f"s_barrier\n{sk}:"); a.vm = sv; sc_used = True
            if pendbar is not None:
                sk = None
                if KS:
                    sk = a.lab("mb"); a(f"s_cmp_eq_u32 s30, 0\ns_cbranch_scc0 {sk}" if "kh" not in opts else f"s_cmp_lt_u32 s30, 2\ns_cbranch_scc0 {sk}")
                a.wait(v=lambda t: t == ("P", pendbar) or any(covers(ev[g])(t) for g in sigs))
                for g in chks: poll_check(g)
                a("s_barrier")
                if sk: a(f"{sk}:")
                for g in sigs: sig(g)
                for g in chks:
                    if ev[g][7]: fastq += ev[g][6]
                    else: slowq += ev[g][6]
                pendbar = None; sc_used = True
            if h == 1 and not sc_used: sc_used = lw(i + 1)
            if not sc_used:
                if memq and memq[0][0] in ("s", "m"):
                    emit(memq.pop(0)); sc_used = True
                    if "sc2" in opts and memq and memq[0][0] in ("s", "m"): emit(memq.pop(0))
                elif valq and valq[0][0][0] == "w": sc_used = emitv(valq.pop(0)[0])
                elif valq and valq[0][0][1].startswith("s_"): emitv(valq.pop(0)[0]); sc_used = True
            n = 0
            if rd: a(rd[h], ltag=("A", i + D)); n += 1
            mp = mper if s < 16 else opt("mq", 4)
            if memq and len(memq[0]) > 2 and memq[0][2][0] == "HL": mp = opt("mh", mp)
            if memq and memq[0][0] in ("x", "d") and (2 * i + h) % mp == (opt("mo", 0) if s < 16 else opt("mqo", 0)) % mp:
                emit(memq.pop(0)); n += 1
            elif memq and memq[0][0] == "v":
                emit(memq.pop(0)); n += 1
            while valq and n < budget + (1 if behind else 0) and valq[0][0][0] != "w" and not valq[0][0][1].startswith("s_"):
                n += emitv(valq.pop(0)[0])
    for it in memq: emit(it)
    for it, d in valq: emitv(it)
    tailq = slowq
    if loop:
        body = [[re.sub(r"K(eb|mb)_\d+", r"K\1", x.text) for x in a.l[marks[s]:marks[s + 4]]] for s in (0, 4, 8, 12)]
        assert body[1] == body[2] == body[3], "loop bodies differ"
        pre = []
        if body[0][0] != body[1][0]:
            assert body[0][0].startswith("s_waitcnt lgkmcnt"); pre = [Ins(body[0][0])]; body[0] = body[0][1:]
        assert body[0] == [x for x in body[1] if not (x.startswith("s_waitcnt vmcnt") and x not in body[0])] or \
               [x for x in body[0] if "vmcnt" not in x] == [x for x in body[1] if "vmcnt" not in x]
        lp = a.lab("loop")
        a.l = a.l[:marks[0]] + pre + [Ins("s_mov_b32 s41, 0"), Ins(f".p2align {opt('al', 3)}")] + [Ins("s_nop 0")] * opt("ao", 0) + [Ins(f"{lp}:")] + a.l[marks[4]:marks[8]] + \
              [Ins("s_add_u32 s41, s41, 1"), Ins("s_cmp_lt_u32 s41, 4"), Ins(f"s_cbranch_scc1 {lp}")] + a.l[marks[16]:]
    st("s2")
    srd(a, 12, 10, 11, 2048 * 1152)
    def red(c):
        T = 208 + 4 * c; TH = 228 + 4 * c if pn else T
        for hi in range(1 if c == 4 else 2):
            pc = c + 5 * hi; S = 224 + 4 * hi
            a.wait(v=("H", pc))
            a(f"v_mfma_f32_16x16x32_bf16 v[{TH}:{TH+3}], a[{S}:{S+3}], a[{HL(pc)}:{HL(pc)+3}], {'0' if hi == 0 else f'v[{TH}:{TH+3}]'}")
        a.wait(v=("L", c))
        for i in range(4):
            S = 224 + (4 if (c < 4 and i >= 2) else 0)
            a(f"v_mfma_f32_16x16x32_bf16 v[{T}:{T+3}], a[{S}:{S+3}], a[{PL(c,i)}:{PL(c,i)+3}], {'0' if (pn and i == 0) else f'v[{T}:{T+3}]'}")
    def rowscale():
        a.wait(v=("R", 6))
        a("""v_add_f32 v16, v16, v17
        v_add_f32 v18, v18, v19
        v_add_f32 v20, v20, v13
        v_add_f32 v16, v16, v18
        v_add_f32 v16, v16, v20
        v_mov_b32 v18, v10
        v_mul_f32 v16, 0x3ae38e39, v16
        v_add_f32 v16, 0x3727c5ac, v16
        v_rcp_f32 v16, v16""")
    lds_out = True
    osc = " sc1" if "osc1" in opts else " nt" if "ont" in opts else ""
    OST = 147456 + 1024
    def out(T):
        r = 208 + 4 * T
        if pn:
            for q in (0, 2):
                a(f"v_pk_add_f32 v[{r+20+q}:{r+21+q}], v[{r+20+q}:{r+21+q}], v[18:19] op_sel_hi:[1,0]")
                a(f"v_pk_fma_f32 v[{r+q}:{r+q+1}], v[{r+q}:{r+q+1}], v[16:17], v[{r+20+q}:{r+21+q}] op_sel_hi:[1,0,1]")
        a(f"v_cvt_pk_bf16_f32 v{r}, v{r}, v{r+1}\nv_cvt_pk_bf16_f32 v{r+1}, v{r+2}, v{r+3}")
        if T == 4: a("s_mov_b32 exec_hi, 0")
        if lds_out: a(f"ds_write_b64 v6, v[{r}:{r+1}] offset:{128*T}")
        elif "xnoout" not in opts: a(f"buffer_store_dwordx2 v[{r}:{r+1}], v5, s[12:15], s94 offen offset:{256*T}" + osc)
        if T == 4: a("s_mov_b64 exec, -1")
    def flush_out(part):
        a("s_waitcnt lgkmcnt(0)\ns_barrier")
        regs = (8, 9) if part == 0 else (10,)
        for q, r in enumerate(regs): a(f"ds_read_b128 v[{32+4*(r-8)}:{35+4*(r-8)}], v{r+3}")
        a("s_waitcnt lgkmcnt(0)")
        for q, r in enumerate(regs): a(f"buffer_store_dwordx4 v[{32+4*(r-8)}:{35+4*(r-8)}], v{r}, s[12:15], s43 offen" + osc)
    def outsetup():
      if pn:
        while any(len(x) > 2 and x[2][0] == "R" for x in pend): emit(pend.pop(0))
        rowscale()
      if lds_out:
        a(f"""v_accvgpr_read_b32 v8, a245
        v_accvgpr_read_b32 v9, a246
        v_accvgpr_read_b32 v10, a247
        s_lshl_b32 s93, s34, 6
        s_lshl_b32 s43, s33, 4
        s_add_u32 s93, s93, s43
        s_add_u32 s93, s93, {OST}
        v_add_u32 v6, s93, v5
        s_mul_i32 s93, s30, 2304
        s_mul_i32 s43, s29, {8*1152}
        s_add_u32 s43, s43, s93
        s_add_u32 s93, s93, {OST}
        v_min_u32 v11, 2288, v8
        v_min_u32 v12, 2288, v9
        v_min_u32 v13, 2288, v10
        v_add_u32 v11, s93, v11
        v_add_u32 v12, s93, v12
        v_add_u32 v13, s93, v13""")
    pend = list(tailq)
    if "osl" not in opts: outsetup()
    def issue(n):
        while pend and n > 0:
            x = pend.pop(0); emit(x)
            if x[0] == "x": n -= 1
    if "ef" in opts:
        for x in epi(3): emit(x)
    for g, e in enumerate(ev):
        if e[4] == 27:
            a.wait(v=covers(e)); a("s_barrier"); sig(g)
    if "ef" not in opts:
        for x in epi(3): emit(x)
    st("epi")
    if "osl" in opts: outsetup()
    a.wait(v=lambda t: isinstance(t, tuple) and t[0] == "ST"); a("s_barrier")
    for g, e in enumerate(ev):
        if e[4] is None: sig(g)
    st("drain")
    rest = [g for g, e in enumerate(ev) if e[5] is None]
    order = [4, 0, 1, 2]; prev = None
    for g in rest:
        nx = sum(1 for x in pend if x[0] == "x")
        issue(nx - opt("keep", 6))
        [emit(x) for x in poll_issue(g)]
        issue(99)
        if g == rest[-1]:
            for _ in range(opt("er", 0)):
                c = order.pop(0); red(c)
                if prev is not None: out(prev)
                prev = c
        poll_check(g); a("s_barrier")
        if g == rest[-1]: st("sync4")
        pend += ev[g][6]
    issue(99)
    if fl2:
        for c in order[:-1]:
            red(c)
            if prev is not None: out(prev)
            prev = c
        out(1); flush_out(0)
        red(2); red(3)
        st("loaded")
        out(2); out(3); flush_out(1)
    else:
        for c in order:
            red(c)
            if prev is not None: out(prev)
            prev = c
        out(2); flush_out(0)
        red(3)
        st("loaded")
        out(3); flush_out(1)
    st("end")
    a.spins = spins
```

```python
from common import *
from pk import divu
WOB = 36864
OOB = 0x7fffff00

def p2c_setup(a):
    a("""s_mul_i32 s27, s28, 43
    s_lshr_b32 s27, s27, 8
    s_mul_i32 s26, s27, 6
    s_sub_u32 s26, s28, s26
    s_lshl_b32 s91, s29, 2
    s_add_u32 s27, s27, s91""")
    for i in range(3):
        a(f"v_add_u32 v16, {64*i}, v15")
        divu(a, 17, 16, 12)
        a(f"""v_mul_u32_u24 v18, 12, v17
        v_sub_u32 v18, v16, v18
        v_lshrrev_b32 v19, 3, v17
        v_lshlrev_b32 v19, 1, v19
        v_xor_b32 v18, v18, v19
        v_lshlrev_b32 v18, 4, v18
        v_add_u32 v18, {2048 - 1024*i}, v18
        v_mul_u32_u24 v19, 1152, v17
        v_add_u32 v{7+i}, v19, v18
        v_lshrrev_b32 v19, 1, v17
        v_mul_u32_u24 v19, 18, v19
        v_and_b32 v17, 1, v17
        v_add_u32 v19, v19, v17
        v_mul_u32_u24 v19, 1152, v19
        v_add_u32 v{10+i}, v19, v18""")
    a(f"""v_lshrrev_b32 v16, 4, v15
    v_bfe_u32 v17, v15, 2, 2
    v_lshl_add_u32 v17, v16, 3, v17
    v_mul_u32_u24 v17, 192, v17
    v_and_b32 v18, 3, v15
    v_lshl_add_u32 v17, v18, 3, v17
    v_add_u32 v17, {WOB}, v17
    v_and_b32 v16, 1, v16
    v_lshlrev_b32 v16, 5, v16
    v_add_u32 v170, v17, v16
    v_sub_u32 v171, v17, v16
    v_add_u32 v172, 55296, v170
    v_add_u32 v173, 55296, v171
    v_and_b32 v16, 15, v15
    v_mul_u32_u24 v17, 1152, v16
    v_lshrrev_b32 v18, 4, v15
    v_lshl_add_u32 v174, v18, 3, v17
    v_lshlrev_b32 v17, 8, v18
    v_lshl_add_u32 v175, v16, 2, v17""")
    a(f"s_sub_u32 s44, s44, 2048\ns_subb_u32 s45, s45, 0\ns_add_u32 s46, s46, 2048")

def p2c_wodma(a, rot=True):
    r = []
    r.append(f"""s_mul_i32 s38, s26, 192
    s_mul_i32 s37, s30, {18*1152}
    s_add_u32 s39, s38, s37
    s_mul_i32 s37, s30, {8*18*1152}
    s_add_u32 s38, s38, s37
    s_add_u32 s38, s38, {16*1152}
    s_mul_i32 s40, s30, 3072
    s_add_u32 s40, s40, {WOB}""")
    r0 = []
    step = 4 * 18 * 1152
    if rot:
        r.append(f"s_add_u32 s43, s39, {8*step}\ns_mul_i32 s37, s26, {step}\ns_add_u32 s39, s39, s37\ns_mov_b32 s42, s39")
    for j in range(9):
        q = r0 if j == 0 else r
        q.append(f"s_add_u32 m0, s40, {j*4*3072}")
        if j < 8:
            if rot: q.append(f"s_add_u32 s39, s39, {step}\ns_cmp_ge_u32 s39, s43\ns_cselect_b32 s37, {8*step}, 0\ns_sub_u32 s39, s39, s37" if j else "s_mov_b32 s39, s42")
            else: q.append(f"s_add_u32 s39, s39, {step}" if j else f"s_sub_u32 s39, s39, {7*step}")
            q += [(f"buffer_load_dwordx4 v{7+i}, s[44:47], s39 offen offset:{i*1024} lds", "wo") for i in range(3)]
        else:
            q.append("s_nop 0")
            q += [(f"buffer_load_dwordx4 v{10+i}, s[44:47], s38 offen offset:{i*1024} lds", "wo") for i in range(3)]
    return r, r0

def p2c_xload(a):
    a(f"""s_lshl_b32 s35, s27, 2
    s_add_u32 s35, s35, s30
    s_mul_i32 s36, s35, {16*1152}
    s_mul_i32 s37, s26, 192
    s_add_u32 s36, s36, s37""")
    for t in range(6):
        a(f"buffer_load_dwordx2 v[{208+2*t}:{209+2*t}], v174, s[12:15], s36 offen offset:{32*t}", vtag="xr")

def p2c_prepoll(a, C2, sh=13):
    a(f"""s_lshr_b32 s53, s27, 1
    s_and_b32 s53, s53, 15
    s_lshl_b32 s53, s53, {sh}
    s_add_u32 s53, s53, {C2}""")
    poll_start(a, "s53")

def p2c_main(a, st, C2, C3, mid=None, early=None, late=None, pre=False, opts=()):
    O = lambda k: 64 + 4 * k
    if not pre: p2c_prepoll(a, C2)
    a(f"""s_mul_i32 s48, s35, 18432
    s_add_u32 s48, s48, {OFRAG}
    s_add_u32 s38, s48, 16384""")
    a("v_lshlrev_b32 v169, 2, v30")
    a.wait(v="wo")
    st("wo")
    poll_finish(a, "s53", 16)
    st("sync2")
    rot = "rot2" in opts
    if rot: a("s_lshl_b32 s49, s26, 11\ns_add_u32 s48, s48, s49")
    for k in range(16):
        if rot:
            if k % 2 == 0 and k: a("s_add_u32 s48, s48, 2048\ns_cmp_ge_u32 s48, s38\ns_cselect_b32 s49, 16384, 0\ns_sub_u32 s48, s48, s49")
            o = (k % 2) * 1024
        else:
            if k % 4 == 0 and k: a("s_add_u32 s48, s48, 4096")
            o = (k % 4) * 1024
        a(f"buffer_load_dwordx4 {vr(O(k),4,'a')}, v15, s[20:23], s48 offen offset:{o} sc1", vtag=("o", k))
    for e in range(8):
        a(f"buffer_load_dword a{O(16)+e}, v175, s[20:23], s38 offen offset:{(e//4)*1024 + (e%4)*64} sc1", vtag=("o", 16 + e // 4))
    pn = "pn" in opts
    if early: early()
    T = lambda t: 220 + 4 * t
    fr = [(ks, t) for ks in range(18) for t in range(6)]
    NF = 12; D = 10
    AF = lambda i: 4 * (i % NF)
    def reads(i):
        ks, t = fr[i]; f = AF(i); o = (ks % 9) * 6144 + t * 32; ad = 170 + (t % 2) + 2 * (ks // 9)
        return [f"ds_read_b64_tr_b16 a[{f}:{f+1}], v{ad} offset:{o}", f"ds_read_b64_tr_b16 a[{f+2}:{f+3}], v{ad} offset:{o+768}"]
    N = len(fr)
    for i in range(7):
        for r in reads(i): a(r, ltag=("A", i))
    if pn:
        a(f"""s_lshr_b32 s49, s35, 1
        s_lshl_b32 s49, s49, 11
        s_and_b32 s50, s35, 1
        s_lshl_b32 s50, s50, 6
        s_add_u32 s49, s49, s50
        s_add_u32 s49, s49, {PM}
        s_lshl_b32 s50, s35, 6
        s_add_u32 s50, s50, {MX}
        v_lshrrev_b32 v176, 4, v30
        v_and_b32 v177, 15, v30
        v_lshlrev_b32 v177, 2, v177
        v_lshl_add_u32 v176, v176, 7, v177""")
        for j in range(4): a(f"buffer_load_dword v{178+j}, v176, s[20:23], s49 offen offset:{512*j} sc1", vtag="pm")
        if "nomx" in opts: a("v_mov_b32 v182, 0")
        else: a("buffer_load_dword v182, v177, s[20:23], s50 offen sc1", vtag="pm")
    D = 7
    a(f"""s_lshr_b32 s49, s35, 1
    s_mul_i32 s48, s49, 36864
    s_and_b32 s38, s35, 1
    s_lshl_b32 s38, s38, 10
    s_add_u32 s48, s48, s38
    s_mul_i32 s38, s26, 6144
    s_add_u32 s48, s48, s38
    s_mul_i32 s39, s35, 768
    s_lshl_b32 s38, s26, 7
    s_add_u32 s39, s39, s38
    s_add_u32 s39, s39, {STATS}
    s_add_u32 s53, s53, {C3-C2}
    s_mov_b32 s50, 0x3f80
    s_mov_b32 s51, 0x3f800000""")
    if HFRAG: a(f"s_add_u32 s48, s48, {HFRAG}")
    for i in range(N):
        ks, t = fr[i]
        a.wait(v=("o", ks), l=lambda tg: isinstance(tg, tuple) and tg[0] == "A" and tg[1] <= i)
        f = AF(i)
        a(f"v_mfma_f32_16x16x32_bf16 {vr(T(t),4)}, a[{f}:{f+3}], {vr(O(ks),4,'a')}, {'0' if ks == 0 else vr(T(t),4)}")
        if i % 2 == 0: a.wait(l=lambda tg: isinstance(tg, tuple) and tg[0] == "A" and tg[1] <= i + 2)
        if i + D < N and not ("xhalf2" in opts and i % 2):
            for r in reads(i + D): a(r, ltag=("A", i + D))
    st("gemm2")
    a.wait(v="xr")
    for t in range(6):
        for q in range(2):
            a(f"v_dot2_f32_bf16 v{T(t)+2*q}, v{208+2*t+q}, s50, v{T(t)+2*q}\nv_dot2_f32_bf16 v{T(t)+2*q+1}, v{208+2*t+q}, s51, v{T(t)+2*q+1}")
    if pn:
        a.wait(v="pm")
        a("""v_add_f32 v178, v178, v179
        v_add_f32 v180, v180, v181
        v_add_f32 v178, v178, v180
        v_mov_b32 v179, v178
        v_permlane16_swap_b32 v178, v179
        v_add_f32 v178, v178, v179
        v_mov_b32 v179, v178
        v_permlane32_swap_b32 v178, v179
        v_add_f32 v178, v178, v179
        v_add_f32 v178, v178, v182""")
        for q in range(0, 24, 2): a(f"v_pk_add_f32 v[{220+q}:{221+q}], v[{220+q}:{221+q}], v[178:179] op_sel_hi:[1,0] neg_lo:[0,1] neg_hi:[0,1]")
    for tp in range(3):
        S = 244 + 4 * tp
        for e in range(2):
            b = T(2 * tp + e)
            a(f"v_cvt_pk_bf16_f32 v{S+2*e}, v{b}, v{b+1}\nv_cvt_pk_bf16_f32 v{S+2*e+1}, v{b+2}, v{b+3}")
        if tp == 2: a("s_add_u32 s48, s48, 4096")
        a(f"buffer_store_dwordx4 {vr(S,4)}, v15, s[20:23], s48 offen offset:{(tp%2)*2048} sc1", vtag="hs")
    a("s_mov_b32 s50, 0x3f803f80")
    for q in range(12):
        c0 = "0" if q < 2 else f"v{220+2*(q&1)}"; c1 = "0" if q < 2 else f"v{221+2*(q&1)}"
        if not pn: a(f"v_dot2_f32_bf16 v{220+2*(q&1)}, v{244+q}, s50, {c0}")
        a(f"v_dot2_f32_bf16 v{221+2*(q&1)}, v{244+q}, v{244+q}, {c1}")
    if pn: a("v_mul_f32 v220, 0.5, v178\nv_mul_f32 v220, 0.5, v220\nv_mov_b32 v222, 0")
    a(f"""v_add_f32 v220, v220, v222
    v_add_f32 v221, v221, v223
    v_permlane16_swap_b32 v220, v221
    v_add_f32 v220, v220, v221
    v_mov_b32 v221, v220
    v_permlane32_swap_b32 v220, v221
    v_add_f32 v220, v220, v221
    s_mov_b32 exec_hi, 0
    buffer_store_dword v220, v169, s[20:23], s39 offen sc1
    s_mov_b64 exec, -1""", vtag="hs")
    if mid:
        a("s_barrier"); mid()
    a.wait(v="hs"); a("s_barrier")
    st("hst")
    signal(a, "s53")
    if late: late()
```

```python
from asmlib import *
from layout import *

class Stamps:
    def __init__(self, a, on, kidx=0):
        self.a = a; self.on = on; self.n = 0; self.kidx = kidx; self.names = []; self.groups = []
    NOTES = {
        "entry": "set-up; warm the L2 with this kernel's code and constant table",
        "start": "phase 0: this workgroup's 8 rows of x are in flight; weight-slice addresses, w_phi block matrix, first K/V weight rows",
        "x8": "LayerNorm 1 of 8 rows; the normalised rows are published in MFMA operand order",
        "ln": "constant table, drain, signal hand-off 0",
        "sig0": "stream the K/V weight slice into LDS, wait for hand-off 0",
        "sync0": "phase 1: K, V projection of 128 rows x 2 heads",
        "gemm": "k feature map (w_phi), dual softmax with true max / min, stage phi_k and v in LDS",
        "smk": "kv and z partial sums over the 128 rows",
        "kvmm": "q projection; signal hand-off 1 once the partials have drained; wo slice streams into LDS",
        "qgemm": "wait for hand-off 1",
        "sync1": "phase 2a: sum the 16 kv partials, q softmax",
        "kvred": "o = num / (den + 1e-6), contribution to the row mean of h; publish, signal hand-off 2",
        "ost": "phase 2b (192 workgroups): h = x + o @ wo for 64 rows x 96 columns",
        "sync2": "o fragments, projection; accumulators start at x - mean(h)",
        "gemm2": "publish centred h and its sums of squares, signal hand-off 3",
        "sync3": "phase 3: FFN for 128 rows x 288 hidden units",
        "bar0": "gate / up projections: 18 stages through a 4-slot LDS ring (stages 0-15 as a loop)",
        "s1": "relu(gate)*up, swap halves with the partner workgroup, down projection, partial sums out",
        "s2": "tail: last partials, hand-offs 4",
        "sync4": "sum the partials, scale by 1/(var+eps), add h, write the output rows",
    }
    def __call__(self, name):
        if name in self.NOTES: self.a.l.append(Ins("; ---- " + self.NOTES[name]))
        if not self.on: return
        if isinstance(self.on, tuple):
            if name == self.on[0]: self.a("s_memrealtime s[56:57]")
            if name == self.on[1]: self.a("s_memrealtime s[58:59]")
            self.names.append(name)
            return
        if name[0] == "g" and name[1:].isdigit() and int(name[1:]) >= 17 and self.on != "lite2": return
        if self.on == "lite2" and name not in ("entry", "g17", "s1", "g19", "g20", "g21", "g22", "g23", "g24", "g25", "g26", "s2", "epi", "drain", "sync4", "end"): return
        if self.on in ("dbg", "lite") and name not in ("entry", "x8", "sync0", "gemm", "kvst", "sync1", "ost", "sync2", "sync3", "bar0", "s1", "s2", "drain", "sync4", "end"): return
        saved = list(self.a.lg)
        self.a(f"{'s_memtime' if self.on == 'cyc' else 's_memrealtime'} s[{56+2*self.n}:{57+2*self.n}]")
        if self.on in ("lite", "lite2"): self.a.lg = saved
        self.names.append(name); self.n += 1
        assert self.n <= 16
    def dump(self, srd, wave, va=0, vd=1):
        if not self.on: return
        a = self.a
        if isinstance(self.on, tuple):
            if self.names[-1] != "end": return
            sk = a.lab("noamp"); lp = a.lab("amp")
            a(f"""s_waitcnt lgkmcnt(0)
            s_lshl_b32 s3, s2, 2
            s_add_u32 s3, s3, {wave}
            s_cmp_lg_u32 s3, {self.on[2] * 4}
            s_cbranch_scc1 {sk}
            s_sub_u32 s58, s58, s56
            s_mul_i32 s58, s58, 4
            s_min_u32 s58, s58, 100000
            s_memrealtime s[60:61]
            s_waitcnt lgkmcnt(0)
            {lp}:
            s_memrealtime s[62:63]
            s_waitcnt lgkmcnt(0)
            s_sub_u32 s62, s62, s60
            s_cmp_lt_u32 s62, s58
            s_cbranch_scc1 {lp}
            {sk}:""")
            return
        if self.on in ("lite", "lite2") and self.names[-1] != "end": return
        if self.on == "dbg":
            if self.names[-1] != "end": return
            sk = a.lab("nodbg")
            a(f"""s_load_dwordx2 s[4:5], s[0:1], 72
            s_waitcnt lgkmcnt(0)
            s_lshl_b32 s3, s2, 2
            s_add_u32 s3, s3, {wave}
            s_cmp_lg_u32 s3, 28
            s_cbranch_scc1 {sk}
            s_mov_b32 s6, 256
            s_mov_b32 s7, 0x20000
            v_mov_b32 v{vd}, 0""")
            for q in range(1, self.n): a(f"s_sub_u32 s3, s{56+2*q}, s56\nv_writelane_b32 v{vd}, s3, {q}")
            a(f"""v_mbcnt_lo_u32_b32 v{va}, -1, 0
            v_lshlrev_b32 v{va}, 2, v{va}
            s_mov_b64 exec, 0xfffe
            buffer_store_dword v{vd}, v{va}, s[4:7], 0 offen
            s_mov_b64 exec, -1
            {sk}:""")
            self.groups.append(self.names)
            return
        a(f"s_waitcnt lgkmcnt(0)\nv_mov_b32 v{vd}, 0")
        for q in range(self.n): a(f"v_writelane_b32 v{vd}, s{56+2*q}, {q}")
        a(f"""s_lshl_b32 s3, s2, 2
        s_add_u32 s3, s3, {wave}
        s_lshl_b32 s3, s3, 6
        s_add_u32 s3, s3, {TS + self.kidx * 0x10000}
        v_mbcnt_lo_u32_b32 v{va}, -1, 0
        v_lshlrev_b32 v{va}, 2, v{va}
        s_mov_b64 exec, 0xffff
        buffer_store_dword v{vd}, v{va}, {srd}, s3 offen
        s_mov_b64 exec, -1""")
        self.groups.append(self.names); self.names = []; self.n = 0; self.kidx += 1

def code_prefetch(a, lab_from, lab_to, vaddr, vdst, nwg_shift=3, reps=1, wide=False):
    pc = a.lab("pc")
    a(f"""s_getpc_b64 s[92:93]
    {pc}:
    s_add_u32 s92, s92, {lab_from}-{pc}
    s_addc_u32 s93, s93, 0
    s_mov_b32 s94, {lab_to}-{lab_from}
    s_mov_b32 s95, 0x20000
    s_lshr_b32 s96, s2, {nwg_shift}
    s_mul_i32 s96, s96, {3072 if wide else 2048}
    v_mul_u32_u24 v{vaddr}, {12 if wide else 8}, v0""")
    for r in range(reps):
        if r: a("s_add_u32 s96, s96, 0x10000")
        a(f"buffer_load_dwordx{3 if wide else 2} {vdst}, v{vaddr}, s[92:95], s96 offen", vtag="pf")

def srd(a, d, lo, hi, nbytes):
    a(f"s_mov_b32 s{d}, s{lo}\ns_mov_b32 s{d+1}, s{hi}\ns_mov_b32 s{d+2}, {nbytes}\ns_mov_b32 s{d+3}, 0x20000")

def signal(a, cnt_sreg, vt=None, check_init=False, cnt2=None):
    sk = a.lab("sig"); saved = list(a.lg)
    a(f"""s_cmp_lg_u32 s30, 0
    s_cbranch_scc1 {sk}""")
    if check_init:
        lp = a.lab("ini"); dn = a.lab("inid"); sv = list(a.vm)
        a(f"""s_mov_b32 s97, 0
        {lp}:
        v_readfirstlane_b32 s98, v{check_init}
        s_cmp_eq_u32 s98, 1
        s_cbranch_scc1 {dn}
        v_mov_b32 v16, 0
        buffer_load_dword v{check_init}, v16, s[24:27], 0 offen sc1
        s_add_u32 s97, s97, 1
        s_cmp_lt_u32 s97, 0x100000
        s_waitcnt vmcnt(0)
        s_cbranch_scc1 {lp}
        {dn}:""")
        a.vm = sv
    a(f"""s_mov_b32 s98, 1
    s_atomic_add s98, s[20:21], {cnt_sreg}""")
    if cnt2: a(f"s_atomic_add s98, s[20:21], {cnt2}")
    a(f"{sk}:")
    a.lg = saved

def poll(a, cnt_sreg, target, vt=None):
    sk = a.lab("pk"); lp = a.lab("poll"); dn = a.lab("done"); saved = list(a.lg)
    a(f"""s_cmp_lg_u32 s30, 0
    s_cbranch_scc1 {sk}
    s_mov_b32 s97, 0
    s_waitcnt lgkmcnt(0)
    {lp}:
    s_mov_b32 s98, 0
    s_atomic_add s98, s[20:21], {cnt_sreg} glc
    s_add_u32 s97, s97, 1
    s_waitcnt lgkmcnt(0)
    s_cmp_ge_u32 s98, {target}
    s_cbranch_scc1 {dn}
    s_cmp_lt_u32 s97, 0x100000
    s_cbranch_scc1 {lp}
    {dn}:
    {sk}:
    s_barrier""")
    a.lg = saved

def init_check(a, vreg):
    lp = a.lab("ini"); dn = a.lab("inid"); sv = list(a.vm)
    a(f"""s_cmp_lg_u32 s30, 0
    s_cbranch_scc1 {dn}
    s_mov_b32 s97, 0
    {lp}:
    v_readfirstlane_b32 s98, v{vreg}
    s_cmp_eq_u32 s98, 1
    s_cbranch_scc1 {dn}
    v_mov_b32 v16, 0
    buffer_load_dword v{vreg}, v16, s[24:27], 0 offen sc1
    s_add_u32 s97, s97, 1
    s_cmp_lt_u32 s97, 0x100000
    s_waitcnt vmcnt(0)
    s_cbranch_scc1 {lp}
    {dn}:""")
    a.vm = sv

def poll2(a, c0, t0, c1, t1):
    sk = a.lab("pk"); lp = a.lab("poll"); dn = a.lab("done"); saved = list(a.lg)
    a(f"""s_cmp_lg_u32 s30, 0
    s_cbranch_scc1 {sk}
    s_mov_b32 s97, 0
    s_waitcnt lgkmcnt(0)
    {lp}:
    s_mov_b32 s98, 0
    s_mov_b32 s96, 0
    s_atomic_add s98, s[20:21], {c0} glc
    s_atomic_add s96, s[20:21], {c1} glc
    s_add_u32 s97, s97, 1
    s_waitcnt lgkmcnt(0)
    s_cmp_ge_u32 s98, {t0}
    s_cselect_b32 s96, s96, 0
    s_cmp_ge_u32 s96, {t1}
    s_cbranch_scc1 {dn}
    s_cmp_lt_u32 s97, 0x100000
    s_cbranch_scc1 {lp}
    {dn}:
    {sk}:
    s_barrier""")
    a.lg = saved

class Table:
    def __init__(self, label):
        self.label = label; self.chunks = []
    def chunk(self, fns):
        fns = list(fns) + [lambda l: 0] * (4 - len(fns))
        self.chunks.append([[f(l) & 0xffffffff for f in fns] for l in range(64)])
        return len(self.chunks) - 1
    def srd(self, a, d):
        pc = a.lab("tpc")
        a(f"""s_getpc_b64 s[{d}:{d+1}]
        {pc}:
        s_add_u32 s{d}, s{d}, {self.label}-{pc}
        s_addc_u32 s{d+1}, s{d+1}, 0
        s_mov_b32 s{d+2}, {self.label}_end-{self.label}
        s_mov_b32 s{d+3}, 0x20000""")
    def load(self, dst, fns, vaddr, d, kind="v"):
        c = self.chunk(fns)
        so = "0" if c < 4 else None
        if c < 4: return f"buffer_load_dwordx4 {kind}[{dst}:{dst+3}], v{vaddr}, s[{d}:{d+3}], 0 offen offset:{c*1024}"
        return f"s_movk_i32 s3, {(c//4)*4096}\nbuffer_load_dwordx4 {kind}[{dst}:{dst+3}], v{vaddr}, s[{d}:{d+3}], s3 offen offset:{(c%4)*1024}"
    def text(self):
        s = f".p2align 7\n.type {self.label},@object\n{self.label}:\n"
        for ch in self.chunks:
            for l in range(64): s += ".long " + ", ".join(f"{v:#x}" for v in ch[l]) + "\n"
        return s + f"{self.label}_end:\n.size {self.label}, {self.label}_end-{self.label}\n"

def poll_start(a, cnt_sreg):
    sk = a.lab("ps"); saved = list(a.lg)
    a(f"""s_cmp_lg_u32 s30, 0
    s_cbranch_scc1 {sk}
    s_mov_b32 s96, 0
    s_atomic_add s96, s[20:21], {cnt_sreg} glc
    {sk}:""")
    a.lg = saved

def poll_finish(a, cnt_sreg, target):
    sk = a.lab("pf"); lp = a.lab("pfl"); saved = list(a.lg)
    a(f"""s_cmp_lg_u32 s30, 0
    s_cbranch_scc1 {sk}
    s_mov_b32 s97, 0
    {lp}:
    s_waitcnt lgkmcnt(0)
    s_cmp_ge_u32 s96, {target}
    s_cbranch_scc1 {sk}
    s_mov_b32 s96, 0
    s_atomic_add s96, s[20:21], {cnt_sreg} glc
    s_add_u32 s97, s97, 1
    s_cmp_lt_u32 s97, 0x100000
    s_cbranch_scc1 {lp}
    s_waitcnt lgkmcnt(0)
    {sk}:
    s_barrier""")
    a.lg = saved
```

```python
from common import *
from ffn16 import dma_offsets, store_setup
UNIT = 18432; SLOT = 2 * UNIT

def ffn_body(a, st, opts, C3, C4, front, tb, C5):
    opt = lambda k, d: next((int(o[len(k):]) for o in reversed(opts) if re.fullmatch(k + r'\d+', o)), d)
    diag = st.on
    T0 = 21
    G = lambda t: 64 + 8 * t
    pn = "pn" in opts
    def U(t):
        if t < 6: return ("v", 208 + 8 * t)
        if pn: return ("v", 32 + 8 * (t - 6)) if t < 10 else ("a", 96 + 8 * (t - 10))
        return ("a", 96 + 8 * (t - 6))
    XR = (lambda k: 8 * (k % 4)) if pn else (lambda k: 32 + 8 * (k % 4))
    XK = "a" if pn else "v"
    NF = opt("nf", 8); D = NF - 2; NA = 2; PK = opt('pk', 1)
    AF = lambda i: 192 + 4 * (i % NF)
    def emit(it):
        if len(it) > 2 and it[2][0] == "F":
            saved = list(a.lg); a(it[1]); a.lg = saved
        elif len(it) > 2: a(it[1], vtag=it[2])
        else: a(it[1])
    pol = " sc1" if "dsc1" in opts else " nt" if "dnt" in opts else " sc0" if "dsc0" in opts else ""
    def blocks(P):
        if P < 20: return [(J, lc) for J in range(9) for lc in range(2)][9 * (P - 18):9 * (P - 17)]
        if P < 23: return [(J, P - 18) for J in range(9)]
        if P < 23 + PK: return [(9 + J, lc) for J in range(9) for lc in range(PK)][9 * (P - 23):9 * (P - 22)]
        return [(9 + J, P - 23) for J in range(9)]
    def dma_pair(P):
        r = []; slot = P % 4
        if P < 18:
            for i in range(9):
                if i % 4 == 0: r.append(("m", f"s_add_u32 m0, s37, {slot*SLOT + i*1024}"))
                r.append(("d", f"buffer_load_dwordx4 v{i}, s[12:15], s36 offen offset:{(i%4)*1024}{pol} lds", ("P", P)))
            return r + [("s", f"s_add_u32 s36, s36, {32*9216}")]
        for b, (J, cg) in enumerate(blocks(P)):
            r.append(("m", f"s_add_u32 m0, s40, {slot*SLOT + b*4096}"))
            base = "s100" if J >= 9 else ("s101" if cg == 4 else "s38")
            r.append(("s", f"s_add_u32 s39, {base}, {(J%9)*32*1152 + (cg%4)*128}"))
            r.append(("d", f"buffer_load_dwordx4 v0, s[16:19], s39 offen{pol} lds", ("P", P)))
        return r
    def dsrc(i):
        def f(l):
            p = i * 1024 + l * 16; row, col = divmod(p, 576)
            return row * 9216 + (col ^ (32 if row & 4 else 0)) + 3072 - (i % 4) * 1024
        return f
    rdb = lambda l, sg: (l >> 2) * 576 + 8 * (l & 3) + sg * 32 * ((l >> 4) & 1)
    OOBV = 0x7fffff00
    fl2 = "fl2" in opts
    L0 = (0, 1, 4, 5, 6) if fl2 else (0, 1, 2, 4, 5, 6, 7)
    L1 = (2, 3, 7, 8) if fl2 else (3, 8)
    def flx(L, p):
        if p >= 16 * len(L): return OOBV
        row, q = divmod(p, 8 * len(L)); ln, pc = divmod(q, 8)
        return row * 1152 + L[ln] * 128 + pc * 16
    def setup():
        a(f"""v_mov_b32 v30, v15
        s_lshl_b32 s31, s29, 1
        s_and_b32 s33, s28, 1
        s_add_u32 s31, s31, s33
        s_lshr_b32 s32, s28, 1
        s_and_b32 s33, s30, 1
        s_lshr_b32 s34, s30, 1
        v_lshlrev_b32 v15, 4, v30""")
        for x in (tb.load(0, [dsrc(i) for i in range(4)], 15, 88), tb.load(4, [dsrc(i) for i in range(4, 8)], 15, 88),
                  tb.load(8, [dsrc(8)] + [(lambda l, q=q: rdb(l, 1) + 55296 * q) for q in range(3)], 15, 88),
                  tb.load(16, [(lambda l, q=q: rdb(l, -1) + 55296 * q) for q in range(3)], 15, 88),
                  tb.load(24, [lambda l: (l // 9) * 9216 + (l % 9) * 128 if l < 18 else OOBV, lambda l: l * 128 if l < 11 else OOBV,
                               lambda l: (l >> 5) * 768 + (l & 31) * 4], 15, 88),
                  tb.load(236, [lambda l: (l >> 3) * 1152 + (((l & 7) << 4) ^ ((l >> 4) << 5))] +
                               [(lambda l, t=t: 2 * SLOT + (l >> 2) * 128 + 8 * (l & 3) + 32 * (((l >> 3) & 3) ^ t)) for t in range(3)], 15, 88, "a"),
                  tb.load(240, [lambda l: 2 * SLOT + (l >> 2) * 128 + 8 * (l & 3) + 32 * (((l >> 3) & 3) ^ 3),
                                lambda l: (l & 7) * 1152 + 8 * ((l >> 3) & 1) + 640 * (l >> 5) + 32 * ((l >> 4) & 1),
                                lambda l: ((l >> 3) & 1) * 256 + (l & 7) * 16 if l < 16 else OOBV,
                                lambda l: (l >> 4) * 9216 + (l & 15) * 16], 15, 88, "a"),
                  tb.load(244, [lambda l: ((l >> 3) & 1) * 147456 + (l >> 4) * 128 + (l & 7) * 16,
                                lambda l: flx(L0, l), lambda l: flx(L0, 64 + l), lambda l: flx(L1, l)], 15, 88, "a")):
            a(x, vtag="ftab")
        a(f"""s_cmp_eq_u32 s34, 0
        s_cselect_b32 s12, s4, s6
        s_cselect_b32 s13, s5, s7
        s_sub_u32 s12, s12, 3072
        s_subb_u32 s13, s13, 0
        s_mov_b32 s14, {576*9216+3072}
        s_mov_b32 s15, 0x20000""")
        srd(a, 16, 8, 9, 4608 * 1152)
        a(f"""s_mul_i32 s36, s31, 576
        s_mul_i32 s39, s33, {16*9216}
        s_add_u32 s36, s36, s39
        s_mul_i32 s37, s30, 9216""")
    def dma0(P):
        a.wait(v="ftab")
        [emit(x) for x in dma_pair(P)]
    loop = "noloop" not in opts
    def zero(part):
        if "mz" in opts:
            if part == 0:
                for q in range(4): a(f"v_mov_b32 v{60+q}, 0")
            blk = [("v", r) for r in range(64, 160, 16)] + [("a", r) for r in (144, 160, 176)] if part == 0 else [("v", r) for r in range(160, 256, 16)] + [("a", r) for r in (96, 112, 128)]
            for k, r in blk: a(f"v_mfma_f32_32x32x16_bf16 {vr(r,16,k)}, v[60:63], v[60:63], 0")
            return
        regs = []
        for t in range(18):
            for q in range(8):
                regs.append(("v", G(t) + q)); k, b = U(t); regs.append((k, b + q))
        for (k, r) in regs:
            late = (k == "v" and r >= 168) or (k == "a" and r < 136)
            if late == (part == 1): a(f"v_mov_b32 v{r}, 0" if k == "v" else f"v_accvgpr_write_b32 a{r}, 0")
    front(setup, dma0, zero)
    o2 = "ord2" in opts
    if o2:
        a(f"s_lshl_b32 s53, s32, 13\ns_add_u32 s53, s53, {C3}")
        poll_start(a, "s53")
        dma0(0)
    tl = "notl" not in opts
    if tl:
        a(f"""v_mov_b32 v31, v24
        v_mov_b32 v14, v25
        s_lshl_b32 s50, s28, 1
        s_add_u32 s50, s50, s33
        s_mul_i32 s50, s50, {2*9216}
        s_mul_i32 s51, s29, 1152
        s_add_u32 s50, s50, s51
        s_add_u32 s50, s50, {opt("tla", 256)*9216 + 3072}
        s_lshl_b32 s51, s28, 2
        s_add_u32 s51, s51, s30
        s_mul_i32 s51, s51, {11*128}
        s_mul_i32 s52, s29, {576*1152}
        s_add_u32 s51, s51, s52""")
    a(f"""s_lshl_b32 s35, s32, 2
    s_add_u32 s35, s35, s30
    s_mul_i32 s43, s35, 1536
    s_mul_i32 s35, s35, 36864
    s_add_u32 s43, s43, {STATS}
    s_mul_i32 s38, s31, {288*1152}
    s_mul_i32 s39, s30, {8*1152}
    s_add_u32 s38, s38, s39
    s_add_u32 s101, s38, 512
    s_and_b32 s39, s31, 1
    s_mul_i32 s100, s39, 640
    s_add_u32 s38, s38, s100
    s_mul_i32 s39, s39, {2*288*1152}
    s_add_u32 s100, s38, {288*1152}
    s_sub_u32 s100, s100, s39
    s_lshl_b32 s40, s30, 10
    s_mov_b32 s47, 0xffff0000
    s_lshl_b32 s53, s32, {8 if 'c3g' in opts else 13}
    s_add_u32 s53, s53, {C3}
    v_mov_b32 v29, v26""")
    if HFRAG: a(f"s_add_u32 s35, s35, {HFRAG}")
    if "z1e" in opts: zero(1)
    if o2 or "ap3" in opts: poll_finish(a, "s53", 12)
    else: poll(a, "s53", 12)
    st("sync3")
    def xload(k):
        r = []
        for h in range(2):
            r.append(("x", f"buffer_load_dwordx4 {vr(XR(k)+4*h,4,XK)}, v15, s[20:23], s35 offen offset:{h*1024} sc1", ("X", k)))
        if "xtwo" in opts: r = r + r
        return r + [("s", "s_add_u32 s35, s35, 2048")]
    for q in range(0 if pn else 6): a(f"buffer_load_dword v{(56,57,58,59,27,28)[q]}, v29, s[20:23], s43 offen offset:{128*q} sc1", vtag="st")
    XA = opt("xa", 2)
    for k in range(3 if XA == 3 else 2): [emit(x) for x in xload(k)]
    if o2: dma0(1)
    if loop and "z1e" not in opts: zero(1)
    a.wait(v="st")
    if not pn: a("""v_add_f32 v56, v56, v57
    v_add_f32 v58, v58, v59
    v_add_f32 v27, v27, v28
    v_add_f32 v56, v56, v58
    v_add_f32 v56, v56, v27
    v_mul_f32 v56, 0x3ae38e39, v56
    v_mov_b32 v57, v56
    v_permlane16_swap_b32 v56, v57
    v_fma_f32 v57, -v56, v56, v57
    v_max_f32 v57, 0, v57
    v_add_f32 v57, 0x3727c5ac, v57
    v_rsq_f32 v12, v57
    s_nop 0
    v_mul_f32_e64 v19, -v56, v12
    v_mov_b32 v13, v12
    v_mov_b32 v20, v19
    v_permlane32_swap_b32 v12, v13
    v_permlane32_swap_b32 v19, v20""")
    def norm(k):
        r = []
        if "xtwo" in opts and k < 17: return [("v", f"v_max_f32_e32 v{T0+q%8}, 0, v{T0+q%8}") for q in range(16)]
        if "xnonorm" in opts or pn: return r
        for h in range(2):
            b = XR(k) + 4 * h
            for j in range(4):
                r.append(("v", f"v_lshlrev_b32_e32 v{T0+2*j}, 16, v{b+j}"))
                r.append(("v", f"v_and_b32_e32 v{T0+1+2*j}, s47, v{b+j}"))
            for j in range(8):
                r.append(("v", f"v_fma_f32 v{T0+j}, v{T0+j}, v{12+h}, v{19+h}"))
            for j in range(4):
                r.append(("v", f"v_cvt_pk_bf16_f32 v{b+j}, v{T0+2*j}, v{T0+1+2*j}"))
        return r
    def conv(J):
        r = []
        for h in range(2):
            for e in range(2):
                t = 2 * J + e; g = G(t) + 4 * h; k, u = U(t); u += 4 * h
                for q in range(4):
                    if k == "a": r.append(("v", f"v_accvgpr_read_b32 v{T0+q}, a{u+q}"))
                    r.append(("v", f"v_max_f32_e32 v{g+q}, 0, v{g+q}"))
                for q in range(4):
                    src = f"v{T0+q}" if k == "a" else f"v{u+q}"
                    r.append(("v", f"v_mul_f32_e32 v{g+q}, v{g+q}, {src}"))
                d = G(2 * J) + 4 * h + 2 * e
                for q in range(2):
                    r.append(("v", f"v_cvt_pk_bf16_f32 v{d+q}, v{g+2*q}, v{g+2*q+1}"))
            r.append(("st", f"buffer_store_dwordx4 {vr(G(2*J)+4*h,4)}, v29, s[20:23], s43 offen offset:{h*1024} sc1", ("HS", J)))
            if h: r.append(("s", "s_add_u32 s43, s43, 2048"))
        if "xtwo" in opts:
            if J < 5: r = [x for x in r if x[0] != "v"]
            else: r = [x for x in r if "accvgpr" not in x[1]]
        return r
    def acc2(c, t):
        if c < 2: return ("a", 8 * (4 * c + t))
        if c < 4: return ("v", G(2 * ((c - 2) * 4 + t) + 1))
        return ("v", 208 + 8 * t)
    ecount = [0]
    ORD = {4: 0, 0: 1, 1: 2, 2: 3, 3: 4}
    def epi(c):
        r = []
        for tp in range(2):
            for h in range(2):
                S = 32 + 4 * (ecount[0] % 8); ecount[0] += 1
                for e in range(2):
                    k, b = acc2(c, 2 * tp + e); b += 4 * h
                    if k == "a":
                        for q in range(4): r.append(("v", f"v_accvgpr_read_b32 v{T0+4*e+q}, a{b+q}"))
                        b = T0 + 4 * e
                    for q in range(2): r.append(("v", f"v_cvt_pk_bf16_f32 v{S+2*e+q}, v{b+2*q}, v{b+2*q+1}"))
                r.append(("st", f"buffer_store_dwordx4 {vr(S,4)}, v15, s[20:23], s{(46 if c == 4 else 44)+h} offen offset:{(c%4)*1024 + tp*512} sc1", ("ST", ORD[c])))
        return r
    a.wait(v=("X", 0))
    [emit(x) for x in norm(0)]
    fr = []
    for ks in range(18):
        for t in range(18):
            fr.append((ks, (0, t), "v", G(t), ("a", XR(ks), None) if pn else XR(ks), ks == 0 and not loop))
            k, b = U(t); fr.append((ks, (1, t), k, b, ("a", XR(ks), None) if pn else XR(ks), ks == 0 and not loop))
    for P in range(18, 27):
        for b_, (J, cg) in enumerate(blocks(P)):
            for t in range(4):
                k, b = acc2(cg, t)
                fr.append((P, (b_, t), k, b, G(2 * J) if J < 9 else ("a", 96 + 8 * (J - 9), J - 9), J == 0))
    N = len(fr)
    def reads(i):
        P, (x, t) = fr[i][0], fr[i][1]; f = AF(i)
        if P < 18:
            slot = (2 * P + x) % 8; base = (9 if t % 2 == 0 else 16) + slot // 3
            o = (slot % 3) * UNIT + t * 32; o2 = o + 9216
        else:
            base = 1 + t; o = x * 4096; o2 = o + 2048
        return [f"ds_read_b64_tr_b16 a[{f}:{f+1}], v{base} offset:{o}", f"ds_read_b64_tr_b16 a[{f+2}:{f+3}], v{base} offset:{o2}"]
    s2setup = ["v_accvgpr_read_b32 v0, a236"]
    s2read = [f"v_accvgpr_read_b32 v{1+t}, a{237+t}" for t in range(4)]
    hhsetup = ["v_lshlrev_b32 v29, 4, v30", "s_lshl_b32 s43, s2, 2", "s_add_u32 s43, s43, s30", "s_mul_i32 s43, s43, 18432", f"s_add_u32 s43, s43, {HHX}",
               "s_xor_b32 s52, s2, 8", "s_lshl_b32 s52, s52, 2", "s_add_u32 s52, s52, s30", "s_mul_i32 s52, s52, 18432", f"s_add_u32 s52, s52, {HHX}",
               "s_lshr_b32 s50, s31, 1", "s_lshl_b32 s51, s32, 4", "s_add_u32 s50, s50, s51", "s_lshl_b32 s50, s50, 9", f"s_add_u32 s50, s50, {C5}"]
    redsetup = ["v_accvgpr_read_b32 v15, a244", "v_accvgpr_read_b32 v5, a241", "v_accvgpr_read_b32 v7, a242", "v_accvgpr_read_b32 v31, a243",
                "v_lshrrev_b32 v14, 4, v30", "v_mul_u32_u24 v14, 9216, v14", "v_add_u32 v14, v14, v31",
                "s_lshl_b32 s44, s32, 4", "s_lshl_b32 s45, s30, 2", "s_add_u32 s44, s44, s45", "s_lshl_b32 s44, s44, 4", "s_add_u32 s44, s44, s31",
                "s_mul_i32 s44, s44, 9216", f"s_add_u32 s44, s44, {PART}", "s_add_u32 s46, s44, 4096", f"s_add_u32 s47, s46, {2*147456}",
                "s_and_b32 s45, s31, 1", "s_mul_i32 s45, s45, 5120", "s_add_u32 s44, s44, s45", f"s_add_u32 s45, s44, {2*147456}",
                "s_lshl_b32 s29, s32, 4", "s_add_u32 s29, s29, s31",
                "s_mul_i32 s88, s29, 147456", "s_lshl_b32 s89, s30, 8", "s_add_u32 s88, s88, s89", f"s_add_u32 s88, s88, {PART}",
                "s_add_u32 s89, s88, 73728", "s_add_u32 s90, s88, 14336", "s_add_u32 s91, s89, 14336",
                "s_lshr_b32 s92, s29, 2", "s_mul_i32 s92, s92, 36864", "s_bfe_u32 s93, s29, 0x10001", "s_lshl_b32 s93, s93, 10", "s_add_u32 s92, s92, s93",
                "s_and_b32 s93, s29, 1", "s_lshl_b32 s93, s93, 7", "s_add_u32 s92, s92, s93", "s_lshl_b32 s93, s34, 11", "s_add_u32 s92, s92, s93",
                "s_lshl_b32 s93, s33, 9", "s_add_u32 s92, s92, s93",
                "s_lshl_b32 s53, s32, 13", f"s_add_u32 s53, s53, {C4}"]
    if pn:
        redsetup += ["s_lshr_b32 s93, s29, 1", "s_mul_i32 s93, s93, 768", "s_and_b32 s94, s29, 1", "s_lshl_b32 s94, s94, 5", "s_add_u32 s93, s93, s94", f"s_add_u32 s51, s93, {STATS}",
                     "v_and_b32 v12, 7, v30", "v_lshlrev_b32 v12, 2, v12"]
    if HFRAG: redsetup.append(f"s_add_u32 s92, s92, {HFRAG}")
    PL = lambda c, i: (168 + 4 * i) if c == 4 else 16 * c + 4 * i
    HL = lambda pc: 64 + 4 * pc if pc < 8 else 248
    def hload(pc): return [("x", f"buffer_load_dwordx4 a[{HL(pc)}:{HL(pc)+3}], v7, s[20:23], s92 offen sc1", ("H", pc)), ("s", "s_add_u32 s92, s92, 4096")]
    def pload(c):
        r = []
        for i in range(4):
            if c == 4: r += [("s", f"s_add_u32 s94, s88, {i*36864 + 4096}"), ("x", f"buffer_load_dwordx4 a[{PL(c,i)}:{PL(c,i)+3}], v31, s[20:23], s94 offen sc1", ("L", c))]
            else: r.append(("x", f"buffer_load_dwordx4 a[{PL(c,i)}:{PL(c,i)+3}], v14, s[20:23], s{88+i} offen offset:{c*1024} sc1", ("L", c)))
        return r
    def hhload(J): return [("x", f"buffer_load_dwordx4 a[{96+8*J+4*h}:{99+8*J+4*h}], v29, s[20:23], s52 offen offset:{h*1024} sc1", ("HL", J)) for h in range(2)] + [("s", "s_add_u32 s52, s52, 2048")]
    sched = opt("sch", 1); HA = opt("ha", 20)
    HN = opt("hn", 5)
    ev = [("HS", HN - 1, ("s50", 0), 2, HA, HA + 1, [x for J in range(HN) for x in hhload(J)], True)]
    if HN < 9: ev.append(("HS", 8, ("s50", 256), 2, opt("hb", HA + 1), opt("hb", HA + 1) + 1, [x for J in range(HN, 9) for x in hhload(J)], True))
    if sched == 1: gs = [((4,), 25, 26), ((0,), 26, None), ((1, 2, 3), None, None)]
    elif sched == 2: gs = [((4, 0), 26, None), ((1, 2, 3), None, None)]
    elif sched == 3: gs = [((4,), 25, 26), ((0, 1, 2), 27, None), ((3,), None, None)]
    elif sched == 4: gs = [((4,), 24, 25), ((0,), 25, 26), ((1, 2), 27, None), ((3,), None, None)]
    elif sched == 5: gs = [((4, 0), 26, None), ((1, 2), 27, None), ((3,), None, None)]
    elif sched == 6: gs = [((4,), 25, 26), ((0, 1), 27, None), ((2, 3), None, None)]
    elif sched == 7: gs = [((4,), 25, None), ((0, 1, 2), 27, None), ((3,), None, None)]
    elif sched == 8: gs = [((4,), 25, 26), ((0, 1, 2, 3), None, None)]
    elif sched == 9: gs = [((4,), 24, 25), ((0, 1), 27, None), ((2, 3), None, None)]
    for g, (chs, sst, chk) in enumerate(gs):
        ev.append(("ST", max(ORD[c] for c in chs), ("s53", 256 * g), 16, sst, chk, [x for c in chs for x in pload(c)], False))
    covers = lambda e: (lambda t: isinstance(t, tuple) and t[0] == e[0] and t[1] <= e[1])
    slowq = []; lper = opt("lper", 18)
    spins = []
    def sig(g):
        sk = a.lab("sg"); saved = list(a.lg)
        a(f"""s_cmp_lg_u32 s30, 0
        s_cbranch_scc1 {sk}
        s_add_u32 s95, {ev[g][2][0]}, {ev[g][2][1]}
        s_mov_b32 s98, 1
        s_atomic_add s98, s[20:21], s95
        {sk}:""")
        a.lg = saved
    def poll_issue(g):
        sk = a.lab("pi")
        return [("x", f"s_cmp_lg_u32 s30, 0\ns_cbranch_scc1 {sk}\ns_add_u32 s96, {ev[g][2][0]}, {ev[g][2][1]}\ns_mov_b32 s97, 0\ns_atomic_add s97, s[20:21], s96 glc\n{sk}:", ("F", g))]
    def poll_check(g):
        ok = a.lab("ok"); sp = a.lab("spin"); saved = list(a.lg)
        a(f"s_cmp_eq_u32 s30, 0\ns_cbranch_scc1 {sp}\n{ok}:")
        spins.append(f"""{sp}:
        s_mov_b32 s99, 0
        {sp}_l:
        s_waitcnt lgkmcnt(0)
        s_cmp_ge_u32 s97, {ev[g][3]}
        s_cbranch_scc1 {ok}
        s_mov_b32 s97, 0
        s_atomic_add s97, s[20:21], s96 glc
        s_add_u32 s99, s99, 1
        s_cmp_lt_u32 s99, 0x100000
        s_cbranch_scc1 {sp}_l
        s_waitcnt lgkmcnt(0)
        s_branch {ok}""")
    st("pro")
    if opt("prio", 0): a(f"s_setprio {opt('prio', 0)}")
    if o2 and "w1" in opts:
        a.wait(v=lambda t: t == ("P", 0) or (isinstance(t, tuple) and t[0] == "X")); a("s_barrier"); early_p1 = True
    else:
        a("s_waitcnt vmcnt(0)\ns_barrier")
    st("bar0")
    if diag and diag not in ("lite", "lite2"): a("s_waitcnt lgkmcnt(0)")
    for i in range(D):
        for r in reads(i): a(r, ltag=("A", i))
    memq = []; valq = []; pendbar = None; fastq = []
    budget = opt("bud", 2); mper = opt("mper", 4)
    def emitv(it):
        if it[0] == "w": return 1 if a.wait(v=it[1]) else 0
        emit(it); return 1
    marks = {}
    for i in range(N):
        P, xt, k, b, B, first = fr[i]
        s, pos = divmod(i, 36)
        if pos == 0 and s % 4 == 0 and s <= 16: marks[s] = len(a.l)
        if i == 648: st("s1")
        if pos == 0 and s >= 17 and s != 18: st(f"g{s}")
        KS = opt("ks", 0); early_w = None
        if KS:
            for w_ in range(1, 4):
                off = (w_ * KS) if "kh" not in opts else (KS if w_ == 2 else None)
                if off is not None and (i + D + off) % 36 == 0 and i + D + off < N and i + D + off > 0: early_w = (w_, (i + D + off) // 36)
        if early_w:
            sn_ = early_w[1]
            while any(len(x) > 2 and x[2][0] == "P" and x[2][1] <= sn_ for x in memq): emit(memq.pop(0))
            for g, e in enumerate(ev):
                if e[4] == sn_:
                    while any(len(x) > 2 and covers(e)(x[2]) for (x, _) in valq): emitv(valq.pop(0)[0])
        if (i + D) % 36 == 0 and i + D < N:
            sn = (i + D) // 36
            while any(len(x) > 2 and x[2][0] == "P" and x[2][1] <= sn + 1 for x in memq) or (memq and memq[0][0] in "sv"): emit(memq.pop(0))
            pendbar = sn
            if sn > 18: valq = [(("v", f"v_add_u32 v{1+t}, {SLOT if sn % 4 else -3*SLOT}, v{1+t}"), i) for t in range(4)] + valq
        if pos == 0:
            Pn = s + 2; q = []
            if s <= 15 and "xnox" not in opts and XA == 2: q += xload(s + 2)
            if Pn == 18: q += [("v", x) for x in s2setup]
            A3 = opt("a3", 99)
            if s < A3:
                if Pn < 27 and not ("xnodma" in opts and Pn < 18): q += dma_pair(Pn)
            else:
                if s == A3: q += dma_pair(Pn)
                if Pn + 1 < 27: q += dma_pair(Pn + 1)
            if Pn == 18: q += [("v", x) for x in s2read]
            if s <= 15 and XA == 3: q += xload(s + 3)
            if s <= 15 and XA == 4: q += xload(s + 2)
            if s == 16: q += [("s" if x.startswith("s_") else "v", x) for x in hhsetup]
            if tl and s < 16 and s % 4 == 0: q += [("x", "buffer_load_dword a232, v31, s[12:15], s50 offen", ("T", s)), ("s", f"s_add_u32 s50, s50, {128*9216}")]
            if tl and s < 16 and s % 4 == 2: q += [("x", "buffer_load_dword a233, v14, s[16:19], s51 offen", ("T", s)), ("s", f"s_add_u32 s51, s51, {128*11*128}")]
            assert not any(len(x) > 2 and x[2][0] == 'P' for x in memq)
            memq = q + memq + fastq; fastq = []
        if pos == (30 if (pn and "xtwo" not in opts) else 14 if pn else 4) and s + 1 < 18:
            valq += [(("w", ("X", s + 1)), 36 * s + 35)] + [(x, 36 * s + 35) for x in norm(s + 1)]
        if i >= 612 and i < 648 and (i - 612) % 4 == 2 and (i - 612) // 4 >= 1:
            J = (i - 612) // 4 - 1
            valq += [(x, 648 + 4 * NA * J) for x in conv(J)]
        if i == 650: valq += [(x, 648 + 4 * NA * 8) for x in conv(8)]
        if i == 652: valq += [(("v", x), 648 + 36 * 4) for x in redsetup]
        EP = opt("ep", 2)
        if s >= 23 and pos == (EP if s < 25 else 2):
            for c in {1: ((4,), (0,), (1,), (2,)), 2: ((4,), (), (0, 1), (2,)), 3: ((4,), (), (), (0, 1, 2))}[PK][s - 23]: valq += [(x, None) for x in epi(c)]
        if i == opt('hl', N - 1):
            for c in range(9): slowq += hload(c)
            if pn: slowq += [("x", f"buffer_load_dword v{(16,17,18,19,20,13,10)[q]}, v12, s[20:23], s51 offen offset:{128*q+64 if q < 6 else 0} sc1", ("R", q)) for q in range(7)]
        chks = []
        for g, e in enumerate(ev):
            if e[5] is not None and i == 36 * e[5] - D - opt("pl", 16): memq = poll_issue(g) + memq
            if e[5] is not None and pendbar == e[5]:
                while any(len(x) > 2 and x[2] == ("F", g) for x in memq): emit(memq.pop(0))
                chks.append(g)
        if slowq and i % lper == opt("loff", 0):
            while True:
                x = slowq.pop(0); memq.append(x)
                if x[0] == "x" or not slowq: break
        sigs = [g for g, e in enumerate(ev) if pendbar is not None and e[4] == pendbar]
        for g in sigs:
            while any(len(x) > 2 and covers(ev[g])(x[2]) for (x, _) in valq): emitv(valq.pop(0)[0])
        if isinstance(B, tuple) and B[2] is not None:
            while any(len(x) > 2 and x[2] == ("HL", B[2]) for x in memq): emit(memq.pop(0))
            a.wait(v=("HL", B[2]))
        while any(d is not None and d <= i for (_, d) in valq): emitv(valq.pop(0)[0])
        lw = lambda lim: a.wait(l=lambda t: t is not None and t != "SMEM" and t[1] <= lim)
        lw(i)
        f = AF(i)
        rd = reads(i + D) if i + D < N else []
        behind = len(valq) > opt("beh", 60)
        for h in range(2):
            hh = h
            if "xchain" in opts and s < 16 and i % 2 == 1:
                hh = 1 - h; k, b = fr[i - 1][2], fr[i - 1][3]; B = XR(s + 2)
            if "snake" in opts and i % 2 == 1: hh = 1 - h
            C = "0" if first else vr(b + 4 * hh, 4, k)
            a(f"v_mfma_f32_16x16x32_bf16 {vr(b+4*hh,4,k)}, a[{f}:{f+3}], {vr(B[1]+4*hh,4,'a') if isinstance(B, tuple) else vr(B+4*hh,4)}, {C}")
            sc_used = False
            if early_w and h == 0:
                w_, sn_ = early_w; sk = a.lab("eb"); sv = list(a.vm)
                sg_ = [g for g, e in enumerate(ev) if e[4] == sn_]
                a(f"s_cmp_eq_u32 s30, {w_}\ns_cbranch_scc0 {sk}" if "kh" not in opts else f"s_cmp_ge_u32 s30, 2\ns_cbranch_scc0 {sk}")
                a.wait(v=lambda t: t == ("P", sn_) or any(covers(ev[g])(t) for g in sg_))
                a(f"s_barrier\n{sk}:"); a.vm = sv; sc_used = True
            if pendbar is not None:
                sk = None
                if KS:
                    sk = a.lab("mb"); a(f"s_cmp_eq_u32 s30, 0\ns_cbranch_scc0 {sk}" if "kh" not in opts else f"s_cmp_lt_u32 s30, 2\ns_cbranch_scc0 {sk}")
                a.wait(v=lambda t: t == ("P", pendbar) or any(covers(ev[g])(t) for g in sigs))
                for g in chks: poll_check(g)
                a("s_barrier")
                if sk: a(f"{sk}:")
                for g in sigs: sig(g)
                for g in chks:
                    if ev[g][7]: fastq += ev[g][6]
                    else: slowq += ev[g][6]
                pendbar = None; sc_used = True
            if h == 1 and not sc_used: sc_used = lw(i + 1)
            if not sc_used:
                if memq and memq[0][0] in ("s", "m"):
                    emit(memq.pop(0)); sc_used = True
                    if "sc2" in opts and memq and memq[0][0] in ("s", "m"): emit(memq.pop(0))
                elif valq and valq[0][0][0] == "w": sc_used = emitv(valq.pop(0)[0])
                elif valq and valq[0][0][1].startswith("s_"): emitv(valq.pop(0)[0]); sc_used = True
            n = 0
            if rd: a(rd[h], ltag=("A", i + D)); n += 1
            mp = mper if s < 16 else opt("mq", 4)
            if memq and len(memq[0]) > 2 and memq[0][2][0] == "HL": mp = opt("mh", mp)
            if memq and memq[0][0] in ("x", "d") and (2 * i + h) % mp == (opt("mo", 0) if s < 16 else opt("mqo", 0)) % mp:
                emit(memq.pop(0)); n += 1
            elif memq and memq[0][0] == "v":
                emit(memq.pop(0)); n += 1
            while valq and n < budget + (1 if behind else 0) and valq[0][0][0] != "w" and not valq[0][0][1].startswith("s_"):
                n += emitv(valq.pop(0)[0])
    for it in memq: emit(it)
    for it, d in valq: emitv(it)
    tailq = slowq
    if loop:
        body = [[re.sub(r"K(eb|mb)_\d+", r"K\1", x.text) for x in a.l[marks[s]:marks[s + 4]] if not x.text.startswith(";")] for s in (0, 4, 8, 12)]
        assert body[1] == body[2] == body[3], "loop bodies differ"
        pre = []
        if body[0][0] != body[1][0]:
            assert body[0][0].startswith("s_waitcnt lgkmcnt"); pre = [Ins(body[0][0])]; body[0] = body[0][1:]
        assert body[0] == [x for x in body[1] if not (x.startswith("s_waitcnt vmcnt") and x not in body[0])] or \
               [x for x in body[0] if "vmcnt" not in x] == [x for x in body[1] if "vmcnt" not in x]
        lp = a.lab("loop")
        a.l = a.l[:marks[0]] + pre + [Ins("s_mov_b32 s41, 0"), Ins(f".p2align {opt('al', 3)}")] + [Ins("s_nop 0")] * opt("ao", 0) + [Ins(f"{lp}:")] + a.l[marks[4]:marks[8]] + \
              [Ins("s_add_u32 s41, s41, 1"), Ins("s_cmp_lt_u32 s41, 4"), Ins(f"s_cbranch_scc1 {lp}")] + a.l[marks[16]:]
    st("s2")
    srd(a, 12, 10, 11, 2048 * 1152)
    def red(c):
        T = 208 + 4 * c; TH = 228 + 4 * c if pn else T
        for hi in range(1 if c == 4 else 2):
            pc = c + 5 * hi; S = 224 + 4 * hi
            a.wait(v=("H", pc))
            a(f"v_mfma_f32_16x16x32_bf16 v[{TH}:{TH+3}], a[{S}:{S+3}], a[{HL(pc)}:{HL(pc)+3}], {'0' if hi == 0 else f'v[{TH}:{TH+3}]'}")
        a.wait(v=("L", c))
        for i in range(4):
            S = 224 + (4 if (c < 4 and i >= 2) else 0)
            a(f"v_mfma_f32_16x16x32_bf16 v[{T}:{T+3}], a[{S}:{S+3}], a[{PL(c,i)}:{PL(c,i)+3}], {'0' if (pn and i == 0) else f'v[{T}:{T+3}]'}")
    def rowscale():
        a.wait(v=("R", 6))
        a("""v_add_f32 v16, v16, v17
        v_add_f32 v18, v18, v19
        v_add_f32 v20, v20, v13
        v_add_f32 v16, v16, v18
        v_add_f32 v16, v16, v20
        v_mov_b32 v18, v10
        v_mul_f32 v16, 0x3ae38e39, v16
        v_add_f32 v16, 0x3727c5ac, v16
        v_rcp_f32 v16, v16""")
    lds_out = True
    osc = " sc1" if "osc1" in opts else " nt" if "ont" in opts else ""
    OST = 147456 + 1024
    def out(T):
        r = 208 + 4 * T
        if pn:
            for q in (0, 2):
                a(f"v_pk_add_f32 v[{r+20+q}:{r+21+q}], v[{r+20+q}:{r+21+q}], v[18:19] op_sel_hi:[1,0]")
                a(f"v_pk_fma_f32 v[{r+q}:{r+q+1}], v[{r+q}:{r+q+1}], v[16:17], v[{r+20+q}:{r+21+q}] op_sel_hi:[1,0,1]")
        a(f"v_cvt_pk_bf16_f32 v{r}, v{r}, v{r+1}\nv_cvt_pk_bf16_f32 v{r+1}, v{r+2}, v{r+3}")
        if T == 4: a("s_mov_b32 exec_hi, 0")
        if lds_out: a(f"ds_write_b64 v6, v[{r}:{r+1}] offset:{128*T}")
        elif "xnoout" not in opts: a(f"buffer_store_dwordx2 v[{r}:{r+1}], v5, s[12:15], s94 offen offset:{256*T}" + osc)
        if T == 4: a("s_mov_b64 exec, -1")
    def flush_out(part):
        a("s_waitcnt lgkmcnt(0)\ns_barrier")
        regs = (8, 9) if part == 0 else (10,)
        for q, r in enumerate(regs): a(f"ds_read_b128 v[{32+4*(r-8)}:{35+4*(r-8)}], v{r+3}")
        a("s_waitcnt lgkmcnt(0)")
        for q, r in enumerate(regs): a(f"buffer_store_dwordx4 v[{32+4*(r-8)}:{35+4*(r-8)}], v{r}, s[12:15], s43 offen" + osc)
    def outsetup():
      if pn:
        while any(len(x) > 2 and x[2][0] == "R" for x in pend): emit(pend.pop(0))
        rowscale()
      if lds_out:
        a(f"""v_accvgpr_read_b32 v8, a245
        v_accvgpr_read_b32 v9, a246
        v_accvgpr_read_b32 v10, a247
        s_lshl_b32 s93, s34, 6
        s_lshl_b32 s43, s33, 4
        s_add_u32 s93, s93, s43
        s_add_u32 s93, s93, {OST}
        v_add_u32 v6, s93, v5
        s_mul_i32 s93, s30, 2304
        s_mul_i32 s43, s29, {8*1152}
        s_add_u32 s43, s43, s93
        s_add_u32 s93, s93, {OST}
        v_min_u32 v11, 2288, v8
        v_min_u32 v12, 2288, v9
        v_min_u32 v13, 2288, v10
        v_add_u32 v11, s93, v11
        v_add_u32 v12, s93, v12
        v_add_u32 v13, s93, v13""")
    pend = list(tailq)
    if "osl" not in opts: outsetup()
    def issue(n):
        while pend and n > 0:
            x = pend.pop(0); emit(x)
            if x[0] == "x": n -= 1
    if "ef" in opts:
        for x in epi(3): emit(x)
    for g, e in enumerate(ev):
        if e[4] == 27:
            a.wait(v=covers(e)); a("s_barrier"); sig(g)
    if "ef" not in opts:
        for x in epi(3): emit(x)
    st("epi")
    if "osl" in opts: outsetup()
    a.wait(v=lambda t: isinstance(t, tuple) and t[0] == "ST"); a("s_barrier")
    for g, e in enumerate(ev):
        if e[4] is None: sig(g)
    st("drain")
    rest = [g for g, e in enumerate(ev) if e[5] is None]
    order = [4, 0, 1, 2]; prev = None
    for g in rest:
        nx = sum(1 for x in pend if x[0] == "x")
        issue(nx - opt("keep", 6))
        [emit(x) for x in poll_issue(g)]
        issue(99)
        if g == rest[-1]:
            for _ in range(opt("er", 0)):
                c = order.pop(0); red(c)
                if prev is not None: out(prev)
                prev = c
        poll_check(g); a("s_barrier")
        if g == rest[-1]: st("sync4")
        pend += ev[g][6]
    issue(99)
    if fl2:
        for c in order[:-1]:
            red(c)
            if prev is not None: out(prev)
            prev = c
        out(1); flush_out(0)
        red(2); red(3)
        st("loaded")
        out(2); out(3); flush_out(1)
    else:
        for c in order:
            red(c)
            if prev is not None: out(prev)
            prev = c
        out(2); flush_out(0)
        red(3)
        st("loaded")
        out(3); flush_out(1)
    st("end")
    a.spins = spins
```

```python
from common import *
from pk import divu
WOB = 36864
OOB = 0x7fffff00

def p2c_setup(a):
    a("""s_mul_i32 s27, s28, 43
    s_lshr_b32 s27, s27, 8
    s_mul_i32 s26, s27, 6
    s_sub_u32 s26, s28, s26
    s_lshl_b32 s91, s29, 2
    s_add_u32 s27, s27, s91""")
    for i in range(3):
        a(f"v_add_u32 v16, {64*i}, v15")
        divu(a, 17, 16, 12)
        a(f"""v_mul_u32_u24 v18, 12, v17
        v_sub_u32 v18, v16, v18
        v_lshrrev_b32 v19, 3, v17
        v_lshlrev_b32 v19, 1, v19
        v_xor_b32 v18, v18, v19
        v_lshlrev_b32 v18, 4, v18
        v_add_u32 v18, {2048 - 1024*i}, v18
        v_mul_u32_u24 v19, 1152, v17
        v_add_u32 v{7+i}, v19, v18
        v_lshrrev_b32 v19, 1, v17
        v_mul_u32_u24 v19, 18, v19
        v_and_b32 v17, 1, v17
        v_add_u32 v19, v19, v17
        v_mul_u32_u24 v19, 1152, v19
        v_add_u32 v{10+i}, v19, v18""")
    a(f"""v_lshrrev_b32 v16, 4, v15
    v_bfe_u32 v17, v15, 2, 2
    v_lshl_add_u32 v17, v16, 3, v17
    v_mul_u32_u24 v17, 192, v17
    v_and_b32 v18, 3, v15
    v_lshl_add_u32 v17, v18, 3, v17
    v_add_u32 v17, {WOB}, v17
    v_and_b32 v16, 1, v16
    v_lshlrev_b32 v16, 5, v16
    v_add_u32 v170, v17, v16
    v_sub_u32 v171, v17, v16
    v_add_u32 v172, 55296, v170
    v_add_u32 v173, 55296, v171
    v_and_b32 v16, 15, v15
    v_mul_u32_u24 v17, 1152, v16
    v_lshrrev_b32 v18, 4, v15
    v_lshl_add_u32 v174, v18, 3, v17
    v_lshlrev_b32 v17, 8, v18
    v_lshl_add_u32 v175, v16, 2, v17""")
    a(f"s_sub_u32 s44, s44, 2048\ns_subb_u32 s45, s45, 0\ns_add_u32 s46, s46, 2048")

def p2c_wodma(a, rot=True):
    r = []
    r.append(f"""s_mul_i32 s38, s26, 192
    s_mul_i32 s37, s30, {18*1152}
    s_add_u32 s39, s38, s37
    s_mul_i32 s37, s30, {8*18*1152}
    s_add_u32 s38, s38, s37
    s_add_u32 s38, s38, {16*1152}
    s_mul_i32 s40, s30, 3072
    s_add_u32 s40, s40, {WOB}""")
    r0 = []
    step = 4 * 18 * 1152
    if rot:
        r.append(f"s_add_u32 s43, s39, {8*step}\ns_mul_i32 s37, s26, {step}\ns_add_u32 s39, s39, s37\ns_mov_b32 s42, s39")
    for j in range(9):
        q = r0 if j == 0 else r
        q.append(f"s_add_u32 m0, s40, {j*4*3072}")
        if j < 8:
            if rot: q.append(f"s_add_u32 s39, s39, {step}\ns_cmp_ge_u32 s39, s43\ns_cselect_b32 s37, {8*step}, 0\ns_sub_u32 s39, s39, s37" if j else "s_mov_b32 s39, s42")
            else: q.append(f"s_add_u32 s39, s39, {step}" if j else f"s_sub_u32 s39, s39, {7*step}")
            q += [(f"buffer_load_dwordx4 v{7+i}, s[44:47], s39 offen offset:{i*1024} lds", "wo") for i in range(3)]
        else:
            q.append("s_nop 0")
            q += [(f"buffer_load_dwordx4 v{10+i}, s[44:47], s38 offen offset:{i*1024} lds", "wo") for i in range(3)]
    return r, r0

def p2c_xload(a):
    a(f"""s_lshl_b32 s35, s27, 2
    s_add_u32 s35, s35, s30
    s_mul_i32 s36, s35, {16*1152}
    s_mul_i32 s37, s26, 192
    s_add_u32 s36, s36, s37""")
    for t in range(6):
        a(f"buffer_load_dwordx2 v[{208+2*t}:{209+2*t}], v174, s[12:15], s36 offen offset:{32*t}", vtag="xr")

def p2c_prepoll(a, C2, sh=13):
    a(f"""s_lshr_b32 s53, s27, 1
    s_and_b32 s53, s53, 15
    s_lshl_b32 s53, s53, {sh}
    s_add_u32 s53, s53, {C2}""")
    poll_start(a, "s53")

def p2c_main(a, st, C2, C3, mid=None, early=None, late=None, pre=False, opts=()):
    O = lambda k: 64 + 4 * k
    if not pre: p2c_prepoll(a, C2)
    a(f"""s_mul_i32 s48, s35, 18432
    s_add_u32 s48, s48, {OFRAG}
    s_add_u32 s38, s48, 16384""")
    a("v_lshlrev_b32 v169, 2, v30")
    pn = "pn" in opts
    def pmsetup():
        a(f"""s_lshr_b32 s49, s35, 1
        s_lshl_b32 s49, s49, 11
        s_and_b32 s50, s35, 1
        s_lshl_b32 s50, s50, 6
        s_add_u32 s49, s49, s50
        s_add_u32 s49, s49, {PM}
        s_lshl_b32 s50, s35, 6
        s_add_u32 s50, s50, {MX}
        v_lshrrev_b32 v176, 4, v30
        v_and_b32 v177, 15, v30
        v_lshlrev_b32 v177, 2, v177
        v_lshl_add_u32 v176, v176, 7, v177""")
    if pn and "rot2" not in opts: pmsetup()
    a.wait(v="wo")
    st("wo")
    poll_finish(a, "s53", 16)
    st("sync2")
    def pmload():
        if pn:
            if "rot2" in opts: pmsetup()
            for j in range(4): a(f"buffer_load_dword v{178+j}, v176, s[20:23], s49 offen offset:{512*j} sc1", vtag="pm")
            if "nomx" in opts: a("v_mov_b32 v182, 0")
            else: a("buffer_load_dword v182, v177, s[20:23], s50 offen sc1", vtag="pm")
    def meanred():
        a.wait(v="pm")
        a("""v_add_f32 v178, v178, v179
        v_add_f32 v180, v180, v181
        v_add_f32 v178, v178, v180
        v_mov_b32 v179, v178
        v_permlane16_swap_b32 v178, v179
        v_add_f32 v178, v178, v179
        v_mov_b32 v179, v178
        v_permlane32_swap_b32 v178, v179
        v_add_f32 v178, v178, v179
        v_add_f32 v178, v178, v182""")
    if "ci" in opts and pn: pmload()
    rot = "rot2" in opts
    if rot: a("s_lshl_b32 s49, s26, 11\ns_add_u32 s48, s48, s49")
    for k in range(16):
        if rot:
            if k % 2 == 0 and k: a("s_add_u32 s48, s48, 2048\ns_cmp_ge_u32 s48, s38\ns_cselect_b32 s49, 16384, 0\ns_sub_u32 s48, s48, s49")
            o = (k % 2) * 1024
        else:
            if k % 4 == 0 and k: a("s_add_u32 s48, s48, 4096")
            o = (k % 4) * 1024
        a(f"buffer_load_dwordx4 {vr(O(k),4,'a')}, v15, s[20:23], s48 offen offset:{o} sc1", vtag=("o", k))
    for e in range(8):
        a(f"buffer_load_dword a{O(16)+e}, v175, s[20:23], s38 offen offset:{(e//4)*1024 + (e%4)*64} sc1", vtag=("o", 16 + e // 4))
    pn = "pn" in opts
    if early: early()
    T = lambda t: 220 + 4 * t
    fr = [(ks, t) for ks in range(18) for t in range(6)]
    NF = 12; D = 10
    AF = lambda i: 4 * (i % NF)
    def reads(i):
        ks, t = fr[i]; f = AF(i); o = (ks % 9) * 6144 + t * 32; ad = 170 + (t % 2) + 2 * (ks // 9)
        return [f"ds_read_b64_tr_b16 a[{f}:{f+1}], v{ad} offset:{o}", f"ds_read_b64_tr_b16 a[{f+2}:{f+3}], v{ad} offset:{o+768}"]
    N = len(fr)
    for i in range(7):
        for r in reads(i): a(r, ltag=("A", i))
    ci = "ci" in opts and pn
    if not ci: pmload()
    if ci:
        meanred(); a.wait(v="xr")
        a("s_mov_b32 s50, 0x3f80\ns_mov_b32 s51, 0x3f800000\nv_sub_f32 v180, 0, v178")
        for t in range(6):
            for q in range(2):
                a(f"v_dot2_f32_bf16 v{T(t)+2*q}, v{208+2*t+q}, s50, v180\nv_dot2_f32_bf16 v{T(t)+2*q+1}, v{208+2*t+q}, s51, v180")
    D = 7
    a(f"""s_lshr_b32 s49, s35, 1
    s_mul_i32 s48, s49, 36864
    s_and_b32 s38, s35, 1
    s_lshl_b32 s38, s38, 10
    s_add_u32 s48, s48, s38
    s_mul_i32 s38, s26, 6144
    s_add_u32 s48, s48, s38
    s_mul_i32 s39, s35, 768
    s_lshl_b32 s38, s26, 7
    s_add_u32 s39, s39, s38
    s_add_u32 s39, s39, {STATS}
    s_add_u32 s53, s53, {C3-C2}
    s_mov_b32 s50, 0x3f80
    s_mov_b32 s51, 0x3f800000""")
    if HFRAG: a(f"s_add_u32 s48, s48, {HFRAG}")
    for i in range(N):
        ks, t = fr[i]
        a.wait(v=("o", ks), l=lambda tg: isinstance(tg, tuple) and tg[0] == "A" and tg[1] <= i)
        f = AF(i)
        a(f"v_mfma_f32_16x16x32_bf16 {vr(T(t),4)}, a[{f}:{f+3}], {vr(O(ks),4,'a')}, {'0' if (ks == 0 and not ci) else vr(T(t),4)}")
        if i % 2 == 0: a.wait(l=lambda tg: isinstance(tg, tuple) and tg[0] == "A" and tg[1] <= i + 2)
        if i + D < N and not ("xhalf2" in opts and i % 2):
            for r in reads(i + D): a(r, ltag=("A", i + D))
    st("gemm2")
    a.wait(v="xr")
    for t in range(0 if ci else 6):
        for q in range(2):
            a(f"v_dot2_f32_bf16 v{T(t)+2*q}, v{208+2*t+q}, s50, v{T(t)+2*q}\nv_dot2_f32_bf16 v{T(t)+2*q+1}, v{208+2*t+q}, s51, v{T(t)+2*q+1}")
    if pn and not ci:
        meanred()
        for q in range(0, 24, 2): a(f"v_pk_add_f32 v[{220+q}:{221+q}], v[{220+q}:{221+q}], v[178:179] op_sel_hi:[1,0] neg_lo:[0,1] neg_hi:[0,1]")
    for tp in range(3):
        S = 244 + 4 * tp
        for e in range(2):
            b = T(2 * tp + e)
            a(f"v_cvt_pk_bf16_f32 v{S+2*e}, v{b}, v{b+1}\nv_cvt_pk_bf16_f32 v{S+2*e+1}, v{b+2}, v{b+3}")
        if tp == 2: a("s_add_u32 s48, s48, 4096")
        a(f"buffer_store_dwordx4 {vr(S,4)}, v15, s[20:23], s48 offen offset:{(tp%2)*2048} sc1", vtag="hs")
    a("s_mov_b32 s50, 0x3f803f80")
    for q in range(12):
        c0 = "0" if q < 2 else f"v{220+2*(q&1)}"; c1 = "0" if q < 2 else f"v{221+2*(q&1)}"
        if not pn: a(f"v_dot2_f32_bf16 v{220+2*(q&1)}, v{244+q}, s50, {c0}")
        a(f"v_dot2_f32_bf16 v{221+2*(q&1)}, v{244+q}, v{244+q}, {c1}")
    if pn: a("v_mul_f32 v220, 0.5, v178\nv_mul_f32 v220, 0.5, v220\nv_mov_b32 v222, 0")
    a(f"""v_add_f32 v220, v220, v222
    v_add_f32 v221, v221, v223
    v_permlane16_swap_b32 v220, v221
    v_add_f32 v220, v220, v221
    v_mov_b32 v221, v220
    v_permlane32_swap_b32 v220, v221
    v_add_f32 v220, v220, v221
    s_mov_b32 exec_hi, 0
    buffer_store_dword v220, v169, s[20:23], s39 offen sc1
    s_mov_b64 exec, -1""", vtag="hs")
    if mid:
        a("s_barrier"); mid()
    if "skew" in opts: st("gemm")
    a.wait(v="hs")
    if "skew" in opts: st("kvst")
    a("s_barrier")
    st("hst")
    signal(a, "s53")
    if late: late()
```

```python
import sys, json
from common import *
from pk import divu
import ffn17, ffn18
from p2c import p2c_wodma, p2c_xload, p2c_main, p2c_prepoll, WOB
from pk2 import touch3

LOG2E = 0x3fb8aa3b
SP = 147456; MOFF = SP; KVL = SP + 6144; ZERO = KVL + 3840; STX = SP + 10240
KVS = 2816; QS = 1280; KVB = 36 * QS; KVR = 9 * KVS; QR = 9 * QS
C1, C0 = FLAGS, FLAGS + 4096
FL2 = FLAGS + 8192
C2, C3, C4, C5 = FL2, FL2 + 256, FL2 + 512, FL2 + 4096
PB = 1024
OOB = 0x7fffff00

def softmax16(a, P, E, vmask):
    for b in range(2):
        p = P[b]
        a(f"v_max3_f32 v{16+b}, v{p}, v{p+1}, v{p+2}\nv_min3_f32 v{18+b}, v{p}, v{p+1}, v{p+2}")
    for i in (3, 5, 7):
        for b in range(2):
            p = P[b]
            a(f"v_max3_f32 v{16+b}, v{16+b}, v{p+i}, v{p+i+1}\nv_min3_f32 v{18+b}, v{18+b}, v{p+i}, v{p+i+1}")
    for b in range(2):
        p = P[b]
        a(f"v_max_f32 v{16+b}, v{16+b}, v{p+9}\nv_min_f32 v{18+b}, v{18+b}, v{p+9}")
    a("""v_permlane16_swap_b32 v16, v17
    v_permlane16_swap_b32 v18, v19
    v_max_f32 v16, v16, v17
    v_min_f32 v18, v18, v19
    v_mul_f32 v20, s48, v16
    v_mul_f32 v24, s48, v18
    v_mov_b32 v22, v20
    v_mov_b32 v26, v24
    v_permlane16_swap_b32 v20, v22
    v_permlane16_swap_b32 v24, v26""")
    for b in range(2):
        for i in range(0, 10, 2):
            p = P[b] + i; e = E[b] + i
            a(f"v_pk_fma_f32 v[{e}:{e+1}], v[{p}:{p+1}], s[48:49], v[{24+2*b}:{25+2*b}] op_sel_hi:[1,0,0] neg_lo:[1,0,0] neg_hi:[1,0,0]")
            a(f"v_pk_fma_f32 v[{p}:{p+1}], v[{p}:{p+1}], s[48:49], v[{20+2*b}:{21+2*b}] op_sel_hi:[1,0,0] neg_lo:[0,0,1] neg_hi:[0,0,1]")
    for b in range(2):
        for i in range(10): a(f"v_exp_f32 v{P[b]+i}, v{P[b]+i}\nv_exp_f32 v{E[b]+i}, v{E[b]+i}")
    sets = [P[0], P[1], E[0], E[1]]
    for s in sets: a(f"v_pk_mul_f32 v[{s+8}:{s+9}], v[{s+8}:{s+9}], v[{vmask}:{vmask+1}] op_sel_hi:[1,0]")
    for k, s in enumerate(sets): a(f"v_pk_add_f32 v[{16+2*k}:{17+2*k}], v[{s}:{s+1}], v[{s+2}:{s+3}]")
    for k, s in enumerate(sets): a(f"v_pk_add_f32 v[{24+2*k}:{25+2*k}], v[{s+4}:{s+5}], v[{s+6}:{s+7}]")
    for k, s in enumerate(sets): a(f"v_pk_add_f32 v[{16+2*k}:{17+2*k}], v[{16+2*k}:{17+2*k}], v[{s+8}:{s+9}]")
    for k in range(4): a(f"v_pk_add_f32 v[{16+2*k}:{17+2*k}], v[{16+2*k}:{17+2*k}], v[{24+2*k}:{25+2*k}]")
    for k in range(4): a(f"v_add_f32 v{16+2*k}, v{16+2*k}, v{17+2*k}")
    a("""v_permlane16_swap_b32 v16, v18
    v_permlane16_swap_b32 v20, v22
    v_add_f32 v16, v16, v18
    v_add_f32 v20, v20, v22
    v_rcp_f32 v16, v16
    v_rcp_f32 v20, v20
    s_nop 0
    v_mov_b32 v18, v16
    v_mov_b32 v22, v20
    v_permlane16_swap_b32 v16, v18
    v_permlane16_swap_b32 v20, v22""")
    for k, s in enumerate(sets):
        for i in range(0, 10, 2): a(f"v_pk_mul_f32 v[{s+i}:{s+i+1}], v[{s+i}:{s+i+1}], v[{16+2*k}:{17+2*k}] op_sel_hi:[1,0]")

def gen(diag, opts):
    a = A("K"); st = Stamps(a, diag, 0); tb = Table("K_tab")
    pn = "pn" in opts
    opt = lambda k, d: next((int(o[len(k):]) for o in reversed(opts) if re.fullmatch(k + r'\d+', o)), d)
    X = lambda k: 64 + 4 * k
    K0, K1, V0, V1, EE = 48, 56, 64, 72, 80
    B0, B1 = 32, 40
    P = (88, 100); E = (140, 152); Z = (176, 188); VP = 200
    a("s_cmp_ge_u32 s2, 256\ns_cbranch_scc1 K_end")
    a("""s_load_dwordx4 s[4:7], s[0:1], 0
    s_load_dwordx4 s[8:11], s[0:1], 16
    s_load_dwordx4 s[88:91], s[0:1], 72""")
    st("entry")
    code_prefetch(a, "K_start", "K_tab_end", 16, "a[0:2]", wide=True)
    a("K_start:")
    a("""v_lshrrev_b32 v16, 6, v0
    v_and_b32 v15, 63, v0
    v_mov_b32 v14, v0
    v_readfirstlane_b32 s30, v16
    s_and_b32 s31, s2, 3
    s_lshl_b32 s31, s31, 2
    s_bfe_u32 s33, s2, 0x20003
    s_add_u32 s32, s31, s33
    s_bfe_u32 s31, s2, 0x10002
    s_lshl_b32 s31, s31, 3
    s_lshr_b32 s33, s2, 5
    s_add_u32 s31, s31, s33
    s_lshr_b32 s28, s2, 3
    s_and_b32 s29, s2, 7""")
    a(f"""v_and_b32 v16, 7, v15
    v_lshrrev_b32 v17, 3, v15
    v_mul_u32_u24 v13, 1152, v16
    v_lshl_add_u32 v13, v17, 4, v13
    v_lshlrev_b32 v5, 4, v15
    s_lshl_b32 s36, s32, 4
    s_add_u32 s36, s36, s31
    s_mul_i32 s36, s36, {8*1152}
    s_lshl_b32 s37, s30, 7
    s_add_u32 s36, s36, s37
    s_cmp_eq_u32 s30, 0
    s_cselect_b32 s37, 0, {OOB}
    s_add_u32 s37, s37, s36
    s_mul_i32 s34, s30, {KVR}
    s_add_u32 s34, s34, {KVB}
    s_lshl_b32 s35, s32, 2
    s_add_u32 s35, s35, s30""")
    a("s_waitcnt lgkmcnt(0)")
    srd(a, 12, 4, 5, 2048 * 1152)
    srd(a, 20, 90, 91, WS_BYTES)
    sk = a.lab("noinit"); saved = list(a.vm)
    a(f"""s_lshl_b32 s33, s2, 2
    s_add_u32 s33, s33, s30
    s_cmp_lg_u32 s33, 515
    s_cbranch_scc1 {sk}
    v_lshlrev_b32 v16, 8, v15
    v_mov_b32 v17, 0
    s_mov_b32 s38, {FLAGS}
    s_mov_b32 exec_hi, 0
    buffer_store_dword v17, v16, s[20:23], s38 offen sc1
    s_mov_b32 exec_hi, -1""")
    a(f"{sk}:")
    a.vm = saved
    a("""buffer_load_dwordx4 v[160:163], v13, s[12:15], s36 offen
    buffer_load_dwordx4 v[164:167], v13, s[12:15], s36 offen offset:512
    buffer_load_dwordx4 v[168:171], v13, s[12:15], s37 offen offset:1024""", vtag="x8")
    srd(a, 24, 88, 89, 256)
    if "fine" not in opts: st("start")
    for i in range(3):
        a(f"v_add_u32 v16, {64*i}, v15")
        divu(a, 17, 16, 11)
        a(f"""v_mul_u32_u24 v18, 11, v17
        v_sub_u32 v18, v16, v18
        v_and_b32 v19, 8, v17
        v_and_b32 v20, 1, v17
        v_lshl_add_u32 v19, v20, 2, v19
        v_bfe_u32 v17, v17, 1, 2
        v_add_u32 v17, v17, v19
        v_mul_u32_u24 v17, 3456, v17
        v_lshl_add_u32 v17, v18, 4, v17
        v_mov_b32 v19, {1152 + 2048 - i*1024}
        v_mov_b32 v16, {2304 - 80 + 2048 - i*1024}
        v_cmp_lt_u32 vcc, 4, v18
        v_mov_b32 v20, {2304 + 36 - 128 + 2048 - i*1024}
        v_cmp_lt_u32 s[38:39], 7, v18
        v_cndmask_b32 v19, v19, v16, vcc
        v_cmp_eq_u32 vcc, 4, v18
        v_cndmask_b32_e64 v19, v19, v20, s[38:39]
        v_cmp_eq_u32 s[38:39], 7, v18
        v_cndmask_b32_e64 v16, 0, 8, vcc
        v_cmp_eq_u32 vcc, 10, v18
        v_cndmask_b32_e64 v16, v16, 12, s[38:39]
        v_add_u32 v{i}, v17, v19
        v_cndmask_b32_e64 v16, v16, 12, vcc
        v_sub_u32 v{i}, v{i}, v16""")
    a(f"""s_sub_u32 s16, s6, 2048
    s_subb_u32 s17, s7, 0
    s_mov_b32 s18, {576*3456+2048}
    s_mov_b32 s19, 0x20000""")
    if "twq" in opts:
        nseg = opt("tseg", 2)
        for q in range(1 if nseg == 2 else 2):
            a(f"""v_add_u32 v18, {256*q}, v14
            v_mul_u32_u24 v16, {65536//(5*nseg)+1}, v18
            v_lshrrev_b32 v16, 16, v16
            v_mul_u32_u24 v17, {5*nseg}, v16
            v_sub_u32 v17, v18, v17
            v_mul_u32_u24 v19, 13108, v17
            v_lshrrev_b32 v19, 16, v19
            v_lshl_add_u32 v17, v19, 2, v17
            v_mul_u32_u24 v16, 3456, v16
            v_lshl_add_u32 v16, v17, 7, v16
            v_mov_b32 v17, {OOB}
            v_cmp_gt_u32 vcc, {18*5*nseg}, v18
            s_mul_i32 s37, s28, {18*3456}
            s_lshr_b32 s38, s29, 2
            s_lshl_b32 s38, s38, 9
            s_add_u32 s37, s37, s38
            s_add_u32 s37, s37, {2048 + (1152 if nseg == 2 else 0)}
            v_cndmask_b32 v16, v17, v16, vcc""")
            a(f"buffer_load_dword a{4+q}, v16, s[16:19], s37 offen", vtag="touch")
    srd(a, 40, 8, 9, 32 * 648)
    if "mearly" in opts:
        a(f"""v_bfe_u32 v16, v15, 3, 2
        v_bfe_u32 v17, v15, 1, 1
        v_and_b32 v18, 1, v15
        v_mul_u32_u24 v19, 5, v17
        v_lshl_add_u32 v19, v16, 1, v19
        v_add_u32 v19, v19, v18
        v_lshlrev_b32 v20, 2, v17
        v_add_u32 v20, 4, v20
        v_cmp_eq_u32 vcc, 2, v16
        v_lshl_add_u32 v16, v16, 1, v18
        v_lshrrev_b32 v21, 5, v15
        v_cndmask_b32 v19, v19, v20, vcc
        v_mul_u32_u24 v21, 9, v21
        v_add_lshl_u32 v19, v19, v21, 2
        v_mov_b32 v22, {OOB}
        v_cmp_gt_u32 vcc, 5, v16
        v_bfe_u32 v17, v15, 2, 1
        s_mul_i32 s38, s30, 6
        v_cndmask_b32 v19, v22, v19, vcc
        v_cmp_eq_u32 vcc, 0, v17
        s_mul_i32 s39, s31, 1296
        s_nop 0
        v_cndmask_b32 v20, v22, v19, vcc
        v_cndmask_b32 v21, v19, v22, vcc""")
        for i in range(6):
            a(f"""s_add_u32 s37, s38, {i}
            s_lshl_b32 s96, s37, 8
            s_add_u32 m0, s96, {MOFF}
            s_cmp_lt_u32 s37, 9
            s_cselect_b64 vcc, -1, 0
            s_mul_i32 s96, s37, 72
            s_add_u32 s96, s96, s39
            v_cndmask_b32 v16, v21, v20, vcc
            s_cmp_ge_u32 s37, 18
            s_cselect_b32 s96, 0x100000, s96""")
            a("buffer_load_dword v16, s[40:43], s96 offen lds", vtag="wphi")
    a(f"""s_sub_u32 s44, s10, 2048
    s_subb_u32 s45, s11, 0
    s_mov_b32 s46, {576*1152+2048}
    s_mov_b32 s47, 0x20000""")
    if pn:
        a(f"""s_mul_i32 s38, s31, 36
        s_add_u32 s38, s38, s35
        s_lshl_b32 s54, s38, 2
        s_add_u32 s54, s54, {WM}
        s_mul_i32 s38, s38, 1152
        s_add_u32 s38, s38, 2048
        s_cmp_lt_u32 s32, 9
        s_cselect_b32 s39, 0, {OOB}
        s_add_u32 s38, s38, s39
        s_add_u32 s54, s54, s39""")
        a("s_mov_b32 s55, s38")
        if "wrl" not in opts:
            a("""buffer_load_dwordx4 v[220:223], v5, s[44:47], s38 offen
            v_mov_b32 v224, 0
            v_mov_b32 v225, 0
            v_mov_b32 v226, 0
            v_mov_b32 v227, 0
            s_mov_b64 exec, 0xff
            buffer_load_dwordx4 v[224:227], v5, s[44:47], s38 offen offset:1024
            s_mov_b64 exec, -1""", vtag="wrow")
    if opt("t4", 0):
        ns = opt("t4", 0); saved = list(a.vm)
        a(f"""s_lshr_b32 s38, 0xaa55, s31
        s_and_b32 s38, s38, 1
        s_cbranch_scc0 K_not4
        s_and_b32 s38, s28, 3
        s_lshr_b32 s39, s28, 3
        s_lshl_b32 s39, s39, 2
        s_add_u32 s38, s38, s39
        s_lshl_b32 s38, s38, 2
        s_add_u32 s38, s38, s30
        s_mul_i32 s38, s38, {9*3456}
        s_add_u32 s38, s38, {2048 + 512 + (3 - ns) * 1152}
        v_mul_u32_u24 v16, {65536//ns+1}, v15
        v_lshrrev_b32 v16, 16, v16
        v_mul_u32_u24 v17, {ns}, v16
        v_sub_u32 v17, v15, v17
        v_mul_u32_u24 v16, 3456, v16
        v_mul_u32_u24 v17, 1152, v17
        v_add_u32 v16, v16, v17
        s_mov_b64 exec, {(1 << (9*ns)) - 1}
        buffer_load_dword a4, v16, s[16:19], s38 offen""")
        for q in range(opt("te", 0)):
            a(f"""s_bitcmp1_b32 s29, 2
            s_cselect_b32 s39, {512 - 128*q}, {-(512 - 128*q) & 0xffffffff}
            s_add_u32 s39, s39, s38
            buffer_load_dword a{5+q}, v16, s[16:19], s39 offen""".replace(f"s_cselect_b32 s39, {512 - 128*q}, {-(512 - 128*q) & 0xffffffff}", f"s_cselect_b32 s39, {2*(512 - 128*q)}, 0\ns_sub_u32 s39, s39, {512 - 128*q}"))
        a("""s_mov_b64 exec, -1
        K_not4:""")
        a.vm = saved
    a("s_load_dwordx8 s[4:11], s[0:1], 40")
    tb.srd(a, 88)
    a("""s_and_b32 s37, s32, 3
    s_lshl_b32 s37, s37, 1
    s_and_b32 s99, s31, 7
    s_add_u32 s99, s99, s37
    s_cmp_ge_u32 s99, 9
    s_cselect_b32 s37, 9, 0
    s_sub_u32 s99, s99, s37""")
    a(f"""s_mul_i32 s101, s30, {16*3456}
    s_mul_i32 s37, s31, 72
    s_add_u32 s101, s101, s37
    s_add_u32 s100, s101, {576*3456}
    s_mul_i32 s37, s99, {64*3456}
    s_add_u32 s101, s101, s37
    s_mov_b32 s51, s101""")
    def em(x):
        if isinstance(x, tuple) and x[1] == "qwait": a.wait(v="tab2")
        elif isinstance(x, tuple): a(x[0], vtag=x[1])
        else: a(x)
    def kvdma(j):
        r = [f"s_add_u32 m0, s34, {j*KVS}", f"s_add_u32 s101, s101, {64*3456}\ns_cmp_ge_u32 s101, s100\ns_cselect_b32 s37, {576*3456}, 0\ns_sub_u32 s101, s101, s37" if j else "s_nop 0"]
        r += [(f"buffer_load_dwordx4 v{i}, s[16:19], s101 offen offset:{i*1024} lds", ("w", j)) for i in range(2)]
        r += ["s_mov_b32 exec_hi, 0xffff", (f"buffer_load_dwordx4 v2, s[16:19], s101 offen offset:2048 lds\ns_mov_b32 exec_hi, -1", ("w", j))]
        return r
    NK0 = opt("nka", 2); NK2 = opt("nkc", 7)
    if NK0: a("s_barrier")
    for j in range(NK0): [em(x) for x in kvdma(j)]
    a(f"""s_mov_b32 s50, 0x3f803f80
    v_and_b32 v16, 7, v15
    v_lshrrev_b32 v17, 5, v15
    v_lshlrev_b32 v18, 4, v16
    v_lshl_add_u32 v19, v17, 7, v18
    v_lshl_add_u32 v6, v17, 11, v18
    v_bfe_u32 v17, v15, 3, 2
    v_lshl_add_u32 v6, v17, 8, v6
    s_lshl_b32 s37, s30, 2
    s_add_u32 s37, s37, {STX}
    v_add_u32 v19, s37, v19
    v_add_u32 v18, {STX}, v18""")
    a(f"""s_lshr_b32 s36, s31, 2
    s_lshl_b32 s37, s32, 2
    s_add_u32 s36, s36, s37
    s_mul_i32 s36, s36, 36864
    s_bfe_u32 s37, s31, 0x10001
    s_lshl_b32 s37, s37, 10
    s_add_u32 s36, s36, s37
    s_and_b32 s37, s31, 1
    s_lshl_b32 s37, s37, 7
    s_add_u32 s36, s36, s37
    s_lshl_b32 s37, s30, 12
    s_add_u32 s36, s36, s37
    s_add_u32 s36, s36, {XFRAG}
    s_add_u32 s38, s36, 16384
    s_cmp_eq_u32 s30, 0
    s_cselect_b32 s39, 0, {OOB}
    s_add_u32 s39, s39, s38
    s_add_u32 s39, s39, 16384
    s_lshl_b32 s53, s32, 8
    s_add_u32 s53, s53, {C0}""")
    a.wait(v="x8")
    sk = a.lab("noflag"); saved = list(a.vm)
    a(f"""s_cmp_lg_u32 s33, 515
    s_cbranch_scc1 {sk}
    v_mov_b32 v16, 1
    v_mov_b32 v17, 0
    s_mov_b64 exec, 1
    buffer_store_dword v16, v17, s[24:27], 0 offen sc1
    s_mov_b64 exec, -1
    {sk}:""")
    a.vm = saved
    if "fine" not in opts and "skew" not in opts: st("x8")
    for j in range(12):
        c0 = "0" if j < 2 else f"v{24+(j&1)}"; c1 = "0" if j < 2 else f"v{26+(j&1)}"
        a(f"v_dot2_f32_bf16 v{24+(j&1)}, v{160+j}, s50, {c0}\nv_dot2_f32_bf16 v{26+(j&1)}, v{160+j}, v{160+j}, {c1}")
    a("""v_add_f32 v24, v24, v25
    v_add_f32 v26, v26, v27
    v_permlane32_swap_b32 v24, v26
    v_add_f32 v24, v24, v26
    v_mov_b32 v25, v24
    v_permlane16_swap_b32 v24, v25
    v_add_f32 v24, v24, v25
    v_add_f32_dpp v24, v24, v24 row_ror:8 row_mask:0xf bank_mask:0xf
    s_mov_b32 s50, 0xffff0000
    ds_write_b32 v19, v24""")
    for k in range(3):
        for j in range(4): a(f"v_lshlrev_b32_e32 v{176+8*k+2*j}, 16, v{160+4*k+j}\nv_and_b32_e32 v{177+8*k+2*j}, s50, v{160+4*k+j}")
    a("""s_waitcnt lgkmcnt(0)
    s_barrier
    ds_read_b128 v[24:27], v18
    ds_read_b128 v[28:31], v18 offset:128
    s_waitcnt lgkmcnt(0)
    v_pk_add_f32 v[24:25], v[24:25], v[26:27]
    v_pk_add_f32 v[28:29], v[28:29], v[30:31]
    v_add_f32 v24, v24, v25
    v_add_f32 v26, v28, v29
    v_mul_f32 v24, 0x3ae38e39, v24
    v_mul_f32 v26, 0x3ae38e39, v26
    v_fma_f32 v26, -v24, v24, v26
    v_max_f32 v26, 0, v26
    v_add_f32 v26, 0x3727c5ac, v26
    v_rsq_f32 v12, v26
    s_nop 0
    v_mul_f32_e64 v13, -v24, v12""")
    if pn: a("v_mov_b32 v228, v24")
    for k, so in ((0, "s36"), (1, "s38"), (2, "s39")):
        b_ = 160 + 4 * k; u = 176 + 8 * k
        for j in range(4): a(f"v_pk_fma_f32 v[{u+2*j}:{u+2*j+1}], v[{u+2*j}:{u+2*j+1}], v[12:13], v[12:13] op_sel:[0,0,1] op_sel_hi:[1,0,1]")
        for j in range(4): a(f"v_cvt_pk_bf16_f32 v{b_+j}, v{u+2*j}, v{u+2*j+1}")
        a(f"buffer_store_dwordx4 {vr(b_,4)}, v6, s[20:23], {so} offen sc1", vtag="xs")
    aINI = 31
    a(f"""v_lshrrev_b32 v16, 3, v15
    v_lshlrev_b32 v16, 8, v16
    v_and_b32 v17, 7, v15
    v_lshl_add_u32 v16, v17, 4, v16
    v_mov_b32 v20, 0
    v_mov_b32 v21, 0
    v_mov_b32 v22, 0
    v_mov_b32 v23, 0
    s_lshl_b32 s37, s32, 4
    s_add_u32 s37, s37, s31
    s_lshl_b32 s37, s37, 9
    s_add_u32 s37, s37, {FL2}
    s_cmp_eq_u32 s30, 1
    s_cselect_b32 exec_lo, 0xffff, 0
    s_cbranch_scc0 K_nozero
    s_mov_b32 exec_hi, 0""")
    saved = list(a.vm)
    a("buffer_store_dwordx4 v[20:23], v16, s[20:23], s37 offen sc1\nK_nozero:\ns_mov_b64 exec, -1")
    a.vm = saved
    a(f"v_mov_b32 v16, 0\nbuffer_load_dword v{aINI}, v16, s[24:27], 0 offen sc1", vtag="xs")
    st("ln")
    g_ = lambda l: l >> 4
    r_ = lambda l: (l >> 2) & 3
    c_ = lambda l: l & 3
    n_ = lambda l: l & 15
    pos = lambda l: 8 * (g_(l) & 1) + 2 * r_(l)
    row_of = lambda p: 8 * (p >> 3) + 4 * (p & 1) + ((p >> 1) & 3)
    kvb = lambda l: KVB + (g_(l) >> 1) * KVR + pos(l) * 176
    def qsrc(i):
        def f(l):
            p = 64 * i + l; ps, pc = divmod(p, 5)
            return row_of(ps & 15) * 3456 + pc * 16 - (8 if pc == 4 else 0) + 2048 - 1024 * i
        return f
    def msrc(head):
        def f(l):
            u = l & 31; p = u >> 3; gp = (u >> 1) & 3; pair = u & 1; half = gp & 1
            if p > 2 or (p == 2 and pair) or gp >> 1 != head: return OOB
            fp = 5 * half + 2 * p + pair if p < 2 else (4 if half == 0 else 8)
            return ((l >> 5) * 9 + fp) * 4
        return f
    def nrd(p2):
        def f(l):
            i = n_(l); g2 = i >> 2; r = i & 3; gp = g_(l)
            if g2 >> 1 != gp >> 1 or (p2 and r == 3): return ZERO
            d = (16 + r) if p2 else 8 * (g2 & 1) + r
            return KVL + (gp >> 1) * 1920 + d * 96 + (gp & 1) * 48
        return f
    def kwr(tile):
        def f(l):
            gam = 32 * tile + 16 * (g_(l) >> 1) + n_(l); e = g_(l) & 1
            if gam < 40: hf, d = divmod(gam, 20); q = 2 * e + hf
            elif gam < 56: d = 2 * (gam - 40) + e; q = 4
            else: d = 99; q = 0
            if d >= 19: return 0x40000000
            return KVL + d * 96 + (q // 3) * 48 + (q % 3) * 8
        return f
    sel = lambda hi, j: (lambda l: (0x3f80 if n_(l) == 8 * hi + 2 * j else 0) | (0x3f800000 if n_(l) == 8 * hi + 2 * j + 1 else 0))
    def wosrc(i, extra):
        def f(l):
            p = 64 * i + l; row, pc = divmod(p, 12); pc ^= 2 * (row >> 3)
            srow = (row >> 1) * 18 + (row & 1) if extra else row
            return srow * 1152 + pc * 16 + 2048 - 1024 * i
        return f
    word = lambda l: WOB + (8 * g_(l) + r_(l)) * 192 + 8 * c_(l)
    def touch9(stride, n, w):
        return lambda l: ((64 * w + l) // 9) * stride + ((64 * w + l) % 9) * 128 if 64 * w + l < n else OOB
    aT, aTE, aQ, aQE, aM = 112, 114, 116, 117, 118
    aMS0 = 120; aZW, aZV, aZX = 122, 123, 124; aZA, aZB = 125, 127
    aP4, aP2, aPL, aPL3 = 129, 130, 131, 132; aN0, aN2, aKA, aKB = 133, 134, 135, 136; aMK, aOX = 138, 137
    zrd = lambda l: KVB + (8 * (l >> 5) + r_(l)) * 144 + (4 * ((l >> 4) & 1) + c_(l)) * 8
    T = "tab"
    tl = [tb.load(112, [lambda l: kvb(l) + 8 * c_(l), lambda l: kvb(l) + 8 * c_(l) + 2 * KVR,
                        lambda l: kvb(l) + (72, 120, 168, 72)[c_(l)], lambda l: kvb(l) + (72, 120, 168, 72)[c_(l)] + 2 * KVR], 5, 88),
          tb.load(116, [lambda l: (g_(l) >> 1) * QR + pos(l) * 80 + 8 * c_(l), lambda l: (g_(l) >> 1) * QR + pos(l) * 80 + 72,
                        lambda l: MOFF + (4 * g_(l) + r_(l)) * 128 + 8 * c_(l), lambda l: nrd(0)(l) + (0 if nrd(0)(l) == ZERO else 384)], 5, 88),
          tb.load(120, [msrc(0), msrc(1), lambda l: (g_(l) >> 1) * 4608 + n_(l) * 144 + (g_(l) & 1) * 24, lambda l: n_(l) * 144 + 96 + 8 * g_(l)], 5, 88),
          tb.load(124, [lambda l: (g_(l) - 1) * 4608 + n_(l) * 144 + 128 if g_(l) in (1, 2) else 0x40000000, zrd, lambda l: zrd(l) + 2 * KVR, lambda l: zrd(l) + 96], 5, 88),
          tb.load(128, [lambda l: zrd(l) + 96 + 2 * KVR, lambda l: (l - 12 * (l >> 5)) * 16, lambda l: 640 + (l & 31) * 8, lambda l: g_(l) * 4 * PB + n_(l) * 16], 5, 88),
          tb.load(132, [lambda l: g_(l) * 4 * PB + n_(l) * 16 if n_(l) < 8 else OOB, nrd(0), nrd(1), kwr(0)], 5, 88),
          tb.load(136, [kwr(1), lambda l: 16384 + (g_(l) >> 1) * 64 + n_(l) * 4 if g_(l) % 2 == 0 else OOB, lambda l: 0 if g_(l) & 1 else 0x3f800000, lambda l: 0], 5, 88),
          tb.load(164, [qsrc(0), qsrc(1), lambda l: ((g_(l) >> 1) * 18 + (g_(l) & 1) * 8) * 4, lambda l: ((g_(l) >> 1) * 18 + 16) * 4 if g_(l) % 2 == 0 else OOB], 5, 88),
          tb.load(8, [wosrc(1, 0), wosrc(2, 0), wosrc(0, 1), wosrc(1, 1)], 5, 88),
          tb.load(168, [wosrc(0, 0), wosrc(2, 1), lambda l: word(l) + 32 * (g_(l) & 1), lambda l: word(l) - 32 * (g_(l) & 1)], 5, 88),
          tb.load(172, [lambda l: word(l) + 32 * (g_(l) & 1) + 55296, lambda l: word(l) - 32 * (g_(l) & 1) + 55296, lambda l: n_(l) * 1152 + 8 * g_(l), lambda l: 256 * g_(l) + 4 * n_(l)], 5, 88),
          tb.load(224, [sel(0, j) for j in range(4)], 5, 88, "a"),
          tb.load(228, [sel(1, j) for j in range(4)], 5, 88, "a")]
    if "ttab" in opts or "tnc" in opts:
        tl.append(tb.load(232, [lambda l: l * 128, lambda l: l * 128 if l < 9 else OOB, lambda l: (l // 9) * 9216 + (l % 9) * 128 if l < 18 else OOB], 5, 88))
    a(f"""v_mov_b32 v24, 0
    v_mov_b32 v25, 0
    v_mov_b32 v26, 0
    v_mov_b32 v27, 0
    v_lshlrev_b32 v16, 4, v14
    v_add_u32 v16, {KVL}, v16
    ds_write_b128 v16, v[24:27]
    s_mov_b32 s48, {LOG2E}
    s_mov_b32 s49, {LOG2E}
    s_lshl_b32 s38, s31, 6
    s_add_u32 s38, s38, s30
    s_mul_i32 s52, s38, {PB}
    s_add_u32 s52, s52, {KVP}""")
    if not pn: a("s_mov_b32 s54, 0xfffff\ns_mov_b32 s55, 0xfffff")
    for q in range(6): a(f"v_accvgpr_write_b32 a{246+4*(q//2)+(q%2)}, 0")
    for q in (5, 11): a(f"v_mov_b32 v{Z[0]+q}, 0\nv_mov_b32 v{Z[1]+q}, 0")
    for b_ in range(2): a(f"v_mov_b32 v{B1+4*b_+2}, 0\nv_mov_b32 v{B1+4*b_+3}, 0\nv_mov_b32 v{VP+9+2*b_}, 0x3f80")
    def touch_wo():
        if "ttab" in opts:
            a(f"""s_lshl_b32 s96, s28, 2
            s_add_u32 s96, s96, s30
            s_mul_i32 s96, s96, {41*128}
            s_add_u32 s96, s96, 2048
            s_mov_b32 exec_hi, 0x1ff""")
            a("buffer_load_dword a208, v232, s[44:47], s96 offen\ns_mov_b32 exec_hi, -1", vtag="touch")
            return
        a(f"""v_mul_u32_u24 v16, 7282, v14
        v_lshrrev_b32 v16, 16, v16
        v_mul_u32_u24 v17, 9, v16
        v_sub_u32 v17, v14, v17
        v_mul_u32_u24 v16, 1152, v16
        v_lshl_add_u32 v16, v17, 7, v16
        v_mov_b32 v17, {OOB}
        v_cmp_gt_u32 vcc, 162, v14
        s_mul_i32 s96, s28, {18*1152}
        s_add_u32 s96, s96, 2048
        v_cndmask_b32 v16, v17, v16, vcc""")
        a(f"buffer_load_dword a208, v16, s[44:47], s96 offen", vtag="touch")
    def touch_gu(rows):
        n = rows // 64
        if "ttab" in opts and n == 1:
            a(f"""s_cmp_lt_u32 s30, 2
            s_cselect_b32 s92, s4, s6
            s_cselect_b32 s93, s5, s7
            s_mov_b32 s94, {576*9216}
            s_mov_b32 s95, 0x20000
            s_lshl_b32 s96, s28, 1
            s_and_b32 s97, s30, 1
            s_add_u32 s96, s96, s97
            s_mul_i32 s96, s96, 9216
            s_mul_i32 s97, s29, 1152
            s_add_u32 s96, s96, s97""")
            a(f"buffer_load_dword a209, v233, s[92:95], s96 offen", vtag="touch")
            return
        a(f"""v_mul_u32_u24 v16, 7282, v15
        v_lshrrev_b32 v16, 16, v16
        v_mul_u32_u24 v17, 9, v16
        v_sub_u32 v17, v15, v17
        v_mul_u32_u24 v16, 9216, v16
        v_lshl_add_u32 v16, v17, 7, v16
        v_mov_b32 v17, {OOB}
        v_cmp_gt_u32 vcc, {9*n}, v15
        s_cmp_lt_u32 s30, 2
        s_cselect_b32 s92, s4, s6
        s_cselect_b32 s93, s5, s7
        s_mov_b32 s94, {576*9216}
        s_mov_b32 s95, 0x20000
        s_lshl_b32 s96, s28, 1
        s_and_b32 s97, s30, 1
        s_add_u32 s96, s96, s97
        s_mul_i32 s96, s96, {n*9216}
        s_mul_i32 s97, s29, 1152
        s_add_u32 s96, s96, s97
        v_cndmask_b32 v16, v17, v16, vcc""")
        a(f"buffer_load_dword a209, v16, s[92:95], s96 offen", vtag="touch")
    if "tabln" in opts:
        for x in tl: a(x.replace("v[164:167]", "v[212:215]").replace("v[168:171]", "v[216:219]"), vtag=T)
        tl = []
    if pn and "wrl" in opts:
        a("""buffer_load_dwordx4 v[220:223], v5, s[44:47], s55 offen
        v_mov_b32 v224, 0
        v_mov_b32 v225, 0
        v_mov_b32 v226, 0
        v_mov_b32 v227, 0
        s_mov_b64 exec, 0xff
        buffer_load_dwordx4 v[224:227], v5, s[44:47], s55 offen offset:1024
        s_mov_b64 exec, -1""", vtag="wrow")
    if "tw0" in opts: touch_wo()
    if opt("gu", 0): touch_gu(opt("gu", 0))
    a.wait(v="xs"); a("s_barrier")
    signal(a, "s53", check_init=aINI)
    st("sig0")
    urgent = range(14) if 'taball' in opts else (0, 2)
    for q in urgent:
        if tl: a(tl[q], vtag=T)
    tl = [(x, "tab2") for q, x in enumerate(tl) if q not in urgent]
    a("""s_mul_i32 s27, s28, 43
    s_lshr_b32 s27, s27, 8
    s_mul_i32 s26, s27, 6
    s_sub_u32 s26, s28, s26
    s_lshl_b32 s37, s29, 2
    s_add_u32 s27, s27, s37""")
    PA = opt("pa", 2)
    for j in range(NK0, NK2):
        if j == NK2 - PA: poll_start(a, "s53")
        [em(x) for x in kvdma(j)]
    if PA == 0: poll_start(a, "s53")
    if "two" in opts: touch_wo()
    a(f"""s_mul_i32 s36, s35, 36864
    s_add_u32 s36, s36, {XFRAG}
    s_add_u32 s33, s36, 36864
    s_lshl_b32 s37, s99, 12
    s_add_u32 s36, s36, s37""")
    st("pre")
    poll_finish(a, "s53", 16)
    if "skew" not in opts: st("sync0")
    def xload(g):
        r = [] if g == 0 else ["s_add_u32 s36, s36, 4096\ns_cmp_ge_u32 s36, s33\ns_cselect_b32 s37, 36864, 0\ns_sub_u32 s36, s36, s37"]
        return r + [(f"buffer_load_dwordx4 {vr(X(4*g+q),4,'a')}, v5, s[20:23], s36 offen offset:{q*1024} sc1", ("X", 2 * g + q // 2)) for q in range(4)]
    NX0 = opt("nx", 2)
    for g in range(NX0): [em(x) for x in xload(g)]
    a.wait(v=T)
    if "tabln" in opts:
        for q in range(8): a(f"v_mov_b32 v{164+q}, v{212+q}")
    def fixups():
        a.wait(v="tab2")
        a(f"""v_mov_b32 v7, v168
        v_mov_b32 v12, v169
        v_add_u32 v{aZW}, s34, v{aZW}
        v_add_u32 v{aZV}, s34, v{aZV}
        v_add_u32 v{aZX}, s34, v{aZX}
        v_min_u32 v{aZX}, {STX}, v{aZX}
        s_lshr_b32 s92, s30, 1
        s_and_b32 s93, s30, 1
        s_mul_i32 s96, s92, 4608
        s_mul_i32 s97, s93, 48
        s_add_u32 s97, s97, s96
        v_add_u32 v{aZA}, s97, v{aZA}
        v_add_u32 v{aZA+1}, s97, v{aZA+1}
        v_add_u32 v{aZB}, s96, v{aZB}
        v_add_u32 v{aZB+1}, s96, v{aZB+1}
        s_mul_i32 s96, s92, 1920
        s_mul_i32 s97, s93, 24
        s_add_u32 s97, s97, s96
        v_add_u32 v{aKA}, s97, v{aKA}
        v_add_u32 v{aKB}, s97, v{aKB}
        v_min_u32 v{aKA}, {STX}, v{aKA}
        v_min_u32 v{aKB}, {STX}, v{aKB}""")
    mq = ["s_mul_i32 s38, s30, 6\ns_mul_i32 s39, s31, 1296"]
    for i in range(6):
        mq += [f"""s_add_u32 s37, s38, {i}
        s_lshl_b32 s96, s37, 8
        s_add_u32 m0, s96, {MOFF}
        s_cmp_lt_u32 s37, 9
        s_cselect_b64 vcc, -1, 0
        s_mul_i32 s96, s37, 72
        s_add_u32 s96, s96, s39
        v_cndmask_b32 v16, v{aMS0+1}, v{aMS0}, vcc
        s_cmp_ge_u32 s37, 18
        s_cselect_b32 s96, 0x100000, s96""", ("buffer_load_dword v16, s[40:43], s96 offen lds", "wphi")]
    WP = lambda stp, p: 232 + 12 * stp + 4 * p
    def mreads():
        a.wait(v="tab2")
        for p in range(3):
            f = WP(0, p); f1 = WP(1, p)
            a(f"ds_read_b64_tr_b16 a[{f}:{f+1}], v{aM} offset:{32*p}\nds_read_b64_tr_b16 a[{f+2}:{f+3}], v{aM} offset:{32*p+2048}\nds_read_b64_tr_b16 a[{f1}:{f1+1}], v{aM} offset:{32*p+4096}")
    AF = lambda i: 4 * (i % 8)
    def reads(i, lst):
        ks, T_, ad, off, sz = lst[i]
        j = ks // 2; f = AF(i)
        if sz == 176: o = j * KVS + off; ad += ks % 2
        else: o = 2 * (ks % 2) * QR + j * QS + off
        return [f"ds_read_b64_tr_b16 a[{f}:{f+1}], v{ad} offset:{o}", f"ds_read_b64_tr_b16 a[{f+2}:{f+3}], v{ad} offset:{o+sz}"]
    D = 6
    def gemm(lst, bars, memq, mper=1, hook=None, mstart=0):
        N = len(lst); per = N // 9
        def flush(pred):
            while any(isinstance(x, tuple) and pred(x[1]) for x in memq): em(memq.pop(0))
        def maybe_bar(i):
            if i < N and i % per == 0 and (i // per) in bars:
                lim = bars[i // per]
                pred = lambda t: (isinstance(t, tuple) and t[0] == "w" and t[1] <= lim) or (t in ("wphi", "tab2") and i // per == 8)
                flush(pred); a.wait(v=pred); a("s_barrier")
        lw = lambda lim: a.wait(l=lambda t: isinstance(t, tuple) and t[0] == "A" and t[1] <= lim)
        for i in range(D):
            maybe_bar(i)
            for r in reads(i, lst): a(r, ltag=("A", i))
        for i in range(N):
            ks, T_, ad, off, sz = lst[i]
            flush(lambda t: t == ("X", ks))
            a.wait(v=("X", ks)); lw(i)
            f = AF(i)
            rd = reads(i + D, lst) if i + D < N else []
            for b_ in range(2):
                a(f"v_mfma_f32_16x16x32_bf16 {vr(T_+4*b_,4)}, a[{f}:{f+3}], {vr(X(2*ks+b_),4,'a')}, {'0' if ks == 0 else vr(T_+4*b_,4)}")
                if b_ == 0 and i + D < N: maybe_bar(i + D)
                if b_ == 1: lw(i + 1)
                if rd: a(rd[b_], ltag=("A", i + D))
            if hook and i in hook: hook[i]()
            if memq and i % mper == 0 and i >= mstart:
                while memq and not isinstance(memq[0], tuple): em(memq.pop(0))
                if memq: em(memq.pop(0))
        for x in memq: em(x)
    memq = []
    kvleft = list(range(NK2, 9))
    for g in range(NX0, 9):
        memq += xload(g)
        if kvleft and g >= opt("kx", 2): memq += kvdma(kvleft.pop(0))
    for j in kvleft: memq += kvdma(j)
    MP = opt("mqp", 99)
    memq = memq[:MP] + ([] if "mearly" in opts else mq) + tl + memq[MP:]
    qq = []
    for j in range(9):
        qq.append([f"s_mul_i32 s37, s30, {QR}\ns_add_u32 m0, s37, {j*QS}", f"s_add_u32 s51, s51, {64*3456}\ns_cmp_ge_u32 s51, s100\ns_cselect_b32 s37, {576*3456}, 0\ns_sub_u32 s51, s51, s37" if j else "s_nop 0",
                 ("buffer_load_dwordx4 v164, s[16:19], s51 offen lds", "wq"), "s_mov_b64 exec, 0xffff",
                 ("buffer_load_dwordx4 v165, s[16:19], s51 offen offset:1024 lds\ns_mov_b64 exec, -1", "wq")])
    NQ = opt("nq", 3)
    QW = ("s_nop 0", "qwait")
    if NQ: memq.append(QW)
    for g in qq[:NQ]: memq += g
    qq = qq[NQ:]
    fr = [(ks, T_, ad, off, 176) for ks in range(18) for (T_, ad, off) in ((K0, aT, 0), (K1, aT, 32), (EE, aTE, 0), (V0, aT, 80), (V1, aT, 128))]
    bars = {j: j for j in range(NK2, 9)}; bars.update({0: min(2, NK2 - 1), 3: NK2 - 1} if NK2 > 3 else {0: NK2 - 1}); bars[8] = 8
    def wmean():
        if pn:
            a.wait(v="wrow")
            a("s_mov_b32 s50, 0x3f803f80")
            for j in range(8): a(f"v_dot2_f32_bf16 v{230+(j&1)}, v{220+j}, s50, {'0' if j < 2 else f'v{230+(j&1)}'}")
            a(f"""v_add_f32 v230, v230, v231
            v_mov_b32 v231, v230
            v_permlane32_swap_b32 v230, v231
            v_add_f32 v230, v230, v231
            v_mov_b32 v231, v230
            v_permlane16_swap_b32 v230, v231
            v_add_f32 v230, v230, v231
            v_add_f32_dpp v230, v230, v230 row_ror:8 row_mask:0xf bank_mask:0xf
            v_add_f32_dpp v230, v230, v230 row_ror:4 row_mask:0xf bank_mask:0xf
            v_add_f32_dpp v230, v230, v230 row_ror:2 row_mask:0xf bank_mask:0xf
            v_add_f32_dpp v230, v230, v230 row_ror:1 row_mask:0xf bank_mask:0xf
            v_mul_f32 v230, 0x3ae38e39, v230
            v_lshlrev_b32 v229, 2, v15
            s_lshl_b32 s55, s32, 4
            s_add_u32 s55, s55, s31
            s_lshl_b32 s55, s55, 5
            s_add_u32 s55, s55, {MX}
            s_cmp_eq_u32 s30, 0
            s_cselect_b32 s3, 0, {OOB}
            s_add_u32 s55, s55, s3""")
        if pn:
            a("""s_mov_b64 exec, 1
            buffer_store_dword v230, v229, s[20:23], s54 offen sc1
            s_mov_b64 exec, 0xff
            buffer_store_dword v228, v229, s[20:23], s55 offen sc1
            s_mov_b64 exec, -1""", vtag="wms")
        a("s_mov_b32 s54, 0xfffff\ns_mov_b32 s55, 0xfffff")
    hk = {82: mreads}
    if pn: hk[opt('wmh', 60)] = wmean
    if "fine" in opts:
        st("setup")
        for q in (0, 10, 20, 30, 40, 50, 60, 70): hk[q] = (lambda q=q: st(f"g{q}"))
    if "xnoq" in opts: memq = [x for x in memq if not (isinstance(x, tuple) and x[1] == "wq") and x != "s_mov_b64 exec, 0xffff"]
    gemm(fr, bars, memq, mper=opt("mp", 2), hook=hk)
    fixups()
    if "twl" in opts: touch_wo()
    if "skew" not in opts: st("gemm")
    if "fine" in opts: st.dump("s[20:23]", "s30", 16, 17); st.kidx += 1; st.groups.append([])
    def packB():
        for b_ in range(2):
            a(f"""v_cvt_pk_bf16_f32 v{B0+4*b_}, v{K0+4*b_}, v{K0+4*b_+1}
            v_cvt_pk_bf16_f32 v{B0+4*b_+1}, v{K0+4*b_+2}, v{K0+4*b_+3}
            v_cvt_pk_bf16_f32 v{B0+4*b_+2}, v{K1+4*b_}, v{K1+4*b_+1}
            v_cvt_pk_bf16_f32 v{B0+4*b_+3}, v{K1+4*b_+2}, v{K1+4*b_+3}
            v_cvt_pk_bf16_f32 v{B1+4*b_}, v{EE+4*b_}, v{EE+4*b_+1}
            v_cvt_pk_bf16_f32 v{B1+4*b_+1}, v{EE+4*b_+2}, v{EE+4*b_+3}""")
    def feat():
        for stp in range(2):
            for b_ in range(2):
                for p in range(3):
                    f = WP(stp, p); d = P[b_] + 4 * p
                    a(f"v_mfma_f32_16x16x32_bf16 {vr(d,4)}, a[{f}:{f+3}], {vr((B0, B1)[stp]+4*b_,4)}, {'0' if stp == 0 else vr(d,4)}")
    def packZ(b_):
        for sg, S in ((0, P), (1, E)):
            for q in range(5): a(f"v_cvt_pk_bf16_f32 v{Z[b_]+6*sg+q}, v{S[b_]+2*q}, v{S[b_]+2*q+1}")
    packB()
    a("s_waitcnt lgkmcnt(0)")
    feat()
    for g in qq[:2]: [em(x) for x in g]
    qq = qq[2:]
    for b_ in range(2):
        for h, V in ((0, V0), (1, V1)):
            d = VP + 4 * b_ + 2 * h
            a(f"v_cvt_pk_bf16_f32 v{d}, v{V+4*b_}, v{V+4*b_+1}\nv_cvt_pk_bf16_f32 v{d+1}, v{V+4*b_+2}, v{V+4*b_+3}")
        a(f"v_mov_b32 v{VP+8+2*b_}, v{B1+4*b_+1}")
    a("s_barrier")
    for b_ in range(2):
        for h in range(2): a(f"ds_write_b64 v{aZV}, {vr(VP+4*b_+2*h,2)} offset:{h*4608 + b_*2304}")
        a(f"ds_write_b64 v{aZX}, {vr(VP+8+2*b_,2)} offset:{b_*2304}")
    sub = "sub" in opts
    def call_sm():
        pc = a.lab("cs")
        a(f"""s_getpc_b64 s[92:93]
        {pc}:
        s_add_u32 s92, s92, K_sm-{pc}
        s_addc_u32 s93, s93, 0
        s_nop 7
        s_swappc_b64 s[94:95], s[92:93]""")
    if sub:
        for g in qq: [em(x) for x in g]
        call_sm()
    else:
        b = A("S"); softmax16(b, P, E, aMK); sm = [x.text for x in b.l]
        per = len(sm) // (len(qq) + opt('qs', 1))
        for g in qq:
            [em(x) for x in g]
            for x in sm[:per]: a(x)
            sm = sm[per:]
        for x in sm: a(x)
    if "twm" in opts: touch_wo()
    if opt("gv", 0): touch_gu(opt("gv", 0))
    if "tnc" in opts:
        saved = list(a.vm)
        a(f"""s_lshr_b32 s96, 0xaa55, s31
        s_and_b32 s96, s96, 1
        s_cbranch_scc0 K_notouch
        s_and_b32 s96, s28, 3
        s_lshr_b32 s97, s28, 3
        s_lshl_b32 s97, s97, 2
        s_add_u32 s3, s96, s97
        s_lshl_b32 s96, s3, 2
        s_add_u32 s96, s96, s30
        s_mul_i32 s96, s96, {81*128}
        s_add_u32 s96, s96, 2048
        s_add_u32 s97, s96, 8192
        buffer_load_dword a208, v232, s[44:47], s96 offen
        s_mov_b64 exec, 0x1ffff
        buffer_load_dword a209, v232, s[44:47], s97 offen
        s_mov_b64 exec, -1
        s_cmp_lt_u32 s30, 2
        s_cselect_b32 s92, s4, s6
        s_cselect_b32 s93, s5, s7
        s_mov_b32 s94, {576*9216}
        s_mov_b32 s95, 0x20000
        s_lshl_b32 s96, s3, 1
        s_and_b32 s97, s30, 1
        s_add_u32 s96, s96, s97
        s_mul_i32 s96, s96, {2*9216}
        s_mul_i32 s97, s29, 1152
        s_add_u32 s96, s96, s97
        buffer_load_dword a210, v234, s[92:95], s96 offen
        K_notouch:""")
        a.vm = saved
    for b_ in range(2):
        if not sub: packZ(b_)
        for sg in range(2):
            for q in range(3): a(f"ds_write_b64 v{aZW}, {vr(Z[b_]+6*sg+2*q,2)} offset:{b_*2304 + 48*sg + 8*q}")
    a(f"""s_mul_i32 s37, s32, {4*PB}
    s_add_u32 s37, s37, s52
    s_lshl_b32 s53, s31, 8
    s_add_u32 s53, s53, {C1}""")
    a("s_waitcnt lgkmcnt(0)\ns_barrier")
    st("smk")
    for stp in range(8):
        w = stp // 2; o = (w % 2) * KVR + (stp % 2) * 16 * 144
        va, vb = aZA + w // 2, aZB + w // 2
        f = 8 * stp
        a(f"ds_read_b64_tr_b16 a[{f}:{f+1}], v{va} offset:{o}\nds_read_b64_tr_b16 a[{f+2}:{f+3}], v{va} offset:{o+576}", ltag=("Z", stp))
        a(f"ds_read_b64_tr_b16 a[{f+4}:{f+5}], v{vb} offset:{o}\nds_read_b64_tr_b16 a[{f+6}:{f+7}], v{vb} offset:{o+576}", ltag=("Z", stp))
        if stp >= 2:
            s2 = stp - 2; f = 8 * s2
            a.wait(l=("Z", s2))
            a(f"v_mfma_f32_32x32x16_bf16 v[64:79], a[{f}:{f+3}], a[{f+4}:{f+7}], {'0' if s2 == 0 else 'v[64:79]'}")
    for s2 in (6, 7):
        f = 8 * s2
        a.wait(l=("Z", s2))
        a(f"v_mfma_f32_32x32x16_bf16 v[64:79], a[{f}:{f+3}], a[{f+4}:{f+7}], v[64:79]")
    for q in range(6): a(f"v_cvt_pk_bf16_f32 v{16+q}, v{64+2*q}, v{65+2*q}")
    a(f"""s_mov_b64 exec, s[54:55]
    buffer_store_dwordx4 v[16:19], v{aP4}, s[20:23], s37 offen sc1
    s_mov_b32 exec_lo, -1
    s_mov_b32 exec_hi, 0
    buffer_store_dwordx2 v[20:21], v{aP2}, s[20:23], s37 offen sc1
    s_mov_b64 exec, -1""", vtag="kvs")
    st("kvmm")
    if "twk" in opts: touch_wo()
    if opt("gw", 0): touch_gu(opt("gw", 0))
    def sig1():
        a.wait(v="kvs"); a("s_barrier")
        signal(a, "s53")
        if "skew" not in opts: st("kvst")
    a.wait(v="wq"); a("s_barrier")
    a("s_cmp_ge_u32 s28, 24\ns_cselect_b32 s46, 0, s46")
    wq, wq0 = p2c_wodma(a, "rot2" in opts)
    WN = opt("wn", 8)
    cut = 1 + 5 * WN
    wq, wq0 = wq[:cut], wq[cut:] + wq0
    W2 = opt("wm", 0)
    wq2 = wq0[len(wq0) - 5 * W2:] if W2 else []
    wq0 = wq0[:len(wq0) - 5 * W2]
    gemm([(ks, T_, ad, off, 80) for ks in range(18) for (T_, ad, off) in ((K0, aQ, 0), (K1, aQ, 32), (EE, aQE, 0))], {}, wq, mper=opt("wp", 2), hook={opt("hk", 12): sig1, opt("p1", 44): lambda: poll_start(a, "s53")}, mstart=opt("wst", 0))
    packB()
    feat()
    st("qgemm")
    early = "smfirst" in opts
    def smq():
        if sub: call_sm()
        else: softmax16(a, P, E, aMK); packZ(0); packZ(1)
    if early: smq()
    poll_finish(a, "s53", 16)
    st("sync1")
    rot1 = "norot1" not in opts
    if rot1: a(f"s_add_u32 s36, s52, {64*PB}\ns_and_b32 s37, s32, 3\ns_mul_i32 s37, s37, {16*PB}\ns_add_u32 s52, s52, s37")
    for i in range(4):
        if i: a(f"s_add_u32 s52, s52, {16*PB}" + (f"\ns_cmp_ge_u32 s52, s36\ns_cselect_b32 s37, {64*PB}, 0\ns_sub_u32 s52, s52, s37" if rot1 else ""))
        for u in range(4):
            r = 64 + 16 * i + 4 * u
            a(f"buffer_load_dwordx4 a[{r}:{r+3}], v{aPL3 if u == 3 else aPL}, s[20:23], s52 offen offset:{256*u} sc1", vtag=("kv", i))
    if pn:
        a(f"s_mul_i32 s92, s31, 144\ns_add_u32 s92, s92, {WM}")
        a("""buffer_load_dwordx4 v[220:223], v166, s[20:23], s92 offen sc1
        buffer_load_dwordx4 v[224:227], v166, s[20:23], s92 offen offset:16 sc1
        buffer_load_dwordx2 v[228:229], v167, s[20:23], s92 offen sc1""", vtag="wml")
    for x in wq0: em(x)
    if not early: smq()
    for i in range(4):
        a.wait(v=("kv", i))
        for u in range(4):
            r = 64 + 16 * i + 4 * u; T_ = 48 + 4 * (u // 2); S = 224 + 4 * (u % 2)
            a(f"v_mfma_f32_16x16x32_bf16 v[{T_}:{T_+3}], a[{S}:{S+3}], a[{r}:{r+3}], {'0' if (i == 0 and u % 2 == 0) else f'v[{T_}:{T_+3}]'}")
    st("smq")
    a(f"""s_mul_i32 s36, s35, 36864
    s_add_u32 s36, s36, {OFRAG}
    s_lshl_b32 s37, s31, 7
    s_add_u32 s37, s37, s36
    s_add_u32 s39, s37, 18432
    s_lshl_b32 s38, s31, 10
    s_add_u32 s36, s36, s38
    s_add_u32 s38, s36, 18432
    s_lshl_b32 s53, s32, 13
    s_add_u32 s53, s53, {C2}
    v_cvt_pk_bf16_f32 v16, v48, v49
    v_cvt_pk_bf16_f32 v17, v50, v51
    v_cvt_pk_bf16_f32 v18, v52, v53
    v_cvt_pk_bf16_f32 v19, v54, v55
    ds_write_b64 v{aKA}, v[16:17]
    ds_write_b64 v{aKB}, v[18:19]
    s_waitcnt lgkmcnt(0)
    s_barrier""")
    st("kvred")
    for t in range(3):
        for p in (2, 0, 1):
            f = 12 * t + 4 * p
            a(f"ds_read_b128 a[{f}:{f+3}], v{(aN0, 119, aN2)[p]} offset:{16*t}", ltag=("K", t))
    for t in range(3):
        a.wait(l=("K", t))
        for p in (2, 0, 1):
            for b_ in range(2):
                f = 12 * t + 4 * p; d = P[b_] + 4 * p
                a(f"v_mfma_f32_16x16x32_bf16 {vr(d,4)}, a[{f}:{f+3}], {vr(Z[b_]+4*t,4)}, {'0' if t == 0 else vr(d,4)}")
    for b_ in range(2): a(f"v_add_f32 v{P[b_]+10}, 0x358637bd, v{P[b_]+10}")
    for b_ in range(2): a(f"v_rcp_f32 v{P[b_]+10}, v{P[b_]+10}")
    for b_ in range(2):
        p = P[b_]
        for q in range(0, 10, 2): a(f"v_pk_mul_f32 v[{p+q}:{p+q+1}], v[{p+q}:{p+q+1}], v[{p+10}:{p+11}] op_sel_hi:[1,0]")
        for q in range(5): a(f"v_cvt_pk_bf16_f32 v{16+8*b_+q}, v{p+2*q}, v{p+2*q+1}")
        a(f"buffer_store_dwordx4 {vr(16+8*b_,4)}, v5, s[20:23], {('s36', 's38')[b_]} offen sc1\nbuffer_store_dword v{20+8*b_}, v{aOX}, s[20:23], {('s37', 's39')[b_]} offen sc1")
    if pn:
        a.wait(v="wml")
        for b_ in range(2):
            p = P[b_]
            a(f"v_pk_mul_f32 v[{230+2*b_}:{231+2*b_}], v[{p}:{p+1}], v[220:221]")
        for q in range(2, 10, 2):
            for b_ in range(2):
                p = P[b_]
                a(f"v_pk_fma_f32 v[{230+2*b_}:{231+2*b_}], v[{p+q}:{p+q+1}], v[{220+q}:{221+q}], v[{230+2*b_}:{231+2*b_}]")
        a(f"""v_add_f32 v230, v230, v231
        v_add_f32 v232, v232, v233
        s_lshl_b32 s92, s35, 4
        s_add_u32 s92, s92, s31
        s_lshl_b32 s92, s92, 7
        s_add_u32 s92, s92, {PM}
        v_permlane16_swap_b32 v230, v232
        v_add_f32 v230, v230, v232
        v_mov_b32 v231, v230
        v_lshlrev_b32 v229, 2, v15
        v_permlane32_swap_b32 v230, v231
        v_add_f32 v230, v230, v231
        s_mov_b32 exec_hi, 0
        buffer_store_dword v230, v229, s[20:23], s92 offen sc1
        s_mov_b64 exec, -1""")
    if "skew" in opts: st("x8")
    a("s_waitcnt vmcnt(0)")
    if "skew" in opts: st("sync0")
    a("s_barrier")
    signal(a, "s53")
    for x in wq2: em(x)
    st("ost")
    st.dump("s[20:23]", "s30", 16, 17)
    def front(setup, dma0, zero):
        o2 = "ord2" in opts; ap2 = o2 or "ap2" in opts; z0 = o2 or "z0" in opts
        if ap2: p2c_prepoll(a, C2)
        p2c_xload(a)
        setup()
        a("s_cmp_ge_u32 s28, 24\ns_cbranch_scc1 K_idle")
        sv = list(a.vm)
        zl = "zl" in opts
        late = None if o2 else (lambda: (zero(0), dma0(0), dma0(1))) if zl else (lambda: (dma0(0), dma0(1)))
        p2c_main(a, st, C2, C3, early=(lambda: zero(0)) if z0 else None, late=late, pre=ap2, opts=opts)
        st.dump("s[20:23]", "s30", 21, 22)
        a("s_branch K_ffn\nK_idle:")
        a.vm = sv
        if "idma" in opts: dma0(0); dma0(1)
        if "tw3" in opts: touch3(a, opt("t3f", 64), opt("t3r", 24))
        if z0 or zl: zero(0)
        if o2: a.wait(v="ftab")
        elif "idma" not in opts: dma0(0); dma0(1)
        if ap2: a("s_waitcnt lgkmcnt(0)")
        a("K_ffn:")
        if "ap3" in opts:
            a(f"s_lshl_b32 s53, s32, 13\ns_add_u32 s53, s53, {C3}")
            poll_start(a, "s53")
        if not z0 and not zl: zero(0)
        a.vm = ["unknown"] * 8
    a.spins = []
    if 'g2' in opts: ffn18.ffn_body(a, st, opts, C3, C4, front, tb, C5)
    else: ffn17.ffn_body(a, st, opts, C3, C4, front, tb)
    st.dump("s[20:23]", "s30", 16, 17)
    a("s_endpgm")
    for x in a.spins: a(x)
    if sub:
        a(".p2align 3\nK_sm:"); softmax16(a, P, E, aMK); packZ(0); packZ(1); a("s_nop 1\ns_setpc_b64 s[94:95]")
    a("K_end:\ns_endpgm")
    return a, st, tb

if __name__ == "__main__":
    out = sys.argv[1]; opts = sys.argv[2:]
    amp = next((o[4:].split(",") for o in opts if o.startswith("amp=")), None)
    a, st, tb = gen((amp[0], amp[1], int(amp[2])) if amp else "cyc" if "cyc" in opts else "dbg" if "dbg" in opts else "lite" if "lite" in opts else "lite2" if "lite2" in opts else "diag" in opts, opts)
    t = a.text() + tb.text()
    NAME = "sequential_preLN__linear_kernel_hedgehog__glu_gated_reglu__prompt_kernel"
    hdr = "".join(l for l in open("sequential_preLN__linear_kernel_hedgehog__glu_gated_reglu__prompt.s.ref") if l.startswith(";") and "@launch" not in l and "Override" not in l and "grid=" not in l)
    hdr += """;
"""
    s = hdr + "; @launch grid=(256,1,1) block=(256,1,1) lds=163840\n" + '.amdgcn_target "amdgcn-amd-amdhsa--gfx950"\n.text\n' + kernel(NAME, t) + '.section .rodata,"a"\n' + descriptor(NAME, 512, 256)
    open(out, "w").write(s)
    json.dump(st.groups, open(out + ".json", "w"))
    print("nops", a.padded, "instrs", len(a.l), st.groups)
```
